```python
import torch

def _softmax(x, axis=-1):
    return torch.softmax(x, dim=axis)
def _gelu(x):
    return torch.nn.functional.gelu(x, approximate="tanh")
def _silu(x):
    return torch.nn.functional.silu(x)
def _sigmoid(x):
    return torch.sigmoid(x)
def _layernorm(x, axis=-1, eps=1e-5):
    m = x.mean(dim=axis, keepdim=True)
    v = x.var(dim=axis, keepdim=True, unbiased=False)
    return (x - m) / torch.sqrt(v + eps)
def _scatter_add(tgt, idx, src, axis=0):
    return tgt.clone().index_add_(axis, idx, src)
def _segment_sum(src, seg, n):
    out = torch.zeros((n,) + src.shape[1:], dtype=src.dtype)
    return out.index_add_(0, seg, src)
def _pad(x, pw):
    flat = tuple(v for pair in reversed(pw) for v in pair)
    return torch.nn.functional.pad(x, flat)

kernel_name = 'concat_heads__ssm_conv_h3__mha_block__prompt'

def setup_inputs():

    _w = (lambda a: (lambda t: t.to(torch.bfloat16) if t.is_floating_point() else t)(torch.as_tensor(a)))
    def _A_setup():
        B, S, D = 1, 2048, 1024
        ks = 4
        return {
            "q": _w((lambda *s: torch.randn(*s, dtype=torch.bfloat16) * 0.05)(B, S, D)),
            "k": _w((lambda *s: torch.randn(*s, dtype=torch.bfloat16) * 0.8)(B, S, D)),
            "v": _w((lambda *s: torch.randn(*s, dtype=torch.bfloat16) * 0.8)(B, S, D)),
            "shift_k": _w((lambda *s: torch.randn(*s, dtype=torch.bfloat16) * 0.8)(D, ks) * 0.5),
            "ssm_k": _w((lambda *s: torch.randn(*s, dtype=torch.bfloat16) * 0.8)(D, S) * (1.0 / S ** 0.5)),
            "ssm_D": _w((lambda *s: torch.randn(*s, dtype=torch.bfloat16) * 0.8)(D)),
        }
    _A_in = _A_setup()

    def _B_setup():
        B, S, D, H = 1, 2048, 1024, 32
        return {
            "x": _w((lambda *s: torch.randn(*s, dtype=torch.bfloat16) * 0.2)(B, S, D)),
            "wqkv": _w((lambda *s: torch.randn(*s, dtype=torch.bfloat16) * 0.2)(D, 3 * D)),
            "wo": _w((lambda *s: torch.randn(*s, dtype=torch.bfloat16) * 0.05)(D, D)),
        }
    _B_in = _B_setup()

    return {
        "A_q": _A_in["q"],
        "A_k": _A_in["k"],
        "A_v": _A_in["v"],
        "A_shift_k": _A_in["shift_k"],
        "A_ssm_k": _A_in["ssm_k"],
        "A_ssm_D": _A_in["ssm_D"],
        "B_x": _B_in["x"],
        "B_wqkv": _B_in["wqkv"],
        "B_wo": _B_in["wo"],
    }

def reference(A_q, A_k, A_v, A_shift_k, A_ssm_k, A_ssm_D, B_x, B_wqkv, B_wo):
    def _A_ref(q, k, v, shift_k, ssm_k, ssm_D):
        B, S, D = q.shape
        ks = shift_k.shape[-1]
        k_pad = _pad(k, ((0, 0), (ks - 1, 0), (0, 0)))
        k_shift = torch.zeros_like(k)
        for t in range(ks):
            k_shift = k_shift + k_pad[:, t:t + S, :] * shift_k[:, ks - 1 - t][None, None, :]
        kv = k_shift * v
        L = 2 * S
        kv_pad = _pad(kv, ((0, 0), (0, S), (0, 0)))
        kf_pad = _pad(ssm_k, ((0, 0), (0, S)))
        kv_f = (lambda x, axes=(-2,-1): torch.fft.rfft2(x.float(), dim=axes))(kv_pad[:, None, :, :], axes=(1, 2))
        kf_f = (lambda x, axes=(-2,-1): torch.fft.rfft2(x.float(), dim=axes))(kf_pad[:, None, :], axes=(1, 2))
        kf_f = (lambda x, *d: x.permute(*d))(kf_f, 1, 2, 0)
        y_f = kv_f * kf_f[None, :, :, :]
        y = (lambda x, s, axes=(-2,-1): torch.fft.irfft2(x, s=s, dim=axes).to(torch.bfloat16))(y_f, (1, L), axes=(1, 2))[:, 0, :S, :]
        y = y + kv * ssm_D[None, None, :]
        return q * y

    def _B_ref(x, wqkv, wo):
        B, S, D = x.shape
        H = 32
        Dh = D // H
        qkv = (lambda x, *d: x.permute(*d))((x @ wqkv).reshape(B, S, 3, H, Dh), 2, 0, 3, 1, 4)
        q, k, v = qkv[0], qkv[1], qkv[2]
        scores = torch.einsum("bhqd,bhkd->bhqk", q, k) * (Dh ** -0.5)
        p = _softmax(scores, axis=-1)
        o = torch.einsum("bhqk,bhkd->bhqd", p, v)
        return (lambda x, *d: x.permute(*d))(o, 0, 2, 1, 3).reshape(B, S, D) @ wo

    a = _A_ref(A_q, A_k, A_v, A_shift_k, A_ssm_k, A_ssm_D)
    b = _B_ref(B_x, B_wqkv, B_wo)
    return torch.concatenate([a, b], axis=-1)
```

```python
import re

class Prog:
    def __init__(self):
        self.lines = []
    def __call__(self, s):
        for ln in s.split("\n"):
            ln = ln.strip()
            if ln: self.lines.append(ln)
    def label(self, name): self.lines.append(name + ":")
    def text(self):
        out = []
        for ln in self.lines:
            if ln.endswith(":") or ln.startswith("."): out.append(ln)
            else: out.append("    " + ln)
        return "\n".join(out) + "\n"

def v(i, n=1): return f"v{i}" if n == 1 else f"v[{i}:{i+n-1}]"
def s(i, n=1): return f"s{i}" if n == 1 else f"s[{i}:{i+n-1}]"

_REG = re.compile(r"^(-|abs\(|\|)?([vsa])(\d+|\[(\d+):(\d+)\])")
def regs_of(tok):
    tok = tok.strip()
    if tok in ("vcc",): return {("s", 106), ("s", 107)}
    if tok in ("vcc_lo",): return {("s", 106)}
    if tok in ("vcc_hi",): return {("s", 107)}
    if tok == "exec": return {("exec", 0)}
    if tok == "m0": return {("m0", 0)}
    m = _REG.match(tok)
    if not m: return set()
    k = m.group(2)
    if m.group(4) is not None: return {(k, i) for i in range(int(m.group(4)), int(m.group(5)) + 1)}
    return {(k, int(m.group(3)))}

TRANS = ("v_exp_", "v_log_", "v_rcp_", "v_rsq_", "v_sqrt_", "v_sin_", "v_cos_")
class Ins:
    def __init__(self, text, idx):
        self.text = text; self.idx = idx
        t = text.split(";")[0].strip()
        p = t.split(None, 1)
        self.op = p[0]
        rest = p[1] if len(p) > 1 else ""
        ops = []; depth = 0; cur = ""
        for ch in rest:
            if ch in "[(": depth += 1
            if ch in "])": depth -= 1
            if ch == "," and depth == 0: ops.append(cur.strip()); cur = ""
            else: cur += ch
        if cur.strip(): ops.append(cur.strip())
        self.mods = ""
        if ops:
            last = ops[-1].split(None, 1)
            ops[-1] = last[0]
            if len(last) > 1: self.mods = last[1]
        self.ops = ops
        op = self.op
        self.is_mfma = op.startswith(("v_mfma", "v_smfmac"))
        self.is_valu = op.startswith("v_") and not self.is_mfma
        self.is_trans = op.startswith(TRANS)
        self.is_salu = op.startswith("s_") and not op.startswith(("s_load", "s_buffer_load", "s_waitcnt", "s_nop", "s_barrier", "s_branch", "s_cbranch", "s_endpgm", "s_setprio", "s_memtime", "s_memrealtime", "s_sleep", "s_atomic"))
        self.is_vmem = op.startswith(("buffer_", "global_", "flat_"))
        self.is_ds = op.startswith("ds_")
        self.is_dma = self.is_vmem and (" lds" in " " + self.mods or "_lds_" in op)
        self.is_dpp = any(k in self.mods for k in ("row_", "quad_perm", "wave_", "dpp"))
        R = [regs_of(o) for o in ops]
        w = set(); r = set()
        if self.is_mfma:
            w = R[0]; r = R[1] | R[2] | R[3]
            self.A, self.B, self.C, self.D = R[1], R[2], R[3], R[0]
            self.passes = 8 if "32x32x16" in op else 4 if "16x16x32" in op else None
            if op.startswith("v_smfmac"):
                r |= R[0]; self.A = R[1] | R[3]; self.C = R[0]; self.passes = 8
            assert self.passes, op
        elif self.is_valu:
            if op.startswith("v_permlane") and "swap" in op:
                w = R[0] | R[1]; r = R[0] | R[1]
            elif "_co_" in op or op.startswith(("v_mad_u64", "v_div_scale")):
                w = R[0] | R[1]; r = set().union(*R[2:])
            elif op.startswith("v_cmpx"):
                w = R[0] | {("exec", 0)}; r = set().union(*R[1:])
            elif op == "v_nop": pass
            else:
                w = R[0]; r = set().union(*R[1:]) if len(R) > 1 else set()
                if op.startswith(("v_fmac", "v_mac", "v_dot2c", "v_pk_fmac", "v_writelane")): r |= R[0]
                if op.startswith("v_cndmask") and len(ops) == 3: r |= regs_of("vcc")
                if op.startswith("v_div_fmas"): r |= regs_of("vcc")
        elif self.is_ds:
            if op.startswith(("ds_read", "ds_bpermute", "ds_permute", "ds_swizzle")) or "_rtn" in op:
                w = R[0]; r = set().union(*R[1:])
            else: r = set().union(*R)
        elif self.is_vmem:
            if self.is_dma: r = set().union(*R) | {("m0", 0)}
            elif "_load" in op: w = R[0]; r = set().union(*R[1:])
            elif op.startswith(("buffer_inv", "buffer_wbl2")): pass
            elif "atomic" in op and "sc0" in self.mods:
                w = R[0]; r = set().union(*R)
            else: r = set().union(*R)
            self.wide_store = ("store" in op and ("x3" in op or "x4" in op))
            if self.wide_store:
                self.data = R[0] if op.startswith("buffer") else R[1]
        elif op.startswith("s_"):
            if op.startswith(("s_cmp", "s_waitcnt", "s_nop", "s_barrier", "s_branch", "s_cbranch", "s_endpgm", "s_setprio", "s_sleep", "s_bitcmp")):
                r = set().union(*R) if R else set()
            elif "saveexec" in op:
                w = R[0] | {("exec", 0)}; r = set().union(*R[1:]) | {("exec", 0)}
            else:
                w = R[0]; r = set().union(*R[1:]) if len(R) > 1 else set()
                if op in ("s_addk_i32", "s_mulk_i32"): r |= R[0]
        self.w, self.r = w, r
        self.ws = 1
        if op == "s_nop": self.ws = int(ops[0], 0) + 1

def need(p, c):
    n = 0
    def up(x, why):
        nonlocal n, reason
        if x > n: n = x; reason = why
    reason = ""
    pw_s = {x for x in p.w if x[0] == "s"}
    pw_v = {x for x in p.w if x[0] in "va"}
    if p.is_valu:
        if pw_s:
            if c.is_vmem and (pw_s & c.r): up(5, "VALU sgpr->VMEM")
            if (c.is_valu or c.is_mfma) and (pw_s & c.r):
                up(4 if c.op.startswith(("v_readlane", "v_writelane", "v_div_fmas")) else 2, "VALU sgpr->VALU")
        if pw_v & c.r:
            if c.op.startswith(("v_readlane", "v_readfirstlane")): up(1, "VALU->readlane")
            if c.op.startswith("v_permlane"): up(2, "VALU->permlane")
            if c.is_valu and c.is_dpp: up(2, "VALU->dpp")
            if c.is_mfma: up(2, "VALU->mfma")
            if p.is_trans and c.is_valu and not c.is_trans: up(1, "trans->valu")
            if p.is_trans and (c.is_vmem or c.is_ds): up(1, "trans->mem")
            if ("op_sel" in p.mods or "sdwa" in p.op or "dst_sel" in p.mods) and not p.op.startswith("v_pk_") and c.is_valu: up(1, "opsel")
        if ("exec", 0) in p.w:
            if c.is_mfma: up(4, "exec->mfma")
            if c.op.startswith(("v_readlane", "v_readfirstlane", "v_writelane", "v_permlane")): up(4, "exec->lane")
            if c.is_valu and c.is_dpp: up(5, "exec->dpp")
    if p.is_salu and ("m0", 0) in p.w and c.is_dma: up(1, "m0->dma")
    if p.is_vmem and getattr(p, "wide_store", False) and (p.data & c.w):
        up(2 if (c.is_valu or c.is_mfma) else 1, "store data WAR")
    if p.is_mfma:
        P = p.passes
        if c.is_mfma:
            if p.D & c.C:
                if not (p.D == c.C and c.passes == P): up(P + 2, "mfma D->C overlap")
            if p.D & (c.A | c.B): up(P + 4, "mfma D->A/B")
            if (p.D & c.D) and not (p.D == c.C and c.passes == P): up(P + 2, "mfma D->D waw")
        elif c.is_valu or c.is_vmem or c.is_ds:
            if p.D & (c.r | c.w): up(P + 4, "mfma D->valu/mem")
            if c.is_valu and (p.C & c.w): up(P - 1, "mfma C WAR")
    return n, reason

def check(text, maxd=20):
    ins = []; labels = {}
    for ln in text.split("\n"):
        t = ln.split(";")[0].strip()
        if not t or t.startswith("."):
            continue
        if t.endswith(":"):
            labels[t[:-1]] = len(ins); continue
        ins.append(Ins(t, len(ins)))
    def succ(i):
        x = ins[i]
        if x.op == "s_endpgm": return []
        if x.op == "s_branch": return [labels[x.ops[0]]]
        if x.op.startswith("s_cbranch"): return [i + 1, labels[x.ops[0]]]
        return [i + 1]
    bad = []
    for p in ins:
        if not (p.is_valu or p.is_mfma or p.is_salu or p.is_vmem): continue
        lim = 13 if p.is_mfma else 5
        seen = {}
        stack = [(j, 0) for j in succ(p.idx)]
        while stack:
            j, d = stack.pop()
            if j >= len(ins) or d >= lim: continue
            if j in seen and seen[j] <= d: continue
            seen[j] = d
            c = ins[j]
            n, why = need(p, c)
            if n > d: bad.append((p, c, n, d, why))
            for k in succ(j): stack.append((k, d + c.ws))
    for p, c, n, d, why in bad:
        print(f"HAZARD [{why}] need {n} have {d}:\n    {p.idx}: {p.text}\n    {c.idx}: {c.text}")
    return len(bad)
```

```python
import sys, os
sys.path.insert(0, os.path.dirname(os.path.abspath(__file__)))
from asmlib import Prog, v, s, check

MB = 1 << 20
WS_Q, WS_K, WS_V, WS_O, WS_XR, WS_Y = 0, 4 * MB, 8 * MB, 12 * MB, 16 * MB, 21 * MB
XRS = 4224
WS_SIZE = 32 * MB
A_Q, A_K, A_V, A_SK, A_SSMK, A_D, B_X, B_WQKV, B_WO, D_OUT, D_DBG, D_WS = [8 * i for i in range(12)]
QSCALE = 0x3E8293EE
import struct, math
def f32bits(x): return struct.unpack("<I", struct.pack("<f", x))[0]
QSCALE = f32bits((32 ** -0.5) * math.log2(math.e))

def mf32(d, a, b, c): return f"v_mfma_f32_32x32x16_bf16 {v(d,16)}, {v(a,4)}, {v(b,4)}, {v(c,16) if isinstance(c,int) else c}"
def mf16(d, a, b, c): return f"v_mfma_f32_16x16x32_bf16 {v(d,4)}, {v(a,4)}, {v(b,4)}, {v(c,4) if isinstance(c,int) else c}"

def srd(p, d, lo, hi, nrec):
    if lo != d: p(f"s_mov_b32 {s(d)}, {s(lo)}")
    if hi != d + 1: p(f"s_mov_b32 {s(d+1)}, {s(hi)}")
    p(f"s_mov_b32 {s(d+2)}, {nrec}")
    p(f"s_mov_b32 {s(d+3)}, 0x20000")

STAMP = os.environ.get("STAMP", "0") == "1"
OPT = dict(kv.split("=") for kv in os.environ.get("OPT", "").split(",") if kv)
def opt(k, d=0): return int(OPT.get(k, d))
WS_ST = 28 * MB
def stamp(p, i, real=False):
    if STAMP:
        p(f"{'s_memrealtime' if real else 's_memtime'} s[{60+2*i}:{61+2*i}]")
def stamp_flush(p, kidx, n, wave_sgpr):
    if not STAMP: return
    p(f"s_load_dwordx2 s[56:57], s[0:1], {D_WS}")
    p("s_lshl_b32 s58, s2, 4")
    p(f"s_add_u32 s58, s58, {s(wave_sgpr)}")
    p("s_lshl_b32 s58, s58, 6")
    p(f"s_add_u32 s58, s58, {WS_ST + kidx * 262144}")
    p("s_waitcnt lgkmcnt(0)")
    p("v_mov_b32 v2, s58")
    for i in range(n):
        p(f"v_mov_b32 v3, s{60+2*i}")
        p(f"global_store_dword v2, v3, s[56:57] offset:{4*i}")

def lstamp_flush(p, kidx, vreg, wave_sgpr):
    if not STAMP: return
    p(f"s_load_dwordx2 s[56:57], s[0:1], {D_WS}")
    p("s_lshl_b32 s58, s2, 4")
    p(f"s_add_u32 s58, s58, {s(wave_sgpr)}")
    p("s_lshl_b32 s58, s58, 8")
    p(f"s_add_u32 s58, s58, {WS_ST + MB + kidx * MB}")
    p("v_mbcnt_lo_u32_b32 v2, -1, 0")
    p("v_mbcnt_hi_u32_b32 v2, -1, v2")
    p("v_lshl_add_u32 v2, v2, 2, s58")
    p("s_waitcnt lgkmcnt(0)")
    p(f"global_store_dword v2, {v(vreg)}, s[56:57]")

def kernel_head(p, name):
    p(f".globl {name}")
    p(".p2align 8")
    p(f".type {name},@function")
    p.label(name)

def kernel_desc(name, vgpr, sgpr=102):
    acc = (vgpr + 3) // 4 * 4
    return f""".amdhsa_kernel {name}
  .amdhsa_next_free_vgpr {vgpr}
  .amdhsa_next_free_sgpr {sgpr}
  .amdhsa_accum_offset {acc}
  .amdhsa_group_segment_fixed_size 0
  .amdhsa_kernarg_size 96
  .amdhsa_user_sgpr_count 2
  .amdhsa_user_sgpr_kernarg_segment_ptr 1
  .amdhsa_system_sgpr_workgroup_id_x 1
.end_amdhsa_kernel
"""

def emit_s1(p, pre, nbar_total):
    nb = [0]
    def bar(n=1):
        for _ in range(n):
            if nb[0] < nbar_total:
                p("s_barrier"); nb[0] += 1
    p(f"s_load_dwordx4 s[4:7], s[0:1], {A_K}")
    p(f"s_load_dwordx2 s[8:9], s[0:1], {A_SK}")
    p(f"s_load_dwordx2 s[10:11], s[0:1], {D_WS}")
    p("s_and_b32 s28, s2, 15")
    p("s_lshr_b32 s29, s2, 4")
    p("s_lshl_b32 s29, s29, 2")
    p("s_add_u32 s29, s29, s3")
    p("s_sub_u32 s29, s29, 8")
    p("v_and_b32 v1, 7, v0")
    p("v_lshrrev_b32 v2, 3, v0")
    p("s_lshl_b32 s30, s29, 5")
    p("v_lshl_add_u32 v3, v2, 2, s30")
    p("s_lshl_b32 s31, s28, 7")
    p("v_lshl_add_u32 v4, v1, 4, s31")
    p("v_lshl_add_u32 v5, v3, 11, v4")
    for j in range(7):
        p(f"v_add_u32 {v(6+j)}, {(j-3)*2048}, v5")
    p("v_lshlrev_b32 v13, 2, v4")
    p("s_waitcnt lgkmcnt(0)")
    srd(p, 12, 4, 5, 4 * MB)
    srd(p, 16, 6, 7, 4 * MB)
    srd(p, 20, 8, 9, 8192)
    srd(p, 24, 10, 11, WS_SIZE)
    KR, VR, SR = 16, 44, 60
    for j in range(4): p(f"buffer_load_dwordx4 {v(SR+4*j,4)}, v13, s[20:23], 0 offen offset:{16*j}")
    for j in range(7): p(f"buffer_load_dwordx4 {v(KR+4*j,4)}, {v(6+j)}, s[12:15], 0 offen")
    for j in range(4): p(f"buffer_load_dwordx4 {v(VR+4*j,4)}, {v(9+j)}, s[16:19], 0 offen")
    p("v_lshrrev_b32 v14, 1, v4")
    p(f"v_mul_u32_u24 v14, {XRS}, v14")
    p("v_lshlrev_b32 v15, 1, v3")
    p(f"v_sub_u32 v15, {4088}, v15")
    p("v_add_u32 v15, v15, v14")
    p("v_lshl_add_u32 v14, v2, 3, v14")
    p("s_mov_b32 s32, 0xffff0000")
    bar(3)
    T, KU, VU, AC, OUT = 76, 84, 98, 106, 114
    for cp in range(4):
        if cp == 0:
            p("s_waitcnt vmcnt(0)"); stamp(p, 2)
        for e in range(2):
            for jj in range(2):
                src = SR + 4 * cp + 2 * e + jj
                p(f"v_lshlrev_b32 {v(T+2*(2*jj)+e)}, 16, {v(src)}")
                p(f"v_and_b32 {v(T+2*(2*jj+1)+e)}, s32, {v(src)}")
        for j in range(7):
            p(f"v_lshlrev_b32 {v(KU+2*j)}, 16, {v(KR+4*j+cp)}")
            p(f"v_and_b32 {v(KU+2*j+1)}, s32, {v(KR+4*j+cp)}")
        for j in range(4):
            p(f"v_lshlrev_b32 {v(VU+2*j)}, 16, {v(VR+4*j+cp)}")
            p(f"v_and_b32 {v(VU+2*j+1)}, s32, {v(VR+4*j+cp)}")
        for t in range(4):
            p(f"v_pk_mul_f32 {v(AC+2*t,2)}, {v(KU+2*(t),2)}, {v(T+6,2)}")
        for j in (2, 1, 0):
            for t in range(4):
                p(f"v_pk_fma_f32 {v(AC+2*t,2)}, {v(KU+2*(t-j+3),2)}, {v(T+2*j,2)}, {v(AC+2*t,2)}")
        for t in range(4):
            p(f"v_pk_mul_f32 {v(AC+2*t,2)}, {v(AC+2*t,2)}, {v(VU+2*t,2)}")
        o = OUT + 4 * (cp & 1)
        for e in range(2):
            p(f"v_cvt_pk_bf16_f32 {v(o+2*e)}, {v(AC+6+e)}, {v(AC+4+e)}")
            p(f"v_cvt_pk_bf16_f32 {v(o+2*e+1)}, {v(AC+2+e)}, {v(AC+0+e)}")
        for e in range(2):
            p(f"s_mov_b32 s33, {WS_XR + (2*cp+e)*XRS}")
            p(f"buffer_store_dwordx2 {v(o+2*e,2)}, v15, s[24:27], s33 offen")
        bar(1)
    p("s_cmp_lg_u32 s29, 0")
    p(f"s_cbranch_scc1 {pre}_S1END")
    p("v_mov_b32 v8, 0")
    p("v_mov_b32 v9, 0")
    for c in range(8):
        p(f"s_mov_b32 s33, {WS_XR + c*XRS + 4096}")
        p(f"buffer_store_dwordx2 v[8:9], v14, s[24:27], s33 offen")
    p.label(f"{pre}_S1END")
    stamp(p, 3); stamp(p, 4, True)
    stamp_flush(p, 0, 5, 59)
    p("s_endpgm")

def emit_k1(p):
    kernel_head(p, "k1_kernel")
    p("s_cmp_ge_u32 s2, 256")
    p("s_cbranch_scc1 K1_END")
    p("v_lshrrev_b32 v1, 6, v0")
    p("v_and_b32 v0, 63, v0")
    p("s_and_b32 s8, s2, 7")
    p("v_readfirstlane_b32 s3, v1")
    stamp(p, 0); stamp(p, 1, True)
    p("s_lshr_b32 s9, s2, 3")
    p("s_mov_b32 s59, s3")
    p("s_and_b32 s26, s8, 1")
    p("s_lshl_b32 s26, s26, 3")
    p("s_and_b32 s10, s9, 7")
    p("s_add_u32 s26, s26, s10")
    p("s_lshr_b32 s27, s8, 1")
    p("s_lshl_b32 s27, s27, 2")
    p("s_lshr_b32 s10, s9, 3")
    p("s_add_u32 s27, s27, s10")
    p("s_cmp_ge_u32 s3, 4")
    p("s_cbranch_scc1 K1_NOTLOADER")
    p(f"s_load_dwordx4 s[4:7], s[0:1], {B_X}")
    p("v_lshrrev_b32 v2, 3, v0")
    p("v_lshlrev_b32 v2, 11, v2")
    p("v_lshrrev_b32 v3, 4, v0")
    p("v_and_b32 v4, 7, v0")
    p("v_xor_b32 v4, v4, v3")
    p("v_lshl_add_u32 v2, v4, 4, v2")
    p("s_lshl_b32 s10, s3, 16")
    p("v_add_u32 v10, s10, v2")
    p("v_xor_b32 v11, 64, v10")
    p(f"v_add_u32 v12, {32768-2048}, v10")
    p(f"v_add_u32 v13, {49152-3072}, v11")
    p(f"v_add_u32 v11, {16384-1024}, v11")
    p("v_lshrrev_b32 v2, 5, v0")
    p("v_lshlrev_b32 v2, 2, v2")
    p("v_bfe_u32 v4, v0, 2, 2")
    p("s_lshl_b32 s10, s3, 4")
    p("v_add3_u32 v2, v2, v4, s10")
    p("v_mul_u32_u24 v2, 6144, v2")
    p("v_and_b32 v3, 1, v3")
    p("v_lshl_add_u32 v2, v3, 6, v2")
    p("v_and_b32 v4, 3, v0")
    p("v_lshl_add_u32 v14, v4, 4, v2")
    p("v_add_u32 v15, 48128, v14")
    p("s_lshl_b32 s23, s3, 12")
    p("s_mul_i32 s24, s3, 6144")
    p("s_add_u32 s24, s24, 65536")
    if opt("rot"):
        p(f"s_mul_i32 s30, s26, {opt('rota', 2)}")
        p(f"s_mul_i32 s31, s27, {opt('rotb', 4)}")
        p("s_add_u32 s30, s30, s31")
        p("s_and_b32 s30, s30, 15")
        p("s_lshl_b32 s20, s30, 7")
        p("s_mul_i32 s21, s30, 393216")
    else:
        p("s_mov_b32 s20, 0")
        p("s_mov_b32 s21, 0")
    p("s_mov_b32 s25, 0")
    p("s_lshl_b32 s10, s26, 18")
    p("s_lshl_b32 s11, s27, 7")
    p("s_waitcnt lgkmcnt(0)")
    p("s_add_u32 s12, s4, s10")
    p("s_addc_u32 s13, s5, 0")
    p("s_mov_b32 s14, 262144")
    p("s_mov_b32 s15, 0x20000")
    p("s_add_u32 s16, s6, s11")
    p("s_addc_u32 s17, s7, 0")
    p(f"s_sub_u32 s18, {1024*6144}, s11")
    p("s_mov_b32 s19, 0x20000")
    stamp(p, 2)
    p("s_branch K1_LISSUE")
    p.label("K1_LLOOP")
    p("s_cmp_lt_u32 s25, 3")
    p("s_cbranch_scc1 K1_LISSUE")
    stamp(p, 6)
    p("s_waitcnt vmcnt(20)")
    stamp(p, 7)
    p("s_barrier")
    if STAMP:
        p("s_waitcnt lgkmcnt(0)")
        p("s_lshl_b32 m0, s25, 1")
        p("s_nop 0")
        p("v_writelane_b32 v20, s72, m0")
        p("s_add_u32 m0, m0, 1")
        p("s_nop 0")
        p("v_writelane_b32 v20, s74, m0")
    p.label("K1_LISSUE")
    p("s_mov_b32 m0, s23")
    p("s_add_u32 s22, s21, 4096")
    for jj in range(4):
        p(f"buffer_load_dwordx4 {v(10+jj)}, s[12:15], s20 offen offset:{1024*jj} lds")
    p("s_mov_b32 m0, s24")
    p("s_add_u32 s20, s20, 128")
    for ii in range(4):
        p(f"buffer_load_dwordx4 {v(14+(ii&1))}, s[16:19], s21 offen offset:{1024*ii} lds")
    p("s_add_u32 m0, s24, 4096")
    p("s_add_u32 s21, s21, 393216")
    for ii in range(2):
        p(f"buffer_load_dwordx4 {v(14+ii)}, s[16:19], s22 offen offset:{1024*ii} lds")
    if opt("rot"):
        p("s_and_b32 s20, s20, 2047")
        p("s_cselect_b32 s21, s21, 0")
    p("s_add_u32 s23, s23, 16384")
    p("s_and_b32 s23, s23, 0xffff")
    p("s_add_u32 s24, s24, 24576")
    p("s_cmp_ge_u32 s24, 163840")
    p("s_cselect_b32 s10, 98304, 0")
    p("s_sub_u32 s24, s24, s10")
    p("s_add_u32 s25, s25, 1")
    p("s_cmp_lt_u32 s25, 16")
    p("s_cbranch_scc1 K1_LLOOP")
    for n in (20, 10, 0):
        p(f"s_waitcnt vmcnt({n})")
        p("s_barrier")
    stamp(p, 3); stamp(p, 4, True)
    if STAMP: p("s_getreg_b32 s70, hwreg(HW_REG_XCC_ID)")
    stamp_flush(p, 0, 6, 59); lstamp_flush(p, 0, 20, 59)
    p.label("K1_END")
    p("s_endpgm")
    p.label("K1_NOTLOADER")
    p("s_cmp_ge_u32 s3, 8")
    p("s_cbranch_scc1 K1_HELPER")
    ACC = 64
    FB = 20
    XB, XC, WB, WC = 4, 8, 12, 13
    p(f"s_load_dwordx2 s[4:5], s[0:1], {D_WS}")
    p("s_sub_u32 s3, s3, 4")
    p("s_lshr_b32 s28, s3, 1")
    p("s_and_b32 s29, s3, 1")
    p("v_and_b32 v1, 31, v0")
    p("v_lshrrev_b32 v2, 5, v0")
    p("v_bfe_u32 v3, v0, 1, 3")
    p("v_xor_b32 v3, v3, v2")
    p("v_lshlrev_b32 v3, 4, v3")
    p("v_lshl_add_u32 v3, v1, 7, v3")
    p("s_lshl_b32 s10, s28, 13")
    p(f"v_add_u32 {v(XB)}, s10, v3")
    for ks in range(1, 4): p(f"v_xor_b32 {v(XB+ks)}, {32*ks}, {v(XB)}")
    p("v_lshlrev_b32 v2, 10, v2")
    p("v_bfe_u32 v3, v0, 2, 2")
    p("v_lshl_add_u32 v2, v3, 6, v2")
    p("v_bfe_u32 v3, v0, 4, 1")
    p("v_lshl_add_u32 v2, v3, 5, v2")
    p("v_and_b32 v3, 3, v0")
    p("v_lshl_add_u32 v2, v3, 3, v2")
    p("s_lshl_b32 s10, s29, 8")
    p("s_add_u32 s10, s10, 65536")
    p(f"v_add_u32 {v(WB)}, s10, v2")
    for i in range(FB + 20, FB + 40): p(f"v_mov_b32 {v(i)}, 0")
    for i in range(ACC, ACC + 96): p(f"v_mov_b32 {v(i)}, 0")
    p("s_mov_b32 s20, 0")
    p("s_mov_b32 s21, 0")
    p("s_mov_b32 s25, 0")
    def frag(b, which):
        base = FB + 20 * b
        return base + {"x0": 0, "x1": 4, "w0": 8, "w1": 12, "w2": 16}[which]
    def mfmas(b):
        L = []
        for (ty, rt) in ((0, 0), (1, 0), (0, 1), (1, 1), (2, 0), (2, 1)):
            d = ACC + (rt * 3 + ty) * 16
            x, w = frag(b, f"x{rt}"), frag(b, f"w{ty}")
            L.append(mf32(d, w, x, d) if ty < 2 else mf32(d, x, w, d))
        return L
    def reads(b, ks):
        def rx(rt): return f"ds_read_b128 {v(frag(b, f'x{rt}'),4)}, {v(XC+ks)} offset:{rt*4096}"
        def rw(ty, h): return f"ds_read_b64_tr_b16 {v(frag(b, f'w{ty}')+2*h,2)}, {v(WC)} offset:{ks*6144+ty*2048+h*512}"
        return [rx(0), rw(0,0), rw(0,1), rw(1,0), rw(1,1), rx(1), rw(2,0), rw(2,1)]
    p.label("K1_CLOOP")
    for ks in range(4): p(f"v_add_u32 {v(XC+ks)}, s20, {v(XB+ks)}")
    p(f"v_add_u32 {v(WC)}, s21, {v(WB)}")
    p("s_add_u32 s20, s20, 16384")
    p("s_and_b32 s20, s20, 0xffff")
    p("s_add_u32 s21, s21, 24576")
    p("s_cmp_ge_u32 s21, 98304")
    p("s_cselect_b32 s21, 0, s21")
    p("s_add_u32 s25, s25, 1")
    stamp(p, 6)
    p("s_waitcnt lgkmcnt(0)")
    if STAMP:
        p("s_lshl_b32 m0, s25, 1")
        p("s_nop 0")
        p("v_writelane_b32 v14, s72, m0")
        p("s_sub_u32 m0, m0, 1")
        p("s_nop 0")
        p("v_writelane_b32 v14, s74, m0")
    p("s_barrier")
    stamp(p, 7)
    for ks in range(4):
        b = ks & 1
        M = mfmas(b ^ 1); R = reads(b, ks)
        w = (lambda n: p(f"s_waitcnt lgkmcnt({n})")) if ks > 0 else (lambda n: None)
        w(5); p(M[0]); p(R[0]); p(R[1])
        w(5); p(M[1]); p(R[2]); p(R[3])
        w(6); p(M[2]); p(R[4]); p(R[5])
        p(M[3]); p(R[6]); p(R[7])
        w(8); p(M[4]); p(M[5])
    p("s_cmp_lt_u32 s25, 16")
    p("s_cbranch_scc1 K1_CLOOP")
    p("s_waitcnt lgkmcnt(0)")
    for m in mfmas(1): p(m)
    stamp(p, 2)
    srd(p, 12, 4, 5, WS_SIZE)
    p("s_lshl_b32 s10, s27, 1")
    p("s_add_u32 s10, s10, s29")
    p("s_lshl_b32 s10, s10, 6")
    p("s_lshl_b32 s11, s26, 2")
    p("s_add_u32 s10, s10, s11")
    p("s_lshl_b32 s11, s28, 1")
    p("s_add_u32 s10, s10, s11")
    p("s_lshl_b32 s10, s10, 11")
    p(f"s_add_u32 s11, s10, {WS_K}")
    p(f"s_add_u32 s16, s10, {WS_V}")
    p(f"s_mov_b32 s17, {QSCALE}")
    p("v_lshlrev_b32 v1, 4, v0")
    n = 0
    for (ty, rt) in ((0, 0), (1, 0), (0, 1), (1, 1), (2, 0), (2, 1)):
        d = ACC + (rt * 3 + ty) * 16
        o = FB + 8 * (n % 4); n += 1
        if ty == 0:
            for i in range(16): p(f"v_mul_f32 {v(d+i)}, s17, {v(d+i)}")
        for i in range(8): p(f"v_cvt_pk_bf16_f32 {v(o+i)}, {v(d+2*i)}, {v(d+2*i+1)}")
        so = (10, 11, 16)[ty]
        for j in range(2):
            p(f"buffer_store_dwordx4 {v(o+4*j,4)}, v1, s[12:15], {s(so)} offen offset:{rt*2048+j*1024}")
    stamp(p, 3)
    if STAMP: p("s_waitcnt vmcnt(0)")
    stamp(p, 5); stamp(p, 4, True)
    stamp_flush(p, 0, 6, 59); lstamp_flush(p, 0, 14, 59)
    p("s_endpgm")
    p.label("K1_HELPER")
    if opt("nohelp"): p("s_endpgm")
    emit_s1(p, "K1", 16)
    return 160

CV_BASE = 65536
CV_STRIDE = 16384
CV_C1 = 5120 + 64
CV_H = 2 * 5120 + 128
def emit_conv(p, pre):
    p(f"s_load_dwordx4 s[36:39], s[0:1], {A_SSMK}")
    p("s_sub_u32 s28, s3, 8")
    p("s_lshl_b32 s29, s2, 2")
    p("s_add_u32 s29, s29, s28")
    p(f"s_mul_i32 s30, s28, {CV_STRIDE}")
    p(f"s_add_u32 s30, s30, {CV_BASE}")
    p("v_lshlrev_b32 v1, 4, v0")
    p("v_add_u32 v2, 2, v1")
    p("v_add_u32 v3, -512, v1")
    p("v_add_u32 v4, 512, v1")
    p(f"s_mul_i32 s31, s29, {XRS}")
    p(f"s_add_u32 s31, s31, {WS_XR}")
    p("s_add_u32 s32, s31, 4096")
    p("s_lshl_b32 s33, s29, 12")
    p("s_lshl_b32 s34, s29, 1")
    p("v_mov_b32 v5, s34")
    p("s_waitcnt lgkmcnt(0)")
    srd(p, 12, 4, 5, WS_SIZE)
    p("s_add_u32 s16, s36, s33")
    p("s_addc_u32 s17, s37, 0")
    p("s_mov_b32 s18, 4096")
    p("s_mov_b32 s19, 0x20000")
    srd(p, 20, 38, 39, 2048)
    p(f"s_add_u32 m0, s30, {CV_H}")
    p("buffer_load_ushort v6, v5, s[20:23], 0 offen")
    p("buffer_load_dwordx4 v3, s[16:19], 0 offen lds")
    p(f"s_add_u32 m0, s30, {CV_H + 1024}")
    p("s_nop 0")
    for j in range(4): p(f"buffer_load_dwordx4 v4, s[16:19], 0 offen offset:{1024*j} lds")
    for (src_v, off) in ((1, 0), (2, CV_C1)):
        p(f"s_add_u32 m0, s30, {off}")
        p("s_nop 0")
        for j in range(4): p(f"buffer_load_dwordx4 {v(src_v)}, s[12:15], s31 offen offset:{1024*j} lds")
        p(f"s_add_u32 m0, s30, {off + 4096}")
        p("s_nop 0")
        p(f"buffer_load_dwordx4 {v(src_v)}, s[12:15], s32 offen lds")
    AB, BB, KVB, ST = 8, 12, 13, 14
    FA, FBB, ACC = 16, 48, 80
    p("v_and_b32 v1, 15, v0")
    p("v_lshrrev_b32 v2, 4, v0")
    p("v_lshrrev_b32 v3, 1, v1")
    p("v_lshlrev_b32 v4, 2, v2")
    p("v_sub_u32 v4, v4, v3")
    p("v_lshlrev_b32 v4, 2, v4")
    p("v_and_b32 v3, 1, v1")
    p("v_xor_b32 v3, 1, v3")
    p(f"v_mul_u32_u24 v3, {CV_C1}, v3")
    p(f"s_add_u32 s34, s30, {4*1023 - 32*(112+1)}")
    p(f"v_add3_u32 {v(AB)}, v4, v3, s34")
    for kk in range(1, 4): p(f"v_add_u32 {v(AB+kk)}, {1024*kk}, {v(AB)}")
    p("v_lshlrev_b32 v3, 5, v1")
    p("v_lshl_add_u32 v4, v2, 4, v3")
    p(f"s_add_u32 s34, s30, {CV_H + 512 - 32}")
    p(f"v_add_u32 {v(BB)}, s34, v4")
    p(f"v_lshl_add_u32 {v(ST)}, v2, 3, v3")
    p(f"s_add_u32 s34, s30, {4088 - 512*7}")
    p(f"v_sub_u32 {v(KVB)}, s34, {v(ST)}")
    for i in range(32): p(f"v_mov_b32 {v(ACC+i)}, 0")
    p("s_mov_b32 s35, 8")
    p("s_barrier")
    p("s_barrier")
    p("s_waitcnt vmcnt(0)")
    p.label(f"{pre}_CVL")
    def rdA(a):
        kk, rem = (7 - a) >> 1, 128 * ((7 - a) & 1)
        return [f"ds_read2_b32 {v(FA+4*a,2)}, {v(AB+kk)} offset0:{rem} offset1:{rem+1}",
                f"ds_read2_b32 {v(FA+4*a+2,2)}, {v(AB+kk)} offset0:{rem+2} offset1:{rem+3}"]
    def rdB(b): return [f"ds_read_b128 {v(FBB+4*b,4)}, {v(BB)} offset:{512*b}"]
    for x in range(8):
        for r_ in rdA(x) + rdB(x): p(r_)
    for kk in range(4): p(f"v_add_u32 {v(AB+kk)}, -64, {v(AB+kk)}")
    p(f"v_add_u32 {v(BB)}, -64, {v(BB)}")
    p("s_waitcnt lgkmcnt(12)")
    for a in range(4):
        for b in range(4): p(mf16(ACC+4*(a+b), FA+4*a, FBB+4*b, ACC+4*(a+b)))
    p("s_waitcnt lgkmcnt(0)")
    for a in range(8):
        for b in range(8 - a):
            if a >= 4 or b >= 4: p(mf16(ACC+4*(a+b), FA+4*a, FBB+4*b, ACC+4*(a+b)))
    p("s_sub_u32 s35, s35, 1")
    p("s_cmp_lg_u32 s35, 0")
    p("s_barrier")
    p(f"s_cbranch_scc1 {pre}_CVL")
    for t in range(8): p(f"ds_read_b64 {v(FA+2*t,2)}, {v(KVB)} offset:{512*(7-t)}")
    p("v_lshlrev_b32 v6, 16, v6")
    p("s_mov_b32 s34, 0xffff0000")
    p(f"s_add_u32 s33, s33, {WS_Y}")
    for t in range(8):
        p(f"s_waitcnt lgkmcnt({7-t})")
        U = FBB + 4 * (t & 3); a = ACC + 4 * t
        p(f"v_and_b32 {v(U)}, s34, {v(FA+2*t+1)}")
        p(f"v_lshlrev_b32 {v(U+1)}, 16, {v(FA+2*t+1)}")
        p(f"v_and_b32 {v(U+2)}, s34, {v(FA+2*t)}")
        p(f"v_lshlrev_b32 {v(U+3)}, 16, {v(FA+2*t)}")
        for r_ in range(4): p(f"v_fmac_f32 {v(a+r_)}, v6, {v(U+r_)}")
        p(f"v_cvt_pk_bf16_f32 {v(a)}, {v(a)}, {v(a+1)}")
        p(f"v_cvt_pk_bf16_f32 {v(a+1)}, {v(a+2)}, {v(a+3)}")
        p(f"buffer_store_dwordx2 {v(a,2)}, {v(ST)}, s[12:15], s33 offen offset:{512*t}")
    p("s_barrier")
    p("s_barrier")
    stamp(p, 3); stamp(p, 4, True)
    stamp_flush(p, 1, 5, 59)
    p("s_endpgm")

def emit_k2(p):
    kernel_head(p, "k2_kernel")
    Q, ONES, L, P0, P1, F0, F1, NEGM, SA, SB, O = 4, 12, 16, 20, 24, 28, 44, 60, 76, 92, 108
    p("s_cmp_ge_u32 s2, 256")
    p("s_cbranch_scc1 K2_END")
    p("v_lshrrev_b32 v1, 6, v0")
    p("v_and_b32 v0, 63, v0")
    p(f"s_load_dwordx2 s[4:5], s[0:1], {D_WS}")
    p("v_readfirstlane_b32 s3, v1")
    stamp(p, 0); stamp(p, 1, True)
    p("s_and_b32 s8, s2, 7")
    p("s_mov_b32 s59, s3")
    p("s_cmp_ge_u32 s3, 8")
    p("s_cbranch_scc1 K2_HELPER")
    p("s_lshr_b32 s9, s2, 3")
    p("s_lshl_b32 s26, s8, 2")
    p("s_and_b32 s10, s9, 3")
    p("s_add_u32 s26, s26, s10")
    p("s_lshr_b32 s27, s9, 2")
    p("s_lshl_b32 s27, s27, 3")
    p("s_add_u32 s27, s27, s3")
    p("v_lshlrev_b32 v1, 4, v0")
    p("s_lshl_b32 s28, s26, 17")
    p("s_lshl_b32 s10, s27, 11")
    p("s_add_u32 s29, s28, s10")
    p(f"s_add_u32 s30, s28, {WS_K}")
    p(f"s_add_u32 s31, s28, {WS_V}")
    p("s_and_b32 s10, s3, 1")
    p("s_cmp_eq_u32 s10, 0")
    p("s_cselect_b32 s11, s30, s31")
    p("s_cselect_b32 s20, 2048, 0")
    p("s_lshr_b32 s10, s3, 1")
    p("s_lshl_b32 s10, s10, 11")
    p("s_add_u32 s20, s20, s10")
    p("s_lshl_b32 s21, s3, 11")
    p("s_waitcnt lgkmcnt(0)")
    srd(p, 12, 4, 5, WS_SIZE)
    p("s_add_u32 s16, s4, s11")
    p("s_addc_u32 s17, s5, 0")
    p("s_mov_b32 s18, 131072")
    p("s_mov_b32 s19, 0x20000")
    for j in range(2): p(f"buffer_load_dwordx4 {v(Q+4*j,4)}, v1, s[12:15], s29 offen offset:{1024*j}")
    for j in range(2): p(f"buffer_load_dwordx4 {v(F1+4*j,4)}, v1, s[12:15], s30 offen offset:{1024*j}")
    def dma():
        p("s_mov_b32 m0, s21")
        p("s_add_u32 s21, s21, 16384")
        for j in range(2): p(f"buffer_load_dwordx4 v1, s[16:19], s20 offen offset:{1024*j} lds")
        p("s_and_b32 s21, s21, 0xffff")
        p("s_add_u32 s20, s20, 8192")
    for _ in range(3): dma()
    p("v_lshrrev_b32 v2, 4, v0")
    p("v_xor_b32 v2, v2, v0")
    p("v_and_b32 v2, 1, v2")
    p("v_cmp_eq_u32 vcc, 0, v2")
    p("v_mov_b32 v3, 0x3f803f80")
    p("v_mov_b32 v2, 0")
    for i in range(4): p(f"v_cndmask_b32 {v(ONES+i)}, v2, v3, vcc")
    for i in range(4): p(f"v_mov_b32 {v(L+i)}, 0")
    for i in range(16): p(f"v_mov_b32 {v(O+i)}, 0")
    for i in range(8, 16): p(f"v_mov_b32 {v(F1+i)}, 0")
    for i in range(16): p(f"v_mov_b32 {v(SB+i)}, 0xf0000000")
    p("s_mov_b32 s22, 0")
    p("s_mov_b32 s25, 16")
    p("s_waitcnt vmcnt(6)")
    p(mf32(SA, F1, Q, "0"))
    p(mf32(SA, F1+4, Q+4, SA))
    p("s_nop 15")
    p(f"v_max3_f32 v2, {v(SA)}, {v(SA+1)}, {v(SA+2)}")
    for i in range(3, 15, 2): p(f"v_max3_f32 v2, v2, {v(SA+i)}, {v(SA+i+1)}")
    p(f"v_max_f32 v2, v2, {v(SA+15)}")
    p("v_mov_b32 v3, v2")
    p("s_nop 1")
    p("v_permlane32_swap_b32 v2, v3")
    p("v_max_f32 v2, v2, v3")
    p("v_sub_f32 v2, 0, v2")
    for i in range(16): p(f"v_mov_b32 {v(NEGM+i)}, v2")
    stamp(p, 2)
    def step(F, Sc, Sn, Fn, u, first=False):
        rd = (lambda j: p(f"ds_read_b128 {v(Fn+4*j,4)}, v2 offset:{u*4096+j*1024}")) if u is not None else (lambda j: p("s_nop 0"))
        ex = lambda a, b: [p(f"v_exp_f32 {v(Sc+i)}, {v(Sc+i)}") for i in range(a, b)]
        cv = lambda P, o: [p(f"v_cvt_pk_bf16_f32 {v(P+i)}, {v(Sc+o+2*i)}, {v(Sc+o+2*i+1)}") for i in range(4)]
        if not first: p("s_waitcnt lgkmcnt(2)")
        if u is not None: p(mf32(Sn, F, Q, NEGM))
        ex(0, 4)
        rd(0); rd(1)
        if u is not None: p(mf32(Sn, F+4, Q+4, Sn))
        ex(4, 8)
        cv(P0, 0)
        ex(8, 10)
        if not first: p(f"s_waitcnt lgkmcnt({2 if u is not None else 0})")
        p(mf32(O, F+8, P0, O))
        ex(10, 14)
        p(mf16(L, ONES, P0, L))
        ex(14, 16)
        cv(P1, 8)
        rd(2); rd(3)
        p(mf32(O, F+12, P1, O))
        p(mf16(L, ONES, P1, L))
    p.label("K2_LOOP")
    p("v_add_u32 v2, s22, v1")
    p("s_add_u32 s22, s22, 16384")
    p("s_and_b32 s22, s22, 0xffff")
    p("s_sub_u32 s25, s25, 1")
    stamp(p, 6)
    p("s_waitcnt vmcnt(4) lgkmcnt(0)")
    if STAMP:
        p("s_sub_u32 m0, 16, s25")
        p("s_lshl_b32 m0, m0, 1")
        p("v_writelane_b32 v124, s72, m0")
        p("s_sub_u32 m0, m0, 1")
        p("s_nop 0")
        p("v_writelane_b32 v124, s74, m0")
    p("s_barrier")
    stamp(p, 7)
    dma()
    step(F1, SB, SA, F0, 0, first=True)
    step(F0, SA, SB, F1, 1)
    step(F1, SB, SA, F0, 2)
    step(F0, SA, SB, F1, 3)
    p("s_cmp_lg_u32 s25, 0")
    p("s_cbranch_scc1 K2_LOOP")
    step(F1, SB, SA, None, None)
    stamp(p, 5)
    p("v_and_b32 v2, 16, v0")
    p("v_cmp_eq_u32 vcc, 0, v2")
    p("s_lshl_b32 s10, s27, 16")
    p("s_lshl_b32 s11, s26, 11")
    p("s_add_u32 s10, s10, s11")
    p(f"s_add_u32 s10, s10, {WS_O}")
    p("s_nop 3")
    p(f"v_cndmask_b32 v2, {v(L+1)}, {v(L)}, vcc")
    p(f"v_max3_f32 v3, abs({v(O)}), abs({v(O+1)}), v2")
    for i in range(2, 16, 2): p(f"v_max3_f32 v3, abs({v(O+i)}), abs({v(O+i+1)}), v3")
    p(f"v_mul_f32 {v(SA)}, 0, v2")
    for i in range(16): p(f"v_fma_f32 {v(SA)}, {v(O+i)}, 0, {v(SA)}")
    p(f"v_add_f32 v3, v3, {v(SA)}")
    p(f"s_mov_b32 s11, {f32bits(2.0**100)}")
    p("v_cmp_nlt_f32 vcc, v3, s11" if False else "v_cmp_ngt_f32 vcc, s11, v3")
    if opt("forcefb"): p("s_branch K2_FALLBACK")
    p("s_cbranch_vccnz K2_FALLBACK")
    p.label("K2_FIN")
    p("v_rcp_f32 v2, v2")
    p("s_nop 0")
    for i in range(16): p(f"v_mul_f32 {v(O+i)}, v2, {v(O+i)}")
    for i in range(8): p(f"v_cvt_pk_bf16_f32 {v(P0+i)}, {v(O+2*i)}, {v(O+2*i+1)}")
    for j in range(2): p(f"buffer_store_dwordx4 {v(P0+4*j,4)}, v1, s[12:15], s10 offen offset:{1024*j}")
    stamp(p, 3); stamp(p, 4, True)
    stamp_flush(p, 1, 6, 59); lstamp_flush(p, 1, 124, 59)
    p.label("K2_END")
    p("s_endpgm")
    p.label("K2_FALLBACK")
    M, AL = NEGM, NEGM + 1
    for i in range(16): p(f"v_mov_b32 {v(O+i)}, 0")
    p("v_mov_b32 v2, 0")
    p(f"v_mov_b32 {v(M)}, 0xff7fffff")
    p("s_mov_b32 s25, 64")
    p.label("K2_FBL")
    for j in range(2): p(f"buffer_load_dwordx4 {v(F0+4*j,4)}, v1, s[12:15], s30 offen offset:{1024*j}")
    for j in range(2): p(f"buffer_load_dwordx4 {v(F0+8+4*j,4)}, v1, s[12:15], s31 offen offset:{1024*j}")
    p("s_add_u32 s30, s30, 2048")
    p("s_add_u32 s31, s31, 2048")
    p("s_waitcnt vmcnt(0)")
    p(mf32(SA, F0, Q, "0"))
    p(mf32(SA, F0+4, Q+4, SA))
    p("s_nop 15")
    p(f"v_max3_f32 v3, {v(SA)}, {v(SA+1)}, {v(M)}")
    for i in range(2, 16, 2): p(f"v_max3_f32 v3, v3, {v(SA+i)}, {v(SA+i+1)}")
    p(f"v_mov_b32 {v(SB)}, v3")
    p("s_nop 1")
    p(f"v_permlane32_swap_b32 v3, {v(SB)}")
    p(f"v_max_f32 v3, v3, {v(SB)}")
    p(f"v_sub_f32 {v(AL)}, {v(M)}, v3")
    p(f"v_exp_f32 {v(AL)}, {v(AL)}")
    p(f"v_mov_b32 {v(M)}, v3")
    for i in range(16): p(f"v_sub_f32 {v(SA+i)}, {v(SA+i)}, v3")
    for i in range(16): p(f"v_exp_f32 {v(SA+i)}, {v(SA+i)}")
    p(f"v_mul_f32 v2, v2, {v(AL)}")
    for i in range(16): p(f"v_mul_f32 {v(O+i)}, {v(O+i)}, {v(AL)}")
    for i in range(16): p(f"v_add_f32 v2, v2, {v(SA+i)}")
    for i in range(8): p(f"v_cvt_pk_bf16_f32 {v(P0+i)}, {v(SA+2*i)}, {v(SA+2*i+1)}")
    p("s_nop 1")
    p(mf32(O, F0+8, P0, O))
    p(mf32(O, F0+12, P1, O))
    p("s_nop 15")
    p("s_sub_u32 s25, s25, 1")
    p("s_cmp_lg_u32 s25, 0")
    p("s_cbranch_scc1 K2_FBL")
    p("v_mov_b32 v3, v2")
    p("s_nop 1")
    p("v_permlane32_swap_b32 v2, v3")
    p("v_add_f32 v2, v2, v3")
    p("s_branch K2_FIN")
    p.label("K2_HELPER")
    emit_conv(p, "K2")
    return 128

def emit_s3(p, pre, nbar_total):
    nb = [0]
    def bar(n=1):
        for _ in range(n):
            if nb[0] < nbar_total:
                p("s_barrier"); nb[0] += 1
    p(f"s_load_dwordx2 s[4:5], s[0:1], {A_Q}")
    p(f"s_load_dwordx2 s[6:7], s[0:1], {D_OUT}")
    p(f"s_load_dwordx2 s[10:11], s[0:1], {D_WS}")
    p("s_and_b32 s28, s2, 15")
    p("s_lshr_b32 s29, s2, 4")
    p("s_lshl_b32 s29, s29, 2")
    p("s_add_u32 s29, s29, s3")
    p("s_sub_u32 s29, s29, 8")
    p("v_and_b32 v1, 7, v0")
    p("v_lshrrev_b32 v2, 3, v0")
    p("s_lshl_b32 s30, s29, 5")
    p("v_lshl_add_u32 v3, v2, 2, s30")
    p("s_lshl_b32 s31, s28, 7")
    p("v_lshl_add_u32 v4, v1, 4, s31")
    p("v_lshl_add_u32 v5, v3, 11, v4")
    p("v_add_u32 v6, 4096, v5")
    p("v_lshlrev_b32 v7, 11, v4")
    p("v_lshl_add_u32 v7, v3, 1, v7")
    p("v_lshl_add_u32 v8, v3, 12, v4")
    p("s_waitcnt lgkmcnt(0)")
    srd(p, 12, 4, 5, 4 * MB)
    srd(p, 16, 6, 7, 8 * MB)
    srd(p, 24, 10, 11, WS_SIZE)
    QR, YR, U, OUT = 16, 32, 48, 64
    for j in range(4): p(f"buffer_load_dwordx4 {v(QR+4*j,4)}, {v(5+(j>>1))}, s[12:15], 0 offen offset:{2048*(j&1)}")
    for c in range(8):
        p(f"s_mov_b32 s33, {WS_Y + c*4096}")
        p(f"buffer_load_dwordx2 {v(YR+2*c,2)}, v7, s[24:27], s33 offen")
    p("s_mov_b32 s32, 0xffff0000")
    bar(3)
    p("s_waitcnt vmcnt(0)")
    for t in range(4):
        for cp in range(4):
            u = U + 4 * (cp & 1)
            q = QR + 4 * t + cp
            p(f"v_lshlrev_b32 {v(u)}, 16, {v(q)}")
            p(f"v_and_b32 {v(u+1)}, s32, {v(q)}")
            for e in range(2):
                y = YR + 2 * (2 * cp + e) + (t >> 1)
                if t & 1: p(f"v_and_b32 {v(u+2+e)}, s32, {v(y)}")
                else: p(f"v_lshlrev_b32 {v(u+2+e)}, 16, {v(y)}")
            p(f"v_pk_mul_f32 {v(u,2)}, {v(u,2)}, {v(u+2,2)}")
            p(f"v_cvt_pk_bf16_f32 {v(OUT+4*t+cp)}, {v(u)}, {v(u+1)}")
        p(f"s_mov_b32 s33, {t*4096}")
        p(f"buffer_store_dwordx4 {v(OUT+4*t,4)}, v8, s[16:19], s33 offen")
        if t & 1: bar(1)
    bar(nbar_total)
    stamp(p, 3); stamp(p, 4, True)
    stamp_flush(p, 2, 5, 59)
    p("s_endpgm")

def emit_k3(p):
    kernel_head(p, "k3_kernel")
    p("s_cmp_ge_u32 s2, 256")
    p("s_cbranch_scc1 K3_END")
    p("v_lshrrev_b32 v1, 6, v0")
    p("v_and_b32 v0, 63, v0")
    p("s_and_b32 s8, s2, 7")
    p("v_readfirstlane_b32 s3, v1")
    stamp(p, 0); stamp(p, 1, True)
    p("s_lshr_b32 s9, s2, 3")
    p("s_mov_b32 s59, s3")
    p("s_and_b32 s26, s8, 3")
    p("s_lshl_b32 s26, s26, 2")
    p("s_and_b32 s10, s9, 3")
    p("s_add_u32 s26, s26, s10")
    p("s_lshr_b32 s27, s8, 2")
    p("s_lshl_b32 s27, s27, 3")
    p("s_lshr_b32 s10, s9, 2")
    p("s_add_u32 s27, s27, s10")
    p("s_cmp_ge_u32 s3, 4")
    p("s_cbranch_scc1 K3_NOTLOADER")
    p(f"s_load_dwordx2 s[4:5], s[0:1], {B_WO}")
    p("v_lshrrev_b32 v2, 5, v0")
    p("v_lshlrev_b32 v2, 2, v2")
    p("v_bfe_u32 v4, v0, 2, 2")
    p("s_lshl_b32 s10, s3, 5")
    p("v_add3_u32 v2, v2, v4, s10")
    p("v_lshlrev_b32 v2, 11, v2")
    p("v_bfe_u32 v3, v0, 4, 1")
    p("v_lshl_add_u32 v2, v3, 6, v2")
    p("v_and_b32 v4, 3, v0")
    p("v_lshl_add_u32 v10, v4, 4, v2")
    for jj in range(1, 4): p(f"v_add_u32 {v(10+jj)}, {jj*(16384-1024)}, v10")
    p("s_lshl_b32 s23, s3, 12")
    p("s_mov_b32 s20, 0")
    p("s_mov_b32 s25, 0")
    p("s_lshl_b32 s11, s27, 7")
    p("s_waitcnt lgkmcnt(0)")
    p("s_add_u32 s16, s4, s11")
    p("s_addc_u32 s17, s5, 0")
    p(f"s_sub_u32 s18, {2*MB}, s11")
    p("s_mov_b32 s19, 0x20000")
    LA = opt("k3la", 3)
    p("s_branch K3_LISSUE")
    p.label("K3_LLOOP")
    p(f"s_cmp_lt_u32 s25, {LA}")
    p("s_cbranch_scc1 K3_LISSUE")
    p(f"s_waitcnt vmcnt({4*(LA-1)})")
    p("s_barrier")
    p.label("K3_LISSUE")
    p("s_mov_b32 m0, s23")
    p("s_add_u32 s23, s23, 16384")
    for jj in range(4): p(f"buffer_load_dwordx4 {v(10+jj)}, s[16:19], s20 offen offset:{1024*jj} lds")
    p("s_add_u32 s20, s20, 262144")
    p("s_add_u32 s25, s25, 1")
    p("s_cmp_lt_u32 s25, 8")
    p("s_cbranch_scc1 K3_LLOOP")
    for n in range(LA - 1, -1, -1):
        p(f"s_waitcnt vmcnt({4*n})")
        p("s_barrier")
    stamp(p, 3); stamp(p, 4, True)
    stamp_flush(p, 2, 5, 59)
    p.label("K3_END")
    p("s_endpgm")
    p.label("K3_NOTLOADER")
    p("s_cmp_ge_u32 s3, 8")
    p("s_cbranch_scc1 K3_HELPER")
    OB, WF, ACC = 64, 8, 32
    p(f"s_load_dwordx2 s[4:5], s[0:1], {D_WS}")
    p(f"s_load_dwordx2 s[6:7], s[0:1], {D_OUT}")
    p("s_sub_u32 s3, s3, 4")
    p("s_lshl_b32 s28, s26, 2")
    p("s_add_u32 s28, s28, s3")
    p("s_lshl_b32 s10, s28, 16")
    p(f"s_add_u32 s10, s10, {WS_O}")
    p("v_lshlrev_b32 v1, 4, v0")
    for i in range(1, 4): p(f"v_add_u32 {v(1+i)}, {4096*i}, v1")
    p("s_waitcnt lgkmcnt(0)")
    p("s_add_u32 s12, s4, s10")
    p("s_addc_u32 s13, s5, 0")
    p("s_mov_b32 s14, 65536")
    p("s_mov_b32 s15, 0x20000")
    def ldo(n, so): return f"buffer_load_dwordx4 {v(OB+4*n,4)}, {v(1+(n>>2))}, s[12:15], {so} offen offset:{1024*(n&3)}"
    for n in range(15): p(ldo(n, "0"))
    p("v_lshrrev_b32 v6, 5, v0")
    p("v_lshlrev_b32 v5, 9, v6")
    p("v_bfe_u32 v7, v0, 2, 2")
    p("v_lshl_add_u32 v5, v7, 6, v5")
    p("v_bfe_u32 v7, v0, 4, 1")
    p("v_lshl_add_u32 v5, v7, 5, v5")
    p("v_and_b32 v7, 3, v0")
    p("v_lshl_add_u32 v5, v7, 3, v5")
    for i in range(WF + 8, WF + 16): p(f"v_mov_b32 {v(i)}, 0")
    for i in range(OB + 60, OB + 64): p(f"v_mov_b32 {v(i)}, 0")
    for i in range(ACC, ACC + 32): p(f"v_mov_b32 {v(i)}, 0")
    p("s_mov_b32 s20, 0")
    p("s_mov_b32 s21, 16384")
    p("s_mov_b32 s25, 4")
    stamp(p, 2)
    def rdw(b, ks): return [f"ds_read_b64_tr_b16 {v(WF+8*b+4*nt+2*h,2)}, v5 offset:{ks*2048+h*1024+nt*256}" for nt in range(2) for h in range(2)]
    def mm(b, n): return [mf32(ACC+16*nt, WF+8*b+4*nt, OB+4*n, ACC+16*nt) for nt in range(2)]
    p.label("K3_CLOOP")
    for ks in range(16):
        b = ks & 1; n = (ks - 1) & 15
        if ks % 8 == 0:
            p("s_barrier")
        R = rdw(b, ks); M = mm(b ^ 1, n)
        p("s_waitcnt vmcnt(15) lgkmcnt(2)" if ks else "s_waitcnt vmcnt(15) lgkmcnt(2)")
        p(M[0]); p(R[0]); p(R[1])
        p("s_waitcnt lgkmcnt(2)")
        p(M[1]); p(R[2]); p(R[3])
        p(ldo(n, "s20" if n == 15 else "s21"))
    p("v_add_u32 v5, 32768, v5")
    p("s_add_u32 s20, s20, 16384")
    p("s_add_u32 s21, s21, 16384")
    p("s_sub_u32 s25, s25, 1")
    p("s_cmp_lg_u32 s25, 0")
    p("s_cbranch_scc1 K3_CLOOP")
    p("s_waitcnt vmcnt(15) lgkmcnt(0)")
    for m in mm(1, 15): p(m)
    stamp(p, 5)
    srd(p, 16, 6, 7, 8 * MB)
    p("v_and_b32 v2, 31, v0")
    p("v_lshlrev_b32 v2, 12, v2")
    p("v_lshl_add_u32 v2, v6, 4, v2")
    p("s_lshl_b32 s10, s28, 17")
    p("s_lshl_b32 s11, s27, 7")
    p("s_add_u32 s10, s10, s11")
    p("s_add_u32 s10, s10, 2048")
    p("s_nop 1")
    for nt in range(2):
        for i in range(8): p(f"v_cvt_pk_bf16_f32 {v(WF+8*nt+i)}, {v(ACC+16*nt+2*i)}, {v(ACC+16*nt+2*i+1)}")
    p("s_nop 0")
    for nt in range(2):
        for pr in range(2):
            b = WF + 8 * nt + 4 * pr
            p(f"v_permlane32_swap_b32 {v(b)}, {v(b+2)}")
            p(f"v_permlane32_swap_b32 {v(b+1)}, {v(b+3)}")
            p(f"buffer_store_dwordx4 {v(b,4)}, v2, s[16:19], s10 offen offset:{64*nt+32*pr}")
    stamp(p, 3); stamp(p, 4, True)
    stamp_flush(p, 2, 6, 59)
    p("s_endpgm")
    p.label("K3_HELPER")
    emit_s3(p, "K3", 8)
    return 128

def build(path, which=("k1", "k2", "k3")):
    p = Prog()
    descs = []
    launches = []
    if "k1" in which:
        vg = emit_k1(p); descs.append(kernel_desc("k1_kernel", vg)); launches.append(("k1_kernel", 256, 768, 163840))
    if "k2" in which:
        vg = emit_k2(p); descs.append(kernel_desc("k2_kernel", vg)); launches.append(("k2_kernel", 256, 768, 131072))
    if "k3" in which:
        vg = emit_k3(p); descs.append(kernel_desc("k3_kernel", vg)); launches.append(("k3_kernel", 256, 768, 131072))
    hdr = open("concat_heads__ssm_conv_h3__mha_block__prompt.s.ref").read().split("\n")
    hdr = [l for l in hdr if l.startswith(";") and "@launch" not in l and "Override" not in l and "grid=ceil" not in l]
    out = "\n".join(hdr) + "\n"
    for (k, g, b, l) in launches: out += f"; @launch kernel={k} grid=({g},1,1) block=({b},1,1) lds={l}\n"
    out += '.amdgcn_target "amdgcn-amd-amdhsa--gfx950"\n.text\n'
    body = p.text()
    nbad = check(body)
    out += body
    out += '.section .rodata,"a"\n'
    for d in descs: out += ".p2align 6\n" + d
    open(path, "w").write(out)
    return nbad

if __name__ == "__main__":
    nb = build(sys.argv[1] if len(sys.argv) > 1 else "out.s")
    print("hazards:", nb)
```

```python
import sys, os, struct, math
sys.path.insert(0, os.path.dirname(os.path.abspath(__file__)))
from asmlib import Prog, v, s, check

MB = 1 << 20
WS_Q, WS_K, WS_V, WS_O, WS_XR, WS_Y, WS_FL = 0, 4 * MB, 8 * MB, 12 * MB, 16 * MB, 21 * MB, 25 * MB
XRS = 4224
WS_SIZE = 32 * MB
FLS = 4352
A_Q, A_K, A_V, A_SK, A_SSMK, A_D, B_X, B_WQKV, B_WO, D_OUT, D_DBG, D_WS = [8 * i for i in range(12)]
def f32bits(x): return struct.unpack("<I", struct.pack("<f", x))[0]
QSCALE = f32bits((32 ** -0.5) * math.log2(math.e))
STAMP = os.environ.get("STAMP", "0") == "1"
OPT = dict(kv.split("=") for kv in os.environ.get("OPT", "").split(",") if kv)
def opt(k, d=0): return int(OPT.get(k, d))
WS_ST = 28 * MB

def mf32(d, a, b, c): return f"v_mfma_f32_32x32x16_bf16 {v(d,16)}, {v(a,4)}, {v(b,4)}, {v(c,16) if isinstance(c,int) else c}"
def mf16(d, a, b, c): return f"v_mfma_f32_16x16x32_bf16 {v(d,4)}, {v(a,4)}, {v(b,4)}, {v(c,4) if isinstance(c,int) else c}"

def srd(p, d, lo, hi, nrec, off=None):
    if off is None:
        if lo != d: p(f"s_mov_b32 {s(d)}, {s(lo)}")
        if hi != d + 1: p(f"s_mov_b32 {s(d+1)}, {s(hi)}")
    else:
        p(f"s_add_u32 {s(d)}, {s(lo)}, {off}")
        p(f"s_addc_u32 {s(d+1)}, {s(hi)}, 0")
    p(f"s_mov_b32 {s(d+2)}, {nrec}")
    p(f"s_mov_b32 {s(d+3)}, 0x20000")

def stamp(p, i, real=False):
    if STAMP: p(f"{'s_memrealtime' if real else 's_memtime'} s[{60+2*i}:{61+2*i}]")
def stamp_flush(p, kidx, n, wave_sgpr=59):
    if not STAMP: return
    p(f"s_load_dwordx2 s[56:57], s[0:1], {D_WS}")
    p("s_lshl_b32 s58, s2, 4")
    p(f"s_add_u32 s58, s58, {s(wave_sgpr)}")
    p("s_lshl_b32 s58, s58, 6")
    p(f"s_add_u32 s58, s58, {WS_ST + kidx * 262144}")
    p("s_waitcnt lgkmcnt(0)")
    p("v_mov_b32 v2, s58")
    for i in range(n):
        p(f"v_mov_b32 v3, s{60+2*i}")
        p(f"global_store_dword v2, v3, s[56:57] offset:{4*i}")
def lstamp_flush(p, kidx, vreg, wave_sgpr=59):
    if not STAMP: return
    p(f"s_load_dwordx2 s[56:57], s[0:1], {D_WS}")
    p("s_lshl_b32 s58, s2, 4")
    p(f"s_add_u32 s58, s58, {s(wave_sgpr)}")
    p("s_lshl_b32 s58, s58, 8")
    p(f"s_add_u32 s58, s58, {WS_ST + MB + kidx * MB}")
    p("v_mbcnt_lo_u32_b32 v2, -1, 0")
    p("v_mbcnt_hi_u32_b32 v2, -1, v2")
    p("v_lshl_add_u32 v2, v2, 2, s58")
    p("s_waitcnt lgkmcnt(0)")
    p(f"global_store_dword v2, {v(vreg)}, s[56:57]")

def kernel_head(p, name):
    p(f".globl {name}")
    p(".p2align 8")
    p(f".type {name},@function")
    p.label(name)

def kernel_desc(name, vgpr, sgpr=102):
    acc = (vgpr + 3) // 4 * 4
    return f""".amdhsa_kernel {name}
  .amdhsa_next_free_vgpr {vgpr}
  .amdhsa_next_free_sgpr {sgpr}
  .amdhsa_accum_offset {acc}
  .amdhsa_group_segment_fixed_size 0
  .amdhsa_kernarg_size 96
  .amdhsa_user_sgpr_count 2
  .amdhsa_user_sgpr_kernarg_segment_ptr 1
  .amdhsa_system_sgpr_workgroup_id_x 1
.end_amdhsa_kernel
"""

def pf_addr(p, vx, vw, which=(0, 1)):
    if 0 in which:
        p("s_and_b32 s29, s27, 3")
        p("s_lshl_b32 s29, s29, 5")
        p("s_lshl_b32 s10, s26, 7")
        p("s_add_u32 s29, s29, s10")
        p("v_lshrrev_b32 v1, 1, v0")
        p("v_add_u32 v1, s29, v1")
        p("v_lshlrev_b32 v1, 11, v1")
        p("v_and_b32 v2, 1, v0")
        p(f"v_lshl_add_u32 {v(vx)}, v2, 7, v1")
    if 1 in which:
        p("v_lshrrev_b32 v2, 5, v0")
        p("v_lshlrev_b32 v2, 6, v2")
        p("v_bfe_u32 v3, v0, 2, 3")
        p("s_and_b32 s29, s26, 7")
        p("s_lshl_b32 s29, s29, 3")
        p("v_add3_u32 v2, v2, v3, s29")
        p("v_mul_u32_u24 v2, 6144, v2")
        p("v_and_b32 v3, 3, v0")
        p("v_min_u32 v3, 2, v3")
        p("v_lshl_add_u32 v2, v3, 11, v2")
        p("s_lshl_b32 s29, s27, 7")
        p(f"v_add_u32 {v(vw)}, s29, v2")

def emit_k1(p):
    DF = {0: "", 1: " nt", 2: " sc1", 3: " sc0 sc1", 4: " sc0"}[opt("df")]
    NS = opt("ns", 3)
    XREG, WREG = 0, NS * 16384
    kernel_head(p, "k1_kernel")
    p("s_cmp_ge_u32 s2, 256")
    p("s_cbranch_scc1 K1_END")
    p(f"s_load_dwordx4 s[4:7], s[0:1], {B_X}")
    p("v_lshrrev_b32 v1, 6, v0")
    p("v_and_b32 v0, 63, v0")
    p("s_and_b32 s8, s2, 7")
    p("v_readfirstlane_b32 s3, v1")
    stamp(p, 0); stamp(p, 1, True)
    p("s_lshr_b32 s9, s2, 3")
    if STAMP: p("s_mov_b32 s59, s3")
    p("s_and_b32 s26, s8, 1")
    p("s_lshl_b32 s26, s26, 3")
    p("s_and_b32 s10, s9, 7")
    p("s_add_u32 s26, s26, s10")
    p("s_lshr_b32 s27, s8, 1")
    p("s_lshl_b32 s27, s27, 2")
    p("s_lshr_b32 s10, s9, 3")
    p("s_add_u32 s27, s27, s10")
    p("s_cmp_ge_u32 s3, 4")
    p("s_cbranch_scc1 K1_NOTLOADER")
    if opt("pf0", 1):
        p("s_bitcmp1_b32 s3, 0")
        p("s_cbranch_scc1 K1_PFW")
        pf_addr(p, 16, 16, (0,))
        p("s_lshl_b32 s10, s3, 7")
        p("s_waitcnt lgkmcnt(0)")
        srd(p, 40, 4, 5, 4 * MB)
        p("s_branch K1_PFGO")
        p.label("K1_PFW")
        pf_addr(p, 16, 16, (1,))
        p("s_lshr_b32 s10, s3, 1")
        p(f"s_mul_i32 s10, s10, {128*6144}")
        p("s_waitcnt lgkmcnt(0)")
        srd(p, 40, 6, 7, 6 * MB)
        p.label("K1_PFGO")
        p("buffer_load_dword v17, v16, s[40:43], s10 offen")
    p("v_lshrrev_b32 v2, 3, v0")
    p("v_lshlrev_b32 v2, 11, v2")
    p("v_lshrrev_b32 v3, 4, v0")
    p("v_and_b32 v4, 7, v0")
    p("v_xor_b32 v4, v4, v3")
    p("v_lshl_add_u32 v2, v4, 4, v2")
    p("s_lshl_b32 s10, s3, 16")
    p("v_add_u32 v10, s10, v2")
    p("v_xor_b32 v11, 64, v10")
    p(f"v_add_u32 v12, {32768-2048}, v10")
    p(f"v_add_u32 v13, {49152-3072}, v11")
    p(f"v_add_u32 v11, {16384-1024}, v11")
    p("v_lshrrev_b32 v2, 5, v0")
    p("v_lshlrev_b32 v2, 2, v2")
    p("v_bfe_u32 v4, v0, 2, 2")
    p("s_lshl_b32 s10, s3, 4")
    p("v_add3_u32 v2, v2, v4, s10")
    p("v_mul_u32_u24 v2, 6144, v2")
    p("v_and_b32 v3, 1, v3")
    p("v_lshl_add_u32 v2, v3, 6, v2")
    p("v_and_b32 v4, 3, v0")
    p("v_lshl_add_u32 v14, v4, 4, v2")
    p("v_add_u32 v15, 48128, v14")
    p("s_lshl_b32 s23, s3, 12")
    p("s_mul_i32 s24, s3, 6144")
    p(f"s_add_u32 s24, s24, {WREG}")
    p("s_mov_b32 s20, 0")
    p("s_mov_b32 s21, 0")
    p("s_mov_b32 s25, 0")
    p("s_lshl_b32 s10, s26, 18")
    p("s_lshl_b32 s11, s27, 7")
    p(f"s_sub_u32 s18, {1024*6144}, s11")
    p("s_mov_b32 s14, 262144")
    p("s_mov_b32 s15, 0x20000")
    p("s_mov_b32 s19, 0x20000")
    p("s_waitcnt lgkmcnt(0)")
    p("s_add_u32 s12, s4, s10")
    p("s_addc_u32 s13, s5, 0")
    p("s_add_u32 s16, s6, s11")
    p("s_addc_u32 s17, s7, 0")
    stamp(p, 2)
    p("s_branch K1_LISSUE")
    p.label("K1_LLOOP")
    p("s_cmp_lt_u32 s25, 2")
    p("s_cbranch_scc1 K1_LISSUE")
    stamp(p, 6)
    p("s_waitcnt vmcnt(10)")
    stamp(p, 7)
    p("s_barrier")
    if STAMP:
        p("s_waitcnt lgkmcnt(0)")
        p("s_lshl_b32 m0, s25, 1")
        p("s_nop 0")
        p("v_writelane_b32 v20, s72, m0")
        p("s_add_u32 m0, m0, 1")
        p("s_nop 0")
        p("v_writelane_b32 v20, s74, m0")
    p.label("K1_LISSUE")
    p("s_mov_b32 m0, s23")
    p("s_add_u32 s22, s21, 4096")
    for jj in range(4):
        p(f"buffer_load_dwordx4 {v(10+jj)}, s[12:15], s20 offen offset:{1024*jj}{DF} lds")
    p("s_mov_b32 m0, s24")
    p("s_add_u32 s20, s20, 128")
    for ii in range(4):
        p(f"buffer_load_dwordx4 {v(14+(ii&1))}, s[16:19], s21 offen offset:{1024*ii}{DF} lds")
    p("s_add_u32 m0, s24, 4096")
    p("s_add_u32 s21, s21, 393216")
    for ii in range(2):
        p(f"buffer_load_dwordx4 {v(14+ii)}, s[16:19], s22 offen offset:{1024*ii}{DF} lds")
    p("s_add_u32 s23, s23, 16384")
    p("s_add_u32 s24, s24, 24576")
    p(f"s_cmp_ge_u32 s23, {WREG}")
    p(f"s_cselect_b32 s10, {NS*16384}, 0")
    p(f"s_cselect_b32 s11, {NS*24576}, 0")
    p("s_sub_u32 s23, s23, s10")
    p("s_sub_u32 s24, s24, s11")
    p("s_add_u32 s25, s25, 1")
    p("s_cmp_lt_u32 s25, 16")
    p("s_cbranch_scc1 K1_LLOOP")
    for n in (10, 0):
        p(f"s_waitcnt vmcnt({n})")
        p("s_barrier")
    stamp(p, 3); stamp(p, 4, True)
    stamp_flush(p, 0, 5); lstamp_flush(p, 0, 20)
    p.label("K1_END")
    p("s_endpgm")
    p.label("K1_NOTLOADER")
    p(f"s_load_dwordx2 s[30:31], s[0:1], {D_WS}")
    p("s_cmp_ge_u32 s3, 8")
    p("s_cbranch_scc1 K1_HELPER")
    ACC = 64
    FB = 20
    XB, XC, WB, WC = 4, 8, 12, 13
    p("s_sub_u32 s3, s3, 4")
    p("s_lshr_b32 s28, s3, 1")
    p("s_and_b32 s29, s3, 1")
    p("v_and_b32 v1, 31, v0")
    p("v_lshrrev_b32 v2, 5, v0")
    p("v_bfe_u32 v3, v0, 1, 3")
    p("v_xor_b32 v3, v3, v2")
    p("v_lshlrev_b32 v3, 4, v3")
    p("v_lshl_add_u32 v3, v1, 7, v3")
    p("s_lshl_b32 s10, s28, 13")
    p(f"v_add_u32 {v(XB)}, s10, v3")
    for ks in range(1, 4): p(f"v_xor_b32 {v(XB+ks)}, {32*ks}, {v(XB)}")
    p("v_lshlrev_b32 v2, 10, v2")
    p("v_bfe_u32 v3, v0, 2, 2")
    p("v_lshl_add_u32 v2, v3, 6, v2")
    p("v_bfe_u32 v3, v0, 4, 1")
    p("v_lshl_add_u32 v2, v3, 5, v2")
    p("v_and_b32 v3, 3, v0")
    p("v_lshl_add_u32 v2, v3, 3, v2")
    p("s_lshl_b32 s10, s29, 8")
    p(f"s_add_u32 s10, s10, {WREG}")
    p(f"v_add_u32 {v(WB)}, s10, v2")
    for ks in range(4): p(f"v_mov_b32 {v(XC+ks)}, {v(XB+ks)}")
    p(f"v_mov_b32 {v(WC)}, {v(WB)}")
    for i in range(FB + 20, FB + 40): p(f"v_mov_b32 {v(i)}, 0")
    for i in range(ACC, ACC + 96): p(f"v_mov_b32 {v(i)}, 0")
    p("s_mov_b32 s20, 16384")
    p("s_mov_b32 s21, 24576")
    p("s_mov_b32 s25, 15")
    def frag(b, which):
        return FB + 20 * b + {"x0": 0, "x1": 4, "w0": 8, "w1": 12, "w2": 16}[which]
    def mfmas(b):
        L = []
        for (ty, rt) in ((0, 0), (1, 0), (0, 1), (1, 1), (2, 0), (2, 1)):
            d = ACC + (rt * 3 + ty) * 16
            x, w = frag(b, f"x{rt}"), frag(b, f"w{ty}")
            L.append(mf32(d, w, x, d) if ty < 2 else mf32(d, x, w, d))
        return L
    def reads(b, ks):
        def rx(rt): return f"ds_read_b128 {v(frag(b, f'x{rt}'),4)}, {v(XC+ks)} offset:{rt*4096}"
        def rw(ty, h): return f"ds_read_b64_tr_b16 {v(frag(b, f'w{ty}')+2*h,2)}, {v(WC)} offset:{ks*6144+ty*2048+h*512}"
        return [rx(0), rw(0,0), rw(0,1), rw(1,0), rw(1,1), rx(1), rw(2,0), rw(2,1)]
    p("s_waitcnt lgkmcnt(0)")
    p("s_barrier")
    stamp(p, 7)
    p.label("K1_CLOOP")
    w = lambda n: p(f"s_waitcnt lgkmcnt({n})")
    for ks in range(3):
        b = ks & 1
        M = mfmas(b ^ 1); R = reads(b, ks)
        if ks: w(5)
        p(M[0]); p(R[0]); p(R[1])
        if ks: w(5)
        p(M[1]); p(R[2]); p(R[3])
        if ks: w(6)
        p(M[2]); p(R[4]); p(R[5])
        p(M[3]); p(R[6]); p(R[7])
        if ks: w(8)
        p(M[4]); p(M[5])
    M = mfmas(0); R = reads(1, 3)
    w(5); p(M[0]); p(R[0]); p(R[1]); p(R[2])
    w(6); p(M[1]); p(R[3]); p(R[4]); p(R[5])
    w(8); p(M[2]); p(R[6]); p(R[7])
    for ks in range(3): p(f"v_add_u32 {v(XC+ks)}, s20, {v(XB+ks)}")
    p(M[3])
    p(f"v_add_u32 {v(XC+3)}, s20, {v(XB+3)}")
    p(f"v_add_u32 {v(WC)}, s21, {v(WB)}")
    p("s_add_u32 s20, s20, 16384")
    p("s_add_u32 s21, s21, 24576")
    p(f"s_cmp_ge_u32 s20, {NS*16384}")
    p("s_cselect_b32 s20, 0, s20")
    w(8); p(M[4])
    p("s_cselect_b32 s21, 0, s21")
    p("s_cmp_eq_u32 s25, 0")
    p("s_cbranch_scc1 K1_CDONE")
    stamp(p, 6)
    p("s_waitcnt lgkmcnt(0)")
    if STAMP:
        p("s_sub_u32 m0, 17, s25")
        p("s_lshl_b32 m0, m0, 1")
        p("v_writelane_b32 v14, s72, m0")
        p("s_sub_u32 m0, m0, 1")
        p("s_nop 0")
        p("v_writelane_b32 v14, s74, m0")
    p("s_barrier")
    stamp(p, 7)
    p(M[5])
    p("s_sub_u32 s25, s25, 1")
    p("s_branch K1_CLOOP")
    p.label("K1_CDONE")
    p(M[5])
    p("s_waitcnt lgkmcnt(0)")
    for m in mfmas(1): p(m)
    stamp(p, 2)
    srd(p, 12, 30, 31, WS_SIZE)
    p("s_lshl_b32 s10, s27, 1")
    p("s_add_u32 s10, s10, s29")
    p("s_lshl_b32 s10, s10, 6")
    p("s_lshl_b32 s11, s26, 2")
    p("s_add_u32 s10, s10, s11")
    p("s_lshl_b32 s11, s28, 1")
    p("s_add_u32 s10, s10, s11")
    p("s_lshl_b32 s10, s10, 11")
    p(f"s_add_u32 s11, s10, {WS_K}")
    p(f"s_add_u32 s16, s10, {WS_V}")
    p(f"s_mov_b32 s17, {QSCALE}")
    p("v_lshlrev_b32 v1, 4, v0")
    n = 0
    for (ty, rt) in ((1, 0), (0, 0), (1, 1), (0, 1), (2, 0), (2, 1)):
        d = ACC + (rt * 3 + ty) * 16
        o = FB + 8 * (n % 4); n += 1
        if ty == 0:
            for i in range(16): p(f"v_mul_f32 {v(d+i)}, s17, {v(d+i)}")
        so = (10, 11, 16)[ty]
        for j in range(2):
            for i in range(4 * j, 4 * j + 4): p(f"v_cvt_pk_bf16_f32 {v(o+i)}, {v(d+2*i)}, {v(d+2*i+1)}")
            p(f"buffer_store_dwordx4 {v(o+4*j,4)}, v1, s[12:15], {s(so)} offen offset:{rt*2048+j*1024}")
    stamp(p, 3)
    if STAMP: p("s_waitcnt vmcnt(0)")
    stamp(p, 5); stamp(p, 4, True)
    stamp_flush(p, 0, 6); lstamp_flush(p, 0, 14)
    p("s_endpgm")
    p.label("K1_HELPER")
    PFS = {0: {},
           1: {-1: [1, 2], 0: [3], 2: [4], 4: [5], 6: [6], 8: [7]},
           3: {-1: [1], 0: [2], 1: [3], 3: [4], 5: [5], 7: [6], 9: [7]},
           4: {0: [2], 1: [3], 3: [4], 5: [5], 7: [6], 9: [7]},
           5: {-1: [2], 0: [3], 2: [4], 4: [5], 6: [6], 8: [7]},
           6: {0: [2, 3], 2: [4], 4: [5], 6: [6], 8: [7]}}[opt("pf", 4)]
    p(f"s_load_dwordx4 s[36:39], s[0:1], {A_K}")
    pf_addr(p, 4, 5)
    p("s_waitcnt lgkmcnt(0)")
    srd(p, 40, 4, 5, 4 * MB)
    srd(p, 44, 6, 7, 6 * MB)
    def pf(pp):
        p(f"s_mov_b32 s34, {pp*128*6144}")
        p(f"buffer_load_dword v6, v4, s[40:43], 0 offen offset:{256*pp}")
        p(f"buffer_load_dword v7, v5, s[44:47], s34 offen")
    for pp in PFS.get(-1, []): pf(pp)
    TW = opt("tw", 14)
    for b_ in range(16):
        p("s_barrier")
        for pp in PFS.get(b_, []): pf(pp)
        if b_ == 0:
            srd(p, 12, 30, 31, 32 * FLS, off=WS_FL)
            p(f"s_mul_i32 s10, s2, {FLS}")
            p("v_lshlrev_b32 v8, 2, v0")
            p("v_mov_b32 v9, 0")
            p("buffer_store_dword v9, v8, s[12:15], s10 offen")
            srd(p, 16, 36, 37, 4 * MB)
            srd(p, 20, 38, 39, 4 * MB)
            p("v_lshlrev_b32 v8, 7, v0")
            p("s_lshl_b32 s10, s2, 14")
            p("s_add_u32 s11, s10, 8192")
        if b_ == TW:
            for sr in (16, 20):
                for so in (10, 11): p(f"buffer_load_dword v6, v8, s[{sr}:{sr+3}], s{so} offen")
        if b_ >= max(TW, 12) and b_ < 15 and TW > 15: break
    p("s_endpgm")
    return 160, 576, NS * 40960

K2_NS = 6
K2_CNT = K2_NS * 16384
CV_BASE = K2_CNT + 256
CV_STRIDE = 15616
CV_C1 = 5120 + 64
CV_H = 2 * 5120 + 128
SC = {0: " sc1", 1: " sc0 sc1", 2: ""}[opt("sc")]
def emit_partA(p, pre):
    p(f"s_load_dwordx8 s[36:43], s[0:1], {A_Q}")
    p(f"s_load_dwordx4 s[44:47], s[0:1], {A_SSMK}")
    p(f"s_load_dwordx4 s[48:51], s[0:1], {B_WO}")
    p("s_barrier")
    p(f"s_setprio {opt('cvprio', 3)}")
    p("s_sub_u32 s3, s3, 9")
    p("s_and_b32 s28, s2, 15")
    p("s_and_b32 s10, s28, 7")
    p("s_lshr_b32 s11, s28, 3")
    p("s_lshl_b32 s28, s10, 1")
    p("s_add_u32 s28, s28, s11")
    p("s_lshr_b32 s29, s2, 4")
    p("s_lshl_b32 s29, s29, 2")
    p("s_add_u32 s29, s29, s3")
    p("s_lshl_b32 s27, s28, 6")
    p("s_add_u32 s27, s27, s29")
    p(f"s_mul_i32 s30, s3, {CV_STRIDE}")
    p(f"s_add_u32 s30, s30, {CV_BASE}")
    p("v_and_b32 v1, 7, v0")
    p("v_lshrrev_b32 v2, 3, v0")
    p("s_lshl_b32 s10, s29, 5")
    p("v_lshl_add_u32 v3, v2, 2, s10")
    p("s_lshl_b32 s11, s28, 7")
    p("v_lshl_add_u32 v4, v1, 4, s11")
    p("v_lshl_add_u32 v120, v3, 11, v4")
    p("v_lshl_add_u32 v122, v3, 12, v4")
    p("v_lshlrev_b32 v121, 11, v4")
    p("v_lshl_add_u32 v121, v2, 4, v121")
    p("s_lshr_b32 s31, s29, 4")
    p("s_lshl_b32 s31, s31, 10")
    p("s_and_b32 s26, s29, 7")
    p("s_lshl_b32 s26, s26, 7")
    p("s_add_u32 s31, s31, s26")
    p("s_and_b32 s26, s29, 8")
    p("s_add_u32 s31, s31, s26")
    p("v_add_u32 v121, s31, v121")
    p("v_and_b32 v123, 15, v0")
    p("v_lshlrev_b32 v123, 2, v123")
    p("v_lshlrev_b32 v124, 4, v0")
    p("v_and_b32 v1, 15, v0")
    p("v_lshrrev_b32 v2, 4, v0")
    p("v_lshl_add_u32 v3, v2, 3, s10")
    p("v_lshl_add_u32 v4, v1, 3, s11")
    p("v_lshl_add_u32 v9, v3, 11, v4")
    for j in range(3): p(f"v_add_u32 {v(6+j)}, {(j-3)*2048}, v9")
    for j in range(1, 4): p(f"v_add_u32 {v(9+j)}, {j*4096}, v9")
    p("v_lshlrev_b32 v13, 2, v4")
    p("v_lshrrev_b32 v14, 1, v4")
    p(f"v_mul_u32_u24 v14, {XRS}, v14")
    p("v_lshlrev_b32 v15, 1, v3")
    p("v_sub_u32 v15, 4080, v15")
    p("v_add_u32 v15, v15, v14")
    p("v_lshl_add_u32 v14, v2, 4, v14")
    p("v_add_u32 v1, -512, v124")
    p("v_add_u32 v2, 512, v124")
    p("s_lshl_b32 s33, s27, 12")
    p("s_lshl_b32 s10, s27, 1")
    p("v_mov_b32 v3, s10")
    p("s_mov_b32 s32, 0xffff0000")
    p(f"s_mul_i32 s34, s28, {FLS}")
    p(f"s_add_u32 s34, s34, {WS_FL}")
    p("s_and_b32 s35, s29, 60")
    p(f"s_mul_i32 s31, s27, {XRS}")
    p(f"s_add_u32 s31, s31, {WS_XR}")
    p("s_add_u32 s26, s31, 4096")
    p("s_waitcnt lgkmcnt(0)")
    srd(p, 12, 4, 5, WS_SIZE)
    srd(p, 16, 38, 39, 4 * MB)
    srd(p, 20, 40, 41, 4 * MB)
    srd(p, 52, 42, 43, 8192)
    p(f"v_mov_b32 v126, {K2_CNT}")
    p.label(f"{pre}_HW0")
    p("s_sleep 2")
    p("ds_read_b32 v127, v126 offset:4")
    p("s_waitcnt lgkmcnt(0)")
    p(f"v_cmp_gt_u32 vcc, {opt('hw0', 4)}, v127")
    p(f"s_cbranch_vccnz {pre}_HW0")
    KR, VR, SR = 16, 38, 56
    def rowaddr(j):
        if j < 3: return v(6 + j), 0
        return v(9 + (j - 3) // 2), 2048 * ((j - 3) & 1)
    for j in range(2): p(f"buffer_load_dwordx4 {v(SR+4*j,4)}, v13, s[52:55], 0 offen offset:{16*j}")
    for j in range(11):
        a_, o_ = rowaddr(j); p(f"buffer_load_dwordx2 {v(KR+2*j,2)}, {a_}, s[16:19], 0 offen offset:{o_}")
    for j in range(8):
        a_, o_ = rowaddr(j + 3); p(f"buffer_load_dwordx2 {v(VR+2*j,2)}, {a_}, s[20:23], 0 offen offset:{o_}")
    srd(p, 16, 44, 45, 4096, off="s33")
    srd(p, 20, 46, 47, 2048)
    T, KU, AC, OUT = 64, 72, 94, 112
    for cp in range(2):
        if cp == 0:
            p("s_waitcnt vmcnt(8)"); stamp(p, 2)
        for e in range(2):
            for jj in range(2):
                src = SR + 4 * cp + 2 * e + jj
                p(f"v_lshlrev_b32 {v(T+2*(2*jj)+e)}, 16, {v(src)}")
                p(f"v_and_b32 {v(T+2*(2*jj+1)+e)}, s32, {v(src)}")
        for j in range(11):
            p(f"v_lshlrev_b32 {v(KU+2*j)}, 16, {v(KR+2*j+cp)}")
            p(f"v_and_b32 {v(KU+2*j+1)}, s32, {v(KR+2*j+cp)}")
        for t in range(8): p(f"v_pk_mul_f32 {v(AC+2*t,2)}, {v(KU+2*t,2)}, {v(T+6,2)}")
        for j in (2, 1, 0):
            for t in range(8): p(f"v_pk_fma_f32 {v(AC+2*t,2)}, {v(KU+2*(t-j+3),2)}, {v(T+2*j,2)}, {v(AC+2*t,2)}")
        if cp == 0: p("s_waitcnt vmcnt(0)")
        for j in range(8):
            p(f"v_lshlrev_b32 {v(KU+2*j)}, 16, {v(VR+2*j+cp)}")
            p(f"v_and_b32 {v(KU+2*j+1)}, s32, {v(VR+2*j+cp)}")
        for t in range(8): p(f"v_pk_mul_f32 {v(AC+2*t,2)}, {v(AC+2*t,2)}, {v(KU+2*t,2)}")
        for e in range(2):
            for i in range(4): p(f"v_cvt_pk_bf16_f32 {v(OUT+4*e+i)}, {v(AC+2*(7-2*i)+e)}, {v(AC+2*(6-2*i)+e)}")
            p(f"s_mov_b32 s10, {WS_XR + (2*cp+e)*XRS}")
            p(f"buffer_store_dwordx4 {v(OUT+4*e,4)}, v15, s[12:15], s10 offen{SC}")
    p("s_cmp_lg_u32 s29, 0")
    p(f"s_cbranch_scc1 {pre}_S1END")
    for i in range(4): p(f"v_mov_b32 {v(8+i)}, 0")
    for c in range(4):
        p(f"s_mov_b32 s10, {WS_XR + c*XRS + 4096}")
        p(f"buffer_store_dwordx4 v[8:11], v14, s[12:15], s10 offen{SC}")
    p.label(f"{pre}_S1END")
    p("v_mov_b32 v118, v1")
    p("v_mov_b32 v119, v2")
    p("v_mov_b32 v117, v3")
    def signal_and_wait(tag, work=None):
        p(f"v_mov_b32 v1, {K2_CNT + 8 * tag}")
        p("v_mov_b32 v2, 1")
        p("s_waitcnt vmcnt(0)")
        stamp(p, 9 + 2 * tag)
        p("s_mov_b64 exec, 1")
        p("ds_add_rtn_u32 v126, v1, v2")
        p("s_mov_b64 exec, -1")
        p("v_mov_b32 v127, s35")
        p("s_mov_b32 s25, 0x40000")
        p("s_waitcnt lgkmcnt(0)")
        p("v_readfirstlane_b32 s24, v126")
        p("s_cmp_lg_u32 s24, 3")
        p(f"s_cbranch_scc1 {pre}_NOSIG{tag}")
        p("s_mov_b64 exec, 1")
        p(f"buffer_store_dword v2, v127, s[12:15], s34 offen{SC}")
        p("s_mov_b64 exec, -1")
        p.label(f"{pre}_NOSIG{tag}")
        if work: work()
        p("s_cmp_lg_u32 s24, 3")
        p(f"s_cbranch_scc1 {pre}_LWAIT{tag}")
        p.label(f"{pre}_POLL{tag}")
        p(f"s_sleep {opt('slp', 8)}")
        p(f"buffer_load_dword v126, v123, s[12:15], s34 offen{SC}")
        p("s_sub_u32 s25, s25, 1")
        p(f"s_cbranch_scc1 {pre}_GOT{tag}")
        p("s_waitcnt vmcnt(0)")
        p("v_cmp_ne_u32 vcc, 1, v126")
        p(f"s_cbranch_vccnz {pre}_POLL{tag}")
        p.label(f"{pre}_GOT{tag}")
        p("ds_write_b32 v1, v2 offset:4")
        p(f"s_branch {pre}_GO{tag}")
        p.label(f"{pre}_LWAIT{tag}")
        p("s_sleep 2")
        p("ds_read_b32 v126, v1 offset:4")
        p("s_waitcnt lgkmcnt(0)")
        p("v_cmp_ne_u32 vcc, 1, v126")
        p(f"s_cbranch_vccnz {pre}_LWAIT{tag}")
        p.label(f"{pre}_GO{tag}")
        stamp(p, 10 + 2 * tag)
    AB, BB, KVB, ST = 8, 12, 13, 14
    FA, FBB, ACC = 16, 48, 80
    def conv_setup():
        p("v_and_b32 v5, 15, v0")
        p("v_lshrrev_b32 v6, 4, v0")
        p("v_lshrrev_b32 v3, 1, v5")
        p("v_lshlrev_b32 v4, 2, v6")
        p("v_sub_u32 v4, v4, v3")
        p("v_lshlrev_b32 v4, 2, v4")
        p("v_and_b32 v3, 1, v5")
        p("v_xor_b32 v3, 1, v3")
        p(f"v_mul_u32_u24 v3, {CV_C1}, v3")
        p(f"s_add_u32 s10, s30, {4*1023 - 32*(112+1)}")
        p(f"v_add3_u32 {v(AB)}, v4, v3, s10")
        for kk in range(1, 4): p(f"v_add_u32 {v(AB+kk)}, {1024*kk}, {v(AB)}")
        p("v_lshlrev_b32 v3, 5, v5")
        p("v_lshl_add_u32 v4, v6, 4, v3")
        p(f"s_add_u32 s10, s30, {CV_H + 512 - 32}")
        p(f"v_add_u32 {v(BB)}, s10, v4")
        p(f"v_lshl_add_u32 {v(ST)}, v6, 3, v3")
        p(f"s_add_u32 s10, s30, {4088 - 512*7}")
        p(f"v_sub_u32 {v(KVB)}, s10, {v(ST)}")
        for i in range(32): p(f"v_mov_b32 {v(ACC+i)}, 0")
    def hload():
        p(f"s_add_u32 m0, s30, {CV_H}")
        p("buffer_load_ushort v125, v117, s[20:23], 0 offen")
        p("buffer_load_dwordx4 v118, s[16:19], 0 offen lds")
        p(f"s_add_u32 m0, s30, {CV_H + 1024}")
        p("s_nop 0")
        for j in range(4): p(f"buffer_load_dwordx4 v119, s[16:19], 0 offen offset:{1024*j} lds")
        conv_setup()
        p("v_add_u32 v7, 2, v124")
    stamp(p, 5)
    signal_and_wait(1, hload)
    for (src_v, off) in ((124, 0), (7, CV_C1)):
        p(f"s_add_u32 m0, s30, {off}")
        p("s_nop 0")
        for j in range(4): p(f"buffer_load_dwordx4 {v(src_v)}, s[12:15], s31 offen offset:{1024*j}{SC} lds")
        p(f"s_add_u32 m0, s30, {off + 4096}")
        p("s_mov_b64 exec, 15")
        p(f"buffer_load_dwordx4 {v(src_v)}, s[12:15], s26 offen{SC} lds")
        p("s_mov_b64 exec, -1")
    p(f"s_add_u32 s34, s34, {16*FLS}")
    p("s_mov_b32 s25, 8")
    p("s_waitcnt vmcnt(0)")
    stamp(p, 7)
    p.label(f"{pre}_CVL")
    def rdA(a):
        kk, rem = (7 - a) >> 1, 128 * ((7 - a) & 1)
        return [f"ds_read2_b32 {v(FA+4*a,2)}, {v(AB+kk)} offset0:{rem} offset1:{rem+1}",
                f"ds_read2_b32 {v(FA+4*a+2,2)}, {v(AB+kk)} offset0:{rem+2} offset1:{rem+3}"]
    def cm(a, b):
        p(mf16(ACC+4*(a+b), FA+4*a, FBB+4*b, ACC+4*(a+b)))
        if opt("cvnop", -1) >= 0: p(f"s_nop {opt('cvnop')}")
    def rdB(b): return [f"ds_read_b128 {v(FBB+4*b,4)}, {v(BB)} offset:{512*b}"]
    for x in range(8):
        for r_ in rdA(x) + rdB(x): p(r_)
    for kk in range(4): p(f"v_add_u32 {v(AB+kk)}, -64, {v(AB+kk)}")
    p(f"v_add_u32 {v(BB)}, -64, {v(BB)}")
    p("s_waitcnt lgkmcnt(12)")
    for a in range(4):
        for b in range(4): cm(a, b)
    p("s_waitcnt lgkmcnt(0)")
    for a in range(8):
        for b in range(8 - a):
            if a >= 4 or b >= 4: cm(a, b)
    p("s_sub_u32 s25, s25, 1")
    p("s_cmp_lg_u32 s25, 0")
    p(f"s_cbranch_scc1 {pre}_CVL")
    stamp(p, 8)
    for t in range(8): p(f"ds_read_b64 {v(FA+2*t,2)}, {v(KVB)} offset:{512*(7-t)}")
    p("v_lshlrev_b32 v125, 16, v125")
    p(f"s_add_u32 s33, s33, {WS_Y}")
    p(f"v_lshlrev_b32 {v(ST)}, 1, {v(ST)}")
    for t in range(8):
        p(f"s_waitcnt lgkmcnt({7-t})")
        U = FBB + 4 * (t & 3); a = ACC + 4 * t; o = FBB + 16 + 2 * t
        p(f"v_and_b32 {v(U)}, s32, {v(FA+2*t+1)}")
        p(f"v_lshlrev_b32 {v(U+1)}, 16, {v(FA+2*t+1)}")
        p(f"v_and_b32 {v(U+2)}, s32, {v(FA+2*t)}")
        p(f"v_lshlrev_b32 {v(U+3)}, 16, {v(FA+2*t)}")
        for r_ in range(4): p(f"v_fmac_f32 {v(a+r_)}, v125, {v(U+r_)}")
        p(f"v_cvt_pk_bf16_f32 {v(o)}, {v(a)}, {v(a+1)}")
        p(f"v_cvt_pk_bf16_f32 {v(o+1)}, {v(a+2)}, {v(a+3)}")
        if t & 1: p(f"buffer_store_dwordx4 {v(o-2,4)}, {v(ST)}, s[12:15], s33 offen offset:{1024*(t>>1)}{SC}")
    QR, YR, U, OUT = 16, 32, 48, 64
    def qload():
        srd(p, 16, 36, 37, 4 * MB)
        srd(p, 20, 50, 51, 8 * MB)
        p("v_add_u32 v6, 4096, v120")
        for j in range(4): p(f"buffer_load_dwordx4 {v(QR+4*j,4)}, {('v120', 'v6')[j>>1]}, s[16:19], 0 offen offset:{2048*(j&1)}")
        if opt("wopf", 1):
            srd(p, 52, 48, 49, 2 * MB)
            p("s_lshl_b32 s10, s27, 11")
            p("v_lshlrev_b32 v7, 5, v0")
            p("buffer_load_dword v8, v7, s[52:55], s10 offen")
    stamp(p, 9)
    signal_and_wait(2, qload)
    stamp(p, 10)
    for c in range(8):
        p(f"s_mov_b32 s10, {WS_Y + c*4096}")
        p(f"buffer_load_dwordx2 {v(YR+2*c,2)}, v121, s[12:15], s10 offen{SC}")
    p("s_waitcnt vmcnt(0)")
    for t in range(4):
        for cp in range(4):
            u = U + 4 * (cp & 1)
            q = QR + 4 * t + cp
            p(f"v_lshlrev_b32 {v(u)}, 16, {v(q)}")
            p(f"v_and_b32 {v(u+1)}, s32, {v(q)}")
            for e in range(2):
                y = YR + 2 * (2 * cp + e) + (t >> 1)
                if t & 1: p(f"v_and_b32 {v(u+2+e)}, s32, {v(y)}")
                else: p(f"v_lshlrev_b32 {v(u+2+e)}, 16, {v(y)}")
            p(f"v_pk_mul_f32 {v(u,2)}, {v(u,2)}, {v(u+2,2)}")
            p(f"v_cvt_pk_bf16_f32 {v(OUT+4*t+cp)}, {v(u)}, {v(u+1)}")
        p(f"s_mov_b32 s10, {t*4096}")
        p(f"buffer_store_dwordx4 {v(OUT+4*t,4)}, v122, s[20:23], s10 offen")
    stamp(p, 3); stamp(p, 4, True)
    stamp_flush(p, 1, 15)
    p("s_endpgm")

def emit_k2(p):
    kernel_head(p, "k2_kernel")
    Q, ONES, L, P0, P1, F0, F1, NEGM, SA, SB, O = 4, 12, 16, 20, 24, 28, 44, 60, 76, 92, 108
    CA, CV_, ONE = 125, 126, 127
    RING = K2_NS * 16384
    p("s_cmp_ge_u32 s2, 256")
    p("s_cbranch_scc1 K2_END")
    p(f"s_load_dwordx2 s[4:5], s[0:1], {D_WS}")
    p("v_lshrrev_b32 v1, 6, v0")
    p("v_and_b32 v0, 63, v0")
    p("s_and_b32 s8, s2, 7")
    p("v_readfirstlane_b32 s3, v1")
    stamp(p, 0); stamp(p, 1, True)
    p("s_lshr_b32 s9, s2, 3")
    if STAMP:
        p("s_add_u32 s59, s3, 12")
        p("s_cmp_eq_u32 s3, 0")
        p("s_cselect_b32 s59, s59, s3")
        p("s_cselect_b32 s58, 0, 1")
        p("s_sub_u32 s59, s59, s58")
    p("s_cmp_ge_u32 s3, 9")
    p("s_cbranch_scc1 K2_HELPER")
    p("s_lshl_b32 s26, s8, 2")
    p("s_and_b32 s10, s9, 3")
    p("s_add_u32 s26, s26, s10")
    p("v_lshlrev_b32 v1, 4, v0")
    p("s_lshl_b32 s28, s26, 17")
    p(f"s_add_u32 s30, s28, {WS_K}")
    p(f"s_add_u32 s31, s28, {WS_V}")
    p(f"v_mov_b32 {v(CA)}, {K2_CNT}")
    p("s_cmp_lg_u32 s3, 0")
    p("s_cbranch_scc1 K2_ATT")
    p("v_add_u32 v2, 2048, v1")
    p("s_sub_u32 s31, s31, 2048")
    p("v_mov_b32 v3, 0")
    p(f"v_lshl_add_u32 v4, v0, 2, {v(CA)}")
    p("ds_write_b32 v4, v3")
    p("s_mov_b32 s20, 0")
    p("s_mov_b32 s21, 0")
    p("s_mov_b32 s25, 0")
    p(f"s_mov_b32 s24, {(-(K2_NS - 1)) & 0xffffffff}")
    p("v_and_b32 v4, 7, v0")
    p(f"v_lshl_add_u32 v4, v4, 2, {v(CA)}")
    p("s_setprio 3")
    p("s_waitcnt lgkmcnt(0)")
    srd(p, 16, 4, 5, 131072, off="s30")
    srd(p, 12, 4, 5, 131072 + 2048, off="s31")
    p("s_branch K2_LISSUE")
    p.label("K2_LSPIN")
    p("s_sleep 2")
    p.label("K2_LLOOP")
    p("ds_read_b32 v3, v4 offset:32")
    p("s_waitcnt lgkmcnt(0)")
    p("v_cmp_gt_i32 vcc, s24, v3")
    p("s_cbranch_vccnz K2_LSPIN")
    p.label("K2_LISSUE")
    for u in range(4):
        p("s_mov_b32 m0, s21")
        p("s_add_u32 s21, s21, 4096")
        for j in range(2): p(f"buffer_load_dwordx4 v2, s[16:19], s20 offen offset:{1024*j} lds")
        for j in range(2): p(f"buffer_load_dwordx4 v1, s[12:15], s20 offen offset:{2048+1024*j} lds")
        p("s_add_u32 s20, s20, 2048")
    p("s_cmp_lg_u32 s25, 0")
    p("s_cbranch_scc1 K2_LNB")
    p("s_barrier")
    p.label("K2_LNB")
    p(f"s_cmp_ge_u32 s21, {RING}")
    p("s_cselect_b32 s21, 0, s21")
    p("s_add_u32 s24, s24, 1")
    p("v_mov_b32 v3, s25")
    p("s_add_u32 s25, s25, 1")
    p("s_waitcnt vmcnt(16)")
    p(f"ds_write_b32 {v(CA)}, v3 offset:4")
    p("s_cmp_lt_u32 s25, 16")
    p("s_cbranch_scc1 K2_LLOOP")
    p("v_mov_b32 v3, 16")
    p("s_waitcnt vmcnt(0)")
    p(f"ds_write_b32 {v(CA)}, v3 offset:4")
    stamp(p, 3); stamp(p, 4, True)
    stamp_flush(p, 1, 5)
    p("s_endpgm")
    p.label("K2_ATT")
    p("s_lshr_b32 s27, s9, 2")
    p("s_lshl_b32 s27, s27, 3")
    p("s_add_u32 s27, s27, s3")
    p("s_sub_u32 s27, s27, 1")
    p("s_lshl_b32 s10, s27, 11")
    p("s_add_u32 s29, s28, s10")
    p("s_waitcnt lgkmcnt(0)")
    srd(p, 12, 4, 5, WS_SIZE)
    for j in range(2): p(f"buffer_load_dwordx4 {v(Q+4*j,4)}, v1, s[12:15], s29 offen offset:{1024*j}")
    for j in range(2): p(f"buffer_load_dwordx4 {v(F1+4*j,4)}, v1, s[12:15], s30 offen offset:{1024*j}")
    p("s_barrier")
    p("v_lshrrev_b32 v2, 4, v0")
    p("v_xor_b32 v2, v2, v0")
    p("v_and_b32 v2, 1, v2")
    p("v_cmp_eq_u32 vcc, 0, v2")
    p("v_mov_b32 v3, 0x3f803f80")
    p("v_mov_b32 v2, 0")
    for i in range(4): p(f"v_cndmask_b32 {v(ONES+i)}, v2, v3, vcc")
    p(f"v_mov_b32 {v(ONE)}, 1")
    for i in range(4): p(f"v_mov_b32 {v(L+i)}, 0")
    for i in range(16): p(f"v_mov_b32 {v(O+i)}, 0")
    for i in range(12, 16): p(f"v_mov_b32 {v(F1+i)}, 0")
    for i in range(4): p(f"v_mov_b32 {v(P1+i)}, 0")
    p("s_mov_b32 s22, 16384")
    p("s_mov_b32 s25, 2")
    p("s_waitcnt vmcnt(0)")
    p(mf32(SA, F1, Q, "0"))
    p(mf32(SA, F1+4, Q+4, SA))
    p("s_nop 11")
    p(f"v_max3_f32 v2, {v(SA)}, {v(SA+1)}, {v(SA+2)}")
    for i in range(3, 15, 2): p(f"v_max3_f32 v2, v2, {v(SA+i)}, {v(SA+i+1)}")
    p(f"v_max_f32 v2, v2, {v(SA+15)}")
    p("v_mov_b32 v3, v2")
    p("s_nop 1")
    p("v_permlane32_swap_b32 v2, v3")
    p("v_max_f32 v3, v2, v3")
    for i in range(16): p(f"v_sub_f32 {v(NEGM+i)}, 0, v3")
    for i in range(16): p(f"v_sub_f32 {v(SA+i)}, {v(SA+i)}, v3")
    p("v_mov_b32 v2, v1")
    p("s_lshl_b32 s10, s3, 2")
    p(f"s_add_u32 s10, s10, {K2_CNT + 28}")
    p("v_mov_b32 v3, s10")
    stamp(p, 2)
    p.label("K2_W0")
    p(f"ds_read_b32 {v(CV_)}, {v(CA)} offset:4")
    p("s_waitcnt lgkmcnt(0)")
    p(f"v_readfirstlane_b32 s10, {v(CV_)}")
    p("s_cmp_eq_u32 s10, 0")
    p("s_cbranch_scc1 K2_W0")
    for j in range(4): p(f"ds_read_b128 {v(F0+4*j,4)}, v2 offset:{j*1024}")
    p("s_branch K2_ENTRY")
    ORDER = "w0 S0 r0 e3 O1p r1 e3 L1p e2 S1 r2 c4 e2 O0 r3 e3 L0 e3 c4"
    def step(F, Sc, Sn, Fn, u, first=False, extra=None):
        e = 0; c = 0
        for t in ORDER.split():
            if t == "S0":
                if u is not None: p(mf32(Sn, F, Q, NEGM))
            elif t == "S1":
                if u is not None: p(mf32(Sn, F+4, Q+4, Sn))
            elif t == "O0": p(mf32(O, F+8, P0, O))
            elif t == "O1p": p(mf32(O, Fn+12, P1, O))
            elif t == "L0":
                p(mf16(L, ONES, P0, L))
                if extra: extra()
            elif t == "L1p": p(mf16(L, ONES, P1, L))
            elif t[0] == "e":
                for _ in range(int(t[1:])): p(f"v_exp_f32 {v(Sc+e)}, {v(Sc+e)}"); e += 1
            elif t[0] == "c":
                for _ in range(int(t[1:])): p(f"v_cvt_pk_bf16_f32 {v(P0+c)}, {v(Sc+2*c)}, {v(Sc+2*c+1)}"); c += 1
            elif t[0] == "r":
                if u is not None: j = int(t[1:]); p(f"ds_read_b128 {v(Fn+4*j,4)}, v2 offset:{u*4096+j*1024}")
            elif t[0] == "w":
                if not first: p(f"s_waitcnt lgkmcnt({t[1:]})")
    def arrive():
        p("s_mov_b64 exec, 1")
        p(f"ds_add_u32 v3, {v(ONE)}")
        p("s_mov_b64 exec, -1")
    def peek():
        p(f"ds_read_b32 {v(CV_)}, {v(CA)} offset:4")
        p("v_add_u32 v2, s22, v1")
        p("s_add_u32 s22, s22, 16384")
        p(f"s_cmp_ge_u32 s22, {RING}")
        p("s_cselect_b32 s22, 0, s22")
    LAD = [int(c) for c in OPT.get("lad", "3210")]
    p.label("K2_SPIN")
    p(f"ds_read_b32 {v(CV_)}, {v(CA)} offset:4")
    p.label("K2_LOOP")
    stamp(p, 6)
    p("s_waitcnt lgkmcnt(0)")
    p(f"v_readfirstlane_b32 s10, {v(CV_)}")
    if STAMP:
        p("s_sub_u32 m0, s25, 1")
        p("s_nop 0")
        p("v_writelane_b32 v124, s72, m0")
    p(f"s_setprio {LAD[0]}")
    p("s_cmp_lt_u32 s10, s25")
    p("s_cbranch_scc1 K2_SPIN")
    p("s_add_u32 s25, s25, 1")
    step(F1, SB, SA, F0, 0, first=True, extra=arrive)
    p.label("K2_ENTRY")
    p(f"s_setprio {LAD[1]}")
    step(F0, SA, SB, F1, 1)
    p(f"s_setprio {LAD[2]}")
    step(F1, SB, SA, F0, 2)
    p(f"s_setprio {LAD[3]}")
    step(F0, SA, SB, F1, 3, extra=peek)
    p("s_cmp_lt_u32 s25, 17")
    p("s_cbranch_scc1 K2_LOOP")
    step(F1, SB, SA, F0, None)
    p("s_nop 1")
    p(mf32(O, F1+12, P1, O))
    p(mf16(L, ONES, P1, L))
    stamp(p, 5)
    p("v_and_b32 v2, 16, v0")
    p("v_cmp_eq_u32 vcc, 0, v2")
    p("s_lshl_b32 s10, s27, 16")
    p("s_lshl_b32 s11, s26, 11")
    p("s_add_u32 s10, s10, s11")
    p(f"s_add_u32 s10, s10, {WS_O}")
    p(f"s_mov_b32 s11, {f32bits(2.0**100)}")
    p("s_nop 3")
    p(f"v_cndmask_b32 v2, {v(L+1)}, {v(L)}, vcc")
    p(f"v_add_f32 v3, abs({v(O)}), v2")
    for i in range(1, 16): p(f"v_add_f32 v3, abs({v(O+i)}), v3")
    p("v_cmp_ngt_f32 vcc, s11, v3")
    if opt("forcefb"): p("s_branch K2_FALLBACK")
    p("s_cbranch_vccnz K2_FALLBACK")
    p.label("K2_FIN")
    p("v_rcp_f32 v2, v2")
    p("s_nop 0")
    for j in range(2):
        for i in range(8 * j, 8 * j + 8): p(f"v_mul_f32 {v(O+i)}, v2, {v(O+i)}")
        for i in range(4 * j, 4 * j + 4): p(f"v_cvt_pk_bf16_f32 {v(P0+i)}, {v(O+2*i)}, {v(O+2*i+1)}")
        p(f"buffer_store_dwordx4 {v(P0+4*j,4)}, v1, s[12:15], s10 offen offset:{1024*j}")
    stamp(p, 3); stamp(p, 4, True)
    stamp_flush(p, 1, 6); lstamp_flush(p, 1, 124)
    p.label("K2_END")
    p("s_endpgm")
    p.label("K2_FALLBACK")
    M, AL = NEGM, NEGM + 1
    for i in range(16): p(f"v_mov_b32 {v(O+i)}, 0")
    p("v_mov_b32 v2, 0")
    p(f"v_mov_b32 {v(M)}, 0xff7fffff")
    p("s_mov_b32 s25, 64")
    p.label("K2_FBL")
    for j in range(2): p(f"buffer_load_dwordx4 {v(F0+4*j,4)}, v1, s[12:15], s30 offen offset:{1024*j}")
    for j in range(2): p(f"buffer_load_dwordx4 {v(F0+8+4*j,4)}, v1, s[12:15], s31 offen offset:{1024*j}")
    p("s_add_u32 s30, s30, 2048")
    p("s_add_u32 s31, s31, 2048")
    p("s_waitcnt vmcnt(0)")
    p(mf32(SA, F0, Q, "0"))
    p(mf32(SA, F0+4, Q+4, SA))
    p("s_nop 15")
    p(f"v_max3_f32 v3, {v(SA)}, {v(SA+1)}, {v(M)}")
    for i in range(2, 16, 2): p(f"v_max3_f32 v3, v3, {v(SA+i)}, {v(SA+i+1)}")
    p(f"v_mov_b32 {v(SB)}, v3")
    p("s_nop 1")
    p(f"v_permlane32_swap_b32 v3, {v(SB)}")
    p(f"v_max_f32 v3, v3, {v(SB)}")
    p(f"v_sub_f32 {v(AL)}, {v(M)}, v3")
    p(f"v_exp_f32 {v(AL)}, {v(AL)}")
    p(f"v_mov_b32 {v(M)}, v3")
    for i in range(16): p(f"v_sub_f32 {v(SA+i)}, {v(SA+i)}, v3")
    for i in range(16): p(f"v_exp_f32 {v(SA+i)}, {v(SA+i)}")
    p(f"v_mul_f32 v2, v2, {v(AL)}")
    for i in range(16): p(f"v_mul_f32 {v(O+i)}, {v(O+i)}, {v(AL)}")
    for i in range(16): p(f"v_add_f32 v2, v2, {v(SA+i)}")
    for i in range(8): p(f"v_cvt_pk_bf16_f32 {v(P0+i)}, {v(SA+2*i)}, {v(SA+2*i+1)}")
    p("s_nop 1")
    p(mf32(O, F0+8, P0, O))
    p(mf32(O, F0+12, P1, O))
    p("s_nop 15")
    p("s_sub_u32 s25, s25, 1")
    p("s_cmp_lg_u32 s25, 0")
    p("s_cbranch_scc1 K2_FBL")
    p("v_mov_b32 v3, v2")
    p("s_nop 1")
    p("v_permlane32_swap_b32 v2, v3")
    p("v_add_f32 v2, v2, v3")
    p("s_branch K2_FIN")
    p.label("K2_HELPER")
    emit_partA(p, "K2")
    return 128, 832, CV_BASE + 4 * CV_STRIDE

def emit_k3(p):
    kernel_head(p, "k3_kernel")
    p("s_cmp_ge_u32 s2, 256")
    p("s_cbranch_scc1 K3_END")
    p(f"s_load_dwordx4 s[4:7], s[0:1], {B_WO}")
    p(f"s_load_dwordx2 s[30:31], s[0:1], {D_WS}")
    p("v_lshrrev_b32 v1, 6, v0")
    p("v_and_b32 v0, 63, v0")
    p("s_and_b32 s8, s2, 7")
    p("v_readfirstlane_b32 s3, v1")
    stamp(p, 0); stamp(p, 1, True)
    p("s_lshr_b32 s9, s2, 3")
    if STAMP: p("s_mov_b32 s59, s3")
    p("s_and_b32 s26, s8, 3")
    p("s_lshl_b32 s26, s26, 2")
    p("s_and_b32 s10, s9, 3")
    p("s_add_u32 s26, s26, s10")
    p("s_lshr_b32 s27, s8, 2")
    p("s_lshl_b32 s27, s27, 3")
    p("s_lshr_b32 s11, s9, 2")
    p("s_add_u32 s27, s27, s11")
    if opt("k3rot", 1):
        p("s_lshr_b32 s11, s11, 1")
        p("s_add_u32 s24, s10, s11")
        p("s_and_b32 s24, s24, 3")
    else:
        p("s_mov_b32 s24, 0")
    p("s_cmp_ge_u32 s3, 4")
    p("s_cbranch_scc1 K3_NOTLOADER")
    p("v_lshrrev_b32 v2, 5, v0")
    p("v_lshlrev_b32 v2, 2, v2")
    p("v_bfe_u32 v4, v0, 2, 2")
    p("s_lshl_b32 s10, s3, 5")
    p("v_add3_u32 v2, v2, v4, s10")
    p("v_lshlrev_b32 v2, 11, v2")
    p("v_bfe_u32 v3, v0, 4, 1")
    p("v_lshl_add_u32 v2, v3, 6, v2")
    p("v_and_b32 v4, 3, v0")
    p("v_lshl_add_u32 v10, v4, 4, v2")
    for jj in range(1, 4): p(f"v_add_u32 {v(10+jj)}, {jj*(16384-1024)}, v10")
    p("s_lshl_b32 s23, s3, 12")
    p("s_lshl_b32 s20, s24, 19")
    p("s_mov_b32 s25, 0")
    p("s_lshl_b32 s11, s27, 7")
    p(f"s_sub_u32 s18, {2*MB}, s11")
    p("s_mov_b32 s19, 0x20000")
    p("s_waitcnt lgkmcnt(0)")
    p("s_add_u32 s16, s4, s11")
    p("s_addc_u32 s17, s5, 0")
    LA = opt("k3la", 2)
    p("s_branch K3_LISSUE")
    p.label("K3_LLOOP")
    p(f"s_cmp_lt_u32 s25, {LA}")
    p("s_cbranch_scc1 K3_LISSUE")
    p(f"s_waitcnt vmcnt({4*(LA-1)})")
    p("s_barrier")
    p.label("K3_LISSUE")
    p("s_mov_b32 m0, s23")
    p("s_add_u32 s23, s23, 16384")
    for jj in range(4): p(f"buffer_load_dwordx4 {v(10+jj)}, s[16:19], s20 offen offset:{1024*jj} lds")
    p("s_add_u32 s20, s20, 262144")
    p(f"s_and_b32 s20, s20, {2*MB-1}")
    p("s_add_u32 s25, s25, 1")
    p("s_cmp_lt_u32 s25, 8")
    p("s_cbranch_scc1 K3_LLOOP")
    for n in range(LA - 1, -1, -1):
        p(f"s_waitcnt vmcnt({4*n})")
        p("s_barrier")
    stamp(p, 3); stamp(p, 4, True)
    stamp_flush(p, 2, 5)
    p.label("K3_END")
    p("s_endpgm")
    p.label("K3_NOTLOADER")
    OB, WF, ACC = 64, 8, 32
    p("s_sub_u32 s3, s3, 4")
    p("s_lshl_b32 s28, s26, 2")
    p("s_add_u32 s28, s28, s3")
    p("s_lshl_b32 s10, s28, 16")
    p(f"s_add_u32 s10, s10, {WS_O}")
    p("v_lshlrev_b32 v1, 4, v0")
    for i in range(1, 4): p(f"v_add_u32 {v(1+i)}, {4096*i}, v1")
    p("s_lshl_b32 s20, s24, 14")
    p("s_waitcnt lgkmcnt(0)")
    srd(p, 12, 30, 31, 65536, off="s10")
    def ldo(n, so): return f"buffer_load_dwordx4 {v(OB+4*n,4)}, {v(1+(n>>2))}, s[12:15], {so} offen offset:{1024*(n&3)}"
    for n in range(15): p(ldo(n, "s20"))
    p("v_lshrrev_b32 v6, 5, v0")
    p("v_lshlrev_b32 v5, 9, v6")
    p("v_bfe_u32 v7, v0, 2, 2")
    p("v_lshl_add_u32 v5, v7, 6, v5")
    p("v_bfe_u32 v7, v0, 4, 1")
    p("v_lshl_add_u32 v5, v7, 5, v5")
    p("v_and_b32 v7, 3, v0")
    p("v_lshl_add_u32 v5, v7, 3, v5")
    for i in range(WF + 8, WF + 16): p(f"v_mov_b32 {v(i)}, 0")
    for i in range(OB + 60, OB + 64): p(f"v_mov_b32 {v(i)}, 0")
    for i in range(ACC, ACC + 32): p(f"v_mov_b32 {v(i)}, 0")
    p("s_add_u32 s21, s20, 16384")
    p("s_and_b32 s21, s21, 0xffff")
    p("s_mov_b32 s25, 4")
    stamp(p, 2)
    def rdw(b, ks): return [f"ds_read_b64_tr_b16 {v(WF+8*b+4*nt+2*h,2)}, v5 offset:{ks*2048+h*1024+nt*256}" for nt in range(2) for h in range(2)]
    def mm(b, n): return [mf32(ACC+16*nt, WF+8*b+4*nt, OB+4*n, ACC+16*nt) for nt in range(2)]
    p.label("K3_CLOOP")
    for ks in range(16):
        b = ks & 1; n = (ks - 1) & 15
        if ks % 8 == 0: p("s_barrier")
        R = rdw(b, ks); M = mm(b ^ 1, n)
        p("s_waitcnt vmcnt(15) lgkmcnt(2)")
        p(M[0]); p(R[0]); p(R[1])
        p("s_waitcnt lgkmcnt(2)")
        p(M[1]); p(R[2]); p(R[3])
        p(ldo(n, "s20" if n == 15 else "s21"))
    p("v_add_u32 v5, 32768, v5")
    p("s_mov_b32 s20, s21")
    p("s_add_u32 s21, s21, 16384")
    p("s_and_b32 s21, s21, 0xffff")
    p("s_sub_u32 s25, s25, 1")
    p("s_cmp_eq_u32 s25, 1")
    p("s_cselect_b32 s21, 0x10000, s21")
    p("s_cmp_lg_u32 s25, 0")
    p("s_cbranch_scc1 K3_CLOOP")
    p("s_waitcnt vmcnt(15) lgkmcnt(0)")
    for m in mm(1, 15): p(m)
    stamp(p, 5)
    srd(p, 16, 6, 7, 8 * MB)
    p("v_and_b32 v2, 31, v0")
    p("v_lshlrev_b32 v2, 12, v2")
    p("v_lshl_add_u32 v2, v6, 4, v2")
    p("s_lshl_b32 s10, s28, 17")
    p("s_lshl_b32 s11, s27, 7")
    p("s_add_u32 s10, s10, s11")
    p("s_add_u32 s10, s10, 2048")
    p("s_nop 1")
    for nt in range(2):
        for i in range(8): p(f"v_cvt_pk_bf16_f32 {v(WF+8*nt+i)}, {v(ACC+16*nt+2*i)}, {v(ACC+16*nt+2*i+1)}")
    p("s_nop 0")
    for nt in range(2):
        for pr in range(2):
            b = WF + 8 * nt + 4 * pr
            p(f"v_permlane32_swap_b32 {v(b)}, {v(b+2)}")
            p(f"v_permlane32_swap_b32 {v(b+1)}, {v(b+3)}")
            p(f"buffer_store_dwordx4 {v(b,4)}, v2, s[16:19], s10 offen offset:{64*nt+32*pr}")
    stamp(p, 3); stamp(p, 4, True)
    stamp_flush(p, 2, 6)
    p("s_endpgm")
    return 128, 512, 131072

def build(path):
    p = Prog()
    descs = []; launches = []
    for name, fn in (("k1_kernel", emit_k1), ("k2_kernel", emit_k2), ("k3_kernel", emit_k3)):
        vg, blk, lds = fn(p)
        descs.append(kernel_desc(name, vg)); launches.append((name, 256, blk, lds))
    hdr = open("concat_heads__ssm_conv_h3__mha_block__prompt.s.ref").read().split("\n")
    hdr = [l for l in hdr if l.startswith(";") and "@launch" not in l and "Override" not in l and "grid=ceil" not in l]
    out = "\n".join(hdr) + "\n"
    for (k, g, b, l) in launches: out += f"; @launch kernel={k} grid=({g},1,1) block=({b},1,1) lds={l}\n"
    out += '.amdgcn_target "amdgcn-amd-amdhsa--gfx950"\n.text\n'
    body = p.text()
    nbad = check(body)
    out += body
    out += '.section .rodata,"a"\n'
    for d in descs: out += ".p2align 6\n" + d
    open(path, "w").write(out)
    return nbad

if __name__ == "__main__":
    nb = build(sys.argv[1] if len(sys.argv) > 1 else "out.s")
    print("hazards:", nb)
```

```python
import sys, os, struct, math
sys.path.insert(0, os.path.dirname(os.path.abspath(__file__)))
from asmlib import Prog, v, s, check

MB = 1 << 20
WS_Q, WS_K, WS_V, WS_O, WS_XR, WS_Y, WS_FL = 0, 4 * MB, 8 * MB, 12 * MB, 16 * MB, 21 * MB, 25 * MB
XRS = 4224
WS_SIZE = 32 * MB
FLS = 4352
A_Q, A_K, A_V, A_SK, A_SSMK, A_D, B_X, B_WQKV, B_WO, D_OUT, D_DBG, D_WS = [8 * i for i in range(12)]
def f32bits(x): return struct.unpack("<I", struct.pack("<f", x))[0]
QSCALE = f32bits((32 ** -0.5) * math.log2(math.e))
STAMP = os.environ.get("STAMP", "0") == "1"
OPT = dict(kv.split("=") for kv in os.environ.get("OPT", "").split(",") if kv)
def opt(k, d=0): return int(OPT.get(k, d))
WS_ST = 28 * MB
FL = {0: "", 1: " nt", 2: " sc1", 3: " sc0 sc1", 4: " sc0"}

def mf32(d, a, b, c): return f"v_mfma_f32_32x32x16_bf16 {v(d,16)}, {v(a,4)}, {v(b,4)}, {v(c,16) if isinstance(c,int) else c}"
def mf16(d, a, b, c): return f"v_mfma_f32_16x16x32_bf16 {v(d,4)}, {v(a,4)}, {v(b,4)}, {v(c,4) if isinstance(c,int) else c}"

def srd(p, d, lo, hi, nrec, off=None):
    if off is None:
        if lo != d: p(f"s_mov_b32 {s(d)}, {s(lo)}")
        if hi != d + 1: p(f"s_mov_b32 {s(d+1)}, {s(hi)}")
    else:
        p(f"s_add_u32 {s(d)}, {s(lo)}, {off}")
        p(f"s_addc_u32 {s(d+1)}, {s(hi)}, 0")
    p(f"s_mov_b32 {s(d+2)}, {nrec}")
    p(f"s_mov_b32 {s(d+3)}, 0x20000")

def stamp(p, i, real=False):
    if STAMP: p(f"{'s_memrealtime' if real else 's_memtime'} s[{60+2*i}:{61+2*i}]")
def stamp_flush(p, kidx, n, wave_sgpr=59):
    if not STAMP: return
    p(f"s_load_dwordx2 s[56:57], s[0:1], {D_WS}")
    p("s_lshl_b32 s58, s2, 4")
    p(f"s_add_u32 s58, s58, {s(wave_sgpr)}")
    p("s_lshl_b32 s58, s58, 6")
    p(f"s_add_u32 s58, s58, {WS_ST + kidx * 262144}")
    p("s_waitcnt lgkmcnt(0)")
    p("v_mov_b32 v2, s58")
    for i in range(n):
        p(f"v_mov_b32 v3, s{60+2*i}")
        p(f"global_store_dword v2, v3, s[56:57] offset:{4*i}")
def lstamp_flush(p, kidx, vreg, wave_sgpr=59):
    if not STAMP: return
    p(f"s_load_dwordx2 s[56:57], s[0:1], {D_WS}")
    p("s_lshl_b32 s58, s2, 4")
    p(f"s_add_u32 s58, s58, {s(wave_sgpr)}")
    p("s_lshl_b32 s58, s58, 8")
    p(f"s_add_u32 s58, s58, {WS_ST + MB + kidx * MB}")
    p("v_mbcnt_lo_u32_b32 v2, -1, 0")
    p("v_mbcnt_hi_u32_b32 v2, -1, v2")
    p("v_lshl_add_u32 v2, v2, 2, s58")
    p("s_waitcnt lgkmcnt(0)")
    p(f"global_store_dword v2, {v(vreg)}, s[56:57]")

def kernel_head(p, name):
    p(f".globl {name}")
    p(".p2align 8")
    p(f".type {name},@function")
    p.label(name)

def kernel_desc(name, vgpr, sgpr=102):
    acc = (vgpr + 3) // 4 * 4
    return f""".amdhsa_kernel {name}
  .amdhsa_next_free_vgpr {vgpr}
  .amdhsa_next_free_sgpr {sgpr}
  .amdhsa_accum_offset {acc}
  .amdhsa_group_segment_fixed_size 0
  .amdhsa_kernarg_size 96
  .amdhsa_user_sgpr_count 2
  .amdhsa_user_sgpr_kernarg_segment_ptr 1
  .amdhsa_system_sgpr_workgroup_id_x 1
.end_amdhsa_kernel
"""

def pf_addr(p, vx, vw, which=(0, 1)):
    if 0 in which:
        p("s_and_b32 s29, s27, 3")
        p("s_lshl_b32 s29, s29, 5")
        p("s_lshl_b32 s10, s26, 7")
        p("s_add_u32 s29, s29, s10")
        p("v_lshrrev_b32 v1, 1, v0")
        p("v_add_u32 v1, s29, v1")
        p("v_lshlrev_b32 v1, 11, v1")
        p("v_and_b32 v2, 1, v0")
        p(f"v_lshl_add_u32 {v(vx)}, v2, 7, v1")
    if 1 in which:
        p("v_lshrrev_b32 v2, 5, v0")
        p("v_lshlrev_b32 v2, 6, v2")
        p("v_bfe_u32 v3, v0, 2, 3")
        p("s_and_b32 s29, s26, 7")
        p("s_lshl_b32 s29, s29, 3")
        p("v_add3_u32 v2, v2, v3, s29")
        p("v_mul_u32_u24 v2, 6144, v2")
        p("v_and_b32 v3, 3, v0")
        p("v_min_u32 v3, 2, v3")
        p("v_lshl_add_u32 v2, v3, 11, v2")
        p("s_lshl_b32 s29, s27, 7")
        p(f"v_add_u32 {v(vw)}, s29, v2")

def emit_k1(p):
    DF = {0: "", 1: " nt", 2: " sc1", 3: " sc0 sc1", 4: " sc0"}[opt("df")]
    NS = opt("ns", 3)
    XREG, WREG = 0, NS * 16384
    kernel_head(p, "k1_kernel")
    p("s_cmp_ge_u32 s2, 256")
    p("s_cbranch_scc1 K1_END")
    p(f"s_load_dwordx4 s[4:7], s[0:1], {B_X}")
    p("v_lshrrev_b32 v1, 6, v0")
    p("v_and_b32 v0, 63, v0")
    p("s_and_b32 s8, s2, 7")
    p("v_readfirstlane_b32 s3, v1")
    stamp(p, 0); stamp(p, 1, True)
    p("s_lshr_b32 s9, s2, 3")
    if STAMP: p("s_mov_b32 s59, s3")
    p("s_and_b32 s26, s8, 1")
    p("s_lshl_b32 s26, s26, 3")
    p("s_and_b32 s10, s9, 7")
    p("s_add_u32 s26, s26, s10")
    p("s_lshr_b32 s27, s8, 1")
    p("s_lshl_b32 s27, s27, 2")
    p("s_lshr_b32 s10, s9, 3")
    p("s_add_u32 s27, s27, s10")
    p(f"s_mul_i32 s33, s8, {opt('xrot', 1)}")
    p("s_and_b32 s33, s33, 7")
    p("s_cmp_ge_u32 s3, 4")
    p("s_cbranch_scc1 K1_NOTLOADER")
    if opt("pf0", 1):
        p("s_bitcmp1_b32 s3, 0")
        p("s_cbranch_scc1 K1_PFW")
        pf_addr(p, 16, 16, (0,))
        p("s_lshr_b32 s10, s3, 1")
        p("s_add_u32 s10, s10, s33")
        p("s_and_b32 s10, s10, 7")
        p("s_lshl_b32 s10, s10, 8")
        p("s_waitcnt lgkmcnt(0)")
        srd(p, 40, 4, 5, 4 * MB)
        p("s_branch K1_PFGO")
        p.label("K1_PFW")
        pf_addr(p, 16, 16, (1,))
        p("s_lshr_b32 s10, s3, 1")
        p("s_add_u32 s10, s10, s33")
        p("s_and_b32 s10, s10, 7")
        p(f"s_mul_i32 s10, s10, {128*6144}")
        p("s_waitcnt lgkmcnt(0)")
        srd(p, 40, 6, 7, 6 * MB)
        p.label("K1_PFGO")
        p("buffer_load_dword v17, v16, s[40:43], s10 offen")
    p("v_lshrrev_b32 v2, 3, v0")
    p("v_lshlrev_b32 v2, 11, v2")
    p("v_lshrrev_b32 v3, 4, v0")
    p("v_and_b32 v4, 7, v0")
    p("v_xor_b32 v4, v4, v3")
    p("v_lshl_add_u32 v2, v4, 4, v2")
    p("s_lshl_b32 s10, s3, 16")
    p("v_add_u32 v10, s10, v2")
    p("v_xor_b32 v11, 64, v10")
    p(f"v_add_u32 v12, {32768-2048}, v10")
    p(f"v_add_u32 v13, {49152-3072}, v11")
    p(f"v_add_u32 v11, {16384-1024}, v11")
    p("v_lshrrev_b32 v2, 5, v0")
    p("v_lshlrev_b32 v2, 2, v2")
    p("v_bfe_u32 v4, v0, 2, 2")
    p("s_lshl_b32 s10, s3, 4")
    p("v_add3_u32 v2, v2, v4, s10")
    p("v_mul_u32_u24 v2, 6144, v2")
    p("v_and_b32 v3, 1, v3")
    p("v_lshl_add_u32 v2, v3, 6, v2")
    p("v_and_b32 v4, 3, v0")
    p("v_lshl_add_u32 v14, v4, 4, v2")
    p("v_add_u32 v15, 48128, v14")
    p("s_lshl_b32 s23, s3, 12")
    p("s_mul_i32 s24, s3, 6144")
    p(f"s_add_u32 s24, s24, {WREG}")
    p("s_lshl_b32 s20, s33, 8")
    p(f"s_mul_i32 s21, s33, {128*6144}")
    p("s_mov_b32 s25, 0")
    p("s_lshl_b32 s10, s26, 18")
    p("s_lshl_b32 s11, s27, 7")
    p(f"s_sub_u32 s18, {1024*6144}, s11")
    p("s_mov_b32 s14, 262144")
    p("s_mov_b32 s15, 0x20000")
    p("s_mov_b32 s19, 0x20000")
    p("s_waitcnt lgkmcnt(0)")
    p("s_add_u32 s12, s4, s10")
    p("s_addc_u32 s13, s5, 0")
    p("s_add_u32 s16, s6, s11")
    p("s_addc_u32 s17, s7, 0")
    stamp(p, 2)
    p("s_branch K1_LISSUE")
    p.label("K1_LLOOP")
    p("s_cmp_lt_u32 s25, 2")
    p("s_cbranch_scc1 K1_LISSUE")
    stamp(p, 6)
    p("s_waitcnt vmcnt(10)")
    stamp(p, 7)
    p("s_barrier")
    if STAMP:
        p("s_waitcnt lgkmcnt(0)")
        p("s_lshl_b32 m0, s25, 1")
        p("s_nop 0")
        p("v_writelane_b32 v20, s72, m0")
        p("s_add_u32 m0, m0, 1")
        p("s_nop 0")
        p("v_writelane_b32 v20, s74, m0")
    p.label("K1_LISSUE")
    p("s_mov_b32 m0, s23")
    p("s_add_u32 s22, s21, 4096")
    for jj in range(4):
        p(f"buffer_load_dwordx4 {v(10+jj)}, s[12:15], s20 offen offset:{1024*jj}{DF} lds")
    p("s_mov_b32 m0, s24")
    p("s_add_u32 s20, s20, 128")
    for ii in range(4):
        p(f"buffer_load_dwordx4 {v(14+(ii&1))}, s[16:19], s21 offen offset:{1024*ii}{DF} lds")
    p("s_add_u32 m0, s24, 4096")
    p("s_add_u32 s21, s21, 393216")
    for ii in range(2):
        p(f"buffer_load_dwordx4 {v(14+ii)}, s[16:19], s22 offen offset:{1024*ii}{DF} lds")
    p("s_and_b32 s20, s20, 2047")
    p("s_cselect_b32 s21, s21, 0")
    p("s_add_u32 s23, s23, 16384")
    p("s_add_u32 s24, s24, 24576")
    p(f"s_cmp_ge_u32 s23, {WREG}")
    p(f"s_cselect_b32 s10, {NS*16384}, 0")
    p(f"s_cselect_b32 s11, {NS*24576}, 0")
    p("s_sub_u32 s23, s23, s10")
    p("s_sub_u32 s24, s24, s11")
    p("s_add_u32 s25, s25, 1")
    p("s_cmp_lt_u32 s25, 16")
    p("s_cbranch_scc1 K1_LLOOP")
    for n in (10, 0):
        p(f"s_waitcnt vmcnt({n})")
        p("s_barrier")
    stamp(p, 3); stamp(p, 4, True)
    stamp_flush(p, 0, 5); lstamp_flush(p, 0, 20)
    p.label("K1_END")
    p("s_endpgm")
    p.label("K1_NOTLOADER")
    p(f"s_load_dwordx2 s[30:31], s[0:1], {D_WS}")
    p("s_cmp_ge_u32 s3, 8")
    p("s_cbranch_scc1 K1_HELPER")
    ACC = 64
    FB = 20
    XB, XC, WB, WC = 4, 8, 12, 13
    p("s_sub_u32 s3, s3, 4")
    p("s_lshr_b32 s28, s3, 1")
    p("s_and_b32 s29, s3, 1")
    p("v_and_b32 v1, 31, v0")
    p("v_lshrrev_b32 v2, 5, v0")
    p("v_bfe_u32 v3, v0, 1, 3")
    p("v_xor_b32 v3, v3, v2")
    p("v_lshlrev_b32 v3, 4, v3")
    p("v_lshl_add_u32 v3, v1, 7, v3")
    p("s_lshl_b32 s10, s28, 13")
    p(f"v_add_u32 {v(XB)}, s10, v3")
    for ks in range(1, 4): p(f"v_xor_b32 {v(XB+ks)}, {32*ks}, {v(XB)}")
    p("v_lshlrev_b32 v2, 10, v2")
    p("v_bfe_u32 v3, v0, 2, 2")
    p("v_lshl_add_u32 v2, v3, 6, v2")
    p("v_bfe_u32 v3, v0, 4, 1")
    p("v_lshl_add_u32 v2, v3, 5, v2")
    p("v_and_b32 v3, 3, v0")
    p("v_lshl_add_u32 v2, v3, 3, v2")
    p("s_lshl_b32 s10, s29, 8")
    p(f"s_add_u32 s10, s10, {WREG}")
    p(f"v_add_u32 {v(WB)}, s10, v2")
    for ks in range(4): p(f"v_mov_b32 {v(XC+ks)}, {v(XB+ks)}")
    p(f"v_mov_b32 {v(WC)}, {v(WB)}")
    for i in range(FB + 20, FB + 40): p(f"v_mov_b32 {v(i)}, 0")
    for i in range(ACC, ACC + 96): p(f"v_mov_b32 {v(i)}, 0")
    p("s_mov_b32 s20, 16384")
    p("s_mov_b32 s21, 24576")
    p("s_mov_b32 s25, 15")
    def frag(b, which):
        return FB + 20 * b + {"x0": 0, "x1": 4, "w0": 8, "w1": 12, "w2": 16}[which]
    def mfmas(b):
        L = []
        for (ty, rt) in ((0, 0), (1, 0), (0, 1), (1, 1), (2, 0), (2, 1)):
            d = ACC + (rt * 3 + ty) * 16
            x, w = frag(b, f"x{rt}"), frag(b, f"w{ty}")
            L.append(mf32(d, w, x, d) if ty < 2 else mf32(d, x, w, d))
        return L
    def reads(b, ks):
        def rx(rt): return f"ds_read_b128 {v(frag(b, f'x{rt}'),4)}, {v(XC+ks)} offset:{rt*4096}"
        def rw(ty, h): return f"ds_read_b64_tr_b16 {v(frag(b, f'w{ty}')+2*h,2)}, {v(WC)} offset:{ks*6144+ty*2048+h*512}"
        return [rx(0), rw(0,0), rw(0,1), rw(1,0), rw(1,1), rx(1), rw(2,0), rw(2,1)]
    p("s_waitcnt lgkmcnt(0)")
    p("s_barrier")
    stamp(p, 7)
    p.label("K1_CLOOP")
    w = lambda n: p(f"s_waitcnt lgkmcnt({n})")
    for ks in range(3):
        b = ks & 1
        M = mfmas(b ^ 1); R = reads(b, ks)
        if ks: w(5)
        p(M[0]); p(R[0]); p(R[1])
        if ks: w(5)
        p(M[1]); p(R[2]); p(R[3])
        if ks: w(6)
        p(M[2]); p(R[4]); p(R[5])
        p(M[3]); p(R[6]); p(R[7])
        if ks: w(8)
        p(M[4]); p(M[5])
    M = mfmas(0); R = reads(1, 3)
    w(5); p(M[0]); p(R[0]); p(R[1]); p(R[2])
    w(6); p(M[1]); p(R[3]); p(R[4]); p(R[5])
    w(8); p(M[2]); p(R[6]); p(R[7])
    for ks in range(3): p(f"v_add_u32 {v(XC+ks)}, s20, {v(XB+ks)}")
    p(M[3])
    p(f"v_add_u32 {v(XC+3)}, s20, {v(XB+3)}")
    p(f"v_add_u32 {v(WC)}, s21, {v(WB)}")
    p("s_add_u32 s20, s20, 16384")
    p("s_add_u32 s21, s21, 24576")
    p(f"s_cmp_ge_u32 s20, {NS*16384}")
    p("s_cselect_b32 s20, 0, s20")
    w(8); p(M[4])
    p("s_cselect_b32 s21, 0, s21")
    p("s_cmp_eq_u32 s25, 0")
    p("s_cbranch_scc1 K1_CDONE")
    stamp(p, 6)
    p("s_waitcnt lgkmcnt(0)")
    if STAMP:
        p("s_sub_u32 m0, 17, s25")
        p("s_lshl_b32 m0, m0, 1")
        p("v_writelane_b32 v14, s72, m0")
        p("s_sub_u32 m0, m0, 1")
        p("s_nop 0")
        p("v_writelane_b32 v14, s74, m0")
    p("s_barrier")
    stamp(p, 7)
    p(M[5])
    p("s_sub_u32 s25, s25, 1")
    p("s_branch K1_CLOOP")
    p.label("K1_CDONE")
    p(M[5])
    p("s_waitcnt lgkmcnt(0)")
    for m in mfmas(1): p(m)
    stamp(p, 2)
    srd(p, 12, 30, 31, WS_SIZE)
    p("s_lshl_b32 s10, s27, 1")
    p("s_add_u32 s10, s10, s29")
    p("s_lshl_b32 s10, s10, 6")
    p("s_lshl_b32 s11, s26, 2")
    p("s_add_u32 s10, s10, s11")
    p("s_lshl_b32 s11, s28, 1")
    p("s_add_u32 s10, s10, s11")
    p("s_lshl_b32 s10, s10, 11")
    p(f"s_add_u32 s11, s10, {WS_K}")
    p(f"s_add_u32 s16, s10, {WS_V}")
    p(f"s_mov_b32 s17, {QSCALE}")
    p("v_lshlrev_b32 v1, 4, v0")
    n = 0
    for (ty, rt) in ((1, 0), (0, 0), (1, 1), (0, 1), (2, 0), (2, 1)):
        d = ACC + (rt * 3 + ty) * 16
        o = FB + 8 * (n % 4); n += 1
        if ty == 0:
            for i in range(16): p(f"v_mul_f32 {v(d+i)}, s17, {v(d+i)}")
        so = (10, 11, 16)[ty]
        for j in range(2):
            for i in range(4 * j, 4 * j + 4): p(f"v_cvt_pk_bf16_f32 {v(o+i)}, {v(d+2*i)}, {v(d+2*i+1)}")
            p(f"buffer_store_dwordx4 {v(o+4*j,4)}, v1, s[12:15], {s(so)} offen offset:{rt*2048+j*1024}{FL[opt('k1sf')]}")
    stamp(p, 3)
    if STAMP: p("s_waitcnt vmcnt(0)")
    stamp(p, 5); stamp(p, 4, True)
    stamp_flush(p, 0, 6); lstamp_flush(p, 0, 14)
    p("s_endpgm")
    p.label("K1_HELPER")
    PFS = {0: {},
           1: {-1: [1, 2], 0: [3], 2: [4], 4: [5], 6: [6], 8: [7]},
           3: {-1: [1], 0: [2], 1: [3], 3: [4], 5: [5], 7: [6], 9: [7]},
           4: {0: [2], 1: [3], 3: [4], 5: [5], 7: [6], 9: [7]},
           5: {-1: [2], 0: [3], 2: [4], 4: [5], 6: [6], 8: [7]},
           6: {0: [2, 3], 2: [4], 4: [5], 6: [6], 8: [7]}}[opt("pf", 4)]
    p(f"s_load_dwordx4 s[36:39], s[0:1], {A_K}")
    pf_addr(p, 4, 5)
    p("s_waitcnt lgkmcnt(0)")
    srd(p, 40, 4, 5, 4 * MB)
    srd(p, 44, 6, 7, 6 * MB)
    def pf(pp):
        p(f"s_add_u32 s34, s33, {pp}")
        p("s_and_b32 s34, s34, 7")
        p("s_lshl_b32 s35, s34, 8")
        p(f"s_mul_i32 s34, s34, {128*6144}")
        p(f"buffer_load_dword v6, v4, s[40:43], s35 offen")
        p(f"buffer_load_dword v7, v5, s[44:47], s34 offen")
    for pp in PFS.get(-1, []): pf(pp)
    TW = opt("tw", 14)
    for b_ in range(16):
        p("s_barrier")
        for pp in PFS.get(b_, []): pf(pp)
        if b_ == 0:
            srd(p, 12, 30, 31, 32 * FLS, off=WS_FL)
            p(f"s_mul_i32 s10, s2, {FLS}")
            p("v_lshlrev_b32 v8, 2, v0")
            p("v_mov_b32 v9, 0")
            p("buffer_store_dword v9, v8, s[12:15], s10 offen")
            srd(p, 16, 36, 37, 4 * MB)
            srd(p, 20, 38, 39, 4 * MB)
            p("v_lshlrev_b32 v8, 7, v0")
            p("s_lshl_b32 s10, s2, 14")
            p("s_add_u32 s11, s10, 8192")
        if b_ == TW:
            for sr in (16, 20):
                for so in (10, 11): p(f"buffer_load_dword v6, v8, s[{sr}:{sr+3}], s{so} offen")
        if b_ >= max(TW, 12) and b_ < 15 and TW > 15: break
    p("s_endpgm")
    return 160, 576, NS * 40960

K2_NS = 6
K2_CNT = K2_NS * 16384
CV_BASE = K2_CNT + 256
CV_STRIDE = 15616
CV_C1 = 5120 + 64
CV_H = 2 * 5120 + 128
SC = {0: " sc1", 1: " sc0 sc1", 2: ""}[opt("sc")]
def emit_partA(p, pre):
    p(f"s_load_dwordx8 s[36:43], s[0:1], {A_Q}")
    p(f"s_load_dwordx4 s[44:47], s[0:1], {A_SSMK}")
    p(f"s_load_dwordx4 s[48:51], s[0:1], {B_WO}")
    p("s_barrier")
    p(f"s_setprio {opt('cvprio', 3)}")
    p("s_sub_u32 s3, s3, 9")
    p("s_and_b32 s28, s2, 15")
    p("s_and_b32 s10, s28, 7")
    p("s_lshr_b32 s11, s28, 3")
    p("s_lshl_b32 s28, s10, 1")
    p("s_add_u32 s28, s28, s11")
    p("s_lshr_b32 s29, s2, 4")
    p("s_lshl_b32 s29, s29, 2")
    p("s_add_u32 s29, s29, s3")
    p("s_lshl_b32 s27, s28, 6")
    p("s_add_u32 s27, s27, s29")
    p(f"s_mul_i32 s30, s3, {CV_STRIDE}")
    p(f"s_add_u32 s30, s30, {CV_BASE}")
    p("v_and_b32 v1, 7, v0")
    p("v_lshrrev_b32 v2, 3, v0")
    p("s_lshl_b32 s10, s29, 5")
    p("v_lshl_add_u32 v3, v2, 2, s10")
    p("s_lshl_b32 s11, s28, 7")
    p("v_lshl_add_u32 v4, v1, 4, s11")
    p("v_lshl_add_u32 v120, v3, 11, v4")
    p("v_lshl_add_u32 v122, v3, 12, v4")
    p("v_lshlrev_b32 v121, 11, v4")
    p("v_lshl_add_u32 v121, v2, 4, v121")
    p("s_lshr_b32 s31, s29, 4")
    p("s_lshl_b32 s31, s31, 10")
    p("s_and_b32 s26, s29, 7")
    p("s_lshl_b32 s26, s26, 7")
    p("s_add_u32 s31, s31, s26")
    p("s_and_b32 s26, s29, 8")
    p("s_add_u32 s31, s31, s26")
    p("v_add_u32 v121, s31, v121")
    p("v_and_b32 v123, 15, v0")
    p("v_lshlrev_b32 v123, 2, v123")
    p("v_lshlrev_b32 v124, 4, v0")
    p("v_and_b32 v1, 15, v0")
    p("v_lshrrev_b32 v2, 4, v0")
    p("v_lshl_add_u32 v3, v2, 3, s10")
    p("v_lshl_add_u32 v4, v1, 3, s11")
    p("v_lshl_add_u32 v9, v3, 11, v4")
    for j in range(3): p(f"v_add_u32 {v(6+j)}, {(j-3)*2048}, v9")
    for j in range(1, 4): p(f"v_add_u32 {v(9+j)}, {j*4096}, v9")
    p("v_lshlrev_b32 v13, 2, v4")
    p("v_lshrrev_b32 v14, 1, v4")
    p(f"v_mul_u32_u24 v14, {XRS}, v14")
    p("v_lshlrev_b32 v15, 1, v3")
    p("v_sub_u32 v15, 4080, v15")
    p("v_add_u32 v15, v15, v14")
    p("v_lshl_add_u32 v14, v2, 4, v14")
    p("v_add_u32 v1, -512, v124")
    p("v_add_u32 v2, 512, v124")
    p("s_lshl_b32 s33, s27, 12")
    p("s_lshl_b32 s10, s27, 1")
    p("v_mov_b32 v3, s10")
    p("s_mov_b32 s32, 0xffff0000")
    p(f"s_mul_i32 s34, s28, {FLS}")
    p(f"s_add_u32 s34, s34, {WS_FL}")
    p("s_and_b32 s35, s29, 60")
    p(f"s_mul_i32 s31, s27, {XRS}")
    p(f"s_add_u32 s31, s31, {WS_XR}")
    p("s_add_u32 s26, s31, 4096")
    p("s_waitcnt lgkmcnt(0)")
    srd(p, 12, 4, 5, WS_SIZE)
    srd(p, 16, 38, 39, 4 * MB)
    srd(p, 20, 40, 41, 4 * MB)
    srd(p, 52, 42, 43, 8192)
    p(f"v_mov_b32 v126, {K2_CNT}")
    p.label(f"{pre}_HW0")
    p("s_sleep 2")
    p("ds_read_b32 v127, v126 offset:4")
    p("s_waitcnt lgkmcnt(0)")
    p(f"v_cmp_gt_u32 vcc, {opt('hw0', 4)}, v127")
    p(f"s_cbranch_vccnz {pre}_HW0")
    KR, VR, SR = 16, 38, 56
    def rowaddr(j):
        if j < 3: return v(6 + j), 0
        return v(9 + (j - 3) // 2), 2048 * ((j - 3) & 1)
    for j in range(2): p(f"buffer_load_dwordx4 {v(SR+4*j,4)}, v13, s[52:55], 0 offen offset:{16*j}")
    for j in range(11):
        a_, o_ = rowaddr(j); p(f"buffer_load_dwordx2 {v(KR+2*j,2)}, {a_}, s[16:19], 0 offen offset:{o_}")
    for j in range(8):
        a_, o_ = rowaddr(j + 3); p(f"buffer_load_dwordx2 {v(VR+2*j,2)}, {a_}, s[20:23], 0 offen offset:{o_}")
    srd(p, 16, 44, 45, 4096, off="s33")
    srd(p, 20, 46, 47, 2048)
    T, KU, AC, OUT = 64, 72, 94, 112
    for cp in range(2):
        if cp == 0:
            p("s_waitcnt vmcnt(8)"); stamp(p, 2)
        for e in range(2):
            for jj in range(2):
                src = SR + 4 * cp + 2 * e + jj
                p(f"v_lshlrev_b32 {v(T+2*(2*jj)+e)}, 16, {v(src)}")
                p(f"v_and_b32 {v(T+2*(2*jj+1)+e)}, s32, {v(src)}")
        for j in range(11):
            p(f"v_lshlrev_b32 {v(KU+2*j)}, 16, {v(KR+2*j+cp)}")
            p(f"v_and_b32 {v(KU+2*j+1)}, s32, {v(KR+2*j+cp)}")
        for t in range(8): p(f"v_pk_mul_f32 {v(AC+2*t,2)}, {v(KU+2*t,2)}, {v(T+6,2)}")
        for j in (2, 1, 0):
            for t in range(8): p(f"v_pk_fma_f32 {v(AC+2*t,2)}, {v(KU+2*(t-j+3),2)}, {v(T+2*j,2)}, {v(AC+2*t,2)}")
        if cp == 0: p("s_waitcnt vmcnt(0)")
        for j in range(8):
            p(f"v_lshlrev_b32 {v(KU+2*j)}, 16, {v(VR+2*j+cp)}")
            p(f"v_and_b32 {v(KU+2*j+1)}, s32, {v(VR+2*j+cp)}")
        for t in range(8): p(f"v_pk_mul_f32 {v(AC+2*t,2)}, {v(AC+2*t,2)}, {v(KU+2*t,2)}")
        for e in range(2):
            for i in range(4): p(f"v_cvt_pk_bf16_f32 {v(OUT+4*e+i)}, {v(AC+2*(7-2*i)+e)}, {v(AC+2*(6-2*i)+e)}")
            p(f"s_mov_b32 s10, {WS_XR + (2*cp+e)*XRS}")
            p(f"buffer_store_dwordx4 {v(OUT+4*e,4)}, v15, s[12:15], s10 offen{SC}")
    p("s_cmp_lg_u32 s29, 0")
    p(f"s_cbranch_scc1 {pre}_S1END")
    for i in range(4): p(f"v_mov_b32 {v(8+i)}, 0")
    for c in range(4):
        p(f"s_mov_b32 s10, {WS_XR + c*XRS + 4096}")
        p(f"buffer_store_dwordx4 v[8:11], v14, s[12:15], s10 offen{SC}")
    p.label(f"{pre}_S1END")
    p("v_mov_b32 v118, v1")
    p("v_mov_b32 v119, v2")
    p("v_mov_b32 v117, v3")
    def signal_and_wait(tag, work=None):
        p(f"v_mov_b32 v1, {K2_CNT + 8 * tag}")
        p("v_mov_b32 v2, 1")
        p("s_waitcnt vmcnt(0)")
        stamp(p, 9 + 2 * tag)
        p("s_mov_b64 exec, 1")
        p("ds_add_rtn_u32 v126, v1, v2")
        p("s_mov_b64 exec, -1")
        p("v_mov_b32 v127, s35")
        p("s_mov_b32 s25, 0x40000")
        p("s_waitcnt lgkmcnt(0)")
        p("v_readfirstlane_b32 s24, v126")
        p("s_cmp_lg_u32 s24, 3")
        p(f"s_cbranch_scc1 {pre}_NOSIG{tag}")
        p("s_mov_b64 exec, 1")
        p(f"buffer_store_dword v2, v127, s[12:15], s34 offen{SC}")
        p("s_mov_b64 exec, -1")
        p.label(f"{pre}_NOSIG{tag}")
        if work: work()
        p("s_cmp_lg_u32 s24, 3")
        p(f"s_cbranch_scc1 {pre}_LWAIT{tag}")
        p.label(f"{pre}_POLL{tag}")
        p(f"s_sleep {opt('slp', 8)}")
        p(f"buffer_load_dword v126, v123, s[12:15], s34 offen{SC}")
        p("s_sub_u32 s25, s25, 1")
        p(f"s_cbranch_scc1 {pre}_GOT{tag}")
        p("s_waitcnt vmcnt(0)")
        p("v_cmp_ne_u32 vcc, 1, v126")
        p(f"s_cbranch_vccnz {pre}_POLL{tag}")
        p.label(f"{pre}_GOT{tag}")
        p("ds_write_b32 v1, v2 offset:4")
        p(f"s_branch {pre}_GO{tag}")
        p.label(f"{pre}_LWAIT{tag}")
        p("s_sleep 2")
        p("ds_read_b32 v126, v1 offset:4")
        p("s_waitcnt lgkmcnt(0)")
        p("v_cmp_ne_u32 vcc, 1, v126")
        p(f"s_cbranch_vccnz {pre}_LWAIT{tag}")
        p.label(f"{pre}_GO{tag}")
        stamp(p, 10 + 2 * tag)
    AB, BB, KVB, ST = 8, 12, 13, 14
    FA, FBB, ACC = 16, 48, 80
    def conv_setup():
        p("v_and_b32 v5, 15, v0")
        p("v_lshrrev_b32 v6, 4, v0")
        p("v_lshrrev_b32 v3, 1, v5")
        p("v_lshlrev_b32 v4, 2, v6")
        p("v_sub_u32 v4, v4, v3")
        p("v_lshlrev_b32 v4, 2, v4")
        p("v_and_b32 v3, 1, v5")
        p("v_xor_b32 v3, 1, v3")
        p(f"v_mul_u32_u24 v3, {CV_C1}, v3")
        p(f"s_add_u32 s10, s30, {4*1023 - 32*(112+1)}")
        p(f"v_add3_u32 {v(AB)}, v4, v3, s10")
        for kk in range(1, 4): p(f"v_add_u32 {v(AB+kk)}, {1024*kk}, {v(AB)}")
        p("v_lshlrev_b32 v3, 5, v5")
        p("v_lshl_add_u32 v4, v6, 4, v3")
        p(f"s_add_u32 s10, s30, {CV_H + 512 - 32}")
        p(f"v_add_u32 {v(BB)}, s10, v4")
        p(f"v_lshl_add_u32 {v(ST)}, v6, 3, v3")
        p(f"s_add_u32 s10, s30, {4088 - 512*7}")
        p(f"v_sub_u32 {v(KVB)}, s10, {v(ST)}")
        for i in range(32): p(f"v_mov_b32 {v(ACC+i)}, 0")
    def hload():
        p(f"s_add_u32 m0, s30, {CV_H}")
        p("buffer_load_ushort v125, v117, s[20:23], 0 offen")
        p("buffer_load_dwordx4 v118, s[16:19], 0 offen lds")
        p(f"s_add_u32 m0, s30, {CV_H + 1024}")
        p("s_nop 0")
        for j in range(4): p(f"buffer_load_dwordx4 v119, s[16:19], 0 offen offset:{1024*j} lds")
        conv_setup()
        p("v_add_u32 v7, 2, v124")
    stamp(p, 5)
    signal_and_wait(1, hload)
    for (src_v, off) in ((124, 0), (7, CV_C1)):
        p(f"s_add_u32 m0, s30, {off}")
        p("s_nop 0")
        for j in range(4): p(f"buffer_load_dwordx4 {v(src_v)}, s[12:15], s31 offen offset:{1024*j}{SC} lds")
        p(f"s_add_u32 m0, s30, {off + 4096}")
        p("s_mov_b64 exec, 15")
        p(f"buffer_load_dwordx4 {v(src_v)}, s[12:15], s26 offen{SC} lds")
        p("s_mov_b64 exec, -1")
    p(f"s_add_u32 s34, s34, {16*FLS}")
    p("s_mov_b32 s25, 8")
    p("s_waitcnt vmcnt(0)")
    stamp(p, 7)
    p.label(f"{pre}_CVL")
    def rdA(a):
        kk, rem = (7 - a) >> 1, 128 * ((7 - a) & 1)
        return [f"ds_read2_b32 {v(FA+4*a,2)}, {v(AB+kk)} offset0:{rem} offset1:{rem+1}",
                f"ds_read2_b32 {v(FA+4*a+2,2)}, {v(AB+kk)} offset0:{rem+2} offset1:{rem+3}"]
    def cm(a, b):
        p(mf16(ACC+4*(a+b), FA+4*a, FBB+4*b, ACC+4*(a+b)))
        if opt("cvnop", -1) >= 0: p(f"s_nop {opt('cvnop')}")
    def rdB(b): return [f"ds_read_b128 {v(FBB+4*b,4)}, {v(BB)} offset:{512*b}"]
    for x in range(8):
        for r_ in rdA(x) + rdB(x): p(r_)
    for kk in range(4): p(f"v_add_u32 {v(AB+kk)}, -64, {v(AB+kk)}")
    p(f"v_add_u32 {v(BB)}, -64, {v(BB)}")
    p("s_waitcnt lgkmcnt(12)")
    for a in range(4):
        for b in range(4): cm(a, b)
    p("s_waitcnt lgkmcnt(0)")
    for a in range(8):
        for b in range(8 - a):
            if a >= 4 or b >= 4: cm(a, b)
    p("s_sub_u32 s25, s25, 1")
    p("s_cmp_lg_u32 s25, 0")
    p(f"s_cbranch_scc1 {pre}_CVL")
    stamp(p, 8)
    for t in range(8): p(f"ds_read_b64 {v(FA+2*t,2)}, {v(KVB)} offset:{512*(7-t)}")
    p("v_lshlrev_b32 v125, 16, v125")
    p(f"s_add_u32 s33, s33, {WS_Y}")
    p(f"v_lshlrev_b32 {v(ST)}, 1, {v(ST)}")
    for t in range(8):
        p(f"s_waitcnt lgkmcnt({7-t})")
        U = FBB + 4 * (t & 3); a = ACC + 4 * t; o = FBB + 16 + 2 * t
        p(f"v_and_b32 {v(U)}, s32, {v(FA+2*t+1)}")
        p(f"v_lshlrev_b32 {v(U+1)}, 16, {v(FA+2*t+1)}")
        p(f"v_and_b32 {v(U+2)}, s32, {v(FA+2*t)}")
        p(f"v_lshlrev_b32 {v(U+3)}, 16, {v(FA+2*t)}")
        for r_ in range(4): p(f"v_fmac_f32 {v(a+r_)}, v125, {v(U+r_)}")
        p(f"v_cvt_pk_bf16_f32 {v(o)}, {v(a)}, {v(a+1)}")
        p(f"v_cvt_pk_bf16_f32 {v(o+1)}, {v(a+2)}, {v(a+3)}")
        if t & 1: p(f"buffer_store_dwordx4 {v(o-2,4)}, {v(ST)}, s[12:15], s33 offen offset:{1024*(t>>1)}{SC}")
    QR, YR, U, OUT = 16, 32, 48, 64
    def qload():
        srd(p, 16, 36, 37, 4 * MB)
        srd(p, 20, 50, 51, 8 * MB)
        p("v_add_u32 v6, 4096, v120")
        for j in range(4): p(f"buffer_load_dwordx4 {v(QR+4*j,4)}, {('v120', 'v6')[j>>1]}, s[16:19], 0 offen offset:{2048*(j&1)}")
        if opt("wopf", 1):
            srd(p, 52, 48, 49, 2 * MB)
            p("s_lshl_b32 s10, s27, 11")
            p("v_lshlrev_b32 v7, 5, v0")
            p("buffer_load_dword v8, v7, s[52:55], s10 offen")
    stamp(p, 9)
    signal_and_wait(2, qload)
    stamp(p, 10)
    for c in range(8):
        p(f"s_mov_b32 s10, {WS_Y + c*4096}")
        p(f"buffer_load_dwordx2 {v(YR+2*c,2)}, v121, s[12:15], s10 offen{SC}")
    p("s_waitcnt vmcnt(0)")
    for t in range(4):
        for cp in range(4):
            u = U + 4 * (cp & 1)
            q = QR + 4 * t + cp
            p(f"v_lshlrev_b32 {v(u)}, 16, {v(q)}")
            p(f"v_and_b32 {v(u+1)}, s32, {v(q)}")
            for e in range(2):
                y = YR + 2 * (2 * cp + e) + (t >> 1)
                if t & 1: p(f"v_and_b32 {v(u+2+e)}, s32, {v(y)}")
                else: p(f"v_lshlrev_b32 {v(u+2+e)}, 16, {v(y)}")
            p(f"v_pk_mul_f32 {v(u,2)}, {v(u,2)}, {v(u+2,2)}")
            p(f"v_cvt_pk_bf16_f32 {v(OUT+4*t+cp)}, {v(u)}, {v(u+1)}")
        p(f"s_mov_b32 s10, {t*4096}")
        p(f"buffer_store_dwordx4 {v(OUT+4*t,4)}, v122, s[20:23], s10 offen{FL[opt('s3sf', 2)]}")
    stamp(p, 3); stamp(p, 4, True)
    stamp_flush(p, 1, 15)
    p("s_endpgm")

def emit_k2(p):
    kernel_head(p, "k2_kernel")
    Q, ONES, L, P0, P1, F0, F1, NEGM, SA, SB, O = 4, 12, 16, 20, 24, 28, 44, 60, 76, 92, 108
    CA, CV_, ONE = 125, 126, 127
    RING = K2_NS * 16384
    p("s_cmp_ge_u32 s2, 256")
    p("s_cbranch_scc1 K2_END")
    p(f"s_load_dwordx2 s[4:5], s[0:1], {D_WS}")
    p("v_lshrrev_b32 v1, 6, v0")
    p("v_and_b32 v0, 63, v0")
    p("s_and_b32 s8, s2, 7")
    p("v_readfirstlane_b32 s3, v1")
    stamp(p, 0); stamp(p, 1, True)
    p("s_lshr_b32 s9, s2, 3")
    if STAMP:
        p("s_add_u32 s59, s3, 12")
        p("s_cmp_eq_u32 s3, 0")
        p("s_cselect_b32 s59, s59, s3")
        p("s_cselect_b32 s58, 0, 1")
        p("s_sub_u32 s59, s59, s58")
    p("s_cmp_ge_u32 s3, 9")
    p("s_cbranch_scc1 K2_HELPER")
    p("s_lshl_b32 s26, s8, 2")
    p("s_and_b32 s10, s9, 3")
    p("s_add_u32 s26, s26, s10")
    p("v_lshlrev_b32 v1, 4, v0")
    p("s_lshl_b32 s28, s26, 17")
    p(f"s_add_u32 s30, s28, {WS_K}")
    p(f"s_add_u32 s31, s28, {WS_V}")
    p(f"v_mov_b32 {v(CA)}, {K2_CNT}")
    p("s_cmp_lg_u32 s3, 0")
    p("s_cbranch_scc1 K2_ATT")
    p("v_add_u32 v2, 2048, v1")
    p("s_sub_u32 s31, s31, 2048")
    p("v_mov_b32 v3, 0")
    p(f"v_lshl_add_u32 v4, v0, 2, {v(CA)}")
    p("ds_write_b32 v4, v3")
    p("s_mov_b32 s20, 0")
    p("s_mov_b32 s21, 0")
    p("s_mov_b32 s25, 0")
    p(f"s_mov_b32 s24, {(-(K2_NS - 1)) & 0xffffffff}")
    p("v_and_b32 v4, 7, v0")
    p(f"v_lshl_add_u32 v4, v4, 2, {v(CA)}")
    p("s_setprio 3")
    p("s_waitcnt lgkmcnt(0)")
    srd(p, 16, 4, 5, 131072, off="s30")
    srd(p, 12, 4, 5, 131072 + 2048, off="s31")
    p("s_branch K2_LISSUE")
    p.label("K2_LSPIN")
    p("s_sleep 2")
    p.label("K2_LLOOP")
    p("ds_read_b32 v3, v4 offset:32")
    p("s_waitcnt lgkmcnt(0)")
    p("v_cmp_gt_i32 vcc, s24, v3")
    p("s_cbranch_vccnz K2_LSPIN")
    p.label("K2_LISSUE")
    for u in range(4):
        p("s_mov_b32 m0, s21")
        p("s_add_u32 s21, s21, 4096")
        for j in range(2): p(f"buffer_load_dwordx4 v2, s[16:19], s20 offen offset:{1024*j} lds")
        for j in range(2): p(f"buffer_load_dwordx4 v1, s[12:15], s20 offen offset:{2048+1024*j} lds")
        p("s_add_u32 s20, s20, 2048")
    p("s_cmp_lg_u32 s25, 0")
    p("s_cbranch_scc1 K2_LNB")
    p("s_barrier")
    p.label("K2_LNB")
    p(f"s_cmp_ge_u32 s21, {RING}")
    p("s_cselect_b32 s21, 0, s21")
    p("s_add_u32 s24, s24, 1")
    p("v_mov_b32 v3, s25")
    p("s_add_u32 s25, s25, 1")
    p("s_waitcnt vmcnt(16)")
    p(f"ds_write_b32 {v(CA)}, v3 offset:4")
    p("s_cmp_lt_u32 s25, 16")
    p("s_cbranch_scc1 K2_LLOOP")
    p("v_mov_b32 v3, 16")
    p("s_waitcnt vmcnt(0)")
    p(f"ds_write_b32 {v(CA)}, v3 offset:4")
    stamp(p, 3); stamp(p, 4, True)
    stamp_flush(p, 1, 5)
    p("s_endpgm")
    p.label("K2_ATT")
    p("s_lshr_b32 s27, s9, 2")
    p("s_lshl_b32 s27, s27, 3")
    p("s_add_u32 s27, s27, s3")
    p("s_sub_u32 s27, s27, 1")
    p("s_lshl_b32 s10, s27, 11")
    p("s_add_u32 s29, s28, s10")
    p("s_waitcnt lgkmcnt(0)")
    srd(p, 12, 4, 5, WS_SIZE)
    for j in range(2): p(f"buffer_load_dwordx4 {v(Q+4*j,4)}, v1, s[12:15], s29 offen offset:{1024*j}")
    for j in range(2): p(f"buffer_load_dwordx4 {v(F1+4*j,4)}, v1, s[12:15], s30 offen offset:{1024*j}")
    p("s_barrier")
    p("v_lshrrev_b32 v2, 4, v0")
    p("v_xor_b32 v2, v2, v0")
    p("v_and_b32 v2, 1, v2")
    p("v_cmp_eq_u32 vcc, 0, v2")
    p("v_mov_b32 v3, 0x3f803f80")
    p("v_mov_b32 v2, 0")
    for i in range(4): p(f"v_cndmask_b32 {v(ONES+i)}, v2, v3, vcc")
    p(f"v_mov_b32 {v(ONE)}, 1")
    for i in range(4): p(f"v_mov_b32 {v(L+i)}, 0")
    for i in range(16): p(f"v_mov_b32 {v(O+i)}, 0")
    for i in range(12, 16): p(f"v_mov_b32 {v(F1+i)}, 0")
    for i in range(4): p(f"v_mov_b32 {v(P1+i)}, 0")
    p("s_mov_b32 s22, 16384")
    p("s_mov_b32 s25, 2")
    p("s_waitcnt vmcnt(0)")
    p(mf32(SA, F1, Q, "0"))
    p(mf32(SA, F1+4, Q+4, SA))
    p("s_nop 11")
    p(f"v_max3_f32 v2, {v(SA)}, {v(SA+1)}, {v(SA+2)}")
    for i in range(3, 15, 2): p(f"v_max3_f32 v2, v2, {v(SA+i)}, {v(SA+i+1)}")
    p(f"v_max_f32 v2, v2, {v(SA+15)}")
    p("v_mov_b32 v3, v2")
    p("s_nop 1")
    p("v_permlane32_swap_b32 v2, v3")
    p("v_max_f32 v3, v2, v3")
    for i in range(16): p(f"v_sub_f32 {v(NEGM+i)}, 0, v3")
    for i in range(16): p(f"v_sub_f32 {v(SA+i)}, {v(SA+i)}, v3")
    p("v_mov_b32 v2, v1")
    p("s_lshl_b32 s10, s3, 2")
    p(f"s_add_u32 s10, s10, {K2_CNT + 28}")
    p("v_mov_b32 v3, s10")
    stamp(p, 2)
    p.label("K2_W0")
    p(f"ds_read_b32 {v(CV_)}, {v(CA)} offset:4")
    p("s_waitcnt lgkmcnt(0)")
    p(f"v_readfirstlane_b32 s10, {v(CV_)}")
    p("s_cmp_eq_u32 s10, 0")
    p("s_cbranch_scc1 K2_W0")
    for j in range(4): p(f"ds_read_b128 {v(F0+4*j,4)}, v2 offset:{j*1024}")
    p("s_branch K2_ENTRY")
    ORDER = "w0 S0 r0 e3 O1p r1 e3 L1p e2 S1 r2 c4 e2 O0 r3 e3 L0 e3 c4"
    def step(F, Sc, Sn, Fn, u, first=False, extra=None):
        e = 0; c = 0
        for t in ORDER.split():
            if t == "S0":
                if u is not None: p(mf32(Sn, F, Q, NEGM))
            elif t == "S1":
                if u is not None: p(mf32(Sn, F+4, Q+4, Sn))
            elif t == "O0": p(mf32(O, F+8, P0, O))
            elif t == "O1p": p(mf32(O, Fn+12, P1, O))
            elif t == "L0":
                p(mf16(L, ONES, P0, L))
                if extra: extra()
            elif t == "L1p": p(mf16(L, ONES, P1, L))
            elif t[0] == "e":
                for _ in range(int(t[1:])): p(f"v_exp_f32 {v(Sc+e)}, {v(Sc+e)}"); e += 1
            elif t[0] == "c":
                for _ in range(int(t[1:])): p(f"v_cvt_pk_bf16_f32 {v(P0+c)}, {v(Sc+2*c)}, {v(Sc+2*c+1)}"); c += 1
            elif t[0] == "r":
                if u is not None: j = int(t[1:]); p(f"ds_read_b128 {v(Fn+4*j,4)}, v2 offset:{u*4096+j*1024}")
            elif t[0] == "w":
                if not first: p(f"s_waitcnt lgkmcnt({t[1:]})")
    def arrive():
        p("s_mov_b64 exec, 1")
        p(f"ds_add_u32 v3, {v(ONE)}")
        p("s_mov_b64 exec, -1")
    def peek():
        p(f"ds_read_b32 {v(CV_)}, {v(CA)} offset:4")
        p("v_add_u32 v2, s22, v1")
        p("s_add_u32 s22, s22, 16384")
        p(f"s_cmp_ge_u32 s22, {RING}")
        p("s_cselect_b32 s22, 0, s22")
    LAD = [int(c) for c in OPT.get("lad", "3210")]
    p.label("K2_SPIN")
    p(f"ds_read_b32 {v(CV_)}, {v(CA)} offset:4")
    p.label("K2_LOOP")
    stamp(p, 6)
    p("s_waitcnt lgkmcnt(0)")
    p(f"v_readfirstlane_b32 s10, {v(CV_)}")
    if STAMP:
        p("s_sub_u32 m0, s25, 1")
        p("s_nop 0")
        p("v_writelane_b32 v124, s72, m0")
    p(f"s_setprio {LAD[0]}")
    p("s_cmp_lt_u32 s10, s25")
    p("s_cbranch_scc1 K2_SPIN")
    p("s_add_u32 s25, s25, 1")
    step(F1, SB, SA, F0, 0, first=True, extra=arrive)
    p.label("K2_ENTRY")
    p(f"s_setprio {LAD[1]}")
    step(F0, SA, SB, F1, 1)
    p(f"s_setprio {LAD[2]}")
    step(F1, SB, SA, F0, 2)
    p(f"s_setprio {LAD[3]}")
    step(F0, SA, SB, F1, 3, extra=peek)
    p("s_cmp_lt_u32 s25, 17")
    p("s_cbranch_scc1 K2_LOOP")
    step(F1, SB, SA, F0, None)
    p("s_nop 1")
    p(mf32(O, F1+12, P1, O))
    p(mf16(L, ONES, P1, L))
    stamp(p, 5)
    p("v_and_b32 v2, 16, v0")
    p("v_cmp_eq_u32 vcc, 0, v2")
    p("s_lshl_b32 s10, s27, 16")
    p("s_lshl_b32 s11, s26, 11")
    p("s_add_u32 s10, s10, s11")
    p(f"s_add_u32 s10, s10, {WS_O}")
    p(f"s_mov_b32 s11, {f32bits(2.0**100)}")
    p("s_nop 3")
    p(f"v_cndmask_b32 v2, {v(L+1)}, {v(L)}, vcc")
    p(f"v_add_f32 v3, abs({v(O)}), v2")
    for i in range(1, 16): p(f"v_add_f32 v3, abs({v(O+i)}), v3")
    p("v_cmp_ngt_f32 vcc, s11, v3")
    if opt("forcefb"): p("s_branch K2_FALLBACK")
    p("s_cbranch_vccnz K2_FALLBACK")
    p.label("K2_FIN")
    p("v_rcp_f32 v2, v2")
    p("s_nop 0")
    for j in range(2):
        for i in range(8 * j, 8 * j + 8): p(f"v_mul_f32 {v(O+i)}, v2, {v(O+i)}")
        for i in range(4 * j, 4 * j + 4): p(f"v_cvt_pk_bf16_f32 {v(P0+i)}, {v(O+2*i)}, {v(O+2*i+1)}")
        p(f"buffer_store_dwordx4 {v(P0+4*j,4)}, v1, s[12:15], s10 offen offset:{1024*j}{FL[opt('k2sf', 2)]}")
    stamp(p, 3); stamp(p, 4, True)
    stamp_flush(p, 1, 6); lstamp_flush(p, 1, 124)
    p.label("K2_END")
    p("s_endpgm")
    p.label("K2_FALLBACK")
    M, AL = NEGM, NEGM + 1
    for i in range(16): p(f"v_mov_b32 {v(O+i)}, 0")
    p("v_mov_b32 v2, 0")
    p(f"v_mov_b32 {v(M)}, 0xff7fffff")
    p("s_mov_b32 s25, 64")
    p.label("K2_FBL")
    for j in range(2): p(f"buffer_load_dwordx4 {v(F0+4*j,4)}, v1, s[12:15], s30 offen offset:{1024*j}")
    for j in range(2): p(f"buffer_load_dwordx4 {v(F0+8+4*j,4)}, v1, s[12:15], s31 offen offset:{1024*j}")
    p("s_add_u32 s30, s30, 2048")
    p("s_add_u32 s31, s31, 2048")
    p("s_waitcnt vmcnt(0)")
    p(mf32(SA, F0, Q, "0"))
    p(mf32(SA, F0+4, Q+4, SA))
    p("s_nop 15")
    p(f"v_max3_f32 v3, {v(SA)}, {v(SA+1)}, {v(M)}")
    for i in range(2, 16, 2): p(f"v_max3_f32 v3, v3, {v(SA+i)}, {v(SA+i+1)}")
    p(f"v_mov_b32 {v(SB)}, v3")
    p("s_nop 1")
    p(f"v_permlane32_swap_b32 v3, {v(SB)}")
    p(f"v_max_f32 v3, v3, {v(SB)}")
    p(f"v_sub_f32 {v(AL)}, {v(M)}, v3")
    p(f"v_exp_f32 {v(AL)}, {v(AL)}")
    p(f"v_mov_b32 {v(M)}, v3")
    for i in range(16): p(f"v_sub_f32 {v(SA+i)}, {v(SA+i)}, v3")
    for i in range(16): p(f"v_exp_f32 {v(SA+i)}, {v(SA+i)}")
    p(f"v_mul_f32 v2, v2, {v(AL)}")
    for i in range(16): p(f"v_mul_f32 {v(O+i)}, {v(O+i)}, {v(AL)}")
    for i in range(16): p(f"v_add_f32 v2, v2, {v(SA+i)}")
    for i in range(8): p(f"v_cvt_pk_bf16_f32 {v(P0+i)}, {v(SA+2*i)}, {v(SA+2*i+1)}")
    p("s_nop 1")
    p(mf32(O, F0+8, P0, O))
    p(mf32(O, F0+12, P1, O))
    p("s_nop 15")
    p("s_sub_u32 s25, s25, 1")
    p("s_cmp_lg_u32 s25, 0")
    p("s_cbranch_scc1 K2_FBL")
    p("v_mov_b32 v3, v2")
    p("s_nop 1")
    p("v_permlane32_swap_b32 v2, v3")
    p("v_add_f32 v2, v2, v3")
    p("s_branch K2_FIN")
    p.label("K2_HELPER")
    emit_partA(p, "K2")
    return 128, 832, CV_BASE + 4 * CV_STRIDE

def emit_k3(p):
    kernel_head(p, "k3_kernel")
    p("s_cmp_ge_u32 s2, 256")
    p("s_cbranch_scc1 K3_END")
    p(f"s_load_dwordx4 s[4:7], s[0:1], {B_WO}")
    p(f"s_load_dwordx2 s[30:31], s[0:1], {D_WS}")
    p("v_lshrrev_b32 v1, 6, v0")
    p("v_and_b32 v0, 63, v0")
    p("s_and_b32 s8, s2, 7")
    p("v_readfirstlane_b32 s3, v1")
    stamp(p, 0); stamp(p, 1, True)
    p("s_lshr_b32 s9, s2, 3")
    if STAMP: p("s_mov_b32 s59, s3")
    p("s_and_b32 s26, s8, 3")
    p("s_lshl_b32 s26, s26, 2")
    p("s_and_b32 s10, s9, 3")
    p("s_add_u32 s26, s26, s10")
    p("s_lshr_b32 s27, s8, 2")
    p("s_lshl_b32 s27, s27, 3")
    p("s_lshr_b32 s11, s9, 2")
    p("s_add_u32 s27, s27, s11")
    if opt("k3rot", 0):
        p("s_lshr_b32 s11, s11, 1")
        p("s_add_u32 s24, s10, s11")
        p("s_and_b32 s24, s24, 3")
    else:
        p("s_mov_b32 s24, 0")
    p("s_cmp_ge_u32 s3, 4")
    p("s_cbranch_scc1 K3_NOTLOADER")
    p("v_lshrrev_b32 v2, 5, v0")
    p("v_lshlrev_b32 v2, 2, v2")
    p("v_bfe_u32 v4, v0, 2, 2")
    p("s_lshl_b32 s10, s3, 5")
    p("v_add3_u32 v2, v2, v4, s10")
    p("v_lshlrev_b32 v2, 11, v2")
    p("v_bfe_u32 v3, v0, 4, 1")
    p("v_lshl_add_u32 v2, v3, 6, v2")
    p("v_and_b32 v4, 3, v0")
    p("v_lshl_add_u32 v10, v4, 4, v2")
    for jj in range(1, 4): p(f"v_add_u32 {v(10+jj)}, {jj*(16384-1024)}, v10")
    p("s_lshl_b32 s23, s3, 12")
    p("s_lshl_b32 s20, s24, 19")
    p("s_mov_b32 s25, 0")
    p("s_lshl_b32 s11, s27, 7")
    p(f"s_sub_u32 s18, {2*MB}, s11")
    p("s_mov_b32 s19, 0x20000")
    p("s_waitcnt lgkmcnt(0)")
    p("s_add_u32 s16, s4, s11")
    p("s_addc_u32 s17, s5, 0")
    LA = opt("k3la", 2)
    p("s_branch K3_LISSUE")
    p.label("K3_LLOOP")
    p(f"s_cmp_lt_u32 s25, {LA}")
    p("s_cbranch_scc1 K3_LISSUE")
    p(f"s_waitcnt vmcnt({4*(LA-1)})")
    p("s_barrier")
    p.label("K3_LISSUE")
    p("s_mov_b32 m0, s23")
    p("s_add_u32 s23, s23, 16384")
    for jj in range(4): p(f"buffer_load_dwordx4 {v(10+jj)}, s[16:19], s20 offen offset:{1024*jj}{FL[opt('k3wf')]} lds")
    p("s_add_u32 s20, s20, 262144")
    p(f"s_and_b32 s20, s20, {2*MB-1}")
    p("s_add_u32 s25, s25, 1")
    p("s_cmp_lt_u32 s25, 8")
    p("s_cbranch_scc1 K3_LLOOP")
    for n in range(LA - 1, -1, -1):
        p(f"s_waitcnt vmcnt({4*n})")
        p("s_barrier")
    stamp(p, 3); stamp(p, 4, True)
    stamp_flush(p, 2, 5)
    p.label("K3_END")
    p("s_endpgm")
    p.label("K3_NOTLOADER")
    OB, WF, ACC = 64, 8, 32
    p("s_sub_u32 s3, s3, 4")
    p("s_lshl_b32 s28, s26, 2")
    p("s_add_u32 s28, s28, s3")
    p("s_lshl_b32 s10, s28, 16")
    p(f"s_add_u32 s10, s10, {WS_O}")
    p("v_lshlrev_b32 v1, 4, v0")
    for i in range(1, 4): p(f"v_add_u32 {v(1+i)}, {4096*i}, v1")
    p("s_lshl_b32 s20, s24, 14")
    p("s_waitcnt lgkmcnt(0)")
    srd(p, 12, 30, 31, 65536, off="s10")
    def ldo(n, so): return f"buffer_load_dwordx4 {v(OB+4*n,4)}, {v(1+(n>>2))}, s[12:15], {so} offen offset:{1024*(n&3)}{FL[opt('k3of')]}"
    for n in range(15): p(ldo(n, "s20"))
    p("v_lshrrev_b32 v6, 5, v0")
    p("v_lshlrev_b32 v5, 9, v6")
    p("v_bfe_u32 v7, v0, 2, 2")
    p("v_lshl_add_u32 v5, v7, 6, v5")
    p("v_bfe_u32 v7, v0, 4, 1")
    p("v_lshl_add_u32 v5, v7, 5, v5")
    p("v_and_b32 v7, 3, v0")
    p("v_lshl_add_u32 v5, v7, 3, v5")
    for i in range(WF + 8, WF + 16): p(f"v_mov_b32 {v(i)}, 0")
    for i in range(OB + 60, OB + 64): p(f"v_mov_b32 {v(i)}, 0")
    for i in range(ACC, ACC + 32): p(f"v_mov_b32 {v(i)}, 0")
    p("s_add_u32 s21, s20, 16384")
    p("s_and_b32 s21, s21, 0xffff")
    p("s_mov_b32 s25, 4")
    stamp(p, 2)
    def rdw(b, ks): return [f"ds_read_b64_tr_b16 {v(WF+8*b+4*nt+2*h,2)}, v5 offset:{ks*2048+h*1024+nt*256}" for nt in range(2) for h in range(2)]
    def mm(b, n): return [mf32(ACC+16*nt, WF+8*b+4*nt, OB+4*n, ACC+16*nt) for nt in range(2)]
    p.label("K3_CLOOP")
    for ks in range(16):
        b = ks & 1; n = (ks - 1) & 15
        if ks % 8 == 0: p("s_barrier")
        R = rdw(b, ks); M = mm(b ^ 1, n)
        p("s_waitcnt vmcnt(15) lgkmcnt(2)")
        p(M[0]); p(R[0]); p(R[1])
        p("s_waitcnt lgkmcnt(2)")
        p(M[1]); p(R[2]); p(R[3])
        p(ldo(n, "s20" if n == 15 else "s21"))
    p("v_add_u32 v5, 32768, v5")
    p("s_mov_b32 s20, s21")
    p("s_add_u32 s21, s21, 16384")
    p("s_and_b32 s21, s21, 0xffff")
    p("s_sub_u32 s25, s25, 1")
    p("s_cmp_eq_u32 s25, 1")
    p("s_cselect_b32 s21, 0x10000, s21")
    p("s_cmp_lg_u32 s25, 0")
    p("s_cbranch_scc1 K3_CLOOP")
    p("s_waitcnt vmcnt(15) lgkmcnt(0)")
    for m in mm(1, 15): p(m)
    stamp(p, 5)
    srd(p, 16, 6, 7, 8 * MB)
    p("v_and_b32 v2, 31, v0")
    p("v_lshlrev_b32 v2, 12, v2")
    p("v_lshl_add_u32 v2, v6, 4, v2")
    p("s_lshl_b32 s10, s28, 17")
    p("s_lshl_b32 s11, s27, 7")
    p("s_add_u32 s10, s10, s11")
    p("s_add_u32 s10, s10, 2048")
    p("s_nop 1")
    for nt in range(2):
        for i in range(8): p(f"v_cvt_pk_bf16_f32 {v(WF+8*nt+i)}, {v(ACC+16*nt+2*i)}, {v(ACC+16*nt+2*i+1)}")
    p("s_nop 0")
    for nt in range(2):
        for pr in range(2):
            b = WF + 8 * nt + 4 * pr
            p(f"v_permlane32_swap_b32 {v(b)}, {v(b+2)}")
            p(f"v_permlane32_swap_b32 {v(b+1)}, {v(b+3)}")
            p(f"buffer_store_dwordx4 {v(b,4)}, v2, s[16:19], s10 offen offset:{64*nt+32*pr}{FL[opt('k3sf')]}")
    stamp(p, 3); stamp(p, 4, True)
    stamp_flush(p, 2, 6)
    p("s_endpgm")
    return 128, 512, 131072

def build(path):
    p = Prog()
    descs = []; launches = []
    for name, fn in (("k1_kernel", emit_k1), ("k2_kernel", emit_k2), ("k3_kernel", emit_k3)):
        vg, blk, lds = fn(p)
        descs.append(kernel_desc(name, vg)); launches.append((name, 256, blk, lds))
    hdr = open("concat_heads__ssm_conv_h3__mha_block__prompt.s.ref").read().split("\n")
    hdr = [l for l in hdr if l.startswith(";") and "@launch" not in l and "Override" not in l and "grid=ceil" not in l]
    out = "\n".join(hdr) + "\n"
    for (k, g, b, l) in launches: out += f"; @launch kernel={k} grid=({g},1,1) block=({b},1,1) lds={l}\n"
    out += '.amdgcn_target "amdgcn-amd-amdhsa--gfx950"\n.text\n'
    body = p.text()
    nbad = check(body)
    out += body
    out += '.section .rodata,"a"\n'
    for d in descs: out += ".p2align 6\n" + d
    open(path, "w").write(out)
    return nbad

if __name__ == "__main__":
    nb = build(sys.argv[1] if len(sys.argv) > 1 else "out.s")
    print("hazards:", nb)
```

```python
import sys, os, struct, math
sys.path.insert(0, os.path.dirname(os.path.abspath(__file__)))
from asmlib import Prog, v, s, check

MB = 1 << 20
WS_Q, WS_K, WS_V, WS_O, WS_XR, WS_Y, WS_FL = 0, 4 * MB, 8 * MB, 12 * MB, 16 * MB, 21 * MB, 25 * MB
XRS = 4224
WS_SIZE = 32 * MB
FLS = 4352
A_Q, A_K, A_V, A_SK, A_SSMK, A_D, B_X, B_WQKV, B_WO, D_OUT, D_DBG, D_WS = [8 * i for i in range(12)]
def f32bits(x): return struct.unpack("<I", struct.pack("<f", x))[0]
QSCALE = f32bits((32 ** -0.5) * math.log2(math.e))
STAMP = os.environ.get("STAMP", "0") == "1"
OPT = dict(kv.split("=") for kv in os.environ.get("OPT", "").split(",") if kv)
def opt(k, d=0): return int(OPT.get(k, d))
WS_ST = 28 * MB
FL = {0: "", 1: " nt", 2: " sc1", 3: " sc0 sc1", 4: " sc0"}

def mf32(d, a, b, c): return f"v_mfma_f32_32x32x16_bf16 {v(d,16)}, {v(a,4)}, {v(b,4)}, {v(c,16) if isinstance(c,int) else c}"
def mf16(d, a, b, c): return f"v_mfma_f32_16x16x32_bf16 {v(d,4)}, {v(a,4)}, {v(b,4)}, {v(c,4) if isinstance(c,int) else c}"

def srd(p, d, lo, hi, nrec, off=None):
    if off is None:
        if lo != d: p(f"s_mov_b32 {s(d)}, {s(lo)}")
        if hi != d + 1: p(f"s_mov_b32 {s(d+1)}, {s(hi)}")
    else:
        p(f"s_add_u32 {s(d)}, {s(lo)}, {off}")
        p(f"s_addc_u32 {s(d+1)}, {s(hi)}, 0")
    p(f"s_mov_b32 {s(d+2)}, {nrec}")
    p(f"s_mov_b32 {s(d+3)}, 0x20000")

def stamp(p, i, real=False):
    if STAMP: p(f"{'s_memrealtime' if real else 's_memtime'} s[{60+2*i}:{61+2*i}]")
def stamp_flush(p, kidx, n, wave_sgpr=59):
    if not STAMP: return
    p(f"s_load_dwordx2 s[56:57], s[0:1], {D_WS}")
    p("s_lshl_b32 s58, s2, 4")
    p(f"s_add_u32 s58, s58, {s(wave_sgpr)}")
    p("s_lshl_b32 s58, s58, 6")
    p(f"s_add_u32 s58, s58, {WS_ST + kidx * 262144}")
    p("s_waitcnt lgkmcnt(0)")
    p("v_mov_b32 v2, s58")
    for i in range(n):
        p(f"v_mov_b32 v3, s{60+2*i}")
        p(f"global_store_dword v2, v3, s[56:57] offset:{4*i}")
def lstamp_flush(p, kidx, vreg, wave_sgpr=59):
    if not STAMP: return
    p(f"s_load_dwordx2 s[56:57], s[0:1], {D_WS}")
    p("s_lshl_b32 s58, s2, 4")
    p(f"s_add_u32 s58, s58, {s(wave_sgpr)}")
    p("s_lshl_b32 s58, s58, 8")
    p(f"s_add_u32 s58, s58, {WS_ST + MB + kidx * MB}")
    p("v_mbcnt_lo_u32_b32 v2, -1, 0")
    p("v_mbcnt_hi_u32_b32 v2, -1, v2")
    p("v_lshl_add_u32 v2, v2, 2, s58")
    p("s_waitcnt lgkmcnt(0)")
    p(f"global_store_dword v2, {v(vreg)}, s[56:57]")

DBG = os.environ.get("DBG", "0") == "1"
def dbg_stamp(p, kidx, slot, lab, wg=0):
    if not DBG: return
    p(f"s_cmp_lg_u32 s2, {wg}")
    p(f"s_cbranch_scc1 DBG_{lab}")
    p(f"s_load_dwordx2 s[90:91], s[0:1], {D_DBG}")
    p("s_memrealtime s[92:93]")
    p("s_waitcnt lgkmcnt(0)")
    p(f"s_add_u32 s90, s90, {512*(2-kidx)}")
    p("s_addc_u32 s91, s91, 0")
    p("v_mov_b32 v127, s92")
    p("v_mov_b32 v126, 0")
    p(f"global_store_dword v126, v127, s[90:91] offset:{4*slot}")
    p.label(f"DBG_{lab}")

def kernel_head(p, name):
    p(f".globl {name}")
    p(".p2align 8")
    p(f".type {name},@function")
    p.label(name)

def kernel_desc(name, vgpr, sgpr=102):
    acc = (vgpr + 3) // 4 * 4
    return f""".amdhsa_kernel {name}
  .amdhsa_next_free_vgpr {vgpr}
  .amdhsa_next_free_sgpr {sgpr}
  .amdhsa_accum_offset {acc}
  .amdhsa_group_segment_fixed_size 0
  .amdhsa_kernarg_size 96
  .amdhsa_user_sgpr_count 2
  .amdhsa_user_sgpr_kernarg_segment_ptr 1
  .amdhsa_system_sgpr_workgroup_id_x 1
.end_amdhsa_kernel
"""

def pf_addr(p, vx, vw, which=(0, 1)):
    if 0 in which:
        p("s_and_b32 s29, s27, 3")
        p("s_lshl_b32 s29, s29, 5")
        p("s_lshl_b32 s10, s26, 7")
        p("s_add_u32 s29, s29, s10")
        p("v_lshrrev_b32 v1, 1, v0")
        p("v_add_u32 v1, s29, v1")
        p("v_lshlrev_b32 v1, 11, v1")
        p("v_and_b32 v2, 1, v0")
        p(f"v_lshl_add_u32 {v(vx)}, v2, 7, v1")
    if 1 in which:
        p("v_lshrrev_b32 v2, 5, v0")
        p("v_lshlrev_b32 v2, 6, v2")
        p("v_bfe_u32 v3, v0, 2, 3")
        p("s_and_b32 s29, s26, 7")
        p("s_lshl_b32 s29, s29, 3")
        p("v_add3_u32 v2, v2, v3, s29")
        p("v_mul_u32_u24 v2, 6144, v2")
        p("v_and_b32 v3, 3, v0")
        p("v_min_u32 v3, 2, v3")
        p("v_lshl_add_u32 v2, v3, 11, v2")
        p("s_lshl_b32 s29, s27, 7")
        p(f"v_add_u32 {v(vw)}, s29, v2")

def emit_k1(p):
    DF = {0: "", 1: " nt", 2: " sc1", 3: " sc0 sc1", 4: " sc0"}[opt("df")]
    NS = opt("ns", 3)
    XREG, WREG = 0, NS * 16384
    kernel_head(p, "k1_kernel")
    p("s_cmp_ge_u32 s2, 256")
    p("s_cbranch_scc1 K1_END")
    p(f"s_load_dwordx4 s[4:7], s[0:1], {B_X}")
    p("v_lshrrev_b32 v1, 6, v0")
    p("v_and_b32 v0, 63, v0")
    p("s_and_b32 s8, s2, 7")
    p("v_readfirstlane_b32 s3, v1")
    stamp(p, 0); stamp(p, 1, True)
    p("s_lshr_b32 s9, s2, 3")
    if STAMP: p("s_mov_b32 s59, s3")
    p("s_and_b32 s26, s8, 1")
    p("s_lshl_b32 s26, s26, 3")
    p("s_and_b32 s10, s9, 7")
    p("s_add_u32 s26, s26, s10")
    p("s_lshr_b32 s27, s8, 1")
    p("s_lshl_b32 s27, s27, 2")
    p("s_lshr_b32 s10, s9, 3")
    p("s_add_u32 s27, s27, s10")
    p(f"s_mul_i32 s33, s8, {opt('xrot', 0)}")
    p("s_and_b32 s33, s33, 7")
    p("s_cmp_ge_u32 s3, 4")
    p("s_cbranch_scc1 K1_NOTLOADER")
    if opt("pf0", 1):
        p("s_bitcmp1_b32 s3, 0")
        p("s_cbranch_scc1 K1_PFW")
        pf_addr(p, 16, 16, (0,))
        p("s_lshr_b32 s10, s3, 1")
        p("s_add_u32 s10, s10, s33")
        p("s_and_b32 s10, s10, 7")
        p("s_lshl_b32 s10, s10, 8")
        p("s_waitcnt lgkmcnt(0)")
        srd(p, 40, 4, 5, 4 * MB)
        p("s_branch K1_PFGO")
        p.label("K1_PFW")
        pf_addr(p, 16, 16, (1,))
        p("s_lshr_b32 s10, s3, 1")
        p("s_add_u32 s10, s10, s33")
        p("s_and_b32 s10, s10, 7")
        p(f"s_mul_i32 s10, s10, {128*6144}")
        p("s_waitcnt lgkmcnt(0)")
        srd(p, 40, 6, 7, 6 * MB)
        p.label("K1_PFGO")
        p("buffer_load_dword v17, v16, s[40:43], s10 offen")
    p("v_lshrrev_b32 v2, 3, v0")
    p("v_lshlrev_b32 v2, 11, v2")
    p("v_lshrrev_b32 v3, 4, v0")
    p("v_and_b32 v4, 7, v0")
    p("v_xor_b32 v4, v4, v3")
    p("v_lshl_add_u32 v2, v4, 4, v2")
    p("s_lshl_b32 s10, s3, 16")
    p("v_add_u32 v10, s10, v2")
    p("v_xor_b32 v11, 64, v10")
    p(f"v_add_u32 v12, {32768-2048}, v10")
    p(f"v_add_u32 v13, {49152-3072}, v11")
    p(f"v_add_u32 v11, {16384-1024}, v11")
    p("v_lshrrev_b32 v2, 5, v0")
    p("v_lshlrev_b32 v2, 2, v2")
    p("v_bfe_u32 v4, v0, 2, 2")
    p("s_lshl_b32 s10, s3, 4")
    p("v_add3_u32 v2, v2, v4, s10")
    p("v_mul_u32_u24 v2, 6144, v2")
    p("v_and_b32 v3, 1, v3")
    p("v_lshl_add_u32 v2, v3, 6, v2")
    p("v_and_b32 v4, 3, v0")
    p("v_lshl_add_u32 v14, v4, 4, v2")
    p("v_add_u32 v15, 48128, v14")
    p("s_lshl_b32 s23, s3, 12")
    p("s_mul_i32 s24, s3, 6144")
    p(f"s_add_u32 s24, s24, {WREG}")
    p("s_lshl_b32 s20, s33, 8")
    p(f"s_mul_i32 s21, s33, {128*6144}")
    p("s_mov_b32 s25, 0")
    p("s_lshl_b32 s10, s26, 18")
    p("s_lshl_b32 s11, s27, 7")
    p(f"s_sub_u32 s18, {1024*6144}, s11")
    p("s_mov_b32 s14, 262144")
    p("s_mov_b32 s15, 0x20000")
    p("s_mov_b32 s19, 0x20000")
    p("s_waitcnt lgkmcnt(0)")
    p("s_add_u32 s12, s4, s10")
    p("s_addc_u32 s13, s5, 0")
    p("s_add_u32 s16, s6, s11")
    p("s_addc_u32 s17, s7, 0")
    stamp(p, 2)
    p("s_branch K1_LISSUE")
    p.label("K1_LLOOP")
    p("s_cmp_lt_u32 s25, 2")
    p("s_cbranch_scc1 K1_LISSUE")
    stamp(p, 6)
    p("s_waitcnt vmcnt(10)")
    stamp(p, 7)
    p("s_barrier")
    if STAMP:
        p("s_waitcnt lgkmcnt(0)")
        p("s_lshl_b32 m0, s25, 1")
        p("s_nop 0")
        p("v_writelane_b32 v20, s72, m0")
        p("s_add_u32 m0, m0, 1")
        p("s_nop 0")
        p("v_writelane_b32 v20, s74, m0")
    p.label("K1_LISSUE")
    p("s_mov_b32 m0, s23")
    p("s_add_u32 s22, s21, 4096")
    for jj in range(4):
        p(f"buffer_load_dwordx4 {v(10+jj)}, s[12:15], s20 offen offset:{1024*jj}{DF} lds")
    p("s_mov_b32 m0, s24")
    p("s_add_u32 s20, s20, 128")
    for ii in range(4):
        p(f"buffer_load_dwordx4 {v(14+(ii&1))}, s[16:19], s21 offen offset:{1024*ii}{DF} lds")
    p("s_add_u32 m0, s24, 4096")
    p("s_add_u32 s21, s21, 393216")
    for ii in range(2):
        p(f"buffer_load_dwordx4 {v(14+ii)}, s[16:19], s22 offen offset:{1024*ii}{DF} lds")
    p("s_and_b32 s20, s20, 2047")
    p("s_cselect_b32 s21, s21, 0")
    p("s_add_u32 s23, s23, 16384")
    p("s_add_u32 s24, s24, 24576")
    p(f"s_cmp_ge_u32 s23, {WREG}")
    p(f"s_cselect_b32 s10, {NS*16384}, 0")
    p(f"s_cselect_b32 s11, {NS*24576}, 0")
    p("s_sub_u32 s23, s23, s10")
    p("s_sub_u32 s24, s24, s11")
    p("s_add_u32 s25, s25, 1")
    p("s_cmp_lt_u32 s25, 16")
    p("s_cbranch_scc1 K1_LLOOP")
    for n in (10, 0):
        p(f"s_waitcnt vmcnt({n})")
        p("s_barrier")
    stamp(p, 3); stamp(p, 4, True)
    stamp_flush(p, 0, 5); lstamp_flush(p, 0, 20)
    p.label("K1_END")
    p("s_endpgm")
    p.label("K1_NOTLOADER")
    p(f"s_load_dwordx2 s[30:31], s[0:1], {D_WS}")
    p("s_cmp_ge_u32 s3, 8")
    p("s_cbranch_scc1 K1_HELPER")
    ACC = 64
    FB = 20
    XB, XC, WB, WC = 4, 8, 12, 13
    p("s_sub_u32 s3, s3, 4")
    p("s_lshr_b32 s28, s3, 1")
    p("s_and_b32 s29, s3, 1")
    p("v_and_b32 v1, 31, v0")
    p("v_lshrrev_b32 v2, 5, v0")
    p("v_bfe_u32 v3, v0, 1, 3")
    p("v_xor_b32 v3, v3, v2")
    p("v_lshlrev_b32 v3, 4, v3")
    p("v_lshl_add_u32 v3, v1, 7, v3")
    p("s_lshl_b32 s10, s28, 13")
    p(f"v_add_u32 {v(XB)}, s10, v3")
    for ks in range(1, 4): p(f"v_xor_b32 {v(XB+ks)}, {32*ks}, {v(XB)}")
    p("v_lshlrev_b32 v2, 10, v2")
    p("v_bfe_u32 v3, v0, 2, 2")
    p("v_lshl_add_u32 v2, v3, 6, v2")
    p("v_bfe_u32 v3, v0, 4, 1")
    p("v_lshl_add_u32 v2, v3, 5, v2")
    p("v_and_b32 v3, 3, v0")
    p("v_lshl_add_u32 v2, v3, 3, v2")
    p("s_lshl_b32 s10, s29, 8")
    p(f"s_add_u32 s10, s10, {WREG}")
    p(f"v_add_u32 {v(WB)}, s10, v2")
    for ks in range(4): p(f"v_mov_b32 {v(XC+ks)}, {v(XB+ks)}")
    p(f"v_mov_b32 {v(WC)}, {v(WB)}")
    for i in range(FB + 20, FB + 40): p(f"v_mov_b32 {v(i)}, 0")
    for i in range(ACC, ACC + 96): p(f"v_mov_b32 {v(i)}, 0")
    p("s_mov_b32 s20, 16384")
    p("s_mov_b32 s21, 24576")
    p("s_mov_b32 s25, 15")
    def frag(b, which):
        return FB + 20 * b + {"x0": 0, "x1": 4, "w0": 8, "w1": 12, "w2": 16}[which]
    def mfmas(b):
        L = []
        for (ty, rt) in ((0, 0), (1, 0), (0, 1), (1, 1), (2, 0), (2, 1)):
            d = ACC + (rt * 3 + ty) * 16
            x, w = frag(b, f"x{rt}"), frag(b, f"w{ty}")
            L.append(mf32(d, w, x, d) if ty < 2 else mf32(d, x, w, d))
        return L
    def reads(b, ks):
        def rx(rt): return f"ds_read_b128 {v(frag(b, f'x{rt}'),4)}, {v(XC+ks)} offset:{rt*4096}"
        def rw(ty, h): return f"ds_read_b64_tr_b16 {v(frag(b, f'w{ty}')+2*h,2)}, {v(WC)} offset:{ks*6144+ty*2048+h*512}"
        return [rx(0), rw(0,0), rw(0,1), rw(1,0), rw(1,1), rx(1), rw(2,0), rw(2,1)]
    p("s_waitcnt lgkmcnt(0)")
    p("s_barrier")
    stamp(p, 7)
    p.label("K1_CLOOP")
    w = lambda n: p(f"s_waitcnt lgkmcnt({n})")
    for ks in range(3):
        b = ks & 1
        M = mfmas(b ^ 1); R = reads(b, ks)
        if ks: w(5)
        p(M[0]); p(R[0]); p(R[1])
        if ks: w(5)
        p(M[1]); p(R[2]); p(R[3])
        if ks: w(6)
        p(M[2]); p(R[4]); p(R[5])
        p(M[3]); p(R[6]); p(R[7])
        if ks: w(8)
        p(M[4]); p(M[5])
    M = mfmas(0); R = reads(1, 3)
    w(5); p(M[0]); p(R[0]); p(R[1]); p(R[2])
    w(6); p(M[1]); p(R[3]); p(R[4]); p(R[5])
    w(8); p(M[2]); p(R[6]); p(R[7])
    for ks in range(3): p(f"v_add_u32 {v(XC+ks)}, s20, {v(XB+ks)}")
    p(M[3])
    p(f"v_add_u32 {v(XC+3)}, s20, {v(XB+3)}")
    p(f"v_add_u32 {v(WC)}, s21, {v(WB)}")
    p("s_add_u32 s20, s20, 16384")
    p("s_add_u32 s21, s21, 24576")
    p(f"s_cmp_ge_u32 s20, {NS*16384}")
    p("s_cselect_b32 s20, 0, s20")
    w(8); p(M[4])
    p("s_cselect_b32 s21, 0, s21")
    p("s_cmp_eq_u32 s25, 0")
    p("s_cbranch_scc1 K1_CDONE")
    stamp(p, 6)
    p("s_waitcnt lgkmcnt(0)")
    if STAMP:
        p("s_sub_u32 m0, 17, s25")
        p("s_lshl_b32 m0, m0, 1")
        p("v_writelane_b32 v14, s72, m0")
        p("s_sub_u32 m0, m0, 1")
        p("s_nop 0")
        p("v_writelane_b32 v14, s74, m0")
    p("s_barrier")
    stamp(p, 7)
    p(M[5])
    p("s_sub_u32 s25, s25, 1")
    p("s_branch K1_CLOOP")
    p.label("K1_CDONE")
    p(M[5])
    p("s_waitcnt lgkmcnt(0)")
    for m in mfmas(1): p(m)
    stamp(p, 2)
    srd(p, 12, 30, 31, WS_SIZE)
    p("s_lshl_b32 s10, s27, 1")
    p("s_add_u32 s10, s10, s29")
    p("s_lshl_b32 s10, s10, 6")
    p("s_lshl_b32 s11, s26, 2")
    p("s_add_u32 s10, s10, s11")
    p("s_lshl_b32 s11, s28, 1")
    p("s_add_u32 s10, s10, s11")
    p("s_lshl_b32 s10, s10, 11")
    p(f"s_add_u32 s11, s10, {WS_K}")
    p(f"s_add_u32 s16, s10, {WS_V}")
    p(f"s_mov_b32 s17, {QSCALE}")
    p("v_lshlrev_b32 v1, 4, v0")
    n = 0
    for (ty, rt) in ((1, 0), (0, 0), (1, 1), (0, 1), (2, 0), (2, 1)):
        d = ACC + (rt * 3 + ty) * 16
        o = FB + 8 * (n % 4); n += 1
        if ty == 0:
            for i in range(16): p(f"v_mul_f32 {v(d+i)}, s17, {v(d+i)}")
        so = (10, 11, 16)[ty]
        for j in range(2):
            for i in range(4 * j, 4 * j + 4): p(f"v_cvt_pk_bf16_f32 {v(o+i)}, {v(d+2*i)}, {v(d+2*i+1)}")
            p(f"buffer_store_dwordx4 {v(o+4*j,4)}, v1, s[12:15], {s(so)} offen offset:{rt*2048+j*1024}{FL[opt('k1sf')]}")
    stamp(p, 3)
    if STAMP: p("s_waitcnt vmcnt(0)")
    stamp(p, 5); stamp(p, 4, True)
    stamp_flush(p, 0, 6); lstamp_flush(p, 0, 14)
    dbg_stamp(p, 0, 4, "a20")
    p("s_endpgm")
    p.label("K1_HELPER")
    PFS = {0: {},
           1: {-1: [1, 2], 0: [3], 2: [4], 4: [5], 6: [6], 8: [7]},
           3: {-1: [1], 0: [2], 1: [3], 3: [4], 5: [5], 7: [6], 9: [7]},
           4: {0: [2], 1: [3], 3: [4], 5: [5], 7: [6], 9: [7]},
           5: {-1: [2], 0: [3], 2: [4], 4: [5], 6: [6], 8: [7]},
           6: {0: [2, 3], 2: [4], 4: [5], 6: [6], 8: [7]}}[opt("pf", 4)]
    dbg_stamp(p, 0, 0, "a0")
    p(f"s_load_dwordx4 s[36:39], s[0:1], {A_K}")
    pf_addr(p, 4, 5)
    p("s_waitcnt lgkmcnt(0)")
    srd(p, 40, 4, 5, 4 * MB)
    srd(p, 44, 6, 7, 6 * MB)
    def pf(pp):
        p(f"s_add_u32 s34, s33, {pp}")
        p("s_and_b32 s34, s34, 7")
        p("s_lshl_b32 s35, s34, 8")
        p(f"s_mul_i32 s34, s34, {128*6144}")
        p(f"buffer_load_dword v6, v4, s[40:43], s35 offen")
        p(f"buffer_load_dword v7, v5, s[44:47], s34 offen")
    for pp in PFS.get(-1, []): pf(pp)
    TW = opt("tw", 14)
    for b_ in range(16):
        p("s_barrier")
        for pp in PFS.get(b_, []): pf(pp)
        if b_ in (0, 2, 15): dbg_stamp(p, 0, {0: 1, 2: 2, 15: 3}[b_], f"a{b_+1}")
        if b_ == 0:
            srd(p, 12, 30, 31, 32 * FLS, off=WS_FL)
            p(f"s_mul_i32 s10, s2, {FLS}")
            p("v_lshlrev_b32 v8, 2, v0")
            p("v_mov_b32 v9, 0")
            p("buffer_store_dword v9, v8, s[12:15], s10 offen")
            srd(p, 16, 36, 37, 4 * MB)
            srd(p, 20, 38, 39, 4 * MB)
            p("v_lshlrev_b32 v8, 7, v0")
            p("s_lshl_b32 s10, s2, 14")
            p("s_add_u32 s11, s10, 8192")
        if b_ == TW:
            for sr in (16, 20):
                for so in (10, 11): p(f"buffer_load_dword v6, v8, s[{sr}:{sr+3}], s{so} offen")
        if b_ >= max(TW, 12) and b_ < 15 and TW > 15: break
    p("s_endpgm")
    return 160, 576, NS * 40960

K2_NS = 6
K2_CNT = K2_NS * 16384
CV_BASE = K2_CNT + 256
CV_STRIDE = 15616
CV_C1 = 5120 + 64
CV_H = 2 * 5120 + 128
SC = {0: " sc1", 1: " sc0 sc1", 2: ""}[opt("sc")]
def emit_partA(p, pre):
    p(f"s_load_dwordx8 s[36:43], s[0:1], {A_Q}")
    p(f"s_load_dwordx4 s[44:47], s[0:1], {A_SSMK}")
    p(f"s_load_dwordx4 s[48:51], s[0:1], {B_WO}")
    dbg_stamp(p, 1, 5, "b0")
    p("s_barrier")
    p(f"s_setprio {opt('cvprio', 3)}")
    p("s_sub_u32 s3, s3, 9")
    p("s_and_b32 s28, s2, 15")
    p("s_and_b32 s10, s28, 7")
    p("s_lshr_b32 s11, s28, 3")
    p("s_lshl_b32 s28, s10, 1")
    p("s_add_u32 s28, s28, s11")
    p("s_lshr_b32 s29, s2, 4")
    p("s_lshl_b32 s29, s29, 2")
    p("s_add_u32 s29, s29, s3")
    p("s_lshl_b32 s27, s28, 6")
    p("s_add_u32 s27, s27, s29")
    p(f"s_mul_i32 s30, s3, {CV_STRIDE}")
    p(f"s_add_u32 s30, s30, {CV_BASE}")
    p("v_and_b32 v1, 7, v0")
    p("v_lshrrev_b32 v2, 3, v0")
    p("s_lshl_b32 s10, s29, 5")
    p("v_lshl_add_u32 v3, v2, 2, s10")
    p("s_lshl_b32 s11, s28, 7")
    p("v_lshl_add_u32 v4, v1, 4, s11")
    p("v_lshl_add_u32 v120, v3, 11, v4")
    p("v_lshl_add_u32 v122, v3, 12, v4")
    p("v_lshlrev_b32 v121, 11, v4")
    p("v_lshl_add_u32 v121, v2, 4, v121")
    p("s_lshr_b32 s31, s29, 4")
    p("s_lshl_b32 s31, s31, 10")
    p("s_and_b32 s26, s29, 7")
    p("s_lshl_b32 s26, s26, 7")
    p("s_add_u32 s31, s31, s26")
    p("s_and_b32 s26, s29, 8")
    p("s_add_u32 s31, s31, s26")
    p("v_add_u32 v121, s31, v121")
    p("v_and_b32 v123, 15, v0")
    p("v_lshlrev_b32 v123, 2, v123")
    p("v_lshlrev_b32 v124, 4, v0")
    p("v_and_b32 v1, 15, v0")
    p("v_lshrrev_b32 v2, 4, v0")
    p("v_lshl_add_u32 v3, v2, 3, s10")
    p("v_lshl_add_u32 v4, v1, 3, s11")
    p("v_lshl_add_u32 v9, v3, 11, v4")
    for j in range(3): p(f"v_add_u32 {v(6+j)}, {(j-3)*2048}, v9")
    for j in range(1, 4): p(f"v_add_u32 {v(9+j)}, {j*4096}, v9")
    p("v_lshlrev_b32 v13, 2, v4")
    p("v_lshrrev_b32 v14, 1, v4")
    p(f"v_mul_u32_u24 v14, {XRS}, v14")
    p("v_lshlrev_b32 v15, 1, v3")
    p("v_sub_u32 v15, 4080, v15")
    p("v_add_u32 v15, v15, v14")
    p("v_lshl_add_u32 v14, v2, 4, v14")
    p("v_add_u32 v1, -512, v124")
    p("v_add_u32 v2, 512, v124")
    p("s_lshl_b32 s33, s27, 12")
    p("s_lshl_b32 s10, s27, 1")
    p("v_mov_b32 v3, s10")
    p("s_mov_b32 s32, 0xffff0000")
    p(f"s_mul_i32 s34, s28, {FLS}")
    p(f"s_add_u32 s34, s34, {WS_FL}")
    p("s_and_b32 s35, s29, 60")
    p(f"s_mul_i32 s31, s27, {XRS}")
    p(f"s_add_u32 s31, s31, {WS_XR}")
    p("s_add_u32 s26, s31, 4096")
    p("s_waitcnt lgkmcnt(0)")
    srd(p, 12, 4, 5, WS_SIZE)
    srd(p, 16, 38, 39, 4 * MB)
    srd(p, 20, 40, 41, 4 * MB)
    srd(p, 52, 42, 43, 8192)
    p(f"v_mov_b32 v126, {K2_CNT}")
    p.label(f"{pre}_HW0")
    p("s_sleep 2")
    p("ds_read_b32 v127, v126 offset:4")
    p("s_waitcnt lgkmcnt(0)")
    p(f"v_cmp_gt_u32 vcc, {opt('hw0', 4)}, v127")
    p(f"s_cbranch_vccnz {pre}_HW0")
    dbg_stamp(p, 1, 6, "b1")
    KR, VR, SR = 16, 38, 56
    def rowaddr(j):
        if j < 3: return v(6 + j), 0
        return v(9 + (j - 3) // 2), 2048 * ((j - 3) & 1)
    for j in range(2): p(f"buffer_load_dwordx4 {v(SR+4*j,4)}, v13, s[52:55], 0 offen offset:{16*j}")
    for j in range(11):
        a_, o_ = rowaddr(j); p(f"buffer_load_dwordx2 {v(KR+2*j,2)}, {a_}, s[16:19], 0 offen offset:{o_}")
    for j in range(8):
        a_, o_ = rowaddr(j + 3); p(f"buffer_load_dwordx2 {v(VR+2*j,2)}, {a_}, s[20:23], 0 offen offset:{o_}")
    srd(p, 16, 44, 45, 4096, off="s33")
    srd(p, 20, 46, 47, 2048)
    T, KU, AC, OUT = 64, 72, 94, 112
    for cp in range(2):
        if cp == 0:
            p("s_waitcnt vmcnt(8)"); stamp(p, 2)
        for e in range(2):
            for jj in range(2):
                src = SR + 4 * cp + 2 * e + jj
                p(f"v_lshlrev_b32 {v(T+2*(2*jj)+e)}, 16, {v(src)}")
                p(f"v_and_b32 {v(T+2*(2*jj+1)+e)}, s32, {v(src)}")
        for j in range(11):
            p(f"v_lshlrev_b32 {v(KU+2*j)}, 16, {v(KR+2*j+cp)}")
            p(f"v_and_b32 {v(KU+2*j+1)}, s32, {v(KR+2*j+cp)}")
        for t in range(8): p(f"v_pk_mul_f32 {v(AC+2*t,2)}, {v(KU+2*t,2)}, {v(T+6,2)}")
        for j in (2, 1, 0):
            for t in range(8): p(f"v_pk_fma_f32 {v(AC+2*t,2)}, {v(KU+2*(t-j+3),2)}, {v(T+2*j,2)}, {v(AC+2*t,2)}")
        if cp == 0: p("s_waitcnt vmcnt(0)")
        for j in range(8):
            p(f"v_lshlrev_b32 {v(KU+2*j)}, 16, {v(VR+2*j+cp)}")
            p(f"v_and_b32 {v(KU+2*j+1)}, s32, {v(VR+2*j+cp)}")
        for t in range(8): p(f"v_pk_mul_f32 {v(AC+2*t,2)}, {v(AC+2*t,2)}, {v(KU+2*t,2)}")
        for e in range(2):
            for i in range(4): p(f"v_cvt_pk_bf16_f32 {v(OUT+4*e+i)}, {v(AC+2*(7-2*i)+e)}, {v(AC+2*(6-2*i)+e)}")
            p(f"s_mov_b32 s10, {WS_XR + (2*cp+e)*XRS}")
            p(f"buffer_store_dwordx4 {v(OUT+4*e,4)}, v15, s[12:15], s10 offen{SC}")
    p("s_cmp_lg_u32 s29, 0")
    p(f"s_cbranch_scc1 {pre}_S1END")
    for i in range(4): p(f"v_mov_b32 {v(8+i)}, 0")
    for c in range(4):
        p(f"s_mov_b32 s10, {WS_XR + c*XRS + 4096}")
        p(f"buffer_store_dwordx4 v[8:11], v14, s[12:15], s10 offen{SC}")
    p.label(f"{pre}_S1END")
    p("v_mov_b32 v118, v1")
    p("v_mov_b32 v119, v2")
    p("v_mov_b32 v117, v3")
    def signal_and_wait(tag, work=None):
        p(f"v_mov_b32 v1, {K2_CNT + 8 * tag}")
        p("v_mov_b32 v2, 1")
        p("s_waitcnt vmcnt(0)")
        stamp(p, 9 + 2 * tag)
        p("s_mov_b64 exec, 1")
        p("ds_add_rtn_u32 v126, v1, v2")
        p("s_mov_b64 exec, -1")
        p("v_mov_b32 v127, s35")
        p("s_mov_b32 s25, 0x40000")
        p("s_waitcnt lgkmcnt(0)")
        p("v_readfirstlane_b32 s24, v126")
        p("s_cmp_lg_u32 s24, 3")
        p(f"s_cbranch_scc1 {pre}_NOSIG{tag}")
        p("s_mov_b64 exec, 1")
        p(f"buffer_store_dword v2, v127, s[12:15], s34 offen{SC}")
        p("s_mov_b64 exec, -1")
        p.label(f"{pre}_NOSIG{tag}")
        if work: work()
        p("s_cmp_lg_u32 s24, 3")
        p(f"s_cbranch_scc1 {pre}_LWAIT{tag}")
        p.label(f"{pre}_POLL{tag}")
        p(f"s_sleep {opt('slp', 8)}")
        p(f"buffer_load_dword v126, v123, s[12:15], s34 offen{SC}")
        p("s_sub_u32 s25, s25, 1")
        p(f"s_cbranch_scc1 {pre}_GOT{tag}")
        p("s_waitcnt vmcnt(0)")
        p("v_cmp_ne_u32 vcc, 1, v126")
        p(f"s_cbranch_vccnz {pre}_POLL{tag}")
        p.label(f"{pre}_GOT{tag}")
        p("ds_write_b32 v1, v2 offset:4")
        p(f"s_branch {pre}_GO{tag}")
        p.label(f"{pre}_LWAIT{tag}")
        p("s_sleep 2")
        p("ds_read_b32 v126, v1 offset:4")
        p("s_waitcnt lgkmcnt(0)")
        p("v_cmp_ne_u32 vcc, 1, v126")
        p(f"s_cbranch_vccnz {pre}_LWAIT{tag}")
        p.label(f"{pre}_GO{tag}")
        stamp(p, 10 + 2 * tag)
    AB, BB, KVB, ST = 8, 12, 13, 14
    FA, FBB, ACC = 16, 48, 80
    def conv_setup():
        p("v_and_b32 v5, 15, v0")
        p("v_lshrrev_b32 v6, 4, v0")
        p("v_lshrrev_b32 v3, 1, v5")
        p("v_lshlrev_b32 v4, 2, v6")
        p("v_sub_u32 v4, v4, v3")
        p("v_lshlrev_b32 v4, 2, v4")
        p("v_and_b32 v3, 1, v5")
        p("v_xor_b32 v3, 1, v3")
        p(f"v_mul_u32_u24 v3, {CV_C1}, v3")
        p(f"s_add_u32 s10, s30, {4*1023 - 32*(112+1)}")
        p(f"v_add3_u32 {v(AB)}, v4, v3, s10")
        for kk in range(1, 4): p(f"v_add_u32 {v(AB+kk)}, {1024*kk}, {v(AB)}")
        p("v_lshlrev_b32 v3, 5, v5")
        p("v_lshl_add_u32 v4, v6, 4, v3")
        p(f"s_add_u32 s10, s30, {CV_H + 512 - 32}")
        p(f"v_add_u32 {v(BB)}, s10, v4")
        p(f"v_lshl_add_u32 {v(ST)}, v6, 3, v3")
        p(f"s_add_u32 s10, s30, {4088 - 512*7}")
        p(f"v_sub_u32 {v(KVB)}, s10, {v(ST)}")
        for i in range(32): p(f"v_mov_b32 {v(ACC+i)}, 0")
    def hload():
        p(f"s_add_u32 m0, s30, {CV_H}")
        p("buffer_load_ushort v125, v117, s[20:23], 0 offen")
        p("buffer_load_dwordx4 v118, s[16:19], 0 offen lds")
        p(f"s_add_u32 m0, s30, {CV_H + 1024}")
        p("s_nop 0")
        for j in range(4): p(f"buffer_load_dwordx4 v119, s[16:19], 0 offen offset:{1024*j} lds")
        conv_setup()
        p("v_add_u32 v7, 2, v124")
    stamp(p, 5)
    signal_and_wait(1, hload)
    for (src_v, off) in ((124, 0), (7, CV_C1)):
        p(f"s_add_u32 m0, s30, {off}")
        p("s_nop 0")
        for j in range(4): p(f"buffer_load_dwordx4 {v(src_v)}, s[12:15], s31 offen offset:{1024*j}{SC} lds")
        p(f"s_add_u32 m0, s30, {off + 4096}")
        p("s_mov_b64 exec, 15")
        p(f"buffer_load_dwordx4 {v(src_v)}, s[12:15], s26 offen{SC} lds")
        p("s_mov_b64 exec, -1")
    p(f"s_add_u32 s34, s34, {16*FLS}")
    p("s_mov_b32 s25, 8")
    p("s_waitcnt vmcnt(0)")
    stamp(p, 7)
    dbg_stamp(p, 1, 7, "b2")
    p.label(f"{pre}_CVL")
    def rdA(a):
        kk, rem = (7 - a) >> 1, 128 * ((7 - a) & 1)
        return [f"ds_read2_b32 {v(FA+4*a,2)}, {v(AB+kk)} offset0:{rem} offset1:{rem+1}",
                f"ds_read2_b32 {v(FA+4*a+2,2)}, {v(AB+kk)} offset0:{rem+2} offset1:{rem+3}"]
    def cm(a, b):
        p(mf16(ACC+4*(a+b), FA+4*a, FBB+4*b, ACC+4*(a+b)))
        if opt("cvnop", -1) >= 0: p(f"s_nop {opt('cvnop')}")
    def rdB(b): return [f"ds_read_b128 {v(FBB+4*b,4)}, {v(BB)} offset:{512*b}"]
    for x in range(8):
        for r_ in rdA(x) + rdB(x): p(r_)
    for kk in range(4): p(f"v_add_u32 {v(AB+kk)}, -64, {v(AB+kk)}")
    p(f"v_add_u32 {v(BB)}, -64, {v(BB)}")
    p("s_waitcnt lgkmcnt(12)")
    for a in range(4):
        for b in range(4): cm(a, b)
    p("s_waitcnt lgkmcnt(0)")
    for a in range(8):
        for b in range(8 - a):
            if a >= 4 or b >= 4: cm(a, b)
    p("s_sub_u32 s25, s25, 1")
    p("s_cmp_lg_u32 s25, 0")
    p(f"s_cbranch_scc1 {pre}_CVL")
    stamp(p, 8)
    for t in range(8): p(f"ds_read_b64 {v(FA+2*t,2)}, {v(KVB)} offset:{512*(7-t)}")
    p("v_lshlrev_b32 v125, 16, v125")
    p(f"s_add_u32 s33, s33, {WS_Y}")
    p(f"v_lshlrev_b32 {v(ST)}, 1, {v(ST)}")
    for t in range(8):
        p(f"s_waitcnt lgkmcnt({7-t})")
        U = FBB + 4 * (t & 3); a = ACC + 4 * t; o = FBB + 16 + 2 * t
        p(f"v_and_b32 {v(U)}, s32, {v(FA+2*t+1)}")
        p(f"v_lshlrev_b32 {v(U+1)}, 16, {v(FA+2*t+1)}")
        p(f"v_and_b32 {v(U+2)}, s32, {v(FA+2*t)}")
        p(f"v_lshlrev_b32 {v(U+3)}, 16, {v(FA+2*t)}")
        for r_ in range(4): p(f"v_fmac_f32 {v(a+r_)}, v125, {v(U+r_)}")
        p(f"v_cvt_pk_bf16_f32 {v(o)}, {v(a)}, {v(a+1)}")
        p(f"v_cvt_pk_bf16_f32 {v(o+1)}, {v(a+2)}, {v(a+3)}")
        if t & 1: p(f"buffer_store_dwordx4 {v(o-2,4)}, {v(ST)}, s[12:15], s33 offen offset:{1024*(t>>1)}{SC}")
    QR, YR, U, OUT = 16, 32, 48, 64
    def qload():
        srd(p, 16, 36, 37, 4 * MB)
        srd(p, 20, 50, 51, 8 * MB)
        p("v_add_u32 v6, 4096, v120")
        for j in range(4): p(f"buffer_load_dwordx4 {v(QR+4*j,4)}, {('v120', 'v6')[j>>1]}, s[16:19], 0 offen offset:{2048*(j&1)}")
        if opt("wopf", 1):
            srd(p, 52, 48, 49, 2 * MB)
            p("s_lshl_b32 s10, s27, 11")
            p("v_lshlrev_b32 v7, 5, v0")
            p("buffer_load_dword v8, v7, s[52:55], s10 offen")
    stamp(p, 9)
    signal_and_wait(2, qload)
    stamp(p, 10)
    for c in range(8):
        p(f"s_mov_b32 s10, {WS_Y + c*4096}")
        p(f"buffer_load_dwordx2 {v(YR+2*c,2)}, v121, s[12:15], s10 offen{SC}")
    p("s_waitcnt vmcnt(0)")
    for t in range(4):
        for cp in range(4):
            u = U + 4 * (cp & 1)
            q = QR + 4 * t + cp
            p(f"v_lshlrev_b32 {v(u)}, 16, {v(q)}")
            p(f"v_and_b32 {v(u+1)}, s32, {v(q)}")
            for e in range(2):
                y = YR + 2 * (2 * cp + e) + (t >> 1)
                if t & 1: p(f"v_and_b32 {v(u+2+e)}, s32, {v(y)}")
                else: p(f"v_lshlrev_b32 {v(u+2+e)}, 16, {v(y)}")
            p(f"v_pk_mul_f32 {v(u,2)}, {v(u,2)}, {v(u+2,2)}")
            p(f"v_cvt_pk_bf16_f32 {v(OUT+4*t+cp)}, {v(u)}, {v(u+1)}")
        p(f"s_mov_b32 s10, {t*4096}")
        p(f"buffer_store_dwordx4 {v(OUT+4*t,4)}, v122, s[20:23], s10 offen{FL[opt('s3sf', 2)]}")
    stamp(p, 3); stamp(p, 4, True)
    stamp_flush(p, 1, 15)
    dbg_stamp(p, 1, 8, "b3")
    p("s_endpgm")

def emit_k2(p):
    kernel_head(p, "k2_kernel")
    Q, ONES, L, P0, P1, F0, F1, NEGM, SA, SB, O = 4, 12, 16, 20, 24, 28, 44, 60, 76, 92, 108
    CA, CV_, ONE = 125, 126, 127
    RING = K2_NS * 16384
    p("s_cmp_ge_u32 s2, 256")
    p("s_cbranch_scc1 K2_END")
    p(f"s_load_dwordx2 s[4:5], s[0:1], {D_WS}")
    p("v_lshrrev_b32 v1, 6, v0")
    p("v_and_b32 v0, 63, v0")
    p("s_and_b32 s8, s2, 7")
    p("v_readfirstlane_b32 s3, v1")
    stamp(p, 0); stamp(p, 1, True)
    p("s_lshr_b32 s9, s2, 3")
    if STAMP:
        p("s_add_u32 s59, s3, 12")
        p("s_cmp_eq_u32 s3, 0")
        p("s_cselect_b32 s59, s59, s3")
        p("s_cselect_b32 s58, 0, 1")
        p("s_sub_u32 s59, s59, s58")
    p("s_cmp_ge_u32 s3, 9")
    p("s_cbranch_scc1 K2_HELPER")
    p("s_lshl_b32 s26, s8, 2")
    p("s_and_b32 s10, s9, 3")
    p("s_add_u32 s26, s26, s10")
    p("v_lshlrev_b32 v1, 4, v0")
    p("s_lshl_b32 s28, s26, 17")
    p(f"s_add_u32 s30, s28, {WS_K}")
    p(f"s_add_u32 s31, s28, {WS_V}")
    p(f"v_mov_b32 {v(CA)}, {K2_CNT}")
    p("s_cmp_lg_u32 s3, 0")
    p("s_cbranch_scc1 K2_ATT")
    p("v_add_u32 v2, 2048, v1")
    p("s_sub_u32 s31, s31, 2048")
    p("v_mov_b32 v3, 0")
    p(f"v_lshl_add_u32 v4, v0, 2, {v(CA)}")
    p("ds_write_b32 v4, v3")
    p("s_mov_b32 s20, 0")
    p("s_mov_b32 s21, 0")
    p("s_mov_b32 s25, 0")
    p(f"s_mov_b32 s24, {(-(K2_NS - 1)) & 0xffffffff}")
    p("v_and_b32 v4, 7, v0")
    p(f"v_lshl_add_u32 v4, v4, 2, {v(CA)}")
    p("s_setprio 3")
    p("s_waitcnt lgkmcnt(0)")
    srd(p, 16, 4, 5, 131072, off="s30")
    srd(p, 12, 4, 5, 131072 + 2048, off="s31")
    p("s_branch K2_LISSUE")
    p.label("K2_LSPIN")
    p("s_sleep 2")
    p.label("K2_LLOOP")
    p("ds_read_b32 v3, v4 offset:32")
    p("s_waitcnt lgkmcnt(0)")
    p("v_cmp_gt_i32 vcc, s24, v3")
    p("s_cbranch_vccnz K2_LSPIN")
    p.label("K2_LISSUE")
    for u in range(4):
        p("s_mov_b32 m0, s21")
        p("s_add_u32 s21, s21, 4096")
        for j in range(2): p(f"buffer_load_dwordx4 v2, s[16:19], s20 offen offset:{1024*j} lds")
        for j in range(2): p(f"buffer_load_dwordx4 v1, s[12:15], s20 offen offset:{2048+1024*j} lds")
        p("s_add_u32 s20, s20, 2048")
    p("s_cmp_lg_u32 s25, 0")
    p("s_cbranch_scc1 K2_LNB")
    p("s_barrier")
    p.label("K2_LNB")
    p(f"s_cmp_ge_u32 s21, {RING}")
    p("s_cselect_b32 s21, 0, s21")
    p("s_add_u32 s24, s24, 1")
    p("v_mov_b32 v3, s25")
    p("s_add_u32 s25, s25, 1")
    p("s_waitcnt vmcnt(16)")
    p(f"ds_write_b32 {v(CA)}, v3 offset:4")
    p("s_cmp_lt_u32 s25, 16")
    p("s_cbranch_scc1 K2_LLOOP")
    p("v_mov_b32 v3, 16")
    p("s_waitcnt vmcnt(0)")
    p(f"ds_write_b32 {v(CA)}, v3 offset:4")
    stamp(p, 3); stamp(p, 4, True)
    stamp_flush(p, 1, 5)
    p("s_endpgm")
    p.label("K2_ATT")
    p("s_lshr_b32 s27, s9, 2")
    p("s_lshl_b32 s27, s27, 3")
    p("s_add_u32 s27, s27, s3")
    p("s_sub_u32 s27, s27, 1")
    p("s_lshl_b32 s10, s27, 11")
    p("s_add_u32 s29, s28, s10")
    p("s_waitcnt lgkmcnt(0)")
    srd(p, 12, 4, 5, WS_SIZE)
    for j in range(2): p(f"buffer_load_dwordx4 {v(Q+4*j,4)}, v1, s[12:15], s29 offen offset:{1024*j}")
    for j in range(2): p(f"buffer_load_dwordx4 {v(F1+4*j,4)}, v1, s[12:15], s30 offen offset:{1024*j}")
    p("s_barrier")
    p("v_lshrrev_b32 v2, 4, v0")
    p("v_xor_b32 v2, v2, v0")
    p("v_and_b32 v2, 1, v2")
    p("v_cmp_eq_u32 vcc, 0, v2")
    p("v_mov_b32 v3, 0x3f803f80")
    p("v_mov_b32 v2, 0")
    for i in range(4): p(f"v_cndmask_b32 {v(ONES+i)}, v2, v3, vcc")
    p(f"v_mov_b32 {v(ONE)}, 1")
    for i in range(4): p(f"v_mov_b32 {v(L+i)}, 0")
    for i in range(16): p(f"v_mov_b32 {v(O+i)}, 0")
    for i in range(12, 16): p(f"v_mov_b32 {v(F1+i)}, 0")
    for i in range(4): p(f"v_mov_b32 {v(P1+i)}, 0")
    p("s_mov_b32 s22, 16384")
    p("s_mov_b32 s25, 2")
    p("s_waitcnt vmcnt(0)")
    p(mf32(SA, F1, Q, "0"))
    p(mf32(SA, F1+4, Q+4, SA))
    p("s_nop 11")
    p(f"v_max3_f32 v2, {v(SA)}, {v(SA+1)}, {v(SA+2)}")
    for i in range(3, 15, 2): p(f"v_max3_f32 v2, v2, {v(SA+i)}, {v(SA+i+1)}")
    p(f"v_max_f32 v2, v2, {v(SA+15)}")
    p("v_mov_b32 v3, v2")
    p("s_nop 1")
    p("v_permlane32_swap_b32 v2, v3")
    p("v_max_f32 v3, v2, v3")
    for i in range(16): p(f"v_sub_f32 {v(NEGM+i)}, 0, v3")
    for i in range(16): p(f"v_sub_f32 {v(SA+i)}, {v(SA+i)}, v3")
    p("v_mov_b32 v2, v1")
    p("s_lshl_b32 s10, s3, 2")
    p(f"s_add_u32 s10, s10, {K2_CNT + 28}")
    p("v_mov_b32 v3, s10")
    stamp(p, 2)
    p.label("K2_W0")
    p(f"ds_read_b32 {v(CV_)}, {v(CA)} offset:4")
    p("s_waitcnt lgkmcnt(0)")
    p(f"v_readfirstlane_b32 s10, {v(CV_)}")
    p("s_cmp_eq_u32 s10, 0")
    p("s_cbranch_scc1 K2_W0")
    for j in range(4): p(f"ds_read_b128 {v(F0+4*j,4)}, v2 offset:{j*1024}")
    p("s_branch K2_ENTRY")
    ORDER = "w0 S0 r0 e3 O1p r1 e3 L1p e2 S1 r2 c4 e2 O0 r3 e3 L0 e3 c4"
    def step(F, Sc, Sn, Fn, u, first=False, extra=None):
        e = 0; c = 0
        for t in ORDER.split():
            if t == "S0":
                if u is not None: p(mf32(Sn, F, Q, NEGM))
            elif t == "S1":
                if u is not None: p(mf32(Sn, F+4, Q+4, Sn))
            elif t == "O0": p(mf32(O, F+8, P0, O))
            elif t == "O1p": p(mf32(O, Fn+12, P1, O))
            elif t == "L0":
                p(mf16(L, ONES, P0, L))
                if extra: extra()
            elif t == "L1p": p(mf16(L, ONES, P1, L))
            elif t[0] == "e":
                for _ in range(int(t[1:])): p(f"v_exp_f32 {v(Sc+e)}, {v(Sc+e)}"); e += 1
            elif t[0] == "c":
                for _ in range(int(t[1:])): p(f"v_cvt_pk_bf16_f32 {v(P0+c)}, {v(Sc+2*c)}, {v(Sc+2*c+1)}"); c += 1
            elif t[0] == "r":
                if u is not None: j = int(t[1:]); p(f"ds_read_b128 {v(Fn+4*j,4)}, v2 offset:{u*4096+j*1024}")
            elif t[0] == "w":
                if not first: p(f"s_waitcnt lgkmcnt({t[1:]})")
    def arrive():
        p("s_mov_b64 exec, 1")
        p(f"ds_add_u32 v3, {v(ONE)}")
        p("s_mov_b64 exec, -1")
    def peek():
        p(f"ds_read_b32 {v(CV_)}, {v(CA)} offset:4")
        p("v_add_u32 v2, s22, v1")
        p("s_add_u32 s22, s22, 16384")
        p(f"s_cmp_ge_u32 s22, {RING}")
        p("s_cselect_b32 s22, 0, s22")
    LAD = [int(c) for c in OPT.get("lad", "3210")]
    p.label("K2_SPIN")
    p(f"ds_read_b32 {v(CV_)}, {v(CA)} offset:4")
    p.label("K2_LOOP")
    stamp(p, 6)
    p("s_waitcnt lgkmcnt(0)")
    p(f"v_readfirstlane_b32 s10, {v(CV_)}")
    if STAMP:
        p("s_sub_u32 m0, s25, 1")
        p("s_nop 0")
        p("v_writelane_b32 v124, s72, m0")
    p(f"s_setprio {LAD[0]}")
    p("s_cmp_lt_u32 s10, s25")
    p("s_cbranch_scc1 K2_SPIN")
    p("s_add_u32 s25, s25, 1")
    step(F1, SB, SA, F0, 0, first=True, extra=arrive)
    p.label("K2_ENTRY")
    p(f"s_setprio {LAD[1]}")
    step(F0, SA, SB, F1, 1)
    p(f"s_setprio {LAD[2]}")
    step(F1, SB, SA, F0, 2)
    p(f"s_setprio {LAD[3]}")
    step(F0, SA, SB, F1, 3, extra=peek)
    p("s_cmp_lt_u32 s25, 17")
    p("s_cbranch_scc1 K2_LOOP")
    step(F1, SB, SA, F0, None)
    p("s_nop 1")
    p(mf32(O, F1+12, P1, O))
    p(mf16(L, ONES, P1, L))
    stamp(p, 5)
    p("v_and_b32 v2, 16, v0")
    p("v_cmp_eq_u32 vcc, 0, v2")
    p("s_lshl_b32 s10, s27, 16")
    p("s_lshl_b32 s11, s26, 11")
    p("s_add_u32 s10, s10, s11")
    p(f"s_add_u32 s10, s10, {WS_O}")
    p(f"s_mov_b32 s11, {f32bits(2.0**100)}")
    p("s_nop 3")
    p(f"v_cndmask_b32 v2, {v(L+1)}, {v(L)}, vcc")
    p(f"v_add_f32 v3, abs({v(O)}), v2")
    for i in range(1, 16): p(f"v_add_f32 v3, abs({v(O+i)}), v3")
    p("v_cmp_ngt_f32 vcc, s11, v3")
    if opt("forcefb"): p("s_branch K2_FALLBACK")
    p("s_cbranch_vccnz K2_FALLBACK")
    p.label("K2_FIN")
    p("v_rcp_f32 v2, v2")
    p("s_nop 0")
    for j in range(2):
        for i in range(8 * j, 8 * j + 8): p(f"v_mul_f32 {v(O+i)}, v2, {v(O+i)}")
        for i in range(4 * j, 4 * j + 4): p(f"v_cvt_pk_bf16_f32 {v(P0+i)}, {v(O+2*i)}, {v(O+2*i+1)}")
        p(f"buffer_store_dwordx4 {v(P0+4*j,4)}, v1, s[12:15], s10 offen offset:{1024*j}{FL[opt('k2sf', 2)]}")
    stamp(p, 3); stamp(p, 4, True)
    stamp_flush(p, 1, 6); lstamp_flush(p, 1, 124)
    dbg_stamp(p, 1, 9, "b4")
    p.label("K2_END")
    p("s_endpgm")
    p.label("K2_FALLBACK")
    M, AL = NEGM, NEGM + 1
    for i in range(16): p(f"v_mov_b32 {v(O+i)}, 0")
    p("v_mov_b32 v2, 0")
    p(f"v_mov_b32 {v(M)}, 0xff7fffff")
    p("s_mov_b32 s25, 64")
    p.label("K2_FBL")
    for j in range(2): p(f"buffer_load_dwordx4 {v(F0+4*j,4)}, v1, s[12:15], s30 offen offset:{1024*j}")
    for j in range(2): p(f"buffer_load_dwordx4 {v(F0+8+4*j,4)}, v1, s[12:15], s31 offen offset:{1024*j}")
    p("s_add_u32 s30, s30, 2048")
    p("s_add_u32 s31, s31, 2048")
    p("s_waitcnt vmcnt(0)")
    p(mf32(SA, F0, Q, "0"))
    p(mf32(SA, F0+4, Q+4, SA))
    p("s_nop 15")
    p(f"v_max3_f32 v3, {v(SA)}, {v(SA+1)}, {v(M)}")
    for i in range(2, 16, 2): p(f"v_max3_f32 v3, v3, {v(SA+i)}, {v(SA+i+1)}")
    p(f"v_mov_b32 {v(SB)}, v3")
    p("s_nop 1")
    p(f"v_permlane32_swap_b32 v3, {v(SB)}")
    p(f"v_max_f32 v3, v3, {v(SB)}")
    p(f"v_sub_f32 {v(AL)}, {v(M)}, v3")
    p(f"v_exp_f32 {v(AL)}, {v(AL)}")
    p(f"v_mov_b32 {v(M)}, v3")
    for i in range(16): p(f"v_sub_f32 {v(SA+i)}, {v(SA+i)}, v3")
    for i in range(16): p(f"v_exp_f32 {v(SA+i)}, {v(SA+i)}")
    p(f"v_mul_f32 v2, v2, {v(AL)}")
    for i in range(16): p(f"v_mul_f32 {v(O+i)}, {v(O+i)}, {v(AL)}")
    for i in range(16): p(f"v_add_f32 v2, v2, {v(SA+i)}")
    for i in range(8): p(f"v_cvt_pk_bf16_f32 {v(P0+i)}, {v(SA+2*i)}, {v(SA+2*i+1)}")
    p("s_nop 1")
    p(mf32(O, F0+8, P0, O))
    p(mf32(O, F0+12, P1, O))
    p("s_nop 15")
    p("s_sub_u32 s25, s25, 1")
    p("s_cmp_lg_u32 s25, 0")
    p("s_cbranch_scc1 K2_FBL")
    p("v_mov_b32 v3, v2")
    p("s_nop 1")
    p("v_permlane32_swap_b32 v2, v3")
    p("v_add_f32 v2, v2, v3")
    p("s_branch K2_FIN")
    p.label("K2_HELPER")
    emit_partA(p, "K2")
    return 128, 832, CV_BASE + 4 * CV_STRIDE

def emit_k3(p):
    kernel_head(p, "k3_kernel")
    p("s_cmp_ge_u32 s2, 256")
    p("s_cbranch_scc1 K3_END")
    p(f"s_load_dwordx4 s[4:7], s[0:1], {B_WO}")
    p(f"s_load_dwordx2 s[30:31], s[0:1], {D_WS}")
    p("v_lshrrev_b32 v1, 6, v0")
    p("v_and_b32 v0, 63, v0")
    p("s_and_b32 s8, s2, 7")
    p("v_readfirstlane_b32 s3, v1")
    stamp(p, 0); stamp(p, 1, True)
    p("s_lshr_b32 s9, s2, 3")
    if STAMP: p("s_mov_b32 s59, s3")
    p("s_and_b32 s26, s8, 3")
    p("s_lshl_b32 s26, s26, 2")
    p("s_and_b32 s10, s9, 3")
    p("s_add_u32 s26, s26, s10")
    p("s_lshr_b32 s27, s8, 2")
    p("s_lshl_b32 s27, s27, 3")
    p("s_lshr_b32 s11, s9, 2")
    p("s_add_u32 s27, s27, s11")
    if opt("k3rot", 0):
        p("s_lshr_b32 s11, s11, 1")
        p("s_add_u32 s24, s10, s11")
        p("s_and_b32 s24, s24, 3")
    else:
        p("s_mov_b32 s24, 0")
    p("s_cmp_ge_u32 s3, 4")
    p("s_cbranch_scc1 K3_NOTLOADER")
    p("v_lshrrev_b32 v2, 5, v0")
    p("v_lshlrev_b32 v2, 2, v2")
    p("v_bfe_u32 v4, v0, 2, 2")
    p("s_lshl_b32 s10, s3, 5")
    p("v_add3_u32 v2, v2, v4, s10")
    p("v_lshlrev_b32 v2, 11, v2")
    p("v_bfe_u32 v3, v0, 4, 1")
    p("v_lshl_add_u32 v2, v3, 6, v2")
    p("v_and_b32 v4, 3, v0")
    p("v_lshl_add_u32 v10, v4, 4, v2")
    for jj in range(1, 4): p(f"v_add_u32 {v(10+jj)}, {jj*(16384-1024)}, v10")
    p("s_lshl_b32 s23, s3, 12")
    p("s_lshl_b32 s20, s24, 19")
    p("s_mov_b32 s25, 0")
    p("s_lshl_b32 s11, s27, 7")
    p(f"s_sub_u32 s18, {2*MB}, s11")
    p("s_mov_b32 s19, 0x20000")
    p("s_waitcnt lgkmcnt(0)")
    p("s_add_u32 s16, s4, s11")
    p("s_addc_u32 s17, s5, 0")
    LA = opt("k3la", 2)
    p("s_branch K3_LISSUE")
    p.label("K3_LLOOP")
    p(f"s_cmp_lt_u32 s25, {LA}")
    p("s_cbranch_scc1 K3_LISSUE")
    p(f"s_waitcnt vmcnt({4*(LA-1)})")
    p("s_barrier")
    p.label("K3_LISSUE")
    p("s_mov_b32 m0, s23")
    p("s_add_u32 s23, s23, 16384")
    for jj in range(4): p(f"buffer_load_dwordx4 {v(10+jj)}, s[16:19], s20 offen offset:{1024*jj}{FL[opt('k3wf')]} lds")
    p("s_add_u32 s20, s20, 262144")
    p(f"s_and_b32 s20, s20, {2*MB-1}")
    p("s_add_u32 s25, s25, 1")
    p("s_cmp_lt_u32 s25, 8")
    p("s_cbranch_scc1 K3_LLOOP")
    for n in range(LA - 1, -1, -1):
        p(f"s_waitcnt vmcnt({4*n})")
        p("s_barrier")
    stamp(p, 3); stamp(p, 4, True)
    stamp_flush(p, 2, 5)
    p.label("K3_END")
    p("s_endpgm")
    p.label("K3_NOTLOADER")
    dbg_stamp(p, 2, 10, "c0")
    OB, WF, ACC = 64, 8, 32
    p("s_sub_u32 s3, s3, 4")
    p("s_lshl_b32 s28, s26, 2")
    p("s_add_u32 s28, s28, s3")
    p("s_lshl_b32 s10, s28, 16")
    p(f"s_add_u32 s10, s10, {WS_O}")
    p("v_lshlrev_b32 v1, 4, v0")
    for i in range(1, 4): p(f"v_add_u32 {v(1+i)}, {4096*i}, v1")
    p("s_lshl_b32 s20, s24, 14")
    p("s_waitcnt lgkmcnt(0)")
    srd(p, 12, 30, 31, 65536, off="s10")
    def ldo(n, so): return f"buffer_load_dwordx4 {v(OB+4*n,4)}, {v(1+(n>>2))}, s[12:15], {so} offen offset:{1024*(n&3)}{FL[opt('k3of')]}"
    for n in range(15): p(ldo(n, "s20"))
    p("v_lshrrev_b32 v6, 5, v0")
    p("v_lshlrev_b32 v5, 9, v6")
    p("v_bfe_u32 v7, v0, 2, 2")
    p("v_lshl_add_u32 v5, v7, 6, v5")
    p("v_bfe_u32 v7, v0, 4, 1")
    p("v_lshl_add_u32 v5, v7, 5, v5")
    p("v_and_b32 v7, 3, v0")
    p("v_lshl_add_u32 v5, v7, 3, v5")
    for i in range(WF + 8, WF + 16): p(f"v_mov_b32 {v(i)}, 0")
    for i in range(OB + 60, OB + 64): p(f"v_mov_b32 {v(i)}, 0")
    for i in range(ACC, ACC + 32): p(f"v_mov_b32 {v(i)}, 0")
    p("s_add_u32 s21, s20, 16384")
    p("s_and_b32 s21, s21, 0xffff")
    p("s_mov_b32 s25, 4")
    stamp(p, 2)
    def rdw(b, ks): return [f"ds_read_b64_tr_b16 {v(WF+8*b+4*nt+2*h,2)}, v5 offset:{ks*2048+h*1024+nt*256}" for nt in range(2) for h in range(2)]
    def mm(b, n): return [mf32(ACC+16*nt, WF+8*b+4*nt, OB+4*n, ACC+16*nt) for nt in range(2)]
    p.label("K3_CLOOP")
    for ks in range(16):
        b = ks & 1; n = (ks - 1) & 15
        if ks % 8 == 0: p("s_barrier")
        R = rdw(b, ks); M = mm(b ^ 1, n)
        p("s_waitcnt vmcnt(15) lgkmcnt(2)")
        p(M[0]); p(R[0]); p(R[1])
        p("s_waitcnt lgkmcnt(2)")
        p(M[1]); p(R[2]); p(R[3])
        p(ldo(n, "s20" if n == 15 else "s21"))
    p("v_add_u32 v5, 32768, v5")
    p("s_mov_b32 s20, s21")
    p("s_add_u32 s21, s21, 16384")
    p("s_and_b32 s21, s21, 0xffff")
    p("s_sub_u32 s25, s25, 1")
    p("s_cmp_eq_u32 s25, 1")
    p("s_cselect_b32 s21, 0x10000, s21")
    p("s_cmp_lg_u32 s25, 0")
    p("s_cbranch_scc1 K3_CLOOP")
    p("s_waitcnt vmcnt(15) lgkmcnt(0)")
    for m in mm(1, 15): p(m)
    stamp(p, 5)
    srd(p, 16, 6, 7, 8 * MB)
    p("v_and_b32 v2, 31, v0")
    p("v_lshlrev_b32 v2, 12, v2")
    p("v_lshl_add_u32 v2, v6, 4, v2")
    p("s_lshl_b32 s10, s28, 17")
    p("s_lshl_b32 s11, s27, 7")
    p("s_add_u32 s10, s10, s11")
    p("s_add_u32 s10, s10, 2048")
    p("s_nop 1")
    for nt in range(2):
        for i in range(8): p(f"v_cvt_pk_bf16_f32 {v(WF+8*nt+i)}, {v(ACC+16*nt+2*i)}, {v(ACC+16*nt+2*i+1)}")
    p("s_nop 0")
    for nt in range(2):
        for pr in range(2):
            b = WF + 8 * nt + 4 * pr
            p(f"v_permlane32_swap_b32 {v(b)}, {v(b+2)}")
            p(f"v_permlane32_swap_b32 {v(b+1)}, {v(b+3)}")
            p(f"buffer_store_dwordx4 {v(b,4)}, v2, s[16:19], s10 offen offset:{64*nt+32*pr}{FL[opt('k3sf')]}")
    stamp(p, 3); stamp(p, 4, True)
    stamp_flush(p, 2, 6)
    dbg_stamp(p, 2, 11, "c1")
    p("s_endpgm")
    return 128, 512, 131072

def build(path):
    p = Prog()
    descs = []; launches = []
    for name, fn in (("k1_kernel", emit_k1), ("k2_kernel", emit_k2), ("k3_kernel", emit_k3)):
        vg, blk, lds = fn(p)
        descs.append(kernel_desc(name, vg)); launches.append((name, 256, blk, lds))
    hdr = open("concat_heads__ssm_conv_h3__mha_block__prompt.s.ref").read().split("\n")
    hdr = [l for l in hdr if l.startswith(";") and "@launch" not in l and "Override" not in l and "grid=ceil" not in l]
    out = "\n".join(hdr) + "\n"
    for (k, g, b, l) in launches: out += f"; @launch kernel={k} grid=({g},1,1) block=({b},1,1) lds={l}\n"
    out += '.amdgcn_target "amdgcn-amd-amdhsa--gfx950"\n.text\n'
    body = p.text()
    nbad = check(body)
    out += body
    out += '.section .rodata,"a"\n'
    for d in descs: out += ".p2align 6\n" + d
    open(path, "w").write(out)
    return nbad

if __name__ == "__main__":
    nb = build(sys.argv[1] if len(sys.argv) > 1 else "out.s")
    print("hazards:", nb)
```

```python
import sys, os, struct, math
sys.path.insert(0, os.path.dirname(os.path.abspath(__file__)))
from asmlib import Prog, v, s, check

MB = 1 << 20
WS_Q, WS_K, WS_V, WS_O, WS_XR, WS_Y, WS_FL = 0, 4 * MB, 8 * MB, 12 * MB, 16 * MB, 21 * MB, 25 * MB
XRS = 4224
WS_SIZE = 32 * MB
FLS = 4352
A_Q, A_K, A_V, A_SK, A_SSMK, A_D, B_X, B_WQKV, B_WO, D_OUT, D_DBG, D_WS = [8 * i for i in range(12)]
def f32bits(x): return struct.unpack("<I", struct.pack("<f", x))[0]
QSCALE = f32bits((32 ** -0.5) * math.log2(math.e))
STAMP = os.environ.get("STAMP", "0") == "1"
OPT = dict(kv.split("=") for kv in os.environ.get("OPT", "").split(",") if kv)
def opt(k, d=0): return int(OPT.get(k, d))
WS_ST = 28 * MB
FL = {0: "", 1: " nt", 2: " sc1", 3: " sc0 sc1", 4: " sc0"}

def mf32(d, a, b, c): return f"v_mfma_f32_32x32x16_bf16 {v(d,16)}, {v(a,4)}, {v(b,4)}, {v(c,16) if isinstance(c,int) else c}"
def mf16(d, a, b, c): return f"v_mfma_f32_16x16x32_bf16 {v(d,4)}, {v(a,4)}, {v(b,4)}, {v(c,4) if isinstance(c,int) else c}"

def srd(p, d, lo, hi, nrec, off=None):
    if off is None:
        if lo != d: p(f"s_mov_b32 {s(d)}, {s(lo)}")
        if hi != d + 1: p(f"s_mov_b32 {s(d+1)}, {s(hi)}")
    else:
        p(f"s_add_u32 {s(d)}, {s(lo)}, {off}")
        p(f"s_addc_u32 {s(d+1)}, {s(hi)}, 0")
    p(f"s_mov_b32 {s(d+2)}, {nrec}")
    p(f"s_mov_b32 {s(d+3)}, 0x20000")

def stamp(p, i, real=False):
    if STAMP: p(f"{'s_memrealtime' if real else 's_memtime'} s[{60+2*i}:{61+2*i}]")
def stamp_flush(p, kidx, n, wave_sgpr=59):
    if not STAMP: return
    p(f"s_load_dwordx2 s[56:57], s[0:1], {D_WS}")
    p("s_lshl_b32 s58, s2, 4")
    p(f"s_add_u32 s58, s58, {s(wave_sgpr)}")
    p("s_lshl_b32 s58, s58, 6")
    p(f"s_add_u32 s58, s58, {WS_ST + kidx * 262144}")
    p("s_waitcnt lgkmcnt(0)")
    p("v_mov_b32 v2, s58")
    for i in range(n):
        p(f"v_mov_b32 v3, s{60+2*i}")
        p(f"global_store_dword v2, v3, s[56:57] offset:{4*i}")
def lstamp_flush(p, kidx, vreg, wave_sgpr=59):
    if not STAMP: return
    p(f"s_load_dwordx2 s[56:57], s[0:1], {D_WS}")
    p("s_lshl_b32 s58, s2, 4")
    p(f"s_add_u32 s58, s58, {s(wave_sgpr)}")
    p("s_lshl_b32 s58, s58, 8")
    p(f"s_add_u32 s58, s58, {WS_ST + MB + kidx * MB}")
    p("v_mbcnt_lo_u32_b32 v2, -1, 0")
    p("v_mbcnt_hi_u32_b32 v2, -1, v2")
    p("v_lshl_add_u32 v2, v2, 2, s58")
    p("s_waitcnt lgkmcnt(0)")
    p(f"global_store_dword v2, {v(vreg)}, s[56:57]")

DBG = os.environ.get("DBG", "0") == "1"
def dbg_stamp(p, kidx, slot, lab, wg=0):
    if not DBG: return
    p(f"s_cmp_lg_u32 s2, {wg}")
    p(f"s_cbranch_scc1 DBG_{lab}")
    p(f"s_load_dwordx2 s[90:91], s[0:1], {D_DBG}")
    p("s_memrealtime s[92:93]")
    p("s_waitcnt lgkmcnt(0)")
    p(f"s_add_u32 s90, s90, {512*(2-kidx)}")
    p("s_addc_u32 s91, s91, 0")
    p("v_mov_b32 v127, s92")
    p("v_mov_b32 v126, 0")
    p(f"global_store_dword v126, v127, s[90:91] offset:{4*slot}")
    p.label(f"DBG_{lab}")

def kernel_head(p, name):
    p(f".globl {name}")
    p(".p2align 8")
    p(f".type {name},@function")
    p.label(name)

def code_prefetch(p, start, end, vt, vd):
    if not opt("cpf", 1): return
    p("s_getpc_b64 s[94:95]")
    p.label(start)
    p(f"v_lshlrev_b32 {v(vt)}, 7, v0")
    p(f"v_min_u32 {v(vt)}, {end}-{start}-4, {v(vt)}")
    p(f"global_load_dword {v(vd)}, {v(vt)}, s[94:95]")

def kernel_desc(name, vgpr, sgpr=102):
    acc = (vgpr + 3) // 4 * 4
    return f""".amdhsa_kernel {name}
  .amdhsa_next_free_vgpr {vgpr}
  .amdhsa_next_free_sgpr {sgpr}
  .amdhsa_accum_offset {acc}
  .amdhsa_group_segment_fixed_size 0
  .amdhsa_kernarg_size 96
  .amdhsa_user_sgpr_count 2
  .amdhsa_user_sgpr_kernarg_segment_ptr 1
  .amdhsa_system_sgpr_workgroup_id_x 1
.end_amdhsa_kernel
"""

def pf_addr(p, vx, vw, which=(0, 1)):
    if 0 in which:
        p("s_and_b32 s29, s27, 3")
        p("s_lshl_b32 s29, s29, 5")
        p("s_lshl_b32 s10, s26, 7")
        p("s_add_u32 s29, s29, s10")
        p("v_lshrrev_b32 v1, 1, v0")
        p("v_add_u32 v1, s29, v1")
        p("v_lshlrev_b32 v1, 11, v1")
        p("v_and_b32 v2, 1, v0")
        p(f"v_lshl_add_u32 {v(vx)}, v2, 7, v1")
    if 1 in which:
        p("v_lshrrev_b32 v2, 5, v0")
        p("v_lshlrev_b32 v2, 6, v2")
        p("v_bfe_u32 v3, v0, 2, 3")
        p("s_and_b32 s29, s26, 7")
        p("s_lshl_b32 s29, s29, 3")
        p("v_add3_u32 v2, v2, v3, s29")
        p("v_mul_u32_u24 v2, 6144, v2")
        p("v_and_b32 v3, 3, v0")
        p("v_min_u32 v3, 2, v3")
        p("v_lshl_add_u32 v2, v3, 11, v2")
        p("s_lshl_b32 s29, s27, 7")
        p(f"v_add_u32 {v(vw)}, s29, v2")

def emit_k1(p):
    DF = {0: "", 1: " nt", 2: " sc1", 3: " sc0 sc1", 4: " sc0"}[opt("df")]
    NS = opt("ns", 3)
    XREG, WREG = 0, NS * 16384
    kernel_head(p, "k1_kernel")
    p("s_cmp_ge_u32 s2, 256")
    p("s_cbranch_scc1 K1_END")
    p(f"s_load_dwordx4 s[4:7], s[0:1], {B_X}")
    code_prefetch(p, "K1_PC", "K1_CODE_END", 1, 19)
    p("v_lshrrev_b32 v1, 6, v0")
    p("v_and_b32 v0, 63, v0")
    p("s_and_b32 s8, s2, 7")
    p("v_readfirstlane_b32 s3, v1")
    stamp(p, 0); stamp(p, 1, True)
    p("s_lshr_b32 s9, s2, 3")
    if STAMP: p("s_mov_b32 s59, s3")
    p("s_and_b32 s26, s8, 1")
    p("s_lshl_b32 s26, s26, 3")
    p("s_and_b32 s10, s9, 7")
    p("s_add_u32 s26, s26, s10")
    p("s_lshr_b32 s27, s8, 1")
    p("s_lshl_b32 s27, s27, 2")
    p("s_lshr_b32 s10, s9, 3")
    p("s_add_u32 s27, s27, s10")
    p(f"s_mul_i32 s33, s8, {opt('xrot', 0)}")
    p("s_and_b32 s33, s33, 7")
    p("s_cmp_ge_u32 s3, 4")
    p("s_cbranch_scc1 K1_NOTLOADER")
    if opt("pf0", 1):
        p("s_bitcmp1_b32 s3, 0")
        p("s_cbranch_scc1 K1_PFW")
        pf_addr(p, 16, 16, (0,))
        p("s_lshr_b32 s10, s3, 1")
        p("s_add_u32 s10, s10, s33")
        p("s_and_b32 s10, s10, 7")
        p("s_lshl_b32 s10, s10, 8")
        p("s_waitcnt lgkmcnt(0)")
        srd(p, 40, 4, 5, 4 * MB)
        p("s_branch K1_PFGO")
        p.label("K1_PFW")
        pf_addr(p, 16, 16, (1,))
        p("s_lshr_b32 s10, s3, 1")
        p("s_add_u32 s10, s10, s33")
        p("s_and_b32 s10, s10, 7")
        p(f"s_mul_i32 s10, s10, {128*6144}")
        p("s_waitcnt lgkmcnt(0)")
        srd(p, 40, 6, 7, 6 * MB)
        p.label("K1_PFGO")
        p("buffer_load_dword v17, v16, s[40:43], s10 offen")
    p("v_lshrrev_b32 v2, 3, v0")
    p("v_lshlrev_b32 v2, 11, v2")
    p("v_lshrrev_b32 v3, 4, v0")
    p("v_and_b32 v4, 7, v0")
    p("v_xor_b32 v4, v4, v3")
    p("v_lshl_add_u32 v2, v4, 4, v2")
    p("s_lshl_b32 s10, s3, 16")
    p("v_add_u32 v10, s10, v2")
    p("v_xor_b32 v11, 64, v10")
    p(f"v_add_u32 v12, {32768-2048}, v10")
    p(f"v_add_u32 v13, {49152-3072}, v11")
    p(f"v_add_u32 v11, {16384-1024}, v11")
    p("v_lshrrev_b32 v2, 5, v0")
    p("v_lshlrev_b32 v2, 2, v2")
    p("v_bfe_u32 v4, v0, 2, 2")
    p("s_lshl_b32 s10, s3, 4")
    p("v_add3_u32 v2, v2, v4, s10")
    p("v_mul_u32_u24 v2, 6144, v2")
    p("v_and_b32 v3, 1, v3")
    p("v_lshl_add_u32 v2, v3, 6, v2")
    p("v_and_b32 v4, 3, v0")
    p("v_lshl_add_u32 v14, v4, 4, v2")
    p("v_add_u32 v15, 48128, v14")
    p("s_lshl_b32 s23, s3, 12")
    p("s_mul_i32 s24, s3, 6144")
    p(f"s_add_u32 s24, s24, {WREG}")
    p("s_lshl_b32 s20, s33, 8")
    p(f"s_mul_i32 s21, s33, {128*6144}")
    p("s_mov_b32 s25, 0")
    p("s_lshl_b32 s10, s26, 18")
    p("s_lshl_b32 s11, s27, 7")
    p(f"s_sub_u32 s18, {1024*6144}, s11")
    p("s_mov_b32 s14, 262144")
    p("s_mov_b32 s15, 0x20000")
    p("s_mov_b32 s19, 0x20000")
    p("s_waitcnt lgkmcnt(0)")
    p("s_add_u32 s12, s4, s10")
    p("s_addc_u32 s13, s5, 0")
    p("s_add_u32 s16, s6, s11")
    p("s_addc_u32 s17, s7, 0")
    stamp(p, 2)
    p("s_branch K1_LISSUE")
    p.label("K1_LLOOP")
    p("s_cmp_lt_u32 s25, 2")
    p("s_cbranch_scc1 K1_LISSUE")
    stamp(p, 6)
    p("s_waitcnt vmcnt(10)")
    stamp(p, 7)
    p("s_barrier")
    if STAMP:
        p("s_waitcnt lgkmcnt(0)")
        p("s_lshl_b32 m0, s25, 1")
        p("s_nop 0")
        p("v_writelane_b32 v20, s72, m0")
        p("s_add_u32 m0, m0, 1")
        p("s_nop 0")
        p("v_writelane_b32 v20, s74, m0")
    p.label("K1_LISSUE")
    p("s_mov_b32 m0, s23")
    p("s_add_u32 s22, s21, 4096")
    for jj in range(4):
        p(f"buffer_load_dwordx4 {v(10+jj)}, s[12:15], s20 offen offset:{1024*jj}{DF} lds")
    p("s_mov_b32 m0, s24")
    p("s_add_u32 s20, s20, 128")
    for ii in range(4):
        p(f"buffer_load_dwordx4 {v(14+(ii&1))}, s[16:19], s21 offen offset:{1024*ii}{DF} lds")
    p("s_add_u32 m0, s24, 4096")
    p("s_add_u32 s21, s21, 393216")
    for ii in range(2):
        p(f"buffer_load_dwordx4 {v(14+ii)}, s[16:19], s22 offen offset:{1024*ii}{DF} lds")
    p("s_and_b32 s20, s20, 2047")
    p("s_cselect_b32 s21, s21, 0")
    p("s_add_u32 s23, s23, 16384")
    p("s_add_u32 s24, s24, 24576")
    p(f"s_cmp_ge_u32 s23, {WREG}")
    p(f"s_cselect_b32 s10, {NS*16384}, 0")
    p(f"s_cselect_b32 s11, {NS*24576}, 0")
    p("s_sub_u32 s23, s23, s10")
    p("s_sub_u32 s24, s24, s11")
    p("s_add_u32 s25, s25, 1")
    p("s_cmp_lt_u32 s25, 16")
    p("s_cbranch_scc1 K1_LLOOP")
    for n in (10, 0):
        p(f"s_waitcnt vmcnt({n})")
        p("s_barrier")
    stamp(p, 3); stamp(p, 4, True)
    stamp_flush(p, 0, 5); lstamp_flush(p, 0, 20)
    p.label("K1_END")
    p("s_endpgm")
    p.label("K1_NOTLOADER")
    p(f"s_load_dwordx2 s[30:31], s[0:1], {D_WS}")
    p("s_cmp_ge_u32 s3, 8")
    p("s_cbranch_scc1 K1_HELPER")
    ACC = 64
    FB = 20
    XB, XC, WB, WC = 4, 8, 12, 13
    p("s_sub_u32 s3, s3, 4")
    p("s_lshr_b32 s28, s3, 1")
    p("s_and_b32 s29, s3, 1")
    p("v_and_b32 v1, 31, v0")
    p("v_lshrrev_b32 v2, 5, v0")
    p("v_bfe_u32 v3, v0, 1, 3")
    p("v_xor_b32 v3, v3, v2")
    p("v_lshlrev_b32 v3, 4, v3")
    p("v_lshl_add_u32 v3, v1, 7, v3")
    p("s_lshl_b32 s10, s28, 13")
    p(f"v_add_u32 {v(XB)}, s10, v3")
    for ks in range(1, 4): p(f"v_xor_b32 {v(XB+ks)}, {32*ks}, {v(XB)}")
    p("v_lshlrev_b32 v2, 10, v2")
    p("v_bfe_u32 v3, v0, 2, 2")
    p("v_lshl_add_u32 v2, v3, 6, v2")
    p("v_bfe_u32 v3, v0, 4, 1")
    p("v_lshl_add_u32 v2, v3, 5, v2")
    p("v_and_b32 v3, 3, v0")
    p("v_lshl_add_u32 v2, v3, 3, v2")
    p("s_lshl_b32 s10, s29, 8")
    p(f"s_add_u32 s10, s10, {WREG}")
    p(f"v_add_u32 {v(WB)}, s10, v2")
    for ks in range(4): p(f"v_mov_b32 {v(XC+ks)}, {v(XB+ks)}")
    p(f"v_mov_b32 {v(WC)}, {v(WB)}")
    for i in range(FB + 20, FB + 40): p(f"v_mov_b32 {v(i)}, 0")
    for i in range(ACC, ACC + 96): p(f"v_mov_b32 {v(i)}, 0")
    p("s_mov_b32 s20, 16384")
    p("s_mov_b32 s21, 24576")
    p("s_mov_b32 s25, 15")
    def frag(b, which):
        return FB + 20 * b + {"x0": 0, "x1": 4, "w0": 8, "w1": 12, "w2": 16}[which]
    def mfmas(b):
        L = []
        for (ty, rt) in ((0, 0), (1, 0), (0, 1), (1, 1), (2, 0), (2, 1)):
            d = ACC + (rt * 3 + ty) * 16
            x, w = frag(b, f"x{rt}"), frag(b, f"w{ty}")
            L.append(mf32(d, w, x, d) if ty < 2 else mf32(d, x, w, d))
        return L
    def reads(b, ks):
        def rx(rt): return f"ds_read_b128 {v(frag(b, f'x{rt}'),4)}, {v(XC+ks)} offset:{rt*4096}"
        def rw(ty, h): return f"ds_read_b64_tr_b16 {v(frag(b, f'w{ty}')+2*h,2)}, {v(WC)} offset:{ks*6144+ty*2048+h*512}"
        return [rx(0), rw(0,0), rw(0,1), rw(1,0), rw(1,1), rx(1), rw(2,0), rw(2,1)]
    p("s_waitcnt lgkmcnt(0)")
    p("s_barrier")
    stamp(p, 7)
    p.label("K1_CLOOP")
    w = lambda n: p(f"s_waitcnt lgkmcnt({n})")
    for ks in range(3):
        b = ks & 1
        M = mfmas(b ^ 1); R = reads(b, ks)
        if ks: w(5)
        p(M[0]); p(R[0]); p(R[1])
        if ks: w(5)
        p(M[1]); p(R[2]); p(R[3])
        if ks: w(6)
        p(M[2]); p(R[4]); p(R[5])
        p(M[3]); p(R[6]); p(R[7])
        if ks: w(8)
        p(M[4]); p(M[5])
    M = mfmas(0); R = reads(1, 3)
    w(5); p(M[0]); p(R[0]); p(R[1]); p(R[2])
    w(6); p(M[1]); p(R[3]); p(R[4]); p(R[5])
    w(8); p(M[2]); p(R[6]); p(R[7])
    for ks in range(3): p(f"v_add_u32 {v(XC+ks)}, s20, {v(XB+ks)}")
    p(M[3])
    p(f"v_add_u32 {v(XC+3)}, s20, {v(XB+3)}")
    p(f"v_add_u32 {v(WC)}, s21, {v(WB)}")
    p("s_add_u32 s20, s20, 16384")
    p("s_add_u32 s21, s21, 24576")
    p(f"s_cmp_ge_u32 s20, {NS*16384}")
    p("s_cselect_b32 s20, 0, s20")
    w(8); p(M[4])
    p("s_cselect_b32 s21, 0, s21")
    p("s_cmp_eq_u32 s25, 0")
    p("s_cbranch_scc1 K1_CDONE")
    stamp(p, 6)
    p("s_waitcnt lgkmcnt(0)")
    if STAMP:
        p("s_sub_u32 m0, 17, s25")
        p("s_lshl_b32 m0, m0, 1")
        p("v_writelane_b32 v14, s72, m0")
        p("s_sub_u32 m0, m0, 1")
        p("s_nop 0")
        p("v_writelane_b32 v14, s74, m0")
    p("s_barrier")
    stamp(p, 7)
    p(M[5])
    p("s_sub_u32 s25, s25, 1")
    p("s_branch K1_CLOOP")
    p.label("K1_CDONE")
    p(M[5])
    p("s_waitcnt lgkmcnt(0)")
    for m in mfmas(1): p(m)
    stamp(p, 2)
    srd(p, 12, 30, 31, WS_SIZE)
    p("s_lshl_b32 s10, s27, 1")
    p("s_add_u32 s10, s10, s29")
    p("s_lshl_b32 s10, s10, 6")
    p("s_lshl_b32 s11, s26, 2")
    p("s_add_u32 s10, s10, s11")
    p("s_lshl_b32 s11, s28, 1")
    p("s_add_u32 s10, s10, s11")
    p("s_lshl_b32 s10, s10, 11")
    p(f"s_add_u32 s11, s10, {WS_K}")
    p(f"s_add_u32 s16, s10, {WS_V}")
    p(f"s_mov_b32 s17, {QSCALE}")
    p("v_lshlrev_b32 v1, 4, v0")
    n = 0
    for (ty, rt) in ((1, 0), (0, 0), (1, 1), (0, 1), (2, 0), (2, 1)):
        d = ACC + (rt * 3 + ty) * 16
        o = FB + 8 * (n % 4); n += 1
        if ty == 0:
            for i in range(16): p(f"v_mul_f32 {v(d+i)}, s17, {v(d+i)}")
        so = (10, 11, 16)[ty]
        for j in range(2):
            for i in range(4 * j, 4 * j + 4): p(f"v_cvt_pk_bf16_f32 {v(o+i)}, {v(d+2*i)}, {v(d+2*i+1)}")
            p(f"buffer_store_dwordx4 {v(o+4*j,4)}, v1, s[12:15], {s(so)} offen offset:{rt*2048+j*1024}{FL[opt('k1sf')]}")
    stamp(p, 3)
    if STAMP: p("s_waitcnt vmcnt(0)")
    stamp(p, 5); stamp(p, 4, True)
    stamp_flush(p, 0, 6); lstamp_flush(p, 0, 14)
    dbg_stamp(p, 0, 4, "a20")
    p("s_endpgm")
    p.label("K1_HELPER")
    PFS = {0: {},
           1: {-1: [1, 2], 0: [3], 2: [4], 4: [5], 6: [6], 8: [7]},
           3: {-1: [1], 0: [2], 1: [3], 3: [4], 5: [5], 7: [6], 9: [7]},
           4: {0: [2], 1: [3], 3: [4], 5: [5], 7: [6], 9: [7]},
           5: {-1: [2], 0: [3], 2: [4], 4: [5], 6: [6], 8: [7]},
           6: {0: [2, 3], 2: [4], 4: [5], 6: [6], 8: [7]}}[opt("pf", 4)]
    dbg_stamp(p, 0, 0, "a0")
    p(f"s_load_dwordx4 s[36:39], s[0:1], {A_K}")
    pf_addr(p, 4, 5)
    p("s_waitcnt lgkmcnt(0)")
    srd(p, 40, 4, 5, 4 * MB)
    srd(p, 44, 6, 7, 6 * MB)
    def pf(pp):
        p(f"s_add_u32 s34, s33, {pp}")
        p("s_and_b32 s34, s34, 7")
        p("s_lshl_b32 s35, s34, 8")
        p(f"s_mul_i32 s34, s34, {128*6144}")
        p(f"buffer_load_dword v6, v4, s[40:43], s35 offen")
        p(f"buffer_load_dword v7, v5, s[44:47], s34 offen")
    for pp in PFS.get(-1, []): pf(pp)
    TW = opt("tw", 14)
    for b_ in range(16):
        p("s_barrier")
        for pp in PFS.get(b_, []): pf(pp)
        if b_ in (0, 2, 15): dbg_stamp(p, 0, {0: 1, 2: 2, 15: 3}[b_], f"a{b_+1}")
        if b_ == 0:
            srd(p, 12, 30, 31, 32 * FLS, off=WS_FL)
            p(f"s_mul_i32 s10, s2, {FLS}")
            p("v_lshlrev_b32 v8, 2, v0")
            p("v_mov_b32 v9, 0")
            p("buffer_store_dword v9, v8, s[12:15], s10 offen")
            srd(p, 16, 36, 37, 4 * MB)
            srd(p, 20, 38, 39, 4 * MB)
            p("v_lshlrev_b32 v8, 7, v0")
            p("s_lshl_b32 s10, s2, 14")
            p("s_add_u32 s11, s10, 8192")
        if b_ == 11 and opt("cpf2", 1):
            p("s_getpc_b64 s[94:95]")
            p.label("K1_PC2")
            for j in range(2):
                p(f"v_add_u32 v10, {8192*j}, v8")
                p("v_min_u32 v10, K3_CODE_END-K1_PC2-4, v10")
                p("global_load_dword v6, v10, s[94:95]")
        if b_ == TW:
            for sr in (16, 20):
                for so in (10, 11): p(f"buffer_load_dword v6, v8, s[{sr}:{sr+3}], s{so} offen")
        if b_ >= max(TW, 12) and b_ < 15 and TW > 15: break
    p("s_endpgm")
    return 160, 576, NS * 40960

K2_NS = 6
K2_CNT = K2_NS * 16384
CV_BASE = K2_CNT + 256
CV_STRIDE = 15616
CV_C1 = 5120 + 64
CV_H = 2 * 5120 + 128
SC = {0: " sc1", 1: " sc0 sc1", 2: ""}[opt("sc")]
def emit_partA(p, pre):
    p(f"s_load_dwordx8 s[36:43], s[0:1], {A_Q}")
    p(f"s_load_dwordx4 s[44:47], s[0:1], {A_SSMK}")
    p(f"s_load_dwordx4 s[48:51], s[0:1], {B_WO}")
    dbg_stamp(p, 1, 5, "b0")
    p("s_barrier")
    p(f"s_setprio {opt('cvprio', 3)}")
    p("s_sub_u32 s3, s3, 9")
    p("s_and_b32 s28, s2, 15")
    p("s_and_b32 s10, s28, 7")
    p("s_lshr_b32 s11, s28, 3")
    p("s_lshl_b32 s28, s10, 1")
    p("s_add_u32 s28, s28, s11")
    p("s_lshr_b32 s29, s2, 4")
    p("s_lshl_b32 s29, s29, 2")
    p("s_add_u32 s29, s29, s3")
    p("s_lshl_b32 s27, s28, 6")
    p("s_add_u32 s27, s27, s29")
    p(f"s_mul_i32 s30, s3, {CV_STRIDE}")
    p(f"s_add_u32 s30, s30, {CV_BASE}")
    p("v_and_b32 v1, 7, v0")
    p("v_lshrrev_b32 v2, 3, v0")
    p("s_lshl_b32 s10, s29, 5")
    p("v_lshl_add_u32 v3, v2, 2, s10")
    p("s_lshl_b32 s11, s28, 7")
    p("v_lshl_add_u32 v4, v1, 4, s11")
    p("v_lshl_add_u32 v120, v3, 11, v4")
    p("v_lshl_add_u32 v122, v3, 12, v4")
    p("v_lshlrev_b32 v121, 11, v4")
    p("v_lshl_add_u32 v121, v2, 4, v121")
    p("s_lshr_b32 s31, s29, 4")
    p("s_lshl_b32 s31, s31, 10")
    p("s_and_b32 s26, s29, 7")
    p("s_lshl_b32 s26, s26, 7")
    p("s_add_u32 s31, s31, s26")
    p("s_and_b32 s26, s29, 8")
    p("s_add_u32 s31, s31, s26")
    p("v_add_u32 v121, s31, v121")
    p("v_and_b32 v123, 15, v0")
    p("v_lshlrev_b32 v123, 2, v123")
    p("v_lshlrev_b32 v124, 4, v0")
    p("v_and_b32 v1, 15, v0")
    p("v_lshrrev_b32 v2, 4, v0")
    p("v_lshl_add_u32 v3, v2, 3, s10")
    p("v_lshl_add_u32 v4, v1, 3, s11")
    p("v_lshl_add_u32 v9, v3, 11, v4")
    for j in range(3): p(f"v_add_u32 {v(6+j)}, {(j-3)*2048}, v9")
    for j in range(1, 4): p(f"v_add_u32 {v(9+j)}, {j*4096}, v9")
    p("v_lshlrev_b32 v13, 2, v4")
    p("v_lshrrev_b32 v14, 1, v4")
    p(f"v_mul_u32_u24 v14, {XRS}, v14")
    p("v_lshlrev_b32 v15, 1, v3")
    p("v_sub_u32 v15, 4080, v15")
    p("v_add_u32 v15, v15, v14")
    p("v_lshl_add_u32 v14, v2, 4, v14")
    p("v_add_u32 v1, -512, v124")
    p("v_add_u32 v2, 512, v124")
    p("s_lshl_b32 s33, s27, 12")
    p("s_lshl_b32 s10, s27, 1")
    p("v_mov_b32 v3, s10")
    p("s_mov_b32 s32, 0xffff0000")
    p(f"s_mul_i32 s34, s28, {FLS}")
    p(f"s_add_u32 s34, s34, {WS_FL}")
    p("s_and_b32 s35, s29, 60")
    p(f"s_mul_i32 s31, s27, {XRS}")
    p(f"s_add_u32 s31, s31, {WS_XR}")
    p("s_add_u32 s26, s31, 4096")
    p("s_waitcnt lgkmcnt(0)")
    srd(p, 12, 4, 5, WS_SIZE)
    srd(p, 16, 38, 39, 4 * MB)
    srd(p, 20, 40, 41, 4 * MB)
    srd(p, 52, 42, 43, 8192)
    p(f"v_mov_b32 v126, {K2_CNT}")
    p.label(f"{pre}_HW0")
    p("s_sleep 2")
    p("ds_read_b32 v127, v126 offset:4")
    p("s_waitcnt lgkmcnt(0)")
    p(f"v_cmp_gt_u32 vcc, {opt('hw0', 4)}, v127")
    p(f"s_cbranch_vccnz {pre}_HW0")
    dbg_stamp(p, 1, 6, "b1")
    KR, VR, SR = 16, 38, 56
    def rowaddr(j):
        if j < 3: return v(6 + j), 0
        return v(9 + (j - 3) // 2), 2048 * ((j - 3) & 1)
    for j in range(2): p(f"buffer_load_dwordx4 {v(SR+4*j,4)}, v13, s[52:55], 0 offen offset:{16*j}")
    for j in range(11):
        a_, o_ = rowaddr(j); p(f"buffer_load_dwordx2 {v(KR+2*j,2)}, {a_}, s[16:19], 0 offen offset:{o_}")
    for j in range(8):
        a_, o_ = rowaddr(j + 3); p(f"buffer_load_dwordx2 {v(VR+2*j,2)}, {a_}, s[20:23], 0 offen offset:{o_}")
    srd(p, 16, 44, 45, 4096, off="s33")
    srd(p, 20, 46, 47, 2048)
    T, KU, AC, OUT = 64, 72, 94, 112
    for cp in range(2):
        if cp == 0:
            p("s_waitcnt vmcnt(8)"); stamp(p, 2)
        for e in range(2):
            for jj in range(2):
                src = SR + 4 * cp + 2 * e + jj
                p(f"v_lshlrev_b32 {v(T+2*(2*jj)+e)}, 16, {v(src)}")
                p(f"v_and_b32 {v(T+2*(2*jj+1)+e)}, s32, {v(src)}")
        for j in range(11):
            p(f"v_lshlrev_b32 {v(KU+2*j)}, 16, {v(KR+2*j+cp)}")
            p(f"v_and_b32 {v(KU+2*j+1)}, s32, {v(KR+2*j+cp)}")
        for t in range(8): p(f"v_pk_mul_f32 {v(AC+2*t,2)}, {v(KU+2*t,2)}, {v(T+6,2)}")
        for j in (2, 1, 0):
            for t in range(8): p(f"v_pk_fma_f32 {v(AC+2*t,2)}, {v(KU+2*(t-j+3),2)}, {v(T+2*j,2)}, {v(AC+2*t,2)}")
        if cp == 0: p("s_waitcnt vmcnt(0)")
        for j in range(8):
            p(f"v_lshlrev_b32 {v(KU+2*j)}, 16, {v(VR+2*j+cp)}")
            p(f"v_and_b32 {v(KU+2*j+1)}, s32, {v(VR+2*j+cp)}")
        for t in range(8): p(f"v_pk_mul_f32 {v(AC+2*t,2)}, {v(AC+2*t,2)}, {v(KU+2*t,2)}")
        for e in range(2):
            for i in range(4): p(f"v_cvt_pk_bf16_f32 {v(OUT+4*e+i)}, {v(AC+2*(7-2*i)+e)}, {v(AC+2*(6-2*i)+e)}")
            p(f"s_mov_b32 s10, {WS_XR + (2*cp+e)*XRS}")
            p(f"buffer_store_dwordx4 {v(OUT+4*e,4)}, v15, s[12:15], s10 offen{SC}")
    p("s_cmp_lg_u32 s29, 0")
    p(f"s_cbranch_scc1 {pre}_S1END")
    for i in range(4): p(f"v_mov_b32 {v(8+i)}, 0")
    for c in range(4):
        p(f"s_mov_b32 s10, {WS_XR + c*XRS + 4096}")
        p(f"buffer_store_dwordx4 v[8:11], v14, s[12:15], s10 offen{SC}")
    p.label(f"{pre}_S1END")
    p("v_mov_b32 v118, v1")
    p("v_mov_b32 v119, v2")
    p("v_mov_b32 v117, v3")
    def signal_and_wait(tag, work=None):
        p(f"v_mov_b32 v1, {K2_CNT + 8 * tag}")
        p("v_mov_b32 v2, 1")
        p("s_waitcnt vmcnt(0)")
        stamp(p, 9 + 2 * tag)
        p("s_mov_b64 exec, 1")
        p("ds_add_rtn_u32 v126, v1, v2")
        p("s_mov_b64 exec, -1")
        p("v_mov_b32 v127, s35")
        p("s_mov_b32 s25, 0x40000")
        p("s_waitcnt lgkmcnt(0)")
        p("v_readfirstlane_b32 s24, v126")
        p("s_cmp_lg_u32 s24, 3")
        p(f"s_cbranch_scc1 {pre}_NOSIG{tag}")
        p("s_mov_b64 exec, 1")
        p(f"buffer_store_dword v2, v127, s[12:15], s34 offen{SC}")
        p("s_mov_b64 exec, -1")
        p.label(f"{pre}_NOSIG{tag}")
        if work: work()
        p("s_cmp_lg_u32 s24, 3")
        p(f"s_cbranch_scc1 {pre}_LWAIT{tag}")
        p.label(f"{pre}_POLL{tag}")
        p(f"s_sleep {opt('slp', 8)}")
        p(f"buffer_load_dword v126, v123, s[12:15], s34 offen{SC}")
        p("s_sub_u32 s25, s25, 1")
        p(f"s_cbranch_scc1 {pre}_GOT{tag}")
        p("s_waitcnt vmcnt(0)")
        p("v_cmp_ne_u32 vcc, 1, v126")
        p(f"s_cbranch_vccnz {pre}_POLL{tag}")
        p.label(f"{pre}_GOT{tag}")
        p("ds_write_b32 v1, v2 offset:4")
        p(f"s_branch {pre}_GO{tag}")
        p.label(f"{pre}_LWAIT{tag}")
        p("s_sleep 2")
        p("ds_read_b32 v126, v1 offset:4")
        p("s_waitcnt lgkmcnt(0)")
        p("v_cmp_ne_u32 vcc, 1, v126")
        p(f"s_cbranch_vccnz {pre}_LWAIT{tag}")
        p.label(f"{pre}_GO{tag}")
        stamp(p, 10 + 2 * tag)
    AB, BB, KVB, ST = 8, 12, 13, 14
    FA, FBB, ACC = 16, 48, 80
    def conv_setup():
        p("v_and_b32 v5, 15, v0")
        p("v_lshrrev_b32 v6, 4, v0")
        p("v_lshrrev_b32 v3, 1, v5")
        p("v_lshlrev_b32 v4, 2, v6")
        p("v_sub_u32 v4, v4, v3")
        p("v_lshlrev_b32 v4, 2, v4")
        p("v_and_b32 v3, 1, v5")
        p("v_xor_b32 v3, 1, v3")
        p(f"v_mul_u32_u24 v3, {CV_C1}, v3")
        p(f"s_add_u32 s10, s30, {4*1023 - 32*(112+1)}")
        p(f"v_add3_u32 {v(AB)}, v4, v3, s10")
        for kk in range(1, 4): p(f"v_add_u32 {v(AB+kk)}, {1024*kk}, {v(AB)}")
        p("v_lshlrev_b32 v3, 5, v5")
        p("v_lshl_add_u32 v4, v6, 4, v3")
        p(f"s_add_u32 s10, s30, {CV_H + 512 - 32}")
        p(f"v_add_u32 {v(BB)}, s10, v4")
        p(f"v_lshl_add_u32 {v(ST)}, v6, 3, v3")
        p(f"s_add_u32 s10, s30, {4088 - 512*7}")
        p(f"v_sub_u32 {v(KVB)}, s10, {v(ST)}")
        for i in range(32): p(f"v_mov_b32 {v(ACC+i)}, 0")
    def hload():
        p(f"s_add_u32 m0, s30, {CV_H}")
        p("buffer_load_ushort v125, v117, s[20:23], 0 offen")
        p("buffer_load_dwordx4 v118, s[16:19], 0 offen lds")
        p(f"s_add_u32 m0, s30, {CV_H + 1024}")
        p("s_nop 0")
        for j in range(4): p(f"buffer_load_dwordx4 v119, s[16:19], 0 offen offset:{1024*j} lds")
        conv_setup()
        p("v_add_u32 v7, 2, v124")
    stamp(p, 5)
    signal_and_wait(1, hload)
    for (src_v, off) in ((124, 0), (7, CV_C1)):
        p(f"s_add_u32 m0, s30, {off}")
        p("s_nop 0")
        for j in range(4): p(f"buffer_load_dwordx4 {v(src_v)}, s[12:15], s31 offen offset:{1024*j}{SC} lds")
        p(f"s_add_u32 m0, s30, {off + 4096}")
        p("s_mov_b64 exec, 15")
        p(f"buffer_load_dwordx4 {v(src_v)}, s[12:15], s26 offen{SC} lds")
        p("s_mov_b64 exec, -1")
    p(f"s_add_u32 s34, s34, {16*FLS}")
    p("s_mov_b32 s25, 8")
    p("s_waitcnt vmcnt(0)")
    stamp(p, 7)
    dbg_stamp(p, 1, 7, "b2")
    p.label(f"{pre}_CVL")
    def rdA(a):
        kk, rem = (7 - a) >> 1, 128 * ((7 - a) & 1)
        return [f"ds_read2_b32 {v(FA+4*a,2)}, {v(AB+kk)} offset0:{rem} offset1:{rem+1}",
                f"ds_read2_b32 {v(FA+4*a+2,2)}, {v(AB+kk)} offset0:{rem+2} offset1:{rem+3}"]
    def cm(a, b):
        p(mf16(ACC+4*(a+b), FA+4*a, FBB+4*b, ACC+4*(a+b)))
        if opt("cvnop", -1) >= 0: p(f"s_nop {opt('cvnop')}")
    def rdB(b): return [f"ds_read_b128 {v(FBB+4*b,4)}, {v(BB)} offset:{512*b}"]
    for x in range(8):
        for r_ in rdA(x) + rdB(x): p(r_)
    for kk in range(4): p(f"v_add_u32 {v(AB+kk)}, -64, {v(AB+kk)}")
    p(f"v_add_u32 {v(BB)}, -64, {v(BB)}")
    p("s_waitcnt lgkmcnt(12)")
    for a in range(4):
        for b in range(4): cm(a, b)
    p("s_waitcnt lgkmcnt(0)")
    for a in range(8):
        for b in range(8 - a):
            if a >= 4 or b >= 4: cm(a, b)
    p("s_sub_u32 s25, s25, 1")
    p("s_cmp_lg_u32 s25, 0")
    p(f"s_cbranch_scc1 {pre}_CVL")
    stamp(p, 8)
    for t in range(8): p(f"ds_read_b64 {v(FA+2*t,2)}, {v(KVB)} offset:{512*(7-t)}")
    p("v_lshlrev_b32 v125, 16, v125")
    p(f"s_add_u32 s33, s33, {WS_Y}")
    p(f"v_lshlrev_b32 {v(ST)}, 1, {v(ST)}")
    for t in range(8):
        p(f"s_waitcnt lgkmcnt({7-t})")
        U = FBB + 4 * (t & 3); a = ACC + 4 * t; o = FBB + 16 + 2 * t
        p(f"v_and_b32 {v(U)}, s32, {v(FA+2*t+1)}")
        p(f"v_lshlrev_b32 {v(U+1)}, 16, {v(FA+2*t+1)}")
        p(f"v_and_b32 {v(U+2)}, s32, {v(FA+2*t)}")
        p(f"v_lshlrev_b32 {v(U+3)}, 16, {v(FA+2*t)}")
        for r_ in range(4): p(f"v_fmac_f32 {v(a+r_)}, v125, {v(U+r_)}")
        p(f"v_cvt_pk_bf16_f32 {v(o)}, {v(a)}, {v(a+1)}")
        p(f"v_cvt_pk_bf16_f32 {v(o+1)}, {v(a+2)}, {v(a+3)}")
        if t & 1: p(f"buffer_store_dwordx4 {v(o-2,4)}, {v(ST)}, s[12:15], s33 offen offset:{1024*(t>>1)}{SC}")
    QR, YR, U, OUT = 16, 32, 48, 64
    def qload():
        srd(p, 16, 36, 37, 4 * MB)
        srd(p, 20, 50, 51, 8 * MB)
        p("v_add_u32 v6, 4096, v120")
        for j in range(4): p(f"buffer_load_dwordx4 {v(QR+4*j,4)}, {('v120', 'v6')[j>>1]}, s[16:19], 0 offen offset:{2048*(j&1)}")
        if opt("wopf", 1):
            srd(p, 52, 48, 49, 2 * MB)
            p("s_lshl_b32 s10, s27, 11")
            p("v_lshlrev_b32 v7, 5, v0")
            p("buffer_load_dword v8, v7, s[52:55], s10 offen")
    stamp(p, 9)
    signal_and_wait(2, qload)
    stamp(p, 10)
    for c in range(8):
        p(f"s_mov_b32 s10, {WS_Y + c*4096}")
        p(f"buffer_load_dwordx2 {v(YR+2*c,2)}, v121, s[12:15], s10 offen{SC}")
    p("s_waitcnt vmcnt(0)")
    for t in range(4):
        for cp in range(4):
            u = U + 4 * (cp & 1)
            q = QR + 4 * t + cp
            p(f"v_lshlrev_b32 {v(u)}, 16, {v(q)}")
            p(f"v_and_b32 {v(u+1)}, s32, {v(q)}")
            for e in range(2):
                y = YR + 2 * (2 * cp + e) + (t >> 1)
                if t & 1: p(f"v_and_b32 {v(u+2+e)}, s32, {v(y)}")
                else: p(f"v_lshlrev_b32 {v(u+2+e)}, 16, {v(y)}")
            p(f"v_pk_mul_f32 {v(u,2)}, {v(u,2)}, {v(u+2,2)}")
            p(f"v_cvt_pk_bf16_f32 {v(OUT+4*t+cp)}, {v(u)}, {v(u+1)}")
        p(f"s_mov_b32 s10, {t*4096}")
        p(f"buffer_store_dwordx4 {v(OUT+4*t,4)}, v122, s[20:23], s10 offen{FL[opt('s3sf', 2)]}")
    stamp(p, 3); stamp(p, 4, True)
    stamp_flush(p, 1, 15)
    dbg_stamp(p, 1, 8, "b3")
    p("s_endpgm")

def emit_k2(p):
    kernel_head(p, "k2_kernel")
    Q, ONES, L, P0, P1, F0, F1, NEGM, SA, SB, O = 4, 12, 16, 20, 24, 28, 44, 60, 76, 92, 108
    CA, CV_, ONE = 125, 126, 127
    RING = K2_NS * 16384
    p("s_cmp_ge_u32 s2, 256")
    p("s_cbranch_scc1 K2_END")
    p(f"s_load_dwordx2 s[4:5], s[0:1], {D_WS}")
    code_prefetch(p, "K2_PC", "K2_CODE_END", 1, 60)
    p("v_lshrrev_b32 v1, 6, v0")
    p("v_and_b32 v0, 63, v0")
    p("s_and_b32 s8, s2, 7")
    p("v_readfirstlane_b32 s3, v1")
    stamp(p, 0); stamp(p, 1, True)
    p("s_lshr_b32 s9, s2, 3")
    if STAMP:
        p("s_add_u32 s59, s3, 12")
        p("s_cmp_eq_u32 s3, 0")
        p("s_cselect_b32 s59, s59, s3")
        p("s_cselect_b32 s58, 0, 1")
        p("s_sub_u32 s59, s59, s58")
    p("s_cmp_ge_u32 s3, 9")
    p("s_cbranch_scc1 K2_HELPER")
    p("s_lshl_b32 s26, s8, 2")
    p("s_and_b32 s10, s9, 3")
    p("s_add_u32 s26, s26, s10")
    p("v_lshlrev_b32 v1, 4, v0")
    p("s_lshl_b32 s28, s26, 17")
    p(f"s_add_u32 s30, s28, {WS_K}")
    p(f"s_add_u32 s31, s28, {WS_V}")
    p(f"v_mov_b32 {v(CA)}, {K2_CNT}")
    p("s_cmp_lg_u32 s3, 0")
    p("s_cbranch_scc1 K2_ATT")
    p("v_add_u32 v2, 2048, v1")
    p("s_sub_u32 s31, s31, 2048")
    p("v_mov_b32 v3, 0")
    p(f"v_lshl_add_u32 v4, v0, 2, {v(CA)}")
    p("ds_write_b32 v4, v3")
    p("s_mov_b32 s20, 0")
    p("s_mov_b32 s21, 0")
    p("s_mov_b32 s25, 0")
    p(f"s_mov_b32 s24, {(-(K2_NS - 1)) & 0xffffffff}")
    p("v_and_b32 v4, 7, v0")
    p(f"v_lshl_add_u32 v4, v4, 2, {v(CA)}")
    p("s_setprio 3")
    p("s_waitcnt lgkmcnt(0)")
    srd(p, 16, 4, 5, 131072, off="s30")
    srd(p, 12, 4, 5, 131072 + 2048, off="s31")
    p("s_branch K2_LISSUE")
    p.label("K2_LSPIN")
    p("s_sleep 2")
    p.label("K2_LLOOP")
    p("ds_read_b32 v3, v4 offset:32")
    p("s_waitcnt lgkmcnt(0)")
    p("v_cmp_gt_i32 vcc, s24, v3")
    p("s_cbranch_vccnz K2_LSPIN")
    p.label("K2_LISSUE")
    for u in range(4):
        p("s_mov_b32 m0, s21")
        p("s_add_u32 s21, s21, 4096")
        for j in range(2): p(f"buffer_load_dwordx4 v2, s[16:19], s20 offen offset:{1024*j} lds")
        for j in range(2): p(f"buffer_load_dwordx4 v1, s[12:15], s20 offen offset:{2048+1024*j} lds")
        p("s_add_u32 s20, s20, 2048")
    p("s_cmp_lg_u32 s25, 0")
    p("s_cbranch_scc1 K2_LNB")
    p("s_barrier")
    p.label("K2_LNB")
    p(f"s_cmp_ge_u32 s21, {RING}")
    p("s_cselect_b32 s21, 0, s21")
    p("s_add_u32 s24, s24, 1")
    p("v_mov_b32 v3, s25")
    p("s_add_u32 s25, s25, 1")
    p("s_waitcnt vmcnt(16)")
    p(f"ds_write_b32 {v(CA)}, v3 offset:4")
    p("s_cmp_lt_u32 s25, 16")
    p("s_cbranch_scc1 K2_LLOOP")
    p("v_mov_b32 v3, 16")
    p("s_waitcnt vmcnt(0)")
    p(f"ds_write_b32 {v(CA)}, v3 offset:4")
    stamp(p, 3); stamp(p, 4, True)
    stamp_flush(p, 1, 5)
    p("s_endpgm")
    p.label("K2_ATT")
    p("s_lshr_b32 s27, s9, 2")
    p("s_lshl_b32 s27, s27, 3")
    p("s_add_u32 s27, s27, s3")
    p("s_sub_u32 s27, s27, 1")
    p("s_lshl_b32 s10, s27, 11")
    p("s_add_u32 s29, s28, s10")
    p("s_waitcnt lgkmcnt(0)")
    srd(p, 12, 4, 5, WS_SIZE)
    for j in range(2): p(f"buffer_load_dwordx4 {v(Q+4*j,4)}, v1, s[12:15], s29 offen offset:{1024*j}")
    for j in range(2): p(f"buffer_load_dwordx4 {v(F1+4*j,4)}, v1, s[12:15], s30 offen offset:{1024*j}")
    p("s_barrier")
    p("v_lshrrev_b32 v2, 4, v0")
    p("v_xor_b32 v2, v2, v0")
    p("v_and_b32 v2, 1, v2")
    p("v_cmp_eq_u32 vcc, 0, v2")
    p("v_mov_b32 v3, 0x3f803f80")
    p("v_mov_b32 v2, 0")
    for i in range(4): p(f"v_cndmask_b32 {v(ONES+i)}, v2, v3, vcc")
    p(f"v_mov_b32 {v(ONE)}, 1")
    for i in range(4): p(f"v_mov_b32 {v(L+i)}, 0")
    for i in range(16): p(f"v_mov_b32 {v(O+i)}, 0")
    for i in range(12, 16): p(f"v_mov_b32 {v(F1+i)}, 0")
    for i in range(4): p(f"v_mov_b32 {v(P1+i)}, 0")
    p("s_mov_b32 s22, 16384")
    p("s_mov_b32 s25, 2")
    p("s_waitcnt vmcnt(0)")
    p(mf32(SA, F1, Q, "0"))
    p(mf32(SA, F1+4, Q+4, SA))
    p("s_nop 11")
    p(f"v_max3_f32 v2, {v(SA)}, {v(SA+1)}, {v(SA+2)}")
    for i in range(3, 15, 2): p(f"v_max3_f32 v2, v2, {v(SA+i)}, {v(SA+i+1)}")
    p(f"v_max_f32 v2, v2, {v(SA+15)}")
    p("v_mov_b32 v3, v2")
    p("s_nop 1")
    p("v_permlane32_swap_b32 v2, v3")
    p("v_max_f32 v3, v2, v3")
    for i in range(16): p(f"v_sub_f32 {v(NEGM+i)}, 0, v3")
    for i in range(16): p(f"v_sub_f32 {v(SA+i)}, {v(SA+i)}, v3")
    p("v_mov_b32 v2, v1")
    p("s_lshl_b32 s10, s3, 2")
    p(f"s_add_u32 s10, s10, {K2_CNT + 28}")
    p("v_mov_b32 v3, s10")
    stamp(p, 2)
    p.label("K2_W0")
    p(f"ds_read_b32 {v(CV_)}, {v(CA)} offset:4")
    p("s_waitcnt lgkmcnt(0)")
    p(f"v_readfirstlane_b32 s10, {v(CV_)}")
    p("s_cmp_eq_u32 s10, 0")
    p("s_cbranch_scc1 K2_W0")
    for j in range(4): p(f"ds_read_b128 {v(F0+4*j,4)}, v2 offset:{j*1024}")
    p("s_branch K2_ENTRY")
    ORDER = "w0 S0 r0 e3 O1p r1 e3 L1p e2 S1 r2 c4 e2 O0 r3 e3 L0 e3 c4"
    def step(F, Sc, Sn, Fn, u, first=False, extra=None):
        e = 0; c = 0
        for t in ORDER.split():
            if t == "S0":
                if u is not None: p(mf32(Sn, F, Q, NEGM))
            elif t == "S1":
                if u is not None: p(mf32(Sn, F+4, Q+4, Sn))
            elif t == "O0": p(mf32(O, F+8, P0, O))
            elif t == "O1p": p(mf32(O, Fn+12, P1, O))
            elif t == "L0":
                p(mf16(L, ONES, P0, L))
                if extra: extra()
            elif t == "L1p": p(mf16(L, ONES, P1, L))
            elif t[0] == "e":
                for _ in range(int(t[1:])): p(f"v_exp_f32 {v(Sc+e)}, {v(Sc+e)}"); e += 1
            elif t[0] == "c":
                for _ in range(int(t[1:])): p(f"v_cvt_pk_bf16_f32 {v(P0+c)}, {v(Sc+2*c)}, {v(Sc+2*c+1)}"); c += 1
            elif t[0] == "r":
                if u is not None: j = int(t[1:]); p(f"ds_read_b128 {v(Fn+4*j,4)}, v2 offset:{u*4096+j*1024}")
            elif t[0] == "w":
                if not first: p(f"s_waitcnt lgkmcnt({t[1:]})")
    def arrive():
        p("s_mov_b64 exec, 1")
        p(f"ds_add_u32 v3, {v(ONE)}")
        p("s_mov_b64 exec, -1")
    def peek():
        p(f"ds_read_b32 {v(CV_)}, {v(CA)} offset:4")
        p("v_add_u32 v2, s22, v1")
        p("s_add_u32 s22, s22, 16384")
        p(f"s_cmp_ge_u32 s22, {RING}")
        p("s_cselect_b32 s22, 0, s22")
    LAD = [int(c) for c in OPT.get("lad", "3210")]
    p.label("K2_SPIN")
    p(f"ds_read_b32 {v(CV_)}, {v(CA)} offset:4")
    p.label("K2_LOOP")
    stamp(p, 6)
    p("s_waitcnt lgkmcnt(0)")
    p(f"v_readfirstlane_b32 s10, {v(CV_)}")
    if STAMP:
        p("s_sub_u32 m0, s25, 1")
        p("s_nop 0")
        p("v_writelane_b32 v124, s72, m0")
    p(f"s_setprio {LAD[0]}")
    p("s_cmp_lt_u32 s10, s25")
    p("s_cbranch_scc1 K2_SPIN")
    p("s_add_u32 s25, s25, 1")
    step(F1, SB, SA, F0, 0, first=True, extra=arrive)
    p.label("K2_ENTRY")
    p(f"s_setprio {LAD[1]}")
    step(F0, SA, SB, F1, 1)
    p(f"s_setprio {LAD[2]}")
    step(F1, SB, SA, F0, 2)
    p(f"s_setprio {LAD[3]}")
    step(F0, SA, SB, F1, 3, extra=peek)
    p("s_cmp_lt_u32 s25, 17")
    p("s_cbranch_scc1 K2_LOOP")
    step(F1, SB, SA, F0, None)
    p("s_nop 1")
    p(mf32(O, F1+12, P1, O))
    p(mf16(L, ONES, P1, L))
    stamp(p, 5)
    p("v_and_b32 v2, 16, v0")
    p("v_cmp_eq_u32 vcc, 0, v2")
    p("s_lshl_b32 s10, s27, 16")
    p("s_lshl_b32 s11, s26, 11")
    p("s_add_u32 s10, s10, s11")
    p(f"s_add_u32 s10, s10, {WS_O}")
    p(f"s_mov_b32 s11, {f32bits(2.0**100)}")
    p("s_nop 3")
    p(f"v_cndmask_b32 v2, {v(L+1)}, {v(L)}, vcc")
    p(f"v_add_f32 v3, abs({v(O)}), v2")
    for i in range(1, 16): p(f"v_add_f32 v3, abs({v(O+i)}), v3")
    p("v_cmp_ngt_f32 vcc, s11, v3")
    if opt("forcefb"): p("s_branch K2_FALLBACK")
    p("s_cbranch_vccnz K2_FALLBACK")
    p.label("K2_FIN")
    p("v_rcp_f32 v2, v2")
    p("s_nop 0")
    for j in range(2):
        for i in range(8 * j, 8 * j + 8): p(f"v_mul_f32 {v(O+i)}, v2, {v(O+i)}")
        for i in range(4 * j, 4 * j + 4): p(f"v_cvt_pk_bf16_f32 {v(P0+i)}, {v(O+2*i)}, {v(O+2*i+1)}")
        p(f"buffer_store_dwordx4 {v(P0+4*j,4)}, v1, s[12:15], s10 offen offset:{1024*j}{FL[opt('k2sf', 2)]}")
    stamp(p, 3); stamp(p, 4, True)
    stamp_flush(p, 1, 6); lstamp_flush(p, 1, 124)
    dbg_stamp(p, 1, 9, "b4")
    p.label("K2_END")
    p("s_endpgm")
    p.label("K2_FALLBACK")
    M, AL = NEGM, NEGM + 1
    for i in range(16): p(f"v_mov_b32 {v(O+i)}, 0")
    p("v_mov_b32 v2, 0")
    p(f"v_mov_b32 {v(M)}, 0xff7fffff")
    p("s_mov_b32 s25, 64")
    p.label("K2_FBL")
    for j in range(2): p(f"buffer_load_dwordx4 {v(F0+4*j,4)}, v1, s[12:15], s30 offen offset:{1024*j}")
    for j in range(2): p(f"buffer_load_dwordx4 {v(F0+8+4*j,4)}, v1, s[12:15], s31 offen offset:{1024*j}")
    p("s_add_u32 s30, s30, 2048")
    p("s_add_u32 s31, s31, 2048")
    p("s_waitcnt vmcnt(0)")
    p(mf32(SA, F0, Q, "0"))
    p(mf32(SA, F0+4, Q+4, SA))
    p("s_nop 15")
    p(f"v_max3_f32 v3, {v(SA)}, {v(SA+1)}, {v(M)}")
    for i in range(2, 16, 2): p(f"v_max3_f32 v3, v3, {v(SA+i)}, {v(SA+i+1)}")
    p(f"v_mov_b32 {v(SB)}, v3")
    p("s_nop 1")
    p(f"v_permlane32_swap_b32 v3, {v(SB)}")
    p(f"v_max_f32 v3, v3, {v(SB)}")
    p(f"v_sub_f32 {v(AL)}, {v(M)}, v3")
    p(f"v_exp_f32 {v(AL)}, {v(AL)}")
    p(f"v_mov_b32 {v(M)}, v3")
    for i in range(16): p(f"v_sub_f32 {v(SA+i)}, {v(SA+i)}, v3")
    for i in range(16): p(f"v_exp_f32 {v(SA+i)}, {v(SA+i)}")
    p(f"v_mul_f32 v2, v2, {v(AL)}")
    for i in range(16): p(f"v_mul_f32 {v(O+i)}, {v(O+i)}, {v(AL)}")
    for i in range(16): p(f"v_add_f32 v2, v2, {v(SA+i)}")
    for i in range(8): p(f"v_cvt_pk_bf16_f32 {v(P0+i)}, {v(SA+2*i)}, {v(SA+2*i+1)}")
    p("s_nop 1")
    p(mf32(O, F0+8, P0, O))
    p(mf32(O, F0+12, P1, O))
    p("s_nop 15")
    p("s_sub_u32 s25, s25, 1")
    p("s_cmp_lg_u32 s25, 0")
    p("s_cbranch_scc1 K2_FBL")
    p("v_mov_b32 v3, v2")
    p("s_nop 1")
    p("v_permlane32_swap_b32 v2, v3")
    p("v_add_f32 v2, v2, v3")
    p("s_branch K2_FIN")
    p.label("K2_HELPER")
    emit_partA(p, "K2")
    return 128, 832, CV_BASE + 4 * CV_STRIDE

def emit_k3(p):
    kernel_head(p, "k3_kernel")
    p("s_cmp_ge_u32 s2, 256")
    p("s_cbranch_scc1 K3_END")
    p(f"s_load_dwordx4 s[4:7], s[0:1], {B_WO}")
    p(f"s_load_dwordx2 s[30:31], s[0:1], {D_WS}")
    code_prefetch(p, "K3_PC", "K3_CODE_END", 1, 24)
    p("v_lshrrev_b32 v1, 6, v0")
    p("v_and_b32 v0, 63, v0")
    p("s_and_b32 s8, s2, 7")
    p("v_readfirstlane_b32 s3, v1")
    stamp(p, 0); stamp(p, 1, True)
    p("s_lshr_b32 s9, s2, 3")
    if STAMP: p("s_mov_b32 s59, s3")
    p("s_and_b32 s26, s8, 3")
    p("s_lshl_b32 s26, s26, 2")
    p("s_and_b32 s10, s9, 3")
    p("s_add_u32 s26, s26, s10")
    p("s_lshr_b32 s27, s8, 2")
    p("s_lshl_b32 s27, s27, 3")
    p("s_lshr_b32 s11, s9, 2")
    p("s_add_u32 s27, s27, s11")
    if opt("k3rot", 0):
        p("s_lshr_b32 s11, s11, 1")
        p("s_add_u32 s24, s10, s11")
        p("s_and_b32 s24, s24, 3")
    else:
        p("s_mov_b32 s24, 0")
    p("s_cmp_ge_u32 s3, 4")
    p("s_cbranch_scc1 K3_NOTLOADER")
    p("v_lshrrev_b32 v2, 5, v0")
    p("v_lshlrev_b32 v2, 2, v2")
    p("v_bfe_u32 v4, v0, 2, 2")
    p("s_lshl_b32 s10, s3, 5")
    p("v_add3_u32 v2, v2, v4, s10")
    p("v_lshlrev_b32 v2, 11, v2")
    p("v_bfe_u32 v3, v0, 4, 1")
    p("v_lshl_add_u32 v2, v3, 6, v2")
    p("v_and_b32 v4, 3, v0")
    p("v_lshl_add_u32 v10, v4, 4, v2")
    for jj in range(1, 4): p(f"v_add_u32 {v(10+jj)}, {jj*(16384-1024)}, v10")
    p("s_lshl_b32 s23, s3, 12")
    p("s_lshl_b32 s20, s24, 19")
    p("s_mov_b32 s25, 0")
    p("s_lshl_b32 s11, s27, 7")
    p(f"s_sub_u32 s18, {2*MB}, s11")
    p("s_mov_b32 s19, 0x20000")
    p("s_waitcnt lgkmcnt(0)")
    p("s_add_u32 s16, s4, s11")
    p("s_addc_u32 s17, s5, 0")
    LA = opt("k3la", 2)
    p("s_branch K3_LISSUE")
    p.label("K3_LLOOP")
    p(f"s_cmp_lt_u32 s25, {LA}")
    p("s_cbranch_scc1 K3_LISSUE")
    p(f"s_waitcnt vmcnt({4*(LA-1)})")
    p("s_barrier")
    p.label("K3_LISSUE")
    p("s_mov_b32 m0, s23")
    p("s_add_u32 s23, s23, 16384")
    for jj in range(4): p(f"buffer_load_dwordx4 {v(10+jj)}, s[16:19], s20 offen offset:{1024*jj}{FL[opt('k3wf')]} lds")
    p("s_add_u32 s20, s20, 262144")
    p(f"s_and_b32 s20, s20, {2*MB-1}")
    p("s_add_u32 s25, s25, 1")
    p("s_cmp_lt_u32 s25, 8")
    p("s_cbranch_scc1 K3_LLOOP")
    for n in range(LA - 1, -1, -1):
        p(f"s_waitcnt vmcnt({4*n})")
        p("s_barrier")
    stamp(p, 3); stamp(p, 4, True)
    stamp_flush(p, 2, 5)
    p.label("K3_END")
    p("s_endpgm")
    p.label("K3_NOTLOADER")
    dbg_stamp(p, 2, 10, "c0")
    OB, WF, ACC = 64, 8, 32
    p("s_sub_u32 s3, s3, 4")
    p("s_lshl_b32 s28, s26, 2")
    p("s_add_u32 s28, s28, s3")
    p("s_lshl_b32 s10, s28, 16")
    p(f"s_add_u32 s10, s10, {WS_O}")
    p("v_lshlrev_b32 v1, 4, v0")
    for i in range(1, 4): p(f"v_add_u32 {v(1+i)}, {4096*i}, v1")
    p("s_lshl_b32 s20, s24, 14")
    p("s_waitcnt lgkmcnt(0)")
    srd(p, 12, 30, 31, 65536, off="s10")
    def ldo(n, so): return f"buffer_load_dwordx4 {v(OB+4*n,4)}, {v(1+(n>>2))}, s[12:15], {so} offen offset:{1024*(n&3)}{FL[opt('k3of')]}"
    for n in range(15): p(ldo(n, "s20"))
    p("v_lshrrev_b32 v6, 5, v0")
    p("v_lshlrev_b32 v5, 9, v6")
    p("v_bfe_u32 v7, v0, 2, 2")
    p("v_lshl_add_u32 v5, v7, 6, v5")
    p("v_bfe_u32 v7, v0, 4, 1")
    p("v_lshl_add_u32 v5, v7, 5, v5")
    p("v_and_b32 v7, 3, v0")
    p("v_lshl_add_u32 v5, v7, 3, v5")
    for i in range(WF + 8, WF + 16): p(f"v_mov_b32 {v(i)}, 0")
    for i in range(OB + 60, OB + 64): p(f"v_mov_b32 {v(i)}, 0")
    for i in range(ACC, ACC + 32): p(f"v_mov_b32 {v(i)}, 0")
    p("s_add_u32 s21, s20, 16384")
    p("s_and_b32 s21, s21, 0xffff")
    p("s_mov_b32 s25, 4")
    stamp(p, 2)
    def rdw(b, ks): return [f"ds_read_b64_tr_b16 {v(WF+8*b+4*nt+2*h,2)}, v5 offset:{ks*2048+h*1024+nt*256}" for nt in range(2) for h in range(2)]
    def mm(b, n): return [mf32(ACC+16*nt, WF+8*b+4*nt, OB+4*n, ACC+16*nt) for nt in range(2)]
    p.label("K3_CLOOP")
    for ks in range(16):
        b = ks & 1; n = (ks - 1) & 15
        if ks % 8 == 0: p("s_barrier")
        R = rdw(b, ks); M = mm(b ^ 1, n)
        p("s_waitcnt vmcnt(15) lgkmcnt(2)")
        p(M[0]); p(R[0]); p(R[1])
        p("s_waitcnt lgkmcnt(2)")
        p(M[1]); p(R[2]); p(R[3])
        p(ldo(n, "s20" if n == 15 else "s21"))
    p("v_add_u32 v5, 32768, v5")
    p("s_mov_b32 s20, s21")
    p("s_add_u32 s21, s21, 16384")
    p("s_and_b32 s21, s21, 0xffff")
    p("s_sub_u32 s25, s25, 1")
    p("s_cmp_eq_u32 s25, 1")
    p("s_cselect_b32 s21, 0x10000, s21")
    p("s_cmp_lg_u32 s25, 0")
    p("s_cbranch_scc1 K3_CLOOP")
    p("s_waitcnt vmcnt(15) lgkmcnt(0)")
    for m in mm(1, 15): p(m)
    stamp(p, 5)
    srd(p, 16, 6, 7, 8 * MB)
    p("v_and_b32 v2, 31, v0")
    p("v_lshlrev_b32 v2, 12, v2")
    p("v_lshl_add_u32 v2, v6, 4, v2")
    p("s_lshl_b32 s10, s28, 17")
    p("s_lshl_b32 s11, s27, 7")
    p("s_add_u32 s10, s10, s11")
    p("s_add_u32 s10, s10, 2048")
    p("s_nop 1")
    for nt in range(2):
        for i in range(8): p(f"v_cvt_pk_bf16_f32 {v(WF+8*nt+i)}, {v(ACC+16*nt+2*i)}, {v(ACC+16*nt+2*i+1)}")
    p("s_nop 0")
    for nt in range(2):
        for pr in range(2):
            b = WF + 8 * nt + 4 * pr
            p(f"v_permlane32_swap_b32 {v(b)}, {v(b+2)}")
            p(f"v_permlane32_swap_b32 {v(b+1)}, {v(b+3)}")
            p(f"buffer_store_dwordx4 {v(b,4)}, v2, s[16:19], s10 offen offset:{64*nt+32*pr}{FL[opt('k3sf')]}")
    stamp(p, 3); stamp(p, 4, True)
    stamp_flush(p, 2, 6)
    dbg_stamp(p, 2, 11, "c1")
    p("s_endpgm")
    return 128, 512, 131072

def build(path):
    p = Prog()
    descs = []; launches = []
    for name, fn in (("k1_kernel", emit_k1), ("k2_kernel", emit_k2), ("k3_kernel", emit_k3)):
        vg, blk, lds = fn(p)
        p.label(name[:2].upper() + "_CODE_END")
        descs.append(kernel_desc(name, vg)); launches.append((name, 256, blk, lds))
    hdr = open("concat_heads__ssm_conv_h3__mha_block__prompt.s.ref").read().split("\n")
    hdr = [l for l in hdr if l.startswith(";") and "@launch" not in l and "Override" not in l and "grid=ceil" not in l]
    out = "\n".join(hdr) + "\n"
    for (k, g, b, l) in launches: out += f"; @launch kernel={k} grid=({g},1,1) block=({b},1,1) lds={l}\n"
    out += '.amdgcn_target "amdgcn-amd-amdhsa--gfx950"\n.text\n'
    body = p.text()
    nbad = check(body)
    out += body
    out += '.section .rodata,"a"\n'
    for d in descs: out += ".p2align 6\n" + d
    open(path, "w").write(out)
    return nbad

if __name__ == "__main__":
    nb = build(sys.argv[1] if len(sys.argv) > 1 else "out.s")
    print("hazards:", nb)
```

```python
import sys, os, struct, math
sys.path.insert(0, os.path.dirname(os.path.abspath(__file__)))
from asmlib import Prog, v, s, check

MB = 1 << 20
WS_Q, WS_K, WS_V, WS_O, WS_XR, WS_Y, WS_FL = 0, 4 * MB, 8 * MB, 12 * MB, 16 * MB, 21 * MB, 25 * MB
XRS = 4224
WS_SIZE = 32 * MB
FLS = 4352
A_Q, A_K, A_V, A_SK, A_SSMK, A_D, B_X, B_WQKV, B_WO, D_OUT, D_DBG, D_WS = [8 * i for i in range(12)]
def f32bits(x): return struct.unpack("<I", struct.pack("<f", x))[0]
QSCALE = f32bits((32 ** -0.5) * math.log2(math.e))
STAMP = os.environ.get("STAMP", "0") == "1"
OPT = dict(kv.split("=") for kv in os.environ.get("OPT", "").split(",") if kv)
def opt(k, d=0): return int(OPT.get(k, d))
WS_ST = 28 * MB
FL = {0: "", 1: " nt", 2: " sc1", 3: " sc0 sc1", 4: " sc0"}

def mf32(d, a, b, c): return f"v_mfma_f32_32x32x16_bf16 {v(d,16)}, {v(a,4)}, {v(b,4)}, {v(c,16) if isinstance(c,int) else c}"
def mf16(d, a, b, c): return f"v_mfma_f32_16x16x32_bf16 {v(d,4)}, {v(a,4)}, {v(b,4)}, {v(c,4) if isinstance(c,int) else c}"

def srd(p, d, lo, hi, nrec, off=None):
    if off is None:
        if lo != d: p(f"s_mov_b32 {s(d)}, {s(lo)}")
        if hi != d + 1: p(f"s_mov_b32 {s(d+1)}, {s(hi)}")
    else:
        p(f"s_add_u32 {s(d)}, {s(lo)}, {off}")
        p(f"s_addc_u32 {s(d+1)}, {s(hi)}, 0")
    p(f"s_mov_b32 {s(d+2)}, {nrec}")
    p(f"s_mov_b32 {s(d+3)}, 0x20000")

def stamp(p, i, real=False):
    if STAMP: p(f"{'s_memrealtime' if real else 's_memtime'} s[{60+2*i}:{61+2*i}]")
def stamp_flush(p, kidx, n, wave_sgpr=59):
    if not STAMP: return
    p(f"s_load_dwordx2 s[56:57], s[0:1], {D_WS}")
    p("s_lshl_b32 s58, s2, 4")
    p(f"s_add_u32 s58, s58, {s(wave_sgpr)}")
    p("s_lshl_b32 s58, s58, 6")
    p(f"s_add_u32 s58, s58, {WS_ST + kidx * 262144}")
    p("s_waitcnt lgkmcnt(0)")
    p("v_mov_b32 v2, s58")
    for i in range(n):
        p(f"v_mov_b32 v3, s{60+2*i}")
        p(f"global_store_dword v2, v3, s[56:57] offset:{4*i}")
def lstamp_flush(p, kidx, vreg, wave_sgpr=59):
    if not STAMP: return
    p(f"s_load_dwordx2 s[56:57], s[0:1], {D_WS}")
    p("s_lshl_b32 s58, s2, 4")
    p(f"s_add_u32 s58, s58, {s(wave_sgpr)}")
    p("s_lshl_b32 s58, s58, 8")
    p(f"s_add_u32 s58, s58, {WS_ST + MB + kidx * MB}")
    p("v_mbcnt_lo_u32_b32 v2, -1, 0")
    p("v_mbcnt_hi_u32_b32 v2, -1, v2")
    p("v_lshl_add_u32 v2, v2, 2, s58")
    p("s_waitcnt lgkmcnt(0)")
    p(f"global_store_dword v2, {v(vreg)}, s[56:57]")

DBG = os.environ.get("DBG", "0") == "1"
def dbg_stamp(p, kidx, slot, lab, wg=0):
    if not DBG: return
    p(f"s_cmp_lg_u32 s2, {wg}")
    p(f"s_cbranch_scc1 DBG_{lab}")
    p(f"s_load_dwordx2 s[90:91], s[0:1], {D_DBG}")
    p("s_memrealtime s[92:93]")
    p("s_waitcnt lgkmcnt(0)")
    p(f"s_add_u32 s90, s90, {512*(2-kidx)}")
    p("s_addc_u32 s91, s91, 0")
    p("v_mov_b32 v127, s92")
    p("v_mov_b32 v126, 0")
    p(f"global_store_dword v126, v127, s[90:91] offset:{4*slot}")
    p.label(f"DBG_{lab}")

def kernel_head(p, name):
    p(f".globl {name}")
    p(".p2align 8")
    p(f".type {name},@function")
    p.label(name)

def code_prefetch(p, start, end, vt, vd):
    if not opt("cpf", 0): return
    p("s_getpc_b64 s[94:95]")
    p.label(start)
    p(f"v_lshlrev_b32 {v(vt)}, 7, v0")
    p(f"v_min_u32 {v(vt)}, {end}-{start}-4, {v(vt)}")
    p(f"global_load_dword {v(vd)}, {v(vt)}, s[94:95]")

def kernel_desc(name, vgpr, sgpr=102):
    acc = (vgpr + 3) // 4 * 4
    return f""".amdhsa_kernel {name}
  .amdhsa_next_free_vgpr {vgpr}
  .amdhsa_next_free_sgpr {sgpr}
  .amdhsa_accum_offset {acc}
  .amdhsa_group_segment_fixed_size 0
  .amdhsa_kernarg_size 96
  .amdhsa_user_sgpr_count 2
  .amdhsa_user_sgpr_kernarg_segment_ptr 1
  .amdhsa_system_sgpr_workgroup_id_x 1
.end_amdhsa_kernel
"""

def pf_addr(p, vx, vw, which=(0, 1)):
    if 0 in which:
        p("s_and_b32 s29, s27, 3")
        p("s_lshl_b32 s29, s29, 5")
        p("s_lshl_b32 s10, s26, 7")
        p("s_add_u32 s29, s29, s10")
        p("v_lshrrev_b32 v1, 1, v0")
        p("v_add_u32 v1, s29, v1")
        p("v_lshlrev_b32 v1, 11, v1")
        p("v_and_b32 v2, 1, v0")
        p(f"v_lshl_add_u32 {v(vx)}, v2, 7, v1")
    if 1 in which:
        p("v_lshrrev_b32 v2, 5, v0")
        p("v_lshlrev_b32 v2, 6, v2")
        p("v_bfe_u32 v3, v0, 2, 3")
        p("s_and_b32 s29, s26, 7")
        p("s_lshl_b32 s29, s29, 3")
        p("v_add3_u32 v2, v2, v3, s29")
        p("v_mul_u32_u24 v2, 6144, v2")
        p("v_and_b32 v3, 3, v0")
        p("v_min_u32 v3, 2, v3")
        p("v_lshl_add_u32 v2, v3, 11, v2")
        p("s_lshl_b32 s29, s27, 7")
        p(f"v_add_u32 {v(vw)}, s29, v2")

def emit_k1(p):
    DF = {0: "", 1: " nt", 2: " sc1", 3: " sc0 sc1", 4: " sc0"}[opt("df")]
    NS = opt("ns", 3)
    XREG, WREG = 0, NS * 16384
    kernel_head(p, "k1_kernel")
    p("s_cmp_ge_u32 s2, 256")
    p("s_cbranch_scc1 K1_END")
    p(f"s_load_dwordx4 s[4:7], s[0:1], {B_X}")
    code_prefetch(p, "K1_PC", "K1_CODE_END", 1, 19)
    p("v_lshrrev_b32 v1, 6, v0")
    p("v_and_b32 v0, 63, v0")
    p("s_and_b32 s8, s2, 7")
    p("v_readfirstlane_b32 s3, v1")
    stamp(p, 0); stamp(p, 1, True)
    p("s_lshr_b32 s9, s2, 3")
    if STAMP: p("s_mov_b32 s59, s3")
    p("s_and_b32 s26, s8, 1")
    p("s_lshl_b32 s26, s26, 3")
    p("s_and_b32 s10, s9, 7")
    p("s_add_u32 s26, s26, s10")
    p("s_lshr_b32 s27, s8, 1")
    p("s_lshl_b32 s27, s27, 2")
    p("s_lshr_b32 s10, s9, 3")
    p("s_add_u32 s27, s27, s10")
    p(f"s_mul_i32 s33, s8, {opt('xrot', 0)}")
    p("s_and_b32 s33, s33, 7")
    p("s_cmp_ge_u32 s3, 4")
    p("s_cbranch_scc1 K1_NOTLOADER")
    if opt("pf0", 1):
        p("s_bitcmp1_b32 s3, 0")
        p("s_cbranch_scc1 K1_PFW")
        pf_addr(p, 16, 16, (0,))
        p("s_lshr_b32 s10, s3, 1")
        p("s_add_u32 s10, s10, s33")
        p("s_and_b32 s10, s10, 7")
        p("s_lshl_b32 s10, s10, 8")
        p("s_waitcnt lgkmcnt(0)")
        srd(p, 40, 4, 5, 4 * MB)
        p("s_branch K1_PFGO")
        p.label("K1_PFW")
        pf_addr(p, 16, 16, (1,))
        p("s_lshr_b32 s10, s3, 1")
        p("s_add_u32 s10, s10, s33")
        p("s_and_b32 s10, s10, 7")
        p(f"s_mul_i32 s10, s10, {128*6144}")
        p("s_waitcnt lgkmcnt(0)")
        srd(p, 40, 6, 7, 6 * MB)
        p.label("K1_PFGO")
        p("buffer_load_dword v17, v16, s[40:43], s10 offen")
    p("v_lshrrev_b32 v2, 3, v0")
    p("v_lshlrev_b32 v2, 11, v2")
    p("v_lshrrev_b32 v3, 4, v0")
    p("v_and_b32 v4, 7, v0")
    p("v_xor_b32 v4, v4, v3")
    p("v_lshl_add_u32 v2, v4, 4, v2")
    p("s_lshl_b32 s10, s3, 16")
    p("v_add_u32 v10, s10, v2")
    p("v_xor_b32 v11, 64, v10")
    p(f"v_add_u32 v12, {32768-2048}, v10")
    p(f"v_add_u32 v13, {49152-3072}, v11")
    p(f"v_add_u32 v11, {16384-1024}, v11")
    p("v_lshrrev_b32 v2, 5, v0")
    p("v_lshlrev_b32 v2, 2, v2")
    p("v_bfe_u32 v4, v0, 2, 2")
    p("s_lshl_b32 s10, s3, 4")
    p("v_add3_u32 v2, v2, v4, s10")
    p("v_mul_u32_u24 v2, 6144, v2")
    p("v_and_b32 v3, 1, v3")
    p("v_lshl_add_u32 v2, v3, 6, v2")
    p("v_and_b32 v4, 3, v0")
    p("v_lshl_add_u32 v14, v4, 4, v2")
    p("v_add_u32 v15, 48128, v14")
    p("s_lshl_b32 s23, s3, 12")
    p("s_mul_i32 s24, s3, 6144")
    p(f"s_add_u32 s24, s24, {WREG}")
    p("s_lshl_b32 s20, s33, 8")
    p(f"s_mul_i32 s21, s33, {128*6144}")
    p("s_mov_b32 s25, 0")
    p("s_lshl_b32 s10, s26, 18")
    p("s_lshl_b32 s11, s27, 7")
    p(f"s_sub_u32 s18, {1024*6144}, s11")
    p("s_mov_b32 s14, 262144")
    p("s_mov_b32 s15, 0x20000")
    p("s_mov_b32 s19, 0x20000")
    p("s_waitcnt lgkmcnt(0)")
    p("s_add_u32 s12, s4, s10")
    p("s_addc_u32 s13, s5, 0")
    p("s_add_u32 s16, s6, s11")
    p("s_addc_u32 s17, s7, 0")
    stamp(p, 2)
    p("s_branch K1_LISSUE")
    p.label("K1_LLOOP")
    p("s_cmp_lt_u32 s25, 2")
    p("s_cbranch_scc1 K1_LISSUE")
    stamp(p, 6)
    p("s_waitcnt vmcnt(10)")
    stamp(p, 7)
    p("s_barrier")
    if STAMP:
        p("s_waitcnt lgkmcnt(0)")
        p("s_lshl_b32 m0, s25, 1")
        p("s_nop 0")
        p("v_writelane_b32 v20, s72, m0")
        p("s_add_u32 m0, m0, 1")
        p("s_nop 0")
        p("v_writelane_b32 v20, s74, m0")
    p.label("K1_LISSUE")
    p("s_mov_b32 m0, s23")
    p("s_add_u32 s22, s21, 4096")
    for jj in range(4):
        p(f"buffer_load_dwordx4 {v(10+jj)}, s[12:15], s20 offen offset:{1024*jj}{DF} lds")
    p("s_mov_b32 m0, s24")
    p("s_add_u32 s20, s20, 128")
    for ii in range(4):
        p(f"buffer_load_dwordx4 {v(14+(ii&1))}, s[16:19], s21 offen offset:{1024*ii}{DF} lds")
    p("s_add_u32 m0, s24, 4096")
    p("s_add_u32 s21, s21, 393216")
    for ii in range(2):
        p(f"buffer_load_dwordx4 {v(14+ii)}, s[16:19], s22 offen offset:{1024*ii}{DF} lds")
    p("s_and_b32 s20, s20, 2047")
    p("s_cselect_b32 s21, s21, 0")
    p("s_add_u32 s23, s23, 16384")
    p("s_add_u32 s24, s24, 24576")
    p(f"s_cmp_ge_u32 s23, {WREG}")
    p(f"s_cselect_b32 s10, {NS*16384}, 0")
    p(f"s_cselect_b32 s11, {NS*24576}, 0")
    p("s_sub_u32 s23, s23, s10")
    p("s_sub_u32 s24, s24, s11")
    p("s_add_u32 s25, s25, 1")
    p("s_cmp_lt_u32 s25, 16")
    p("s_cbranch_scc1 K1_LLOOP")
    for n in (10, 0):
        p(f"s_waitcnt vmcnt({n})")
        p("s_barrier")
    stamp(p, 3); stamp(p, 4, True)
    stamp_flush(p, 0, 5); lstamp_flush(p, 0, 20)
    p.label("K1_END")
    p("s_endpgm")
    p.label("K1_NOTLOADER")
    p(f"s_load_dwordx2 s[30:31], s[0:1], {D_WS}")
    p("s_cmp_ge_u32 s3, 8")
    p("s_cbranch_scc1 K1_HELPER")
    ACC = 64
    FB = 20
    XB, XC, WB, WC = 4, 8, 12, 13
    p("s_sub_u32 s3, s3, 4")
    p("s_lshr_b32 s28, s3, 1")
    p("s_and_b32 s29, s3, 1")
    p("v_and_b32 v1, 31, v0")
    p("v_lshrrev_b32 v2, 5, v0")
    p("v_bfe_u32 v3, v0, 1, 3")
    p("v_xor_b32 v3, v3, v2")
    p("v_lshlrev_b32 v3, 4, v3")
    p("v_lshl_add_u32 v3, v1, 7, v3")
    p("s_lshl_b32 s10, s28, 13")
    p(f"v_add_u32 {v(XB)}, s10, v3")
    for ks in range(1, 4): p(f"v_xor_b32 {v(XB+ks)}, {32*ks}, {v(XB)}")
    p("v_lshlrev_b32 v2, 10, v2")
    p("v_bfe_u32 v3, v0, 2, 2")
    p("v_lshl_add_u32 v2, v3, 6, v2")
    p("v_bfe_u32 v3, v0, 4, 1")
    p("v_lshl_add_u32 v2, v3, 5, v2")
    p("v_and_b32 v3, 3, v0")
    p("v_lshl_add_u32 v2, v3, 3, v2")
    p("s_lshl_b32 s10, s29, 8")
    p(f"s_add_u32 s10, s10, {WREG}")
    p(f"v_add_u32 {v(WB)}, s10, v2")
    for ks in range(4): p(f"v_mov_b32 {v(XC+ks)}, {v(XB+ks)}")
    p(f"v_mov_b32 {v(WC)}, {v(WB)}")
    for i in range(FB + 20, FB + 40): p(f"v_mov_b32 {v(i)}, 0")
    for i in range(ACC, ACC + 96): p(f"v_mov_b32 {v(i)}, 0")
    p("s_mov_b32 s20, 16384")
    p("s_mov_b32 s21, 24576")
    p("s_mov_b32 s25, 15")
    def frag(b, which):
        return FB + 20 * b + {"x0": 0, "x1": 4, "w0": 8, "w1": 12, "w2": 16}[which]
    def mfmas(b):
        L = []
        for (ty, rt) in ((0, 0), (1, 0), (0, 1), (1, 1), (2, 0), (2, 1)):
            d = ACC + (rt * 3 + ty) * 16
            x, w = frag(b, f"x{rt}"), frag(b, f"w{ty}")
            L.append(mf32(d, w, x, d) if ty < 2 else mf32(d, x, w, d))
        return L
    def reads(b, ks):
        def rx(rt): return f"ds_read_b128 {v(frag(b, f'x{rt}'),4)}, {v(XC+ks)} offset:{rt*4096}"
        def rw(ty, h): return f"ds_read_b64_tr_b16 {v(frag(b, f'w{ty}')+2*h,2)}, {v(WC)} offset:{ks*6144+ty*2048+h*512}"
        return [rx(0), rw(0,0), rw(0,1), rw(1,0), rw(1,1), rx(1), rw(2,0), rw(2,1)]
    p("s_waitcnt lgkmcnt(0)")
    p("s_barrier")
    stamp(p, 7)
    p.label("K1_CLOOP")
    w = lambda n: p(f"s_waitcnt lgkmcnt({n})")
    for ks in range(3):
        b = ks & 1
        M = mfmas(b ^ 1); R = reads(b, ks)
        if ks: w(5)
        p(M[0]); p(R[0]); p(R[1])
        if ks: w(5)
        p(M[1]); p(R[2]); p(R[3])
        if ks: w(6)
        p(M[2]); p(R[4]); p(R[5])
        p(M[3]); p(R[6]); p(R[7])
        if ks: w(8)
        p(M[4]); p(M[5])
    M = mfmas(0); R = reads(1, 3)
    w(5); p(M[0]); p(R[0]); p(R[1]); p(R[2])
    w(6); p(M[1]); p(R[3]); p(R[4]); p(R[5])
    w(8); p(M[2]); p(R[6]); p(R[7])
    for ks in range(3): p(f"v_add_u32 {v(XC+ks)}, s20, {v(XB+ks)}")
    p(M[3])
    p(f"v_add_u32 {v(XC+3)}, s20, {v(XB+3)}")
    p(f"v_add_u32 {v(WC)}, s21, {v(WB)}")
    p("s_add_u32 s20, s20, 16384")
    p("s_add_u32 s21, s21, 24576")
    p(f"s_cmp_ge_u32 s20, {NS*16384}")
    p("s_cselect_b32 s20, 0, s20")
    w(8); p(M[4])
    p("s_cselect_b32 s21, 0, s21")
    p("s_cmp_eq_u32 s25, 0")
    p("s_cbranch_scc1 K1_CDONE")
    stamp(p, 6)
    p("s_waitcnt lgkmcnt(0)")
    if STAMP:
        p("s_sub_u32 m0, 17, s25")
        p("s_lshl_b32 m0, m0, 1")
        p("v_writelane_b32 v14, s72, m0")
        p("s_sub_u32 m0, m0, 1")
        p("s_nop 0")
        p("v_writelane_b32 v14, s74, m0")
    p("s_barrier")
    stamp(p, 7)
    p(M[5])
    p("s_sub_u32 s25, s25, 1")
    p("s_branch K1_CLOOP")
    p.label("K1_CDONE")
    p(M[5])
    p("s_waitcnt lgkmcnt(0)")
    for m in mfmas(1): p(m)
    stamp(p, 2)
    srd(p, 12, 30, 31, WS_SIZE)
    p("s_lshl_b32 s10, s27, 1")
    p("s_add_u32 s10, s10, s29")
    p("s_lshl_b32 s10, s10, 6")
    p("s_lshl_b32 s11, s26, 2")
    p("s_add_u32 s10, s10, s11")
    p("s_lshl_b32 s11, s28, 1")
    p("s_add_u32 s10, s10, s11")
    p("s_lshl_b32 s10, s10, 11")
    p(f"s_add_u32 s11, s10, {WS_K}")
    p(f"s_add_u32 s16, s10, {WS_V}")
    p(f"s_mov_b32 s17, {QSCALE}")
    p("v_lshlrev_b32 v1, 4, v0")
    n = 0
    for (ty, rt) in ((1, 0), (0, 0), (1, 1), (0, 1), (2, 0), (2, 1)):
        d = ACC + (rt * 3 + ty) * 16
        o = FB + 8 * (n % 4); n += 1
        if ty == 0:
            for i in range(16): p(f"v_mul_f32 {v(d+i)}, s17, {v(d+i)}")
        so = (10, 11, 16)[ty]
        for j in range(2):
            for i in range(4 * j, 4 * j + 4): p(f"v_cvt_pk_bf16_f32 {v(o+i)}, {v(d+2*i)}, {v(d+2*i+1)}")
            p(f"buffer_store_dwordx4 {v(o+4*j,4)}, v1, s[12:15], {s(so)} offen offset:{rt*2048+j*1024}{FL[opt('k1sf')]}")
    stamp(p, 3)
    if STAMP: p("s_waitcnt vmcnt(0)")
    stamp(p, 5); stamp(p, 4, True)
    stamp_flush(p, 0, 6); lstamp_flush(p, 0, 14)
    dbg_stamp(p, 0, 4, "a20")
    p("s_endpgm")
    p.label("K1_HELPER")
    PFS = {0: {},
           1: {-1: [1, 2], 0: [3], 2: [4], 4: [5], 6: [6], 8: [7]},
           3: {-1: [1], 0: [2], 1: [3], 3: [4], 5: [5], 7: [6], 9: [7]},
           4: {0: [2], 1: [3], 3: [4], 5: [5], 7: [6], 9: [7]},
           5: {-1: [2], 0: [3], 2: [4], 4: [5], 6: [6], 8: [7]},
           6: {0: [2, 3], 2: [4], 4: [5], 6: [6], 8: [7]}}[opt("pf", 4)]
    dbg_stamp(p, 0, 0, "a0")
    p(f"s_load_dwordx4 s[36:39], s[0:1], {A_K}")
    pf_addr(p, 4, 5)
    p("s_waitcnt lgkmcnt(0)")
    srd(p, 40, 4, 5, 4 * MB)
    srd(p, 44, 6, 7, 6 * MB)
    def pf(pp):
        p(f"s_add_u32 s34, s33, {pp}")
        p("s_and_b32 s34, s34, 7")
        p("s_lshl_b32 s35, s34, 8")
        p(f"s_mul_i32 s34, s34, {128*6144}")
        p(f"buffer_load_dword v6, v4, s[40:43], s35 offen")
        p(f"buffer_load_dword v7, v5, s[44:47], s34 offen")
    for pp in PFS.get(-1, []): pf(pp)
    TW = opt("tw", 14)
    for b_ in range(16):
        p("s_barrier")
        for pp in PFS.get(b_, []): pf(pp)
        if b_ in (0, 2, 15): dbg_stamp(p, 0, {0: 1, 2: 2, 15: 3}[b_], f"a{b_+1}")
        if b_ == 0:
            srd(p, 12, 30, 31, 64 * FLS, off=WS_FL)
            p(f"s_mul_i32 s10, s2, {FLS}")
            p("v_lshlrev_b32 v8, 2, v0")
            p("v_mov_b32 v9, 0")
            p("buffer_store_dword v9, v8, s[12:15], s10 offen")
            srd(p, 16, 36, 37, 4 * MB)
            srd(p, 20, 38, 39, 4 * MB)
            p("v_lshlrev_b32 v8, 7, v0")
            p("s_lshl_b32 s10, s2, 14")
            p("s_add_u32 s11, s10, 8192")
        if b_ == 11 and opt("cpf2", 0):
            p("s_getpc_b64 s[94:95]")
            p.label("K1_PC2")
            for j in range(2):
                p(f"v_add_u32 v10, {8192*j}, v8")
                p("v_min_u32 v10, K3_CODE_END-K1_PC2-4, v10")
                p("global_load_dword v6, v10, s[94:95]")
        if b_ == TW:
            for sr in (16, 20):
                for so in (10, 11): p(f"buffer_load_dword v6, v8, s[{sr}:{sr+3}], s{so} offen")
        if b_ >= max(TW, 12) and b_ < 15 and TW > 15: break
    p("s_endpgm")
    return 160, 576, NS * 40960

K2_NS = 6
CV_BASE = K2_NS * 16384
CV_STRIDE = 15616
K2_CNT = CV_BASE + 4 * CV_STRIDE
FUSE3 = opt("fuse3", 1)
CV_C1 = 5120 + 64
CV_H = 2 * 5120 + 128
SC = {0: " sc1", 1: " sc0 sc1", 2: ""}[opt("sc")]
def emit_partA(p, pre):
    p(f"s_load_dwordx8 s[36:43], s[0:1], {A_Q}")
    p(f"s_load_dwordx4 s[44:47], s[0:1], {A_SSMK}")
    p(f"s_load_dwordx4 s[48:51], s[0:1], {B_WO}")
    dbg_stamp(p, 1, 5, "b0")
    p("s_barrier")
    p(f"s_setprio {opt('cvprio', 3)}")
    p("s_sub_u32 s3, s3, 9")
    p("s_and_b32 s28, s2, 15")
    p("s_and_b32 s10, s28, 7")
    p("s_lshr_b32 s11, s28, 3")
    p("s_lshl_b32 s28, s10, 1")
    p("s_add_u32 s28, s28, s11")
    p("s_lshr_b32 s29, s2, 4")
    p("s_lshl_b32 s29, s29, 2")
    p("s_add_u32 s29, s29, s3")
    p("s_lshl_b32 s27, s28, 6")
    p("s_add_u32 s27, s27, s29")
    p(f"s_mul_i32 s30, s3, {CV_STRIDE}")
    p(f"s_add_u32 s30, s30, {CV_BASE}")
    p("v_and_b32 v1, 7, v0")
    p("v_lshrrev_b32 v2, 3, v0")
    p("s_lshl_b32 s10, s29, 5")
    p("v_lshl_add_u32 v3, v2, 2, s10")
    p("s_lshl_b32 s11, s28, 7")
    p("v_lshl_add_u32 v4, v1, 4, s11")
    p("v_lshl_add_u32 v120, v3, 11, v4")
    p("v_lshl_add_u32 v122, v3, 12, v4")
    p("v_lshlrev_b32 v121, 11, v4")
    p("v_lshl_add_u32 v121, v2, 4, v121")
    p("s_lshr_b32 s31, s29, 4")
    p("s_lshl_b32 s31, s31, 10")
    p("s_and_b32 s26, s29, 7")
    p("s_lshl_b32 s26, s26, 7")
    p("s_add_u32 s31, s31, s26")
    p("s_and_b32 s26, s29, 8")
    p("s_add_u32 s31, s31, s26")
    p("v_add_u32 v121, s31, v121")
    p("v_and_b32 v123, 15, v0")
    p("v_lshlrev_b32 v123, 2, v123")
    p("v_lshlrev_b32 v124, 4, v0")
    p("v_and_b32 v1, 15, v0")
    p("v_lshrrev_b32 v2, 4, v0")
    p("v_lshl_add_u32 v3, v2, 3, s10")
    p("v_lshl_add_u32 v4, v1, 3, s11")
    p("v_lshl_add_u32 v9, v3, 11, v4")
    for j in range(3): p(f"v_add_u32 {v(6+j)}, {(j-3)*2048}, v9")
    for j in range(1, 4): p(f"v_add_u32 {v(9+j)}, {j*4096}, v9")
    p("v_lshlrev_b32 v13, 2, v4")
    p("v_lshrrev_b32 v14, 1, v4")
    p(f"v_mul_u32_u24 v14, {XRS}, v14")
    p("v_lshlrev_b32 v15, 1, v3")
    p("v_sub_u32 v15, 4080, v15")
    p("v_add_u32 v15, v15, v14")
    p("v_lshl_add_u32 v14, v2, 4, v14")
    p("v_add_u32 v1, -512, v124")
    p("v_add_u32 v2, 512, v124")
    p("s_lshl_b32 s33, s27, 12")
    p("s_lshl_b32 s10, s27, 1")
    p("v_mov_b32 v3, s10")
    p("s_mov_b32 s32, 0xffff0000")
    p(f"s_mul_i32 s34, s28, {FLS}")
    p(f"s_add_u32 s34, s34, {WS_FL}")
    p("s_and_b32 s35, s29, 60")
    p(f"s_mul_i32 s31, s27, {XRS}")
    p(f"s_add_u32 s31, s31, {WS_XR}")
    p("s_add_u32 s26, s31, 4096")
    p("s_waitcnt lgkmcnt(0)")
    srd(p, 12, 4, 5, WS_SIZE)
    srd(p, 16, 38, 39, 4 * MB)
    srd(p, 20, 40, 41, 4 * MB)
    srd(p, 52, 42, 43, 8192)
    p(f"v_mov_b32 v126, {K2_CNT}")
    p.label(f"{pre}_HW0")
    p("s_sleep 2")
    p("ds_read_b32 v127, v126 offset:4")
    p("s_waitcnt lgkmcnt(0)")
    p(f"v_cmp_gt_u32 vcc, {opt('hw0', 4)}, v127")
    p(f"s_cbranch_vccnz {pre}_HW0")
    dbg_stamp(p, 1, 6, "b1")
    KR, VR, SR = 16, 38, 56
    def rowaddr(j):
        if j < 3: return v(6 + j), 0
        return v(9 + (j - 3) // 2), 2048 * ((j - 3) & 1)
    for j in range(2): p(f"buffer_load_dwordx4 {v(SR+4*j,4)}, v13, s[52:55], 0 offen offset:{16*j}")
    for j in range(11):
        a_, o_ = rowaddr(j); p(f"buffer_load_dwordx2 {v(KR+2*j,2)}, {a_}, s[16:19], 0 offen offset:{o_}")
    for j in range(8):
        a_, o_ = rowaddr(j + 3); p(f"buffer_load_dwordx2 {v(VR+2*j,2)}, {a_}, s[20:23], 0 offen offset:{o_}")
    srd(p, 16, 44, 45, 4096, off="s33")
    srd(p, 20, 46, 47, 2048)
    T, KU, AC, OUT = 64, 72, 94, 112
    for cp in range(2):
        if cp == 0:
            p("s_waitcnt vmcnt(8)"); stamp(p, 2)
        for e in range(2):
            for jj in range(2):
                src = SR + 4 * cp + 2 * e + jj
                p(f"v_lshlrev_b32 {v(T+2*(2*jj)+e)}, 16, {v(src)}")
                p(f"v_and_b32 {v(T+2*(2*jj+1)+e)}, s32, {v(src)}")
        for j in range(11):
            p(f"v_lshlrev_b32 {v(KU+2*j)}, 16, {v(KR+2*j+cp)}")
            p(f"v_and_b32 {v(KU+2*j+1)}, s32, {v(KR+2*j+cp)}")
        for t in range(8): p(f"v_pk_mul_f32 {v(AC+2*t,2)}, {v(KU+2*t,2)}, {v(T+6,2)}")
        for j in (2, 1, 0):
            for t in range(8): p(f"v_pk_fma_f32 {v(AC+2*t,2)}, {v(KU+2*(t-j+3),2)}, {v(T+2*j,2)}, {v(AC+2*t,2)}")
        if cp == 0: p("s_waitcnt vmcnt(0)")
        for j in range(8):
            p(f"v_lshlrev_b32 {v(KU+2*j)}, 16, {v(VR+2*j+cp)}")
            p(f"v_and_b32 {v(KU+2*j+1)}, s32, {v(VR+2*j+cp)}")
        for t in range(8): p(f"v_pk_mul_f32 {v(AC+2*t,2)}, {v(AC+2*t,2)}, {v(KU+2*t,2)}")
        for e in range(2):
            for i in range(4): p(f"v_cvt_pk_bf16_f32 {v(OUT+4*e+i)}, {v(AC+2*(7-2*i)+e)}, {v(AC+2*(6-2*i)+e)}")
            p(f"s_mov_b32 s10, {WS_XR + (2*cp+e)*XRS}")
            p(f"buffer_store_dwordx4 {v(OUT+4*e,4)}, v15, s[12:15], s10 offen{SC}")
    p("s_cmp_lg_u32 s29, 0")
    p(f"s_cbranch_scc1 {pre}_S1END")
    for i in range(4): p(f"v_mov_b32 {v(8+i)}, 0")
    for c in range(4):
        p(f"s_mov_b32 s10, {WS_XR + c*XRS + 4096}")
        p(f"buffer_store_dwordx4 v[8:11], v14, s[12:15], s10 offen{SC}")
    p.label(f"{pre}_S1END")
    p("v_mov_b32 v118, v1")
    p("v_mov_b32 v119, v2")
    p("v_mov_b32 v117, v3")
    def signal_and_wait(tag, work=None):
        p(f"v_mov_b32 v1, {K2_CNT + 8 * tag}")
        p("v_mov_b32 v2, 1")
        p("s_waitcnt vmcnt(0)")
        stamp(p, 9 + 2 * tag)
        p("s_mov_b64 exec, 1")
        p("ds_add_rtn_u32 v126, v1, v2")
        p("s_mov_b64 exec, -1")
        p("v_mov_b32 v127, s35")
        p("s_mov_b32 s25, 0x40000")
        p("s_waitcnt lgkmcnt(0)")
        p("v_readfirstlane_b32 s24, v126")
        p("s_cmp_lg_u32 s24, 3")
        p(f"s_cbranch_scc1 {pre}_NOSIG{tag}")
        p("s_mov_b64 exec, 1")
        p(f"buffer_store_dword v2, v127, s[12:15], s34 offen{SC}")
        p("s_mov_b64 exec, -1")
        p.label(f"{pre}_NOSIG{tag}")
        if work: work()
        p("s_cmp_lg_u32 s24, 3")
        p(f"s_cbranch_scc1 {pre}_LWAIT{tag}")
        p.label(f"{pre}_POLL{tag}")
        p(f"s_sleep {opt('slp', 8)}")
        p(f"buffer_load_dword v126, v123, s[12:15], s34 offen{SC}")
        p("s_sub_u32 s25, s25, 1")
        p(f"s_cbranch_scc1 {pre}_GOT{tag}")
        p("s_waitcnt vmcnt(0)")
        p("v_cmp_ne_u32 vcc, 1, v126")
        p(f"s_cbranch_vccnz {pre}_POLL{tag}")
        p.label(f"{pre}_GOT{tag}")
        p("ds_write_b32 v1, v2 offset:4")
        p(f"s_branch {pre}_GO{tag}")
        p.label(f"{pre}_LWAIT{tag}")
        p("s_sleep 2")
        p("ds_read_b32 v126, v1 offset:4")
        p("s_waitcnt lgkmcnt(0)")
        p("v_cmp_ne_u32 vcc, 1, v126")
        p(f"s_cbranch_vccnz {pre}_LWAIT{tag}")
        p.label(f"{pre}_GO{tag}")
        stamp(p, 10 + 2 * tag)
    AB, BB, KVB, ST = 8, 12, 13, 14
    FA, FBB, ACC = 16, 48, 80
    def conv_setup():
        p("v_and_b32 v5, 15, v0")
        p("v_lshrrev_b32 v6, 4, v0")
        p("v_lshrrev_b32 v3, 1, v5")
        p("v_lshlrev_b32 v4, 2, v6")
        p("v_sub_u32 v4, v4, v3")
        p("v_lshlrev_b32 v4, 2, v4")
        p("v_and_b32 v3, 1, v5")
        p("v_xor_b32 v3, 1, v3")
        p(f"v_mul_u32_u24 v3, {CV_C1}, v3")
        p(f"s_add_u32 s10, s30, {4*1023 - 32*(112+1)}")
        p(f"v_add3_u32 {v(AB)}, v4, v3, s10")
        for kk in range(1, 4): p(f"v_add_u32 {v(AB+kk)}, {1024*kk}, {v(AB)}")
        p("v_lshlrev_b32 v3, 5, v5")
        p("v_lshl_add_u32 v4, v6, 4, v3")
        p(f"s_add_u32 s10, s30, {CV_H + 512 - 32}")
        p(f"v_add_u32 {v(BB)}, s10, v4")
        p(f"v_lshl_add_u32 {v(ST)}, v6, 3, v3")
        p(f"s_add_u32 s10, s30, {4088 - 512*7}")
        p(f"v_sub_u32 {v(KVB)}, s10, {v(ST)}")
        for i in range(32): p(f"v_mov_b32 {v(ACC+i)}, 0")
    def hload():
        p(f"s_add_u32 m0, s30, {CV_H}")
        p("buffer_load_ushort v125, v117, s[20:23], 0 offen")
        p("buffer_load_dwordx4 v118, s[16:19], 0 offen lds")
        p(f"s_add_u32 m0, s30, {CV_H + 1024}")
        p("s_nop 0")
        for j in range(4): p(f"buffer_load_dwordx4 v119, s[16:19], 0 offen offset:{1024*j} lds")
        srd(p, 52, 48, 49, 2 * MB)
        p("s_lshl_b32 s10, s27, 11")
        p("v_lshlrev_b32 v7, 5, v0")
        p("buffer_load_dword v116, v7, s[52:55], s10 offen")
        conv_setup()
        p("v_add_u32 v7, 2, v124")
    stamp(p, 5)
    signal_and_wait(1, hload)
    for (src_v, off) in ((124, 0), (7, CV_C1)):
        p(f"s_add_u32 m0, s30, {off}")
        p("s_nop 0")
        for j in range(4): p(f"buffer_load_dwordx4 {v(src_v)}, s[12:15], s31 offen offset:{1024*j}{SC} lds")
        p(f"s_add_u32 m0, s30, {off + 4096}")
        p("s_mov_b64 exec, 15")
        p(f"buffer_load_dwordx4 {v(src_v)}, s[12:15], s26 offen{SC} lds")
        p("s_mov_b64 exec, -1")
    p(f"s_add_u32 s34, s34, {16*FLS}")
    p("s_mov_b32 s25, 8")
    p("s_waitcnt vmcnt(0)")
    stamp(p, 7)
    dbg_stamp(p, 1, 7, "b2")
    p.label(f"{pre}_CVL")
    def rdA(a):
        kk, rem = (7 - a) >> 1, 128 * ((7 - a) & 1)
        return [f"ds_read2_b32 {v(FA+4*a,2)}, {v(AB+kk)} offset0:{rem} offset1:{rem+1}",
                f"ds_read2_b32 {v(FA+4*a+2,2)}, {v(AB+kk)} offset0:{rem+2} offset1:{rem+3}"]
    cnt = [0]
    def cm(a, b):
        p(mf16(ACC+4*(a+b), FA+4*a, FBB+4*b, ACC+4*(a+b)))
        cnt[0] += 1
        if opt("cvnop", -1) >= 0 and cnt[0] % opt("cvev", 1) == 0: p(f"s_nop {opt('cvnop')}")
    def rdB(b): return [f"ds_read_b128 {v(FBB+4*b,4)}, {v(BB)} offset:{512*b}"]
    for x in range(8):
        for r_ in rdA(x) + rdB(x): p(r_)
    for kk in range(4): p(f"v_add_u32 {v(AB+kk)}, -64, {v(AB+kk)}")
    p(f"v_add_u32 {v(BB)}, -64, {v(BB)}")
    p("s_waitcnt lgkmcnt(12)")
    for a in range(4):
        for b in range(4): cm(a, b)
    p("s_waitcnt lgkmcnt(0)")
    for a in range(8):
        for b in range(8 - a):
            if a >= 4 or b >= 4: cm(a, b)
    p("s_sub_u32 s25, s25, 1")
    p("s_cmp_lg_u32 s25, 0")
    p(f"s_cbranch_scc1 {pre}_CVL")
    stamp(p, 8)
    for t in range(8): p(f"ds_read_b64 {v(FA+2*t,2)}, {v(KVB)} offset:{512*(7-t)}")
    p("v_lshlrev_b32 v125, 16, v125")
    p(f"s_add_u32 s33, s33, {WS_Y}")
    p(f"v_lshlrev_b32 {v(ST)}, 1, {v(ST)}")
    for t in range(8):
        p(f"s_waitcnt lgkmcnt({7-t})")
        U = FBB + 4 * (t & 3); a = ACC + 4 * t; o = FBB + 16 + 2 * t
        p(f"v_and_b32 {v(U)}, s32, {v(FA+2*t+1)}")
        p(f"v_lshlrev_b32 {v(U+1)}, 16, {v(FA+2*t+1)}")
        p(f"v_and_b32 {v(U+2)}, s32, {v(FA+2*t)}")
        p(f"v_lshlrev_b32 {v(U+3)}, 16, {v(FA+2*t)}")
        for r_ in range(4): p(f"v_fmac_f32 {v(a+r_)}, v125, {v(U+r_)}")
        p(f"v_cvt_pk_bf16_f32 {v(o)}, {v(a)}, {v(a+1)}")
        p(f"v_cvt_pk_bf16_f32 {v(o+1)}, {v(a+2)}, {v(a+3)}")
        if t & 1: p(f"buffer_store_dwordx4 {v(o-2,4)}, {v(ST)}, s[12:15], s33 offen offset:{1024*(t>>1)}{SC}")
    QR, YR, U, OUT = 16, 32, 48, 64
    def qload():
        srd(p, 16, 36, 37, 4 * MB)
        srd(p, 20, 50, 51, 8 * MB)
        p("v_add_u32 v6, 4096, v120")
        for j in range(4): p(f"buffer_load_dwordx4 {v(QR+4*j,4)}, {('v120', 'v6')[j>>1]}, s[16:19], 0 offen offset:{2048*(j&1)}")
        if opt("wopf", 0):
            srd(p, 52, 48, 49, 2 * MB)
            p("s_lshl_b32 s10, s27, 11")
            p("v_lshlrev_b32 v7, 5, v0")
            p("buffer_load_dword v8, v7, s[52:55], s10 offen")
    stamp(p, 9)
    signal_and_wait(2, qload)
    stamp(p, 10)
    for c in range(8):
        p(f"s_mov_b32 s10, {WS_Y + c*4096}")
        p(f"buffer_load_dwordx2 {v(YR+2*c,2)}, v121, s[12:15], s10 offen{SC}")
    p("s_waitcnt vmcnt(0)")
    for t in range(4):
        for cp in range(4):
            u = U + 4 * (cp & 1)
            q = QR + 4 * t + cp
            p(f"v_lshlrev_b32 {v(u)}, 16, {v(q)}")
            p(f"v_and_b32 {v(u+1)}, s32, {v(q)}")
            for e in range(2):
                y = YR + 2 * (2 * cp + e) + (t >> 1)
                if t & 1: p(f"v_and_b32 {v(u+2+e)}, s32, {v(y)}")
                else: p(f"v_lshlrev_b32 {v(u+2+e)}, 16, {v(y)}")
            p(f"v_pk_mul_f32 {v(u,2)}, {v(u,2)}, {v(u+2,2)}")
            p(f"v_cvt_pk_bf16_f32 {v(OUT+4*t+cp)}, {v(u)}, {v(u+1)}")
        p(f"s_mov_b32 s10, {t*4096}")
        p(f"buffer_store_dwordx4 {v(OUT+4*t,4)}, v122, s[20:23], s10 offen{FL[opt('s3sf', 2)]}")
    stamp(p, 3); stamp(p, 4, True)
    stamp_flush(p, 1, 15)
    dbg_stamp(p, 1, 8, "b3")
    p("s_endpgm")

def emit_k2(p):
    kernel_head(p, "k2_kernel")
    Q, ONES, L, P0, P1, F0, F1, NEGM, SA, SB, O = 4, 12, 16, 20, 24, 28, 44, 60, 76, 92, 108
    CA, CV_, ONE = 125, 126, 127
    IDX = 0 if STAMP else 124
    RING = K2_NS * 16384
    def tile3():
        p("s_and_b32 s38, s8, 3")
        p("s_lshl_b32 s38, s38, 2")
        p("s_and_b32 s10, s9, 3")
        p("s_add_u32 s38, s38, s10")
        p("s_lshr_b32 s39, s8, 2")
        p("s_lshl_b32 s39, s39, 3")
        p("s_lshr_b32 s10, s9, 2")
        p("s_add_u32 s39, s39, s10")
    p("s_cmp_ge_u32 s2, 256")
    p("s_cbranch_scc1 K2_END")
    p(f"s_load_dwordx2 s[4:5], s[0:1], {D_WS}")
    code_prefetch(p, "K2_PC", "K2_CODE_END", 1, 60)
    p("v_lshrrev_b32 v1, 6, v0")
    p("v_and_b32 v0, 63, v0")
    p("s_and_b32 s8, s2, 7")
    p("v_readfirstlane_b32 s3, v1")
    stamp(p, 0); stamp(p, 1, True)
    p("s_lshr_b32 s9, s2, 3")
    if STAMP:
        p("s_add_u32 s59, s3, 12")
        p("s_cmp_eq_u32 s3, 0")
        p("s_cselect_b32 s59, s59, s3")
        p("s_cselect_b32 s58, 0, 1")
        p("s_sub_u32 s59, s59, s58")
    p("s_cmp_ge_u32 s3, 9")
    p("s_cbranch_scc1 K2_HELPER")
    p("s_lshl_b32 s26, s8, 2")
    p("s_and_b32 s10, s9, 3")
    p("s_add_u32 s26, s26, s10")
    p("v_lshlrev_b32 v1, 4, v0")
    p("s_lshl_b32 s28, s26, 17")
    p(f"s_add_u32 s30, s28, {WS_K}")
    p(f"s_add_u32 s31, s28, {WS_V}")
    p(f"v_mov_b32 {v(CA)}, {K2_CNT}")
    p("s_cmp_lg_u32 s3, 0")
    p("s_cbranch_scc1 K2_ATT")
    p("v_add_u32 v2, 2048, v1")
    p("s_sub_u32 s31, s31, 2048")
    p("v_mov_b32 v3, 0")
    p(f"v_lshl_add_u32 v4, v0, 2, {v(CA)}")
    p("ds_write_b32 v4, v3")
    p("s_mov_b32 s20, 0")
    p("s_mov_b32 s21, 0")
    p("s_mov_b32 s25, 0")
    p(f"s_mov_b32 s24, {(-(K2_NS - 1)) & 0xffffffff}")
    p("v_and_b32 v4, 7, v0")
    p(f"v_lshl_add_u32 v4, v4, 2, {v(CA)}")
    p("s_setprio 3")
    p("s_waitcnt lgkmcnt(0)")
    srd(p, 16, 4, 5, 131072, off="s30")
    srd(p, 12, 4, 5, 131072 + 2048, off="s31")
    p("s_branch K2_LISSUE")
    p.label("K2_LSPIN")
    p("s_sleep 2")
    p.label("K2_LLOOP")
    p("ds_read_b32 v3, v4 offset:32")
    p("s_waitcnt lgkmcnt(0)")
    p("v_cmp_gt_i32 vcc, s24, v3")
    p("s_cbranch_vccnz K2_LSPIN")
    p.label("K2_LISSUE")
    for u in range(4):
        p("s_mov_b32 m0, s21")
        p("s_add_u32 s21, s21, 4096")
        for j in range(2): p(f"buffer_load_dwordx4 v2, s[16:19], s20 offen offset:{1024*j} lds")
        for j in range(2): p(f"buffer_load_dwordx4 v1, s[12:15], s20 offen offset:{2048+1024*j} lds")
        p("s_add_u32 s20, s20, 2048")
    p("s_cmp_lg_u32 s25, 0")
    p("s_cbranch_scc1 K2_LNB")
    p("s_barrier")
    p.label("K2_LNB")
    p(f"s_cmp_ge_u32 s21, {RING}")
    p("s_cselect_b32 s21, 0, s21")
    p("s_add_u32 s24, s24, 1")
    p("v_mov_b32 v3, s25")
    p("s_add_u32 s25, s25, 1")
    p("s_waitcnt vmcnt(16)")
    p(f"ds_write_b32 {v(CA)}, v3 offset:4")
    p("s_cmp_lt_u32 s25, 16")
    p("s_cbranch_scc1 K2_LLOOP")
    p("v_mov_b32 v3, 16")
    if FUSE3:
        p(f"s_load_dwordx2 s[36:37], s[0:1], {B_WO}")
        tile3()
        p("v_lshrrev_b32 v5, 5, v0")
        p("v_lshlrev_b32 v5, 2, v5")
        p("v_bfe_u32 v6, v0, 2, 2")
        p("v_add_u32 v5, v5, v6")
        p("v_lshlrev_b32 v5, 11, v5")
        p("v_bfe_u32 v6, v0, 4, 1")
        p("v_lshl_add_u32 v5, v6, 6, v5")
        p("v_and_b32 v6, 3, v0")
        p("v_lshl_add_u32 v10, v6, 4, v5")
        for jj in range(1, 4): p(f"v_add_u32 {v(10+jj)}, {jj*(16384-1024)}, v10")
        p("v_and_b32 v6, 31, v0")
        p("v_lshlrev_b32 v6, 2, v6")
        p("s_lshl_b32 s11, s39, 7")
        p(f"s_sub_u32 s18, {2*MB}, s11")
        p("s_lshr_b32 s34, s38, 1")
        p("s_lshl_b32 s34, s34, 2")
        p("s_and_b32 s10, s39, 3")
        p("s_add_u32 s34, s34, s10")
        p(f"s_mul_i32 s34, s34, {FLS}")
        p(f"s_add_u32 s34, s34, {WS_FL + 32*FLS}")
    p("s_waitcnt vmcnt(0) lgkmcnt(0)")
    p(f"ds_write_b32 {v(CA)}, v3 offset:4")
    if FUSE3:
        p("s_add_u32 s16, s36, s11")
        p("s_addc_u32 s17, s37, 0")
        srd(p, 12, 4, 5, WS_SIZE)
        order = [(0, 11, 0), (1, 12, 0), (4, 13, 0), (5, 14, 0), (2, 14, 4), (3, 14, 4), (6, 15, 4), (7, 16, 4)]
        pack = lambda f: sum(f(o) << (4 * i) for i, o in enumerate(order))
        p(f"s_mov_b32 s40, {pack(lambda o: o[0])}")
        p(f"s_mov_b32 s42, {pack(lambda o: o[1] - 8)}")
        p(f"s_mov_b32 s43, {pack(lambda o: o[2])}")
        p("s_mov_b32 s25, 8")
        p("s_mov_b32 s44, 0")
        p("s_mov_b32 s46, 0x40000")
        p.label("K2_WLOOP")
        p("s_and_b32 s24, s42, 15")
        p("s_add_u32 s24, s24, 8")
        p("s_and_b32 s23, s43, 15")
        p("ds_read_b32 v3, v4 offset:32")
        p(f"ds_read_b32 v7, {v(CA)} offset:16")
        p("s_waitcnt lgkmcnt(0)")
        p("v_cmp_gt_i32 vcc, s24, v3")
        p("s_cbranch_vccnz K2_WSKIP")
        p("v_cmp_gt_i32 vcc, s23, v7")
        p("s_cbranch_vccnz K2_WSKIP")
        p("s_and_b32 s10, s40, 15")
        p("s_lshl_b32 s20, s10, 18")
        p("s_xor_b32 s21, s10, 4")
        p("s_lshl_b32 s21, s21, 14")
        p("s_lshl_b32 s10, s10, 2")
        p("s_bitset1_b32 s44, s10")
        for q_ in range(4):
            p("s_mov_b32 m0, s21")
            p("s_add_u32 s21, s21, 4096")
            for jj in range(4): p(f"buffer_load_dwordx4 {v(10+jj)}, s[16:19], s20 offen offset:{1024*jj} lds")
            p("s_add_u32 s20, s20, 65536")
        for r_ in (40, 42, 43): p(f"s_lshr_b32 s{r_}, s{r_}, 4")
        p("s_waitcnt vmcnt(32)")
        p("s_sub_u32 s25, s25, 1")
        p.label("K2_WSKIP")
        p(f"s_cmp_gt_u32 s25, {opt('pstart', 1)}")
        p("s_cbranch_scc1 K2_WNEXT")
        p.label("K2_OPOLL")
        p(f"buffer_load_dword v7, v6, s[12:15], s34 offen{SC}")
        p("s_waitcnt vmcnt(0)")
        p("v_cmp_eq_u32 vcc, 1, v7")
        p("s_lshr_b32 s10, vcc_lo, 1")
        p("s_and_b32 s45, vcc_lo, s10")
        p("s_lshr_b32 s10, s45, 2")
        p("s_and_b32 s45, s45, s10")
        p("s_sub_u32 s46, s46, 1")
        p("s_cselect_b32 s45, -1, s45")
        p("s_and_b32 s45, s45, s44")
        p("v_mov_b32 v3, s45")
        p(f"ds_write_b32 {v(CA)}, v3 offset:28")
        p("s_cmp_eq_u32 s45, 0x11111111")
        p("s_cbranch_scc1 K2_ODONE")
        p.label("K2_WNEXT")
        p(f"s_sleep {opt('oslp', 8)}")
        p("s_cmp_lg_u32 s25, 0")
        p("s_cbranch_scc1 K2_WLOOP")
        p("s_branch K2_OPOLL")
        p.label("K2_ODONE")
    stamp(p, 3); stamp(p, 4, True)
    stamp_flush(p, 1, 5)
    p("s_endpgm")
    p.label("K2_ATT")
    p("s_lshr_b32 s27, s9, 2")
    p("s_lshl_b32 s27, s27, 3")
    p("s_add_u32 s27, s27, s3")
    p("s_sub_u32 s27, s27, 1")
    p("s_lshl_b32 s10, s27, 11")
    p("s_add_u32 s29, s28, s10")
    p("s_waitcnt lgkmcnt(0)")
    srd(p, 12, 4, 5, WS_SIZE)
    for j in range(2): p(f"buffer_load_dwordx4 {v(Q+4*j,4)}, v1, s[12:15], s29 offen offset:{1024*j}")
    for j in range(2): p(f"buffer_load_dwordx4 {v(F1+4*j,4)}, v1, s[12:15], s30 offen offset:{1024*j}")
    p("s_barrier")
    p("v_and_b32 v2, 2, v0")
    p("v_cmp_eq_u32 vcc, 0, v2")
    p("v_mov_b32 v3, 0x3f803f80")
    p("v_mov_b32 v2, 0")
    for i in range(2): p(f"v_cndmask_b32 {v(ONES+i)}, v2, v3, vcc")
    for i in range(2, 4): p(f"v_cndmask_b32 {v(ONES+i)}, v3, v2, vcc")
    p("v_and_b32 v2, 1, v0")
    p("v_mul_u32_u24 v2, 0xaaaa, v2")
    p(f"v_add_u32 {v(IDX)}, 0x4444, v2")
    p(f"v_mov_b32 {v(ONE)}, 1")
    for i in range(4): p(f"v_mov_b32 {v(P0+i)}, 0")
    for i in range(4): p(f"v_mov_b32 {v(L+i)}, 0")
    for i in range(16): p(f"v_mov_b32 {v(O+i)}, 0")
    for i in range(12, 16): p(f"v_mov_b32 {v(F1+i)}, 0")
    for i in range(4): p(f"v_mov_b32 {v(P1+i)}, 0")
    p("s_mov_b32 s22, 16384")
    p("s_mov_b32 s25, 2")
    p("s_waitcnt vmcnt(0)")
    p(mf32(SA, F1, Q, "0"))
    p(mf32(SA, F1+4, Q+4, SA))
    p("s_nop 11")
    p(f"v_max3_f32 v2, {v(SA)}, {v(SA+1)}, {v(SA+2)}")
    for i in range(3, 15, 2): p(f"v_max3_f32 v2, v2, {v(SA+i)}, {v(SA+i+1)}")
    p(f"v_max_f32 v2, v2, {v(SA+15)}")
    p("v_mov_b32 v3, v2")
    p("s_nop 1")
    p("v_permlane32_swap_b32 v2, v3")
    p("v_max_f32 v3, v2, v3")
    for i in range(16): p(f"v_sub_f32 {v(NEGM+i)}, 0, v3")
    for i in range(16): p(f"v_sub_f32 {v(SA+i)}, {v(SA+i)}, v3")
    p("v_mov_b32 v2, v1")
    p("s_lshl_b32 s10, s3, 2")
    p(f"s_add_u32 s10, s10, {K2_CNT + 28}")
    p("v_mov_b32 v3, s10")
    stamp(p, 2)
    p.label("K2_W0")
    p(f"ds_read_b32 {v(CV_)}, {v(CA)} offset:4")
    p("s_waitcnt lgkmcnt(0)")
    p(f"v_readfirstlane_b32 s10, {v(CV_)}")
    p("s_cmp_eq_u32 s10, 0")
    p("s_cbranch_scc1 K2_W0")
    for j in range(4): p(f"ds_read_b128 {v(F0+4*j,4)}, v2 offset:{j*1024}")
    p("s_branch K2_ENTRY")
    ORDER = "w0 S0 r0 e3 O1p r1 e3 LS e2 S1 r2 c4 e2 O0 r3 e3 X e3 c4"
    LS = f"v_smfmac_f32_16x16x64_bf16 {v(L,4)}, {v(ONES,4)}, {v(P0,8)}, {v(IDX)}"
    def step(F, Sc, Sn, Fn, u, first=False, extra=None):
        e = 0; c = 0
        for t in ORDER.split():
            if t == "S0":
                if u is not None: p(mf32(Sn, F, Q, NEGM))
            elif t == "S1":
                if u is not None: p(mf32(Sn, F+4, Q+4, Sn))
            elif t == "O0": p(mf32(O, F+8, P0, O))
            elif t == "O1p": p(mf32(O, Fn+12, P1, O))
            elif t == "X":
                if extra: extra()
            elif t == "LS": p(LS)
            elif t[0] == "e":
                for _ in range(int(t[1:])): p(f"v_exp_f32 {v(Sc+e)}, {v(Sc+e)}"); e += 1
            elif t[0] == "c":
                for _ in range(int(t[1:])): p(f"v_cvt_pk_bf16_f32 {v(P0+c)}, {v(Sc+2*c)}, {v(Sc+2*c+1)}"); c += 1
            elif t[0] == "r":
                if u is not None: j = int(t[1:]); p(f"ds_read_b128 {v(Fn+4*j,4)}, v2 offset:{u*4096+j*1024}")
            elif t[0] == "w":
                if not first: p(f"s_waitcnt lgkmcnt({t[1:]})")
    def arrive():
        p("s_mov_b64 exec, 1")
        p(f"ds_add_u32 v3, {v(ONE)}")
        p("s_mov_b64 exec, -1")
    def peek():
        p(f"ds_read_b32 {v(CV_)}, {v(CA)} offset:4")
        p("v_add_u32 v2, s22, v1")
        p("s_add_u32 s22, s22, 16384")
        p(f"s_cmp_ge_u32 s22, {RING}")
        p("s_cselect_b32 s22, 0, s22")
    LAD = [int(c) for c in OPT.get("lad", "3210")]
    p.label("K2_SPIN")
    p(f"ds_read_b32 {v(CV_)}, {v(CA)} offset:4")
    p.label("K2_LOOP")
    stamp(p, 6)
    p("s_waitcnt lgkmcnt(0)")
    p(f"v_readfirstlane_b32 s10, {v(CV_)}")
    if STAMP:
        p("s_sub_u32 m0, s25, 1")
        p("s_nop 0")
        p("v_writelane_b32 v124, s72, m0")
    p(f"s_setprio {LAD[0]}")
    p("s_cmp_lt_u32 s10, s25")
    p("s_cbranch_scc1 K2_SPIN")
    p("s_add_u32 s25, s25, 1")
    step(F1, SB, SA, F0, 0, first=True, extra=arrive)
    p.label("K2_ENTRY")
    p(f"s_setprio {LAD[1]}")
    step(F0, SA, SB, F1, 1)
    p(f"s_setprio {LAD[2]}")
    step(F1, SB, SA, F0, 2)
    p(f"s_setprio {LAD[3]}")
    step(F0, SA, SB, F1, 3, extra=peek)
    p("s_cmp_lt_u32 s25, 17")
    p("s_cbranch_scc1 K2_LOOP")
    step(F1, SB, SA, F0, None, extra=arrive)
    p("s_nop 1")
    p(mf32(O, F1+12, P1, O))
    p(LS)
    stamp(p, 5)
    p("v_and_b32 v2, 256, v1")
    p("v_cmp_eq_u32 vcc, 0, v2")
    p("s_lshl_b32 s10, s27, 16")
    p("s_lshl_b32 s11, s26, 11")
    p("s_add_u32 s10, s10, s11")
    p(f"s_add_u32 s10, s10, {WS_O}")
    p(f"s_mov_b32 s11, {f32bits(2.0**100)}")
    p("s_nop 4")
    p(f"v_add_f32 {v(L)}, {v(L)}, {v(L+1)}")
    p(f"v_add_f32 {v(L+2)}, {v(L+2)}, {v(L+3)}")
    p(f"v_cndmask_b32 v2, {v(L+2)}, {v(L)}, vcc")
    p(f"v_add_f32 v3, abs({v(O)}), v2")
    for i in range(1, 16): p(f"v_add_f32 v3, abs({v(O+i)}), v3")
    p("v_cmp_ngt_f32 vcc, s11, v3")
    if opt("forcefb"): p("s_branch K2_FALLBACK")
    p("s_cbranch_vccnz K2_FALLBACK")
    p.label("K2_FIN")
    p("v_rcp_f32 v2, v2")
    p("s_nop 0")
    for j in range(2):
        for i in range(8 * j, 8 * j + 8): p(f"v_mul_f32 {v(O+i)}, v2, {v(O+i)}")
        for i in range(4 * j, 4 * j + 4): p(f"v_cvt_pk_bf16_f32 {v(P0+i)}, {v(O+2*i)}, {v(O+2*i+1)}")
        p(f"buffer_store_dwordx4 {v(P0+4*j,4)}, v1, s[12:15], s10 offen offset:{1024*j}{FL[opt('k2sf', 2)]}")
    stamp(p, 3)
    if STAMP: lstamp_flush(p, 1, 124)
    if FUSE3:
        OB, WF, ACC = 76, 8, 40
        p(f"s_load_dwordx2 s[36:37], s[0:1], {D_OUT}")
        p("s_setprio 0")
        p("s_lshr_b32 s10, s9, 2")
        p(f"s_mul_i32 s34, s10, {4*FLS}")
        p(f"s_add_u32 s34, s34, {WS_FL + 32*FLS}")
        p("s_lshl_b32 s10, s26, 2")
        p("s_add_u32 s34, s34, s10")
        p("v_lshrrev_b32 v0, 4, v1")
        p(f"v_mul_u32_u24 v72, {FLS}, v0")
        p("s_waitcnt vmcnt(0)")
        p("s_mov_b64 exec, 1")
        p(f"ds_add_rtn_u32 {v(CV_)}, {v(CA)}, {v(ONE)} offset:24")
        p("s_waitcnt lgkmcnt(0)")
        p(f"v_cmp_eq_u32 vcc, 7, {v(CV_)}")
        p("s_cbranch_vccz K2_NOFLAG")
        p("s_mov_b64 exec, 15")
        p(f"buffer_store_dword {v(ONE)}, v72, s[12:15], s34 offen{SC}")
        p.label("K2_NOFLAG")
        p("s_mov_b64 exec, -1")
        stamp(p, 7)
        tile3()
        p("s_sub_u32 s3, s3, 1")
        p("s_and_b32 s28, s3, 3")
        p("s_lshl_b32 s10, s38, 2")
        p("s_add_u32 s28, s28, s10")
        p("s_lshr_b32 s29, s3, 2")
        p("s_lshl_b32 s10, s28, 16")
        p("s_lshl_b32 s11, s29, 12")
        p("s_add_u32 s10, s10, s11")
        p(f"s_add_u32 s10, s10, {WS_O}")
        srd(p, 16, 4, 5, 65536, off="s10")
        srd(p, 20, 36, 37, 8 * MB)
        p("v_lshrrev_b32 v6, 5, v0")
        p("v_lshlrev_b32 v5, 9, v6")
        p("v_bfe_u32 v7, v0, 2, 2")
        p("v_lshl_add_u32 v5, v7, 6, v5")
        p("v_bfe_u32 v7, v0, 4, 1")
        p("v_lshl_add_u32 v5, v7, 5, v5")
        p("v_and_b32 v7, 3, v0")
        p("v_lshl_add_u32 v5, v7, 3, v5")
        p("s_lshl_b32 s10, s29, 13")
        p("v_add_u32 v5, s10, v5")
        for i in range(ACC, ACC + 32): p(f"v_mov_b32 {v(i)}, 0")
        p("v_and_b32 v73, 31, v0")
        p("v_lshlrev_b32 v73, 12, v73")
        p("v_lshl_add_u32 v73, v6, 4, v73")
        p("s_lshl_b32 s10, s3, 12")
        p("v_add_u32 v74, s10, v1")
        p("v_xor_b32 v75, 16384, v74")
        p("s_lshl_b32 s30, s28, 17")
        p("s_lshl_b32 s11, s39, 7")
        p("s_add_u32 s30, s30, s11")
        p("s_lshl_b32 s11, s29, 6")
        p("s_add_u32 s30, s30, s11")
        p("s_add_u32 s30, s30, 2048")
        p("s_mov_b32 s24, 0")
        p("s_mov_b32 s25, 0")
        def acq(u):
            j = u % 3
            p("s_andn2_b32 s10, s25, s24")
            p(f"s_cbranch_scc1 K2_AQ{u}b")
            p.label(f"K2_AQ{u}a")
            p(f"ds_read_b32 {v(CV_)}, {v(CA)} offset:28")
            p("s_waitcnt lgkmcnt(0)")
            p(f"v_readfirstlane_b32 s25, {v(CV_)}")
            p("s_andn2_b32 s10, s25, s24")
            p(f"s_cbranch_scc1 K2_AQ{u}b")
            p("s_sleep 2")
            p(f"s_branch K2_AQ{u}a")
            p.label(f"K2_AQ{u}b")
            p("s_ff1_i32_b32 s11, s10")
            p("s_bitset1_b32 s24, s11")
            p("s_lshl_b32 s10, s11, 11")
            p("s_xor_b32 s11, s11, 16")
            p(f"s_lshl_b32 s{40+j}, s11, 12")
            for n in range(4): p(f"buffer_load_dwordx4 {v(OB+16*j+4*n,4)}, v1, s[16:19], s10 offen offset:{1024*n}{FL[opt('olf', 2)]}")
        def rdw(u):
            p(f"v_add_u32 v4, s{40+u%3}, v5")
            for ks in range(4):
                for nt in range(2):
                    for h in range(2): p(f"ds_read_b64_tr_b16 {v(WF+8*ks+4*nt+2*h,2)}, v4 offset:{ks*2048+h*1024+nt*256}")
        acq(0)
        stamp(p, 8)
        rdw(0); acq(1); acq(2)
        for u in range(8):
            rest = 4 * min(2, 7 - u)
            for ks in range(4):
                p(f"s_waitcnt vmcnt({rest + 3 - ks}) lgkmcnt({12 - 4*ks})")
                for nt in range(2): p(mf32(ACC+16*nt, WF+8*ks+4*nt, OB+16*(u%3)+4*ks, ACC+16*nt))
            if u < 7: rdw(u + 1)
            if u + 3 < 8: acq(u + 3)
        stamp(p, 9)
        p("s_barrier")
        p("s_cmp_eq_u32 s29, 0")
        p("s_cbranch_scc1 K2_X0")
        p("s_nop 7")
        for j in range(4): p(f"ds_write_b128 v74, {v(ACC+4*j,4)} offset:{1024*j}")
        for i in range(16): p(f"v_mov_b32 {v(ACC+i)}, {v(ACC+16+i)}")
        p("s_branch K2_X1")
        p.label("K2_X0")
        p("s_nop 8")
        for j in range(4): p(f"ds_write_b128 v74, {v(ACC+16+4*j,4)} offset:{1024*j}")
        p.label("K2_X1")
        p("s_waitcnt lgkmcnt(0)")
        p("s_barrier")
        for j in range(4): p(f"ds_read_b128 {v(ACC+16+4*j,4)}, v75 offset:{1024*j}")
        for pr in range(2):
            p(f"s_waitcnt lgkmcnt({2-2*pr})")
            for i in range(8 * pr, 8 * pr + 8): p(f"v_add_f32 {v(ACC+i)}, {v(ACC+i)}, {v(ACC+16+i)}")
            b = WF + 4 * pr
            for i in range(4): p(f"v_cvt_pk_bf16_f32 {v(b+i)}, {v(ACC+8*pr+2*i)}, {v(ACC+8*pr+2*i+1)}")
            p("s_nop 1")
            p(f"v_permlane32_swap_b32 {v(b)}, {v(b+2)}")
            p(f"v_permlane32_swap_b32 {v(b+1)}, {v(b+3)}")
            p(f"buffer_store_dwordx4 {v(b,4)}, v73, s[20:23], s30 offen offset:{32*pr}")
        stamp(p, 10)
    stamp(p, 4, True)
    stamp_flush(p, 1, 11)
    p.label("K2_END")
    p("s_endpgm")
    p.label("K2_FALLBACK")
    M, AL = NEGM, NEGM + 1
    for i in range(16): p(f"v_mov_b32 {v(O+i)}, 0")
    p("v_mov_b32 v2, 0")
    p(f"v_mov_b32 {v(M)}, 0xff7fffff")
    p("s_mov_b32 s25, 64")
    p.label("K2_FBL")
    for j in range(2): p(f"buffer_load_dwordx4 {v(F0+4*j,4)}, v1, s[12:15], s30 offen offset:{1024*j}")
    for j in range(2): p(f"buffer_load_dwordx4 {v(F0+8+4*j,4)}, v1, s[12:15], s31 offen offset:{1024*j}")
    p("s_add_u32 s30, s30, 2048")
    p("s_add_u32 s31, s31, 2048")
    p("s_waitcnt vmcnt(0)")
    p(mf32(SA, F0, Q, "0"))
    p(mf32(SA, F0+4, Q+4, SA))
    p("s_nop 15")
    p(f"v_max3_f32 v3, {v(SA)}, {v(SA+1)}, {v(M)}")
    for i in range(2, 16, 2): p(f"v_max3_f32 v3, v3, {v(SA+i)}, {v(SA+i+1)}")
    p(f"v_mov_b32 {v(SB)}, v3")
    p("s_nop 1")
    p(f"v_permlane32_swap_b32 v3, {v(SB)}")
    p(f"v_max_f32 v3, v3, {v(SB)}")
    p(f"v_sub_f32 {v(AL)}, {v(M)}, v3")
    p(f"v_exp_f32 {v(AL)}, {v(AL)}")
    p(f"v_mov_b32 {v(M)}, v3")
    for i in range(16): p(f"v_sub_f32 {v(SA+i)}, {v(SA+i)}, v3")
    for i in range(16): p(f"v_exp_f32 {v(SA+i)}, {v(SA+i)}")
    p(f"v_mul_f32 v2, v2, {v(AL)}")
    for i in range(16): p(f"v_mul_f32 {v(O+i)}, {v(O+i)}, {v(AL)}")
    for i in range(16): p(f"v_add_f32 v2, v2, {v(SA+i)}")
    for i in range(8): p(f"v_cvt_pk_bf16_f32 {v(P0+i)}, {v(SA+2*i)}, {v(SA+2*i+1)}")
    p("s_nop 1")
    p(mf32(O, F0+8, P0, O))
    p(mf32(O, F0+12, P1, O))
    p("s_nop 15")
    p("s_sub_u32 s25, s25, 1")
    p("s_cmp_lg_u32 s25, 0")
    p("s_cbranch_scc1 K2_FBL")
    p("v_mov_b32 v3, v2")
    p("s_nop 1")
    p("v_permlane32_swap_b32 v2, v3")
    p("v_add_f32 v2, v2, v3")
    p("s_branch K2_FIN")
    p.label("K2_HELPER")
    emit_partA(p, "K2")
    return 128, 832, K2_CNT + 256

def emit_k3(p):
    kernel_head(p, "k3_kernel")
    p("s_cmp_ge_u32 s2, 256")
    p("s_cbranch_scc1 K3_END")
    p(f"s_load_dwordx4 s[4:7], s[0:1], {B_WO}")
    p(f"s_load_dwordx2 s[30:31], s[0:1], {D_WS}")
    code_prefetch(p, "K3_PC", "K3_CODE_END", 1, 24)
    p("v_lshrrev_b32 v1, 6, v0")
    p("v_and_b32 v0, 63, v0")
    p("s_and_b32 s8, s2, 7")
    p("v_readfirstlane_b32 s3, v1")
    stamp(p, 0); stamp(p, 1, True)
    p("s_lshr_b32 s9, s2, 3")
    if STAMP: p("s_mov_b32 s59, s3")
    p("s_and_b32 s26, s8, 3")
    p("s_lshl_b32 s26, s26, 2")
    p("s_and_b32 s10, s9, 3")
    p("s_add_u32 s26, s26, s10")
    p("s_lshr_b32 s27, s8, 2")
    p("s_lshl_b32 s27, s27, 3")
    p("s_lshr_b32 s11, s9, 2")
    p("s_add_u32 s27, s27, s11")
    if opt("k3rot", 0):
        p("s_lshr_b32 s11, s11, 1")
        p("s_add_u32 s24, s10, s11")
        p("s_and_b32 s24, s24, 3")
    else:
        p("s_mov_b32 s24, 0")
    p("s_cmp_ge_u32 s3, 4")
    p("s_cbranch_scc1 K3_NOTLOADER")
    p("v_lshrrev_b32 v2, 5, v0")
    p("v_lshlrev_b32 v2, 2, v2")
    p("v_bfe_u32 v4, v0, 2, 2")
    p("s_lshl_b32 s10, s3, 5")
    p("v_add3_u32 v2, v2, v4, s10")
    p("v_lshlrev_b32 v2, 11, v2")
    p("v_bfe_u32 v3, v0, 4, 1")
    p("v_lshl_add_u32 v2, v3, 6, v2")
    p("v_and_b32 v4, 3, v0")
    p("v_lshl_add_u32 v10, v4, 4, v2")
    for jj in range(1, 4): p(f"v_add_u32 {v(10+jj)}, {jj*(16384-1024)}, v10")
    p("s_lshl_b32 s23, s3, 12")
    p("s_lshl_b32 s20, s24, 19")
    p("s_mov_b32 s25, 0")
    p("s_lshl_b32 s11, s27, 7")
    p(f"s_sub_u32 s18, {2*MB}, s11")
    p("s_mov_b32 s19, 0x20000")
    p("s_waitcnt lgkmcnt(0)")
    p("s_add_u32 s16, s4, s11")
    p("s_addc_u32 s17, s5, 0")
    LA = opt("k3la", 2)
    p("s_branch K3_LISSUE")
    p.label("K3_LLOOP")
    p(f"s_cmp_lt_u32 s25, {LA}")
    p("s_cbranch_scc1 K3_LISSUE")
    p(f"s_waitcnt vmcnt({4*(LA-1)})")
    p("s_barrier")
    p.label("K3_LISSUE")
    p("s_mov_b32 m0, s23")
    p("s_add_u32 s23, s23, 16384")
    for jj in range(4): p(f"buffer_load_dwordx4 {v(10+jj)}, s[16:19], s20 offen offset:{1024*jj}{FL[opt('k3wf')]} lds")
    p("s_add_u32 s20, s20, 262144")
    p(f"s_and_b32 s20, s20, {2*MB-1}")
    p("s_add_u32 s25, s25, 1")
    p("s_cmp_lt_u32 s25, 8")
    p("s_cbranch_scc1 K3_LLOOP")
    for n in range(LA - 1, -1, -1):
        p(f"s_waitcnt vmcnt({4*n})")
        p("s_barrier")
    stamp(p, 3); stamp(p, 4, True)
    stamp_flush(p, 2, 5)
    p.label("K3_END")
    p("s_endpgm")
    p.label("K3_NOTLOADER")
    dbg_stamp(p, 2, 10, "c0")
    OB, WF, ACC = 64, 8, 32
    p("s_sub_u32 s3, s3, 4")
    p("s_lshl_b32 s28, s26, 2")
    p("s_add_u32 s28, s28, s3")
    p("s_lshl_b32 s10, s28, 16")
    p(f"s_add_u32 s10, s10, {WS_O}")
    p("v_lshlrev_b32 v1, 4, v0")
    for i in range(1, 4): p(f"v_add_u32 {v(1+i)}, {4096*i}, v1")
    p("s_lshl_b32 s20, s24, 14")
    p("s_waitcnt lgkmcnt(0)")
    srd(p, 12, 30, 31, 65536, off="s10")
    def ldo(n, so): return f"buffer_load_dwordx4 {v(OB+4*n,4)}, {v(1+(n>>2))}, s[12:15], {so} offen offset:{1024*(n&3)}{FL[opt('k3of')]}"
    for n in range(15): p(ldo(n, "s20"))
    p("v_lshrrev_b32 v6, 5, v0")
    p("v_lshlrev_b32 v5, 9, v6")
    p("v_bfe_u32 v7, v0, 2, 2")
    p("v_lshl_add_u32 v5, v7, 6, v5")
    p("v_bfe_u32 v7, v0, 4, 1")
    p("v_lshl_add_u32 v5, v7, 5, v5")
    p("v_and_b32 v7, 3, v0")
    p("v_lshl_add_u32 v5, v7, 3, v5")
    for i in range(WF + 8, WF + 16): p(f"v_mov_b32 {v(i)}, 0")
    for i in range(OB + 60, OB + 64): p(f"v_mov_b32 {v(i)}, 0")
    for i in range(ACC, ACC + 32): p(f"v_mov_b32 {v(i)}, 0")
    p("s_add_u32 s21, s20, 16384")
    p("s_and_b32 s21, s21, 0xffff")
    p("s_mov_b32 s25, 4")
    stamp(p, 2)
    def rdw(b, ks): return [f"ds_read_b64_tr_b16 {v(WF+8*b+4*nt+2*h,2)}, v5 offset:{ks*2048+h*1024+nt*256}" for nt in range(2) for h in range(2)]
    def mm(b, n): return [mf32(ACC+16*nt, WF+8*b+4*nt, OB+4*n, ACC+16*nt) for nt in range(2)]
    p.label("K3_CLOOP")
    for ks in range(16):
        b = ks & 1; n = (ks - 1) & 15
        if ks % 8 == 0: p("s_barrier")
        R = rdw(b, ks); M = mm(b ^ 1, n)
        p("s_waitcnt vmcnt(15) lgkmcnt(2)")
        p(M[0]); p(R[0]); p(R[1])
        p("s_waitcnt lgkmcnt(2)")
        p(M[1]); p(R[2]); p(R[3])
        p(ldo(n, "s20" if n == 15 else "s21"))
    p("v_add_u32 v5, 32768, v5")
    p("s_mov_b32 s20, s21")
    p("s_add_u32 s21, s21, 16384")
    p("s_and_b32 s21, s21, 0xffff")
    p("s_sub_u32 s25, s25, 1")
    p("s_cmp_eq_u32 s25, 1")
    p("s_cselect_b32 s21, 0x10000, s21")
    p("s_cmp_lg_u32 s25, 0")
    p("s_cbranch_scc1 K3_CLOOP")
    p("s_waitcnt vmcnt(15) lgkmcnt(0)")
    for m in mm(1, 15): p(m)
    stamp(p, 5)
    srd(p, 16, 6, 7, 8 * MB)
    p("v_and_b32 v2, 31, v0")
    p("v_lshlrev_b32 v2, 12, v2")
    p("v_lshl_add_u32 v2, v6, 4, v2")
    p("s_lshl_b32 s10, s28, 17")
    p("s_lshl_b32 s11, s27, 7")
    p("s_add_u32 s10, s10, s11")
    p("s_add_u32 s10, s10, 2048")
    p("s_nop 1")
    for nt in range(2):
        for i in range(8): p(f"v_cvt_pk_bf16_f32 {v(WF+8*nt+i)}, {v(ACC+16*nt+2*i)}, {v(ACC+16*nt+2*i+1)}")
    p("s_nop 0")
    for nt in range(2):
        for pr in range(2):
            b = WF + 8 * nt + 4 * pr
            p(f"v_permlane32_swap_b32 {v(b)}, {v(b+2)}")
            p(f"v_permlane32_swap_b32 {v(b+1)}, {v(b+3)}")
            p(f"buffer_store_dwordx4 {v(b,4)}, v2, s[16:19], s10 offen offset:{64*nt+32*pr}{FL[opt('k3sf')]}")
    stamp(p, 3); stamp(p, 4, True)
    stamp_flush(p, 2, 6)
    dbg_stamp(p, 2, 11, "c1")
    p("s_endpgm")
    return 128, 512, 131072

def build(path):
    p = Prog()
    descs = []; launches = []
    for name, fn in (("k1_kernel", emit_k1), ("k2_kernel", emit_k2), ("k3_kernel", emit_k3))[:2 if FUSE3 else 3]:
        vg, blk, lds = fn(p)
        p.label(name[:2].upper() + "_CODE_END")
        descs.append(kernel_desc(name, vg)); launches.append((name, 256, blk, lds))
    hdr = open("concat_heads__ssm_conv_h3__mha_block__prompt.s.ref").read().split("\n")
    hdr = [l for l in hdr if l.startswith(";") and "@launch" not in l and "Override" not in l and "grid=ceil" not in l]
    out = "\n".join(hdr) + "\n"
    for (k, g, b, l) in launches: out += f"; @launch kernel={k} grid=({g},1,1) block=({b},1,1) lds={l}\n"
    out += '.amdgcn_target "amdgcn-amd-amdhsa--gfx950"\n.text\n'
    body = p.text()
    nbad = check(body)
    out += body
    out += '.section .rodata,"a"\n'
    for d in descs: out += ".p2align 6\n" + d
    open(path, "w").write(out)
    return nbad

if __name__ == "__main__":
    nb = build(sys.argv[1] if len(sys.argv) > 1 else "out.s")
    print("hazards:", nb)
```

```python
import sys, os, struct, math
sys.path.insert(0, os.path.dirname(os.path.abspath(__file__)))
from asmlib import Prog, v, s, check

MB = 1 << 20
WS_KV, WS_QX, WS_O, WS_XR, WS_Y, WS_FL = 0, 8 * MB, 12 * MB, 16 * MB, 21 * MB, 25 * MB
XRS = 4224
WS_SIZE = 32 * MB
FLS = 4352
FL_A1, FL_A2, FL_KV, FL_O = [WS_FL + 16 * i * FLS for i in range(4)]
A_Q, A_K, A_V, A_SK, A_SSMK, A_D, B_X, B_WQKV, B_WO, D_OUT, D_DBG, D_WS = [8 * i for i in range(12)]
def f32bits(x): return struct.unpack("<I", struct.pack("<f", x))[0]
QSCALE = f32bits((32 ** -0.5) * math.log2(math.e))
STAMP = os.environ.get("STAMP", "0") == "1"
OPT = dict(kv.split("=") for kv in os.environ.get("OPT", "").split(",") if kv)
def opt(k, d=0): return int(OPT.get(k, d))
WS_ST = 28 * MB
SC = " sc1"
NAME = "concat_heads__ssm_conv_h3__mha_block__prompt_kernel"

WREG = 3 * 16384
RING = 6 * 16384
OWNC = 122880
QHO = OWNC + 16384
CV_BASE = 98304
CV_STRIDE = 15616
CV_C1 = 5120 + 64
CV_H = 2 * 5120 + 128
CNT = CV_BASE + 4 * CV_STRIDE
C_LAND, C_CONS, C_PROG, C_KVL, C_OWN, C_KVST, C_A1, C_A2, C_OARR, C_OMASK, C_QRDY = 0, 16, 32, 64, 68, 72, 76, 84, 92, 96, 100
LDS_BYTES = CNT + 256

def mf32(d, a, b, c): return f"v_mfma_f32_32x32x16_bf16 {v(d,16)}, {v(a,4)}, {v(b,4)}, {v(c,16) if isinstance(c,int) else c}"
def mf16(d, a, b, c): return f"v_mfma_f32_16x16x32_bf16 {v(d,4)}, {v(a,4)}, {v(b,4)}, {v(c,4) if isinstance(c,int) else c}"

def srd(p, d, lo, hi, nrec, off=None):
    if off is None:
        if lo != d: p(f"s_mov_b32 {s(d)}, {s(lo)}")
        if hi != d + 1: p(f"s_mov_b32 {s(d+1)}, {s(hi)}")
    else:
        p(f"s_add_u32 {s(d)}, {s(lo)}, {off}")
        p(f"s_addc_u32 {s(d+1)}, {s(hi)}, 0")
    p(f"s_mov_b32 {s(d+2)}, {nrec}")
    p(f"s_mov_b32 {s(d+3)}, 0x20000")

def stamp(p, i, real=True):
    if STAMP and not (opt("p1st") and i in (4, 5, 6, 7, 9, 10, 11)): p(f"{'s_memrealtime' if real else 's_memtime'} s[{60+2*i}:{61+2*i}]")
def stamp_flush(p, n=14):
    if not STAMP: return
    p("s_memtime s[90:91]")
    p("s_lshl_b32 s58, s2, 4")
    p("s_add_u32 s58, s58, s59")
    p("s_lshl_b32 s58, s58, 6")
    p(f"s_add_u32 s58, s58, {WS_ST}")
    p("s_waitcnt lgkmcnt(0)")
    p("v_mov_b32 v2, s58")
    for i in range(16):
        p(f"v_mov_b32 v3, s{60+2*i}")
        p(f"global_store_dword v2, v3, s[98:99] offset:{4*i}")

def lane_id(p, d):
    p(f"v_mbcnt_lo_u32_b32 {v(d)}, -1, 0")
    p(f"v_mbcnt_hi_u32_b32 {v(d)}, -1, {v(d)}")

def bail(p):
    p("s_sub_u32 s100, s100, 1")
    p("s_cbranch_scc1 L_END")

def lds_wait_ge(p, lab, vaddr, off, need, vt, sleep=2):
    p(f"s_branch {lab}c")
    p.label(f"{lab}s")
    bail(p)
    p(f"s_sleep {sleep}")
    p.label(f"{lab}c")
    p(f"ds_read_b32 {v(vt)}, {v(vaddr)} offset:{off}")
    p("s_waitcnt lgkmcnt(0)")
    p(f"v_cmp_gt_i32 vcc, {need}, {v(vt)}")
    p(f"s_cbranch_vccnz {lab}s")

def flag_publish(p, vt, voff, soff):
    p("s_memrealtime s[92:93]")
    p("s_waitcnt lgkmcnt(0)")
    p(f"v_mov_b32 {v(vt)}, s92")
    p(f"v_mov_b32 {v(vt+1)}, s93")
    p(f"buffer_store_dwordx2 {v(vt,2)}, {v(voff)}, s[12:15], {soff} offen{SC}")

def flag_test(p, vt):
    p(f"v_cmp_lt_u64 vcc, s[96:97], {v(vt,2)}")
    p(f"v_cmp_gt_u64 s[92:93], s[94:95], {v(vt,2)}")
    p("s_and_b64 vcc, vcc, s[92:93]")

def pf_addr(p, vx, vw, which=(0, 1)):
    if 0 in which:
        p("s_and_b32 s29, s27, 3")
        p("s_lshl_b32 s29, s29, 5")
        p("s_lshl_b32 s10, s26, 7")
        p("s_add_u32 s29, s29, s10")
        p("v_lshrrev_b32 v1, 1, v0")
        p("v_add_u32 v1, s29, v1")
        p("v_lshlrev_b32 v1, 11, v1")
        p("v_and_b32 v2, 1, v0")
        p(f"v_lshl_add_u32 {v(vx)}, v2, 7, v1")
    if 1 in which:
        p("v_lshrrev_b32 v2, 5, v0")
        p("v_lshlrev_b32 v2, 6, v2")
        p("v_bfe_u32 v3, v0, 2, 3")
        p("s_and_b32 s29, s26, 7")
        p("s_lshl_b32 s29, s29, 3")
        p("v_add3_u32 v2, v2, v3, s29")
        p("v_mul_u32_u24 v2, 6144, v2")
        p("v_and_b32 v3, 3, v0")
        p("v_min_u32 v3, 2, v3")
        p("v_lshl_add_u32 v2, v3, 11, v2")
        p("s_lshl_b32 s29, s27, 7")
        p(f"v_add_u32 {v(vw)}, s29, v2")

def tile3(p):
    p("s_and_b32 s38, s8, 3")
    p("s_lshl_b32 s38, s38, 2")
    p("s_and_b32 s10, s9, 3")
    p("s_add_u32 s38, s38, s10")
    p("s_lshr_b32 s39, s8, 2")
    p("s_lshl_b32 s39, s39, 3")
    p("s_lshr_b32 s10, s9, 2")
    p("s_add_u32 s39, s39, s10")

WTAB = 0x10543876

def emit(p):
    p(f".globl {NAME}")
    p(".p2align 8")
    p(f".type {NAME},@function")
    p.label(NAME)
    p("s_cmp_ge_u32 s2, 256")
    p("s_cbranch_scc1 L_END")
    p(f"s_load_dwordx4 s[4:7], s[0:1], {B_X}")
    p(f"s_load_dwordx2 s[98:99], s[0:1], {D_WS}")
    p("s_memrealtime s[96:97]")
    p("v_lshrrev_b32 v1, 6, v0")
    p("v_and_b32 v0, 63, v0")
    p("s_and_b32 s8, s2, 7")
    p("v_readfirstlane_b32 s3, v1")
    stamp(p, 0); stamp(p, 14, False)
    p("s_lshr_b32 s9, s2, 3")
    p("s_mov_b32 s100, 0x100000")
    if STAMP: p("s_mov_b32 s59, s3")
    p("s_and_b32 s26, s8, 1")
    p("s_lshl_b32 s26, s26, 3")
    p("s_and_b32 s10, s9, 7")
    p("s_add_u32 s26, s26, s10")
    p("s_lshr_b32 s27, s8, 1")
    p("s_lshl_b32 s27, s27, 2")
    p("s_lshr_b32 s10, s9, 3")
    p("s_add_u32 s27, s27, s10")
    p("s_cmp_ge_u32 s3, 4")
    p("s_cbranch_scc1 L_NOTLOADER")
    p("s_and_b32 s35, s3, 1")
    p("s_bitcmp1_b32 s3, 1")
    p("s_cbranch_scc1 P1_PFW")
    pf_addr(p, 16, 16, (0,))
    p("s_mov_b32 s36, 256")
    p("s_waitcnt lgkmcnt(0)")
    srd(p, 40, 4, 5, 4 * MB)
    p("s_branch P1_PFGO")
    p.label("P1_PFW")
    pf_addr(p, 16, 16, (1,))
    p(f"s_mov_b32 s36, {128*6144}")
    p("s_waitcnt lgkmcnt(0)")
    srd(p, 40, 6, 7, 6 * MB)
    p.label("P1_PFGO")
    p("s_mul_i32 s35, s35, s36")
    p("buffer_load_dword v17, v16, s[40:43], s35 offen")
    p("s_lshl_b32 s35, s36, 1")
    p("s_and_b32 s34, s3, 2")
    p("s_and_b32 s25, s3, 1")
    p("v_lshrrev_b32 v2, 3, v0")
    p("v_lshlrev_b32 v2, 11, v2")
    p("v_lshrrev_b32 v3, 4, v0")
    p("v_and_b32 v4, 7, v0")
    p("v_xor_b32 v4, v4, v3")
    p("v_lshl_add_u32 v2, v4, 4, v2")
    p("s_lshl_b32 s10, s34, 16")
    p("v_add_u32 v10, s10, v2")
    p("v_xor_b32 v11, 64, v10")
    p(f"v_add_u32 v12, {32768-2048}, v10")
    p(f"v_add_u32 v13, {49152-3072}, v11")
    p(f"v_add_u32 v11, {16384-1024}, v11")
    p("v_lshrrev_b32 v2, 5, v0")
    p("v_lshlrev_b32 v2, 2, v2")
    p("v_bfe_u32 v4, v0, 2, 2")
    p("s_lshl_b32 s10, s34, 4")
    p("v_add3_u32 v2, v2, v4, s10")
    p("v_mul_u32_u24 v2, 6144, v2")
    p("v_and_b32 v3, 1, v3")
    p("v_lshl_add_u32 v2, v3, 6, v2")
    p("v_and_b32 v4, 3, v0")
    p("v_lshl_add_u32 v14, v4, 4, v2")
    p("v_add_u32 v15, 48128, v14")
    p("v_lshlrev_b32 v4, 2, v4")
    p(f"v_add_u32 v18, {CNT}, v4")
    p("s_lshl_b32 s23, s34, 12")
    p("s_lshl_b32 s10, s25, 14")
    p("s_add_u32 s23, s23, s10")
    p("s_mul_i32 s24, s34, 6144")
    p("s_mul_i32 s10, s25, 24576")
    p("s_add_u32 s24, s24, s10")
    p(f"s_add_u32 s24, s24, {WREG}")
    p("s_lshl_b32 s20, s25, 7")
    p("s_mul_i32 s21, s25, 393216")
    p("s_lshl_b32 s10, s26, 18")
    p("s_lshl_b32 s11, s27, 7")
    p(f"s_sub_u32 s18, {1024*6144}, s11")
    p("s_mov_b32 s14, 262144")
    p("s_mov_b32 s15, 0x20000")
    p("s_mov_b32 s19, 0x20000")
    p("s_add_u32 s12, s4, s10")
    p("s_addc_u32 s13, s5, 0")
    p("s_add_u32 s16, s6, s11")
    p("s_addc_u32 s17, s7, 0")
    p("s_lshl_b64 s[32:33], 1, s3")
    p("s_cmp_eq_u32 s25, 0")
    p("s_cbranch_scc1 P1_LISSUE")
    p("s_barrier")
    p("v_mov_b32 v19, 1")
    p("s_mov_b64 exec, s[32:33]")
    p(f"ds_write_b32 v18, v19 offset:{C_LAND}")
    p("s_mov_b64 exec, -1")
    p("s_branch P1_LISSUE")
    p.label("P1_LLOOP")
    if STAMP and opt("p1st"):
        p("s_lshr_b32 s58, s25, 1")
        p("s_cmp_lg_u32 s58, 4")
        p("s_cbranch_scc1 P1_LSa")
        p("s_memrealtime s[68:69]")
        p.label("P1_LSa")
    p("s_sub_u32 s28, s25, 1")
    lds_wait_ge(p, "P1_LW", 18, C_CONS, "s28", 19, sleep=opt("lslp", 1))
    p.label("P1_LISSUE")
    if STAMP and opt("p1st"):
        p("s_lshr_b32 s58, s25, 1")
        p("s_cmp_lg_u32 s58, 4")
        p("s_cbranch_scc1 P1_LSb")
        p("s_memrealtime s[70:71]")
        p.label("P1_LSb")
    for q_ in range(2):
        p(f"s_add_u32 m0, s23, {4096*q_}")
        p(f"s_add_u32 s10, s20, {65536*q_}")
        for jj in range(4): p(f"buffer_load_dwordx4 {v(10+jj)}, s[12:15], s10 offen offset:{1024*jj} lds")
    for q_ in range(2):
        p(f"s_add_u32 m0, s24, {6144*q_}")
        p(f"s_add_u32 s10, s21, {16*6144*q_}")
        for ii in range(4): p(f"buffer_load_dwordx4 {v(14+(ii&1))}, s[16:19], s10 offen offset:{1024*ii} lds")
        p(f"s_add_u32 m0, s24, {6144*q_+4096}")
        p(f"s_add_u32 s10, s21, {16*6144*q_+4096}")
        for ii in range(2): p(f"buffer_load_dwordx4 {v(14+ii)}, s[16:19], s10 offen offset:{1024*ii} lds")
    if STAMP and opt("p1st"):
        p("s_lshr_b32 s58, s25, 1")
        p("s_cmp_lg_u32 s58, 4")
        p("s_cbranch_scc1 P1_LSc")
        p("s_memrealtime s[72:73]")
        p.label("P1_LSc")
    p("s_cmp_lg_u32 s25, 0")
    p("s_cbranch_scc1 P1_LNB")
    p("s_barrier")
    p.label("P1_LNB")
    p("s_add_u32 s20, s20, 256")
    p("s_add_u32 s21, s21, 786432")
    p("s_add_u32 s23, s23, 32768")
    p("s_add_u32 s24, s24, 49152")
    p(f"s_cmp_ge_u32 s23, {WREG}")
    p(f"s_cselect_b32 s10, {3*16384}, 0")
    p(f"s_cselect_b32 s11, {3*24576}, 0")
    p("s_sub_u32 s23, s23, s10")
    p("s_sub_u32 s24, s24, s11")
    PFS = opt("pfs", 2)
    p(f"s_sub_u32 s10, s25, {PFS}")
    p("s_bitcmp1_b32 s10, 0")
    p("s_cselect_b32 s10, 99, s10")
    p("s_cmp_lt_u32 s10, 12")
    p("s_cbranch_scc0 P1_NOPF")
    p("buffer_load_dword v17, v16, s[40:43], s35 offen")
    p("s_add_u32 s35, s35, s36")
    p("s_waitcnt vmcnt(1)")
    p("s_branch P1_PUB")
    p.label("P1_NOPF")
    p("s_waitcnt vmcnt(0)")
    p.label("P1_PUB")
    p("s_add_u32 s25, s25, 2")
    p("v_mov_b32 v19, s25")
    p("s_mov_b64 exec, s[32:33]")
    p(f"ds_write_b32 v18, v19 offset:{C_LAND}")
    p("s_mov_b64 exec, -1")
    if STAMP and opt("p1st"):
        p("s_lshr_b32 s58, s25, 1")
        p("s_cmp_lg_u32 s58, 5")
        p("s_cbranch_scc1 P1_LSd")
        p("s_memrealtime s[74:75]")
        p.label("P1_LSd")
    p("s_cmp_lt_u32 s25, 16")
    p("s_cbranch_scc1 P1_LLOOP")
    stamp(p, 1)
    Q, ONES, L, P0, P1, F0, F1, NEGM, SA, SB, O = 4, 12, 16, 20, 24, 28, 44, 60, 76, 92, 108
    VN, VL, VC, VP, IDX, CA, CV_, ONE = 0, 1, 2, 3, 124, 125, 126, 127
    p("s_lshl_b32 s28, s26, 2")
    p("s_add_u32 s28, s28, s3")
    p("v_lshlrev_b32 v1, 4, v0")
    p(f"v_mov_b32 {v(CA)}, {CNT}")
    srd(p, 12, 98, 99, WS_SIZE)
    p("s_lshl_b32 s10, s3, 11")
    p(f"s_add_u32 s10, s10, {QHO}")
    p(f"v_add_u32 {v(SB)}, s10, v1")
    p("s_branch A_INIT")

    p.label("L_NOTLOADER")
    p("s_cmp_ge_u32 s3, 8")
    p("s_cbranch_scc1 L_HELPERS")
    ACC, XF, WF_, XC, WC, SY, VT = 32, 0, 16, 28, 29, 30, 31
    p("s_sub_u32 s31, s3, 4")
    p("s_lshr_b32 s28, s31, 1")
    p("s_and_b32 s29, s31, 1")
    p("v_and_b32 v1, 31, v0")
    p("v_lshrrev_b32 v2, 5, v0")
    p("v_bfe_u32 v3, v0, 1, 3")
    p("v_xor_b32 v3, v3, v2")
    p("v_lshlrev_b32 v3, 4, v3")
    p("v_lshl_add_u32 v3, v1, 7, v3")
    p("s_lshl_b32 s10, s28, 13")
    p(f"v_add_u32 {v(XC)}, s10, v3")
    p("v_lshlrev_b32 v2, 10, v2")
    p("v_bfe_u32 v3, v0, 2, 2")
    p("v_lshl_add_u32 v2, v3, 6, v2")
    p("v_bfe_u32 v3, v0, 4, 1")
    p("v_lshl_add_u32 v2, v3, 5, v2")
    p("v_and_b32 v3, 3, v0")
    p("v_lshl_add_u32 v2, v3, 3, v2")
    p("s_lshl_b32 s10, s29, 8")
    p(f"s_add_u32 s10, s10, {WREG}")
    p(f"v_add_u32 {v(WC)}, s10, v2")
    p("v_lshlrev_b32 v3, 2, v3")
    p(f"v_add_u32 {v(SY)}, {CNT}, v3")
    p("v_lshlrev_b32 v3, 2, v0")
    p(f"v_add_u32 v3, {CNT}, v3")
    p(f"v_mov_b32 {v(VT)}, 0")
    p(f"ds_write_b32 v3, {v(VT)}")
    p("s_lshl_b64 s[32:33], 1, s31")
    p("s_waitcnt lgkmcnt(0)")
    p("s_barrier")
    for i in range(8, 28): p(f"v_mov_b32 {v(i)}, 0")
    for i in range(ACC, ACC + 96): p(f"v_mov_b32 {v(i)}, 0")
    p("s_mov_b32 s25, 0")
    p("s_mov_b32 s24, 0")
    p(f"s_setprio {opt('cpprio', 3)}")
    def mfmas(b):
        L_ = []
        for ty in range(3):
            for rt in range(2):
                d = ACC + (rt * 3 + ty) * 16
                x, w = XF + 8 * b + 4 * rt, WF_ + 4 * ty
                L_.append(mf32(d, w, x, d) if ty < 2 else mf32(d, x, w, d))
        return L_
    def rx(b, rt): return f"ds_read_b128 {v(XF+8*b+4*rt,4)}, {v(XC)} offset:{rt*4096}"
    def rw(ks, ty): return [f"ds_read_b64_tr_b16 {v(WF_+4*ty+2*h,2)}, {v(WC)} offset:{ks*6144+ty*2048+h*512}" for h in range(2)]
    def cons():
        p("s_mov_b64 exec, s[32:33]")
        p(f"ds_inc_u32 {v(SY)}, {v(SY)} offset:{C_CONS}")
        p("s_mov_b64 exec, -1")
    w = lambda n: p(f"s_waitcnt lgkmcnt({n})")
    p("s_branch P1_CLOOP")
    p.label("P1_CSPIN")
    bail(p)
    p(f"ds_read_b32 {v(VT)}, {v(SY)} offset:{C_LAND}")
    p("s_waitcnt lgkmcnt(0)")
    p("s_branch P1_CCHK")
    p.label("P1_CLOOP")
    for ks in range(4):
        b = ks & 1
        M = mfmas(b ^ 1)
        w(4); p(M[0])
        if ks == 0:
            p(M[1])
            w(0)
            cons()
            p.label("P1_CCHK")
            p(f"v_cmp_ge_u32 vcc, s25, {v(VT)}")
            p("s_cbranch_vccnz P1_CSPIN")
            for r_ in rw(ks, 0): p(r_)
            p(M[2])
            p(rx(b, 0)); p(rx(b, 1))
            p(f"v_xor_b32 {v(XC)}, 32, {v(XC)}")
        else:
            p(rx(b, 0)); p(rx(b, 1))
            p(f"v_xor_b32 {v(XC)}, {32 if ks == 2 else 96}, {v(XC)}")
            p(M[1])
            for r_ in rw(ks, 0): p(r_)
        if ks == 3: p(f"v_add_u32 {v(XC)}, s22, {v(XC)}")
        if ks == 1:
            p("s_add_u32 s24, s24, 1")
            p("s_cmp_eq_u32 s24, 3")
            p("s_cselect_b32 s23, -2, 1")
            p("s_cselect_b32 s24, 0, s24")
            p("s_mul_i32 s22, s23, 16384")
            p("s_mul_i32 s23, s23, 24576")
        if ks: w(6); p(M[2])
        p(M[3])
        for r_ in rw(ks, 1): p(r_)
        if ks: w(6)
        p(M[4])
        if ks == 3:
            p(f"ds_read_b32 {v(VT)}, {v(SY)} offset:{C_LAND}")
            p("s_add_u32 s25, s25, 1")
            p("s_cmp_lt_u32 s25, 16")
        p(M[5])
        for r_ in rw(ks, 2): p(r_)
    p(f"v_add_u32 {v(WC)}, s23, {v(WC)}")
    if STAMP and opt("p1st"):
        for (n_, i_) in ((5, 4), (6, 5), (7, 6), (8, 7), (9, 9), (10, 10), (11, 11)):
            p(f"s_cmp_lg_u32 s25, {n_}")
            p(f"s_cbranch_scc1 P1_ST{n_}")
            p(f"s_memrealtime s[{60+2*i_}:{61+2*i_}]")
            p.label(f"P1_ST{n_}")
        p("s_cmp_lt_u32 s25, 16")
    p("s_cbranch_scc1 P1_CLOOP")
    M = mfmas(1)
    w(4); p(M[0]); p(M[1]); w(2); p(M[2]); p(M[3]); w(0)
    cons()
    p(M[4]); p(M[5])
    stamp(p, 1)
    lane_id(p, XC)
    p(f"v_lshlrev_b32 {v(XC)}, 4, {v(XC)}")
    srd(p, 12, 98, 99, WS_SIZE)
    p("s_lshl_b32 s10, s27, 1")
    p("s_add_u32 s10, s10, s29")
    p("s_lshl_b32 s10, s10, 4")
    p("s_add_u32 s10, s10, s26")
    p("s_lshl_b32 s10, s10, 14")
    p("s_lshl_b32 s11, s28, 12")
    p("s_add_u32 s10, s10, s11")
    p("s_add_u32 s16, s10, 8192")
    p("s_lshl_b32 s18, s27, 4")
    p("s_add_u32 s18, s18, s26")
    p("s_lshl_b32 s18, s18, 13")
    p("s_add_u32 s18, s18, s11")
    p(f"s_add_u32 s18, s18, {WS_QX}")
    p(f"s_add_u32 s11, s11, {OWNC}")
    p(f"v_add_u32 {v(WC)}, s11, {v(XC)}")
    p(f"s_mov_b32 s17, {QSCALE}")
    p("s_xor_b32 s19, s26, s29")
    p("s_bitcmp1_b32 s19, 0")
    p("s_cbranch_scc1 P1_EOTH")
    for own in (1, 0):
        n = 0
        order = ((1, 0), (0, 0), (0, 1), (2, 0), (1, 1), (2, 1)) if own else ((0, 0), (0, 1), (1, 0), (1, 1), (2, 0), (2, 1))
        keep = []
        for (ty, rt) in order:
            d = ACC + (rt * 3 + ty) * 16
            if ty == 0:
                for i in range(16): p(f"v_mul_f32 {v(d+i)}, s17, {v(d+i)}")
            for j in range(2):
                o = d + 8 * j if own else 4 * (n % 7); n += 1
                for i in range(4): p(f"v_cvt_pk_bf16_f32 {v(o+i)}, {v(d+8*j+2*i)}, {v(d+8*j+2*i+1)}")
                st = f"buffer_store_dwordx4 {v(o,4)}, {v(XC)}, s[12:15], {('s18', 's10', 's16')[ty]} offen offset:{rt*2048+j*1024}{SC}"
                if own:
                    p(f"ds_write_b128 {v(WC)}, {v(o,4)} offset:{(16384, 0, 8192)[ty]+rt*2048+j*1024}")
                    if ty: keep.append(st)
                else: p(st)
        if own:
            p(f"v_mov_b32 {v(VT)}, 1")
            p(f"v_mov_b32 {v(SY)}, {CNT}")
            for st in keep[:2]: p(st)
            p("s_waitcnt lgkmcnt(0)")
            p("s_mov_b64 exec, 1")
            p(f"ds_add_u32 {v(SY)}, {v(VT)} offset:{C_OWN}")
            p("s_mov_b64 exec, -1")
            for st in keep[2:]: p(st)
            p("s_branch P1_EDONE")
            p.label("P1_EOTH")
    p.label("P1_EDONE")
    p(f"v_mov_b32 v30, {CNT}")
    p("v_mov_b32 v31, 1")
    p(f"s_mul_i32 s34, s27, {FLS}")
    p(f"s_add_u32 s34, s34, {FL_KV}")
    p("s_lshl_b32 s10, s26, 3")
    p("v_mov_b32 v29, s10")
    p("s_waitcnt vmcnt(0)")
    p("s_mov_b64 exec, 1")
    p(f"ds_add_rtn_u32 v31, v30, v31 offset:{C_KVST}")
    p("s_waitcnt lgkmcnt(0)")
    p("v_cmp_eq_u32 vcc, 3, v31")
    p("s_cbranch_vccz P1_NOKVF")
    flag_publish(p, 30, 29, "s34")
    p.label("P1_NOKVF")
    p("s_mov_b64 exec, -1")
    stamp(p, 3)
    p("s_setprio 0")
    p(f"v_mov_b32 v1, {v(XC)}")
    p(f"v_lshrrev_b32 v0, 4, {v(XC)}")
    p(f"v_mov_b32 {v(CA)}, {CNT}")
    p("s_xor_b32 s28, s26, 1")
    p("s_lshl_b32 s18, s27, 4")
    p("s_add_u32 s18, s18, s28")
    p("s_lshl_b32 s18, s18, 13")
    p("s_lshl_b32 s10, s31, 11")
    p("s_add_u32 s18, s18, s10")
    p(f"s_add_u32 s18, s18, {WS_QX}")
    p("s_lshl_b32 s28, s28, 2")
    p("s_add_u32 s28, s28, s31")
    p.label("A_INIT")
    p("v_and_b32 v2, 2, v0")
    p("v_cmp_eq_u32 vcc, 0, v2")
    p("v_mov_b32 v3, 0x3f803f80")
    p("v_mov_b32 v2, 0")
    for i in range(2): p(f"v_cndmask_b32 {v(ONES+i)}, v2, v3, vcc")
    for i in range(2, 4): p(f"v_cndmask_b32 {v(ONES+i)}, v3, v2, vcc")
    p("v_and_b32 v2, 1, v0")
    p("v_mul_u32_u24 v2, 0xaaaa, v2")
    p(f"v_add_u32 {v(IDX)}, 0x4444, v2")
    p(f"v_mov_b32 {v(ONE)}, 1")
    for i in range(12): p(f"v_mov_b32 {v(L+i)}, 0")
    for i in range(16): p(f"v_mov_b32 {v(O+i)}, 0")
    for i in range(12, 16): p(f"v_mov_b32 {v(F1+i)}, 0")
    p("s_and_b32 s29, s26, 1")
    p("s_lshl_b32 s10, s27, 1")
    p("s_add_u32 s29, s29, s10")
    p("s_mov_b32 s22, 0")
    p(f"v_add_u32 {v(VC)}, {OWNC}, v1")
    p("s_lshl_b32 s10, s3, 2")
    p(f"s_add_u32 s10, s10, {CNT + C_PROG}")
    p(f"v_mov_b32 {v(VP)}, s10")
    p("s_mov_b32 s25, 2")
    lds_wait_ge(p, "A_OW", CA, C_OWN, 2, CV_, sleep=opt("owslp", 2))
    for j in range(2): p(f"ds_read_b128 {v(F1+4*j,4)}, {v(VC)} offset:{j*1024}")
    p("s_cmp_ge_u32 s3, 4")
    p("s_cbranch_scc1 A_FARQ")
    for j in range(2): p(f"ds_read_b128 {v(Q+4*j,4)}, {v(SB)} offset:{j*1024}")
    p("s_branch A_HAVEQ")
    p.label("A_FARQ")
    lds_wait_ge(p, "A_QW", CA, C_QRDY, 1, CV_, sleep=2)
    for j in range(2): p(f"buffer_load_dwordx4 {v(Q+4*j,4)}, v1, s[12:15], s18 offen offset:{j*1024}{SC}")
    p("s_waitcnt vmcnt(0)")
    p.label("A_HAVEQ")
    stamp(p, 2)
    p("s_waitcnt lgkmcnt(0)")
    p(mf32(SA, F1, Q, "0"))
    p(mf32(SA, F1+4, Q+4, SA))
    for j in range(2): p(f"ds_read_b128 {v(F0+4*j,4)}, {v(VC)} offset:{2048+j*1024}")
    for j in range(2): p(f"ds_read_b128 {v(F0+8+4*j,4)}, {v(VC)} offset:{8192+j*1024}")
    p("s_nop 7")
    T_ = NEGM
    p(f"v_max3_f32 {v(T_)}, {v(SA)}, {v(SA+1)}, {v(SA+2)}")
    for i in range(3, 15, 2): p(f"v_max3_f32 {v(T_)}, {v(T_)}, {v(SA+i)}, {v(SA+i+1)}")
    p(f"v_max_f32 {v(T_)}, {v(T_)}, {v(SA+15)}")
    p(f"v_mov_b32 {v(CV_)}, {v(T_)}")
    p("s_nop 1")
    p(f"v_permlane32_swap_b32 {v(T_)}, {v(CV_)}")
    p(f"v_max_f32 {v(CV_)}, {v(T_)}, {v(CV_)}")
    for i in range(16): p(f"v_sub_f32 {v(NEGM+i)}, 0, {v(CV_)}")
    for i in range(16): p(f"v_sub_f32 {v(SA+i)}, {v(SA+i)}, {v(CV_)}")
    p("s_branch A_ENTRY")
    ORDER = "w0 Y S0 r0 e3 O1p r1 e3 LS e2 S1 r2 c4 e2 O0 r3 e3 X e3 c4"
    LS = f"v_smfmac_f32_16x16x64_bf16 {v(L,4)}, {v(ONES,4)}, {v(P0,8)}, {v(IDX)}"
    def step(F, Sc, Sn, Fn, u, extra=None, head=None):
        e = 0; c = 0
        for t in ORDER.split():
            if t == "S0":
                if u is not None: p(mf32(Sn, F, Q, NEGM))
            elif t == "S1":
                if u is not None: p(mf32(Sn, F+4, Q+4, Sn))
            elif t == "O0": p(mf32(O, F+8, P0, O))
            elif t == "O1p": p(mf32(O, Fn+12, P1, O))
            elif t == "X":
                if extra: extra()
            elif t == "Y":
                if head: head()
            elif t == "LS": p(LS)
            elif t[0] == "e":
                for _ in range(int(t[1:])): p(f"v_exp_f32 {v(Sc+e)}, {v(Sc+e)}"); e += 1
            elif t[0] == "c":
                for _ in range(int(t[1:])): p(f"v_cvt_pk_bf16_f32 {v(P0+c)}, {v(Sc+2*c)}, {v(Sc+2*c+1)}"); c += 1
            elif t[0] == "r":
                if u is not None:
                    j = int(t[1:])
                    if j >= 2: p(f"ds_read_b128 {v(Fn+4*j,4)}, {v(VC)} offset:{8192+u*2048+(j-2)*1024}")
                    elif u < 3: p(f"ds_read_b128 {v(Fn+4*j,4)}, {v(VC)} offset:{(u+1)*2048+j*1024}")
                    else: p(f"ds_read_b128 {v(Fn+4*j,4)}, {v(VN)} offset:{j*1024}")
            elif t[0] == "w": p(f"s_waitcnt lgkmcnt({t[1:]})")
    def arrive():
        p("s_mov_b64 exec, 1")
        p(f"ds_add_u32 {v(VP)}, {v(ONE)}")
        p("s_mov_b64 exec, -1")
    def peek():
        p(f"ds_read_b32 {v(CV_)}, {v(CA)} offset:{C_KVL}")
        p(f"v_add_u32 {v(VN)}, s22, v1")
        p("s_add_u32 s22, s22, 16384")
        p(f"s_cmp_ge_u32 s22, {RING}")
        p("s_cselect_b32 s22, 0, s22")
    def chk():
        p.label("A_CHK")
        p(f"v_cmp_gt_u32 vcc, s25, {v(CV_)}")
        p("s_cbranch_vccnz A_SPIN")
    def flip():
        p(f"v_mov_b32 {v(VC)}, {v(VN)}")
        p("s_add_u32 s25, s25, 1")
    LAD = [int(c) for c in OPT.get("lad", "3210")]
    p.label("A_SPIN")
    bail(p)
    p("s_sleep 1")
    p(f"ds_read_b32 {v(CV_)}, {v(CA)} offset:{C_KVL}")
    p("s_waitcnt lgkmcnt(0)")
    p("s_branch A_CHK")
    p.label("A_LOOP")
    p(f"s_setprio {LAD[0]}")
    step(F1, SB, SA, F0, 0, extra=arrive)
    p.label("A_ENTRY")
    p(f"s_setprio {LAD[1]}")
    step(F0, SA, SB, F1, 1)
    p(f"s_setprio {LAD[2]}")
    step(F1, SB, SA, F0, 2, extra=peek)
    p(f"s_setprio {LAD[3]}")
    step(F0, SA, SB, F1, 3, extra=flip, head=chk)
    if STAMP:
        for (n_, i_) in ((3, 4), (4, 5), (6, 6), (10, 7)):
            p(f"s_cmp_lg_u32 s25, {n_}")
            p(f"s_cbranch_scc1 A_ST{n_}")
            stamp(p, i_)
            p.label(f"A_ST{n_}")
    p("s_cmp_lt_u32 s25, 18")
    p("s_cbranch_scc1 A_LOOP")
    step(F1, SB, SA, F0, None, extra=arrive)
    p("s_nop 1")
    p(mf32(O, F1+12, P1, O))
    p(LS)
    stamp(p, 8)
    p("v_and_b32 v2, 256, v1")
    p("v_cmp_eq_u32 vcc, 0, v2")
    p("s_lshl_b32 s10, s28, 16")
    p("s_lshl_b32 s11, s29, 11")
    p("s_add_u32 s10, s10, s11")
    p("s_nop 3")
    p(f"s_add_u32 s35, s10, {WS_O}")
    p(f"s_mov_b32 s11, {f32bits(2.0**100)}")
    p("s_nop 0")
    p(f"v_add_f32 {v(L)}, {v(L)}, {v(L+1)}")
    p(f"v_add_f32 {v(L+2)}, {v(L+2)}, {v(L+3)}")
    p(f"v_cndmask_b32 v2, {v(L+2)}, {v(L)}, vcc")
    p(f"v_add_f32 v3, abs({v(O)}), v2")
    for i in range(1, 16): p(f"v_add_f32 v3, abs({v(O+i)}), v3")
    p("v_cmp_ngt_f32 vcc, s11, v3")
    if opt("forcefb"): p("s_branch A_FALLBACK")
    p("s_cbranch_vccnz A_FALLBACK")
    p.label("A_FIN")
    p("v_rcp_f32 v2, v2")
    p("s_nop 0")
    for j in range(2):
        for i in range(8 * j, 8 * j + 8): p(f"v_mul_f32 {v(O+i)}, v2, {v(O+i)}")
        for i in range(4 * j, 4 * j + 4): p(f"v_cvt_pk_bf16_f32 {v(P0+i)}, {v(O+2*i)}, {v(O+2*i+1)}")
        p(f"buffer_store_dwordx4 {v(P0+4*j,4)}, v1, s[12:15], s35 offen offset:{1024*j}{SC}")
    OB, WF, AC3 = 76, 8, 40
    p(f"s_load_dwordx2 s[36:37], s[0:1], {D_OUT}")
    p("s_setprio 0")
    p("s_and_b32 s10, s26, 14")
    p(f"s_mul_i32 s34, s10, {FLS}")
    p(f"s_add_u32 s34, s34, {FL_O}")
    p("s_lshl_b32 s10, s29, 3")
    p("s_add_u32 s34, s34, s10")
    p("v_lshrrev_b32 v0, 4, v1")
    p(f"v_mul_u32_u24 v72, {FLS}, v0")
    p("s_waitcnt vmcnt(0)")
    p("s_mov_b64 exec, 1")
    p(f"ds_add_rtn_u32 {v(CV_)}, {v(CA)}, {v(ONE)} offset:{C_OARR}")
    p("s_waitcnt lgkmcnt(0)")
    p(f"v_cmp_eq_u32 vcc, 7, {v(CV_)}")
    p("s_cbranch_vccz G_NOFLAG")
    p("s_mov_b64 exec, 3")
    flag_publish(p, 2, 72, "s34")
    p.label("G_NOFLAG")
    p("s_mov_b64 exec, -1")
    stamp(p, 9)
    tile3(p)
    p("s_and_b32 s28, s3, 3")
    p("s_lshl_b32 s10, s38, 2")
    p("s_add_u32 s28, s28, s10")
    p("s_lshr_b32 s29, s3, 2")
    p("s_lshl_b32 s10, s28, 16")
    p("s_lshl_b32 s11, s29, 12")
    p("s_add_u32 s10, s10, s11")
    p(f"s_add_u32 s10, s10, {WS_O}")
    srd(p, 16, 98, 99, 65536, off="s10")
    srd(p, 20, 36, 37, 8 * MB)
    p("v_lshrrev_b32 v6, 5, v0")
    p("v_lshlrev_b32 v5, 9, v6")
    p("v_bfe_u32 v7, v0, 2, 2")
    p("v_lshl_add_u32 v5, v7, 6, v5")
    p("v_bfe_u32 v7, v0, 4, 1")
    p("v_lshl_add_u32 v5, v7, 5, v5")
    p("v_and_b32 v7, 3, v0")
    p("v_lshl_add_u32 v5, v7, 3, v5")
    p("s_lshl_b32 s10, s29, 13")
    p("v_add_u32 v5, s10, v5")
    for i in range(AC3, AC3 + 32): p(f"v_mov_b32 {v(i)}, 0")
    p("v_and_b32 v73, 31, v0")
    p("v_lshlrev_b32 v73, 12, v73")
    p("v_lshl_add_u32 v73, v6, 4, v73")
    p("s_lshl_b32 s10, s3, 12")
    p("v_add_u32 v74, s10, v1")
    p("v_xor_b32 v75, 16384, v74")
    p("s_lshl_b32 s30, s28, 17")
    p("s_lshl_b32 s11, s39, 7")
    p("s_add_u32 s30, s30, s11")
    p("s_lshl_b32 s11, s29, 6")
    p("s_add_u32 s30, s30, s11")
    p("s_add_u32 s30, s30, 2048")
    p("s_mov_b32 s24, 0")
    p("s_mov_b32 s25, 0")
    p(f"s_mov_b32 s31, {WTAB}")
    def acq(u):
        j = u % 3
        p("s_andn2_b32 s10, s25, s24")
        p(f"s_cbranch_scc1 G_AQ{u}b")
        p.label(f"G_AQ{u}a")
        p(f"ds_read_b32 {v(CV_)}, {v(CA)} offset:{C_OMASK}")
        p("s_waitcnt lgkmcnt(0)")
        p(f"v_readfirstlane_b32 s25, {v(CV_)}")
        p("s_andn2_b32 s10, s25, s24")
        p(f"s_cbranch_scc1 G_AQ{u}b")
        bail(p)
        p("s_sleep 2")
        p(f"s_branch G_AQ{u}a")
        p.label(f"G_AQ{u}b")
        p("s_ff1_i32_b32 s11, s10")
        p("s_bitset1_b32 s24, s11")
        p("s_lshl_b32 s10, s11, 11")
        p("s_lshr_b32 s11, s31, s11")
        p("s_and_b32 s11, s11, 15")
        p(f"s_lshl_b32 s{40+j}, s11, 14")
        for n in range(4): p(f"buffer_load_dwordx4 {v(OB+16*j+4*n,4)}, v1, s[16:19], s10 offen offset:{1024*n}{SC}")
    def rdw(u):
        p(f"v_add_u32 v4, s{40+u%3}, v5")
        for ks in range(4):
            for nt in range(2):
                for h in range(2): p(f"ds_read_b64_tr_b16 {v(WF+8*ks+4*nt+2*h,2)}, v4 offset:{ks*2048+h*1024+nt*256}")
    acq(0)
    stamp(p, 10)
    rdw(0); acq(1); acq(2)
    for u in range(8):
        rest = 4 * min(2, 7 - u)
        for ks in range(4):
            p(f"s_waitcnt vmcnt({rest + 3 - ks}) lgkmcnt({12 - 4*ks})")
            for nt in range(2): p(mf32(AC3+16*nt, WF+8*ks+4*nt, OB+16*(u%3)+4*ks, AC3+16*nt))
        if u < 7: rdw(u + 1)
        if u + 3 < 8: acq(u + 3)
    stamp(p, 11)
    p("s_barrier")
    p("s_cmp_eq_u32 s29, 0")
    p("s_cbranch_scc1 G_X0")
    p("s_nop 7")
    for j in range(4): p(f"ds_write_b128 v74, {v(AC3+4*j,4)} offset:{1024*j}")
    for i in range(16): p(f"v_mov_b32 {v(AC3+i)}, {v(AC3+16+i)}")
    p("s_branch G_X1")
    p.label("G_X0")
    p("s_nop 8")
    for j in range(4): p(f"ds_write_b128 v74, {v(AC3+16+4*j,4)} offset:{1024*j}")
    p.label("G_X1")
    p("s_waitcnt lgkmcnt(0)")
    p("s_barrier")
    for j in range(4): p(f"ds_read_b128 {v(AC3+16+4*j,4)}, v75 offset:{1024*j}")
    for pr in range(2):
        p(f"s_waitcnt lgkmcnt({2-2*pr})")
        for i in range(8 * pr, 8 * pr + 8): p(f"v_add_f32 {v(AC3+i)}, {v(AC3+i)}, {v(AC3+16+i)}")
        b = WF + 4 * pr
        for i in range(4): p(f"v_cvt_pk_bf16_f32 {v(b+i)}, {v(AC3+8*pr+2*i)}, {v(AC3+8*pr+2*i+1)}")
        p("s_nop 1")
        p(f"v_permlane32_swap_b32 {v(b)}, {v(b+2)}")
        p(f"v_permlane32_swap_b32 {v(b+1)}, {v(b+3)}")
        p(f"buffer_store_dwordx4 {v(b,4)}, v73, s[20:23], s30 offen offset:{32*pr}")
    stamp(p, 12)
    stamp_flush(p)
    p.label("L_END")
    p("s_endpgm")
    p.label("A_FALLBACK")
    M_, AL = NEGM, NEGM + 1
    for i in range(16): p(f"v_mov_b32 {v(O+i)}, 0")
    p("v_mov_b32 v2, 0")
    p(f"v_mov_b32 {v(M_)}, 0xff7fffff")
    p("s_lshl_b32 s30, s29, 18")
    p("s_mov_b32 s25, 0")
    p.label("A_FBL")
    p("s_lshr_b32 s10, s25, 2")
    p("s_lshl_b32 s10, s10, 14")
    p("s_and_b32 s11, s25, 3")
    p("s_lshl_b32 s11, s11, 11")
    p("s_add_u32 s10, s10, s11")
    p("s_add_u32 s10, s10, s30")
    p("s_add_u32 s11, s10, 8192")
    for j in range(2): p(f"buffer_load_dwordx4 {v(F0+4*j,4)}, v1, s[12:15], s10 offen offset:{1024*j}{SC}")
    for j in range(2): p(f"buffer_load_dwordx4 {v(F0+8+4*j,4)}, v1, s[12:15], s11 offen offset:{1024*j}{SC}")
    p("s_waitcnt vmcnt(0)")
    p(mf32(SA, F0, Q, "0"))
    p(mf32(SA, F0+4, Q+4, SA))
    p("s_nop 15")
    p(f"v_max3_f32 v3, {v(SA)}, {v(SA+1)}, {v(M_)}")
    for i in range(2, 16, 2): p(f"v_max3_f32 v3, v3, {v(SA+i)}, {v(SA+i+1)}")
    p(f"v_mov_b32 {v(SB)}, v3")
    p("s_nop 1")
    p(f"v_permlane32_swap_b32 v3, {v(SB)}")
    p(f"v_max_f32 v3, v3, {v(SB)}")
    p(f"v_sub_f32 {v(AL)}, {v(M_)}, v3")
    p(f"v_exp_f32 {v(AL)}, {v(AL)}")
    p(f"v_mov_b32 {v(M_)}, v3")
    for i in range(16): p(f"v_sub_f32 {v(SA+i)}, {v(SA+i)}, v3")
    for i in range(16): p(f"v_exp_f32 {v(SA+i)}, {v(SA+i)}")
    p(f"v_mul_f32 v2, v2, {v(AL)}")
    for i in range(16): p(f"v_mul_f32 {v(O+i)}, {v(O+i)}, {v(AL)}")
    for i in range(16): p(f"v_add_f32 v2, v2, {v(SA+i)}")
    for i in range(8): p(f"v_cvt_pk_bf16_f32 {v(P0+i)}, {v(SA+2*i)}, {v(SA+2*i+1)}")
    p("s_nop 1")
    p(mf32(O, F0+8, P0, O))
    p(mf32(O, F0+12, P1, O))
    p("s_nop 15")
    p("s_add_u32 s25, s25, 1")
    p("s_cmp_lt_u32 s25, 64")
    p("s_cbranch_scc1 A_FBL")
    p("v_mov_b32 v3, v2")
    p("s_nop 1")
    p("v_permlane32_swap_b32 v2, v3")
    p("v_add_f32 v2, v2, v3")
    p("s_branch A_FIN")

    p.label("L_HELPERS")
    p("s_cmp_ge_u32 s3, 9")
    p("s_cbranch_scc1 L_PARTA")
    emit_w8(p)
    p.label("L_PARTA")
    emit_partA(p)

def emit_w8(p):
    p(f"s_load_dwordx2 s[36:37], s[0:1], {B_WO}")
    p("s_barrier")
    p("v_and_b32 v8, 3, v0")
    p("v_lshlrev_b32 v8, 2, v8")
    p(f"v_add_u32 v8, {CNT}, v8")
    p("v_and_b32 v9, 7, v0")
    p("v_lshlrev_b32 v9, 2, v9")
    p(f"v_add_u32 v9, {CNT}, v9")
    p(f"v_mov_b32 v20, {CNT}")
    p("s_waitcnt lgkmcnt(0)")
    p("s_add_u32 s94, s96, 0x1000000")
    p("s_addc_u32 s95, s97, 0")
    p("v_lshlrev_b32 v1, 4, v0")
    p("v_and_b32 v6, 15, v0")
    p("v_lshlrev_b32 v6, 3, v6")
    srd(p, 12, 98, 99, WS_SIZE)
    p(f"s_mul_i32 s34, s27, {FLS}")
    p(f"s_add_u32 s34, s34, {FL_KV}")
    p("s_and_b32 s30, s26, 1")
    p("s_lshl_b32 s10, s27, 1")
    p("s_add_u32 s30, s30, s10")
    p("s_lshl_b32 s30, s30, 18")
    p("s_xor_b32 s31, s26, 1")
    p("s_mov_b32 s47, 0")
    p("v_and_b32 v16, 31, v0")
    p("v_lshlrev_b32 v16, 3, v16")
    p("s_lshl_b32 s44, 1, s26")
    p("s_mov_b32 s45, 0")
    p("s_mov_b32 s46, 0x4000")
    p("s_mov_b32 s21, 0")
    p("s_mov_b32 s25, 1")
    tile3(p)
    p("v_lshrrev_b32 v5, 5, v0")
    p("v_lshlrev_b32 v5, 2, v5")
    p("v_bfe_u32 v7, v0, 2, 2")
    p("v_add_u32 v5, v5, v7")
    p("v_lshlrev_b32 v5, 11, v5")
    p("v_bfe_u32 v7, v0, 4, 1")
    p("v_lshl_add_u32 v5, v7, 6, v5")
    p("v_and_b32 v7, 3, v0")
    p("v_lshl_add_u32 v10, v7, 4, v5")
    for jj in range(1, 4): p(f"v_add_u32 {v(10+jj)}, {jj*(16384-1024)}, v10")
    p("s_lshl_b32 s11, s39, 7")
    p(f"s_sub_u32 s18, {2*MB}, s11")
    p("s_add_u32 s16, s36, s11")
    p("s_addc_u32 s17, s37, 0")
    p("s_mov_b32 s19, 0x20000")
    p("s_setprio 3")
    lds_wait_ge(p, "W8_E0", 8, C_CONS, 15, 3, sleep=16)
    lds_wait_ge(p, "W8_E1", 8, C_CONS, 17, 3, sleep=2)
    if opt("kvw", 4): lds_wait_ge(p, "W8_E2", 20, C_KVST, opt("kvw", 4), 3, sleep=1)
    stamp(p, 1)
    p.label("W8_LOOP")
    p("s_cmp_eq_u32 s47, 0")
    p("s_cbranch_scc1 W8_POLL")
    p("s_andn2_b32 s10, s45, s44")
    p("s_cbranch_scc1 W8_HAVE")
    p.label("W8_POLL")
    p(f"buffer_load_dwordx2 v[14:15], v6, s[12:15], s34 offen{SC}")
    p("v_mov_b32 v3, s25")
    p("s_waitcnt vmcnt(1)")
    p(f"ds_write_b32 v20, v3 offset:{C_KVL}")
    p("s_waitcnt vmcnt(0)")
    if STAMP:
        p("s_cmp_lg_u32 s46, 0x4000")
        p("s_cbranch_scc1 W8_STP")
        stamp(p, 6)
        p.label("W8_STP")
    flag_test(p, 14)
    p("s_and_b32 s45, vcc_lo, 0xffff")
    p("s_sub_u32 s46, s46, 1")
    p("s_cselect_b32 s45, 0xffff, s45")
    p("s_lshr_b32 s47, s45, s31")
    p("s_and_b32 s47, s47, 1")
    p("v_mov_b32 v3, s47")
    p(f"ds_write_b32 v20, v3 offset:{C_QRDY}")
    p("s_andn2_b32 s10, s45, s44")
    p("s_cbranch_scc1 W8_HAVE")
    p(f"s_sleep {opt('kslp', 4)}")
    p("s_branch W8_POLL")
    p.label("W8_NOSLOT")
    p("v_mov_b32 v3, s25")
    p("s_waitcnt vmcnt(0)")
    p(f"ds_write_b32 v20, v3 offset:{C_KVL}")
    bail(p)
    p("s_sleep 4")
    p("s_branch W8_LOOP")
    p.label("W8_HAVE")
    p("s_sub_u32 s24, s25, 5")
    p(f"ds_read_b32 v3, v9 offset:{C_PROG}")
    p("s_waitcnt lgkmcnt(0)")
    p("v_cmp_gt_i32 vcc, s24, v3")
    p("s_cbranch_vccnz W8_NOSLOT")
    p("s_lshr_b32 s11, s10, s26")
    p("s_cselect_b32 s11, s11, s10")
    p("s_cselect_b32 s20, s26, 0")
    p("s_ff1_i32_b32 s11, s11")
    p("s_add_u32 s11, s11, s20")
    p("s_bitset1_b32 s44, s11")
    p("s_lshl_b32 s20, s11, 14")
    p("s_add_u32 s20, s20, s30")
    for q_ in range(4):
        p("s_mov_b32 m0, s21")
        p("s_add_u32 s21, s21, 4096")
        for j in range(4): p(f"buffer_load_dwordx4 v1, s[12:15], s20 offen offset:{1024*j}{SC} lds")
        p("s_add_u32 s20, s20, 4096")
    p(f"s_cmp_ge_u32 s21, {RING}")
    p("s_cselect_b32 s21, 0, s21")
    p("v_mov_b32 v3, s25")
    p("s_add_u32 s25, s25, 1")
    p("s_waitcnt vmcnt(16)")
    p(f"ds_write_b32 v20, v3 offset:{C_KVL}")
    if STAMP:
        for (n_, i_) in ((2, 2), (3, 3), (6, 4)):
            p(f"s_cmp_lg_u32 s25, {n_}")
            p(f"s_cbranch_scc1 W8_ST{n_}")
            stamp(p, i_)
            p.label(f"W8_ST{n_}")
    p("s_cmp_lt_u32 s25, 16")
    p("s_cbranch_scc1 W8_LOOP")
    p("v_mov_b32 v3, 17")
    p("s_waitcnt vmcnt(0)")
    p(f"ds_write_b32 v20, v3 offset:{C_KVL}")
    stamp(p, 5)
    p(f"s_mul_i32 s34, s38, {FLS}")
    p(f"s_add_u32 s34, s34, {FL_O}")
    order = [(0, 8, 4), (1, 8, 4), (2, 8, 4), (3, 11, 4), (4, 12, 4), (5, 13, 4), (6, 14, 4), (7, 15, 4)]
    pack = lambda f: sum(f(o) << (4 * i) for i, o in enumerate(order))
    p(f"s_mov_b32 s41, {WTAB}")
    p(f"s_mov_b32 s42, {pack(lambda o: o[1] - 8)}")
    p("s_mov_b32 s25, 0")
    p("s_mov_b32 s44, 0")
    p("s_mov_b32 s46, 0x4000")
    lds_wait_ge(p, "W8_CV", 20, C_A2, 4, 3, sleep=4)
    p.label("W8_WLOOP")
    p("s_and_b32 s24, s42, 15")
    p("s_add_u32 s24, s24, 8")
    p(f"ds_read_b32 v3, v9 offset:{C_PROG}")
    p("s_waitcnt lgkmcnt(0)")
    p("v_cmp_gt_i32 vcc, s24, v3")
    p("s_cbranch_vccnz W8_WSKIP")
    p("s_lshl_b32 s20, s25, 18")
    p("s_and_b32 s21, s41, 15")
    p("s_lshl_b32 s21, s21, 14")
    p("s_lshl_b32 s10, s25, 2")
    p("s_bitset1_b32 s44, s10")
    for q_ in range(4):
        p("s_mov_b32 m0, s21")
        p("s_add_u32 s21, s21, 4096")
        for jj in range(4): p(f"buffer_load_dwordx4 {v(10+jj)}, s[16:19], s20 offen offset:{1024*jj} lds")
        p("s_add_u32 s20, s20, 65536")
    for r_ in (41, 42): p(f"s_lshr_b32 s{r_}, s{r_}, 4")
    p("s_waitcnt vmcnt(32)")
    p("s_add_u32 s25, s25, 1")
    p("s_cmp_lt_u32 s25, 8")
    p("s_cbranch_scc1 W8_WLOOP")
    lds_wait_ge(p, "W8_OW", 20, C_OARR, opt("ostart", 8), 3, sleep=4)
    p.label("W8_WSKIP")
    p("s_cmp_lt_u32 s25, 8")
    p("s_cbranch_scc1 W8_WNEXT")
    p.label("W8_OPOLL")
    p(f"buffer_load_dwordx2 v[14:15], v16, s[12:15], s34 offen{SC}")
    p("s_waitcnt vmcnt(0)")
    flag_test(p, 14)
    p("s_lshr_b32 s10, vcc_lo, 1")
    p("s_and_b32 s45, vcc_lo, s10")
    p("s_lshr_b32 s10, s45, 2")
    p("s_and_b32 s45, s45, s10")
    p("s_sub_u32 s46, s46, 1")
    p("s_cselect_b32 s45, -1, s45")
    p("s_and_b32 s45, s45, s44")
    p("v_mov_b32 v3, s45")
    p(f"ds_write_b32 v20, v3 offset:{C_OMASK}")
    p("s_cmp_eq_u32 s45, 0x11111111")
    p("s_cbranch_scc1 W8_DONE")
    p.label("W8_WNEXT")
    bail(p)
    p(f"s_sleep {opt('oslp', 8)}")
    p("s_cmp_lt_u32 s25, 8")
    p("s_cbranch_scc1 W8_WLOOP")
    p("s_branch W8_OPOLL")
    p.label("W8_DONE")
    stamp(p, 12)
    stamp_flush(p)
    p("s_endpgm")

def emit_partA(p):
    pre = "PA"
    p(f"s_load_dwordx8 s[36:43], s[0:1], {A_Q}")
    p(f"s_load_dwordx4 s[44:47], s[0:1], {A_SSMK}")
    p(f"s_load_dwordx4 s[48:51], s[0:1], {B_WO}")
    p("s_barrier")
    p("s_sub_u32 s3, s3, 9")
    p("s_and_b32 s28, s2, 15")
    p("s_and_b32 s10, s28, 7")
    p("s_lshr_b32 s11, s28, 3")
    p("s_lshl_b32 s28, s10, 1")
    p("s_add_u32 s28, s28, s11")
    p("s_lshr_b32 s29, s2, 4")
    p("s_lshl_b32 s35, s29, 3")
    p("s_lshl_b32 s29, s29, 2")
    p("s_add_u32 s29, s29, s3")
    p("s_lshl_b32 s27, s28, 6")
    p("s_add_u32 s27, s27, s29")
    p(f"s_mul_i32 s30, s3, {CV_STRIDE}")
    p(f"s_add_u32 s30, s30, {CV_BASE}")
    p("v_and_b32 v1, 7, v0")
    p("v_lshrrev_b32 v2, 3, v0")
    p("s_lshl_b32 s10, s29, 5")
    p("v_lshl_add_u32 v3, v2, 2, s10")
    p("s_lshl_b32 s11, s28, 7")
    p("v_lshl_add_u32 v4, v1, 4, s11")
    p("v_lshl_add_u32 v120, v3, 11, v4")
    p("v_lshl_add_u32 v122, v3, 12, v4")
    p("v_lshlrev_b32 v121, 11, v4")
    p("v_lshl_add_u32 v121, v2, 4, v121")
    p("s_lshr_b32 s31, s29, 4")
    p("s_lshl_b32 s31, s31, 10")
    p("s_and_b32 s26, s29, 7")
    p("s_lshl_b32 s26, s26, 7")
    p("s_add_u32 s31, s31, s26")
    p("s_and_b32 s26, s29, 8")
    p("s_add_u32 s31, s31, s26")
    p("v_add_u32 v121, s31, v121")
    p("v_and_b32 v123, 15, v0")
    p("v_lshlrev_b32 v123, 3, v123")
    p("v_lshlrev_b32 v124, 4, v0")
    p("v_and_b32 v1, 15, v0")
    p("v_lshrrev_b32 v2, 4, v0")
    p("v_lshl_add_u32 v3, v2, 3, s10")
    p("v_lshl_add_u32 v4, v1, 3, s11")
    p("v_lshl_add_u32 v9, v3, 11, v4")
    for j in range(3): p(f"v_add_u32 {v(6+j)}, {(j-3)*2048}, v9")
    for j in range(1, 4): p(f"v_add_u32 {v(9+j)}, {j*4096}, v9")
    p("v_lshlrev_b32 v13, 2, v4")
    p("v_lshrrev_b32 v14, 1, v4")
    p(f"v_mul_u32_u24 v14, {XRS}, v14")
    p("v_lshlrev_b32 v15, 1, v3")
    p("v_sub_u32 v15, 4080, v15")
    p("v_add_u32 v15, v15, v14")
    p("v_lshl_add_u32 v14, v2, 4, v14")
    p("s_lshl_b32 s33, s27, 12")
    p("s_mov_b32 s32, 0xffff0000")
    p(f"s_mul_i32 s34, s28, {FLS}")
    p(f"s_add_u32 s34, s34, {FL_A1}")
    p(f"s_mul_i32 s31, s27, {XRS}")
    p(f"s_add_u32 s31, s31, {WS_XR}")
    p("s_add_u32 s26, s31, 4096")
    p("v_and_b32 v1, 3, v0")
    p("v_lshlrev_b32 v1, 2, v1")
    p(f"v_add_u32 v1, {CNT}, v1")
    p("s_waitcnt lgkmcnt(0)")
    p("s_add_u32 s94, s96, 0x1000000")
    p("s_addc_u32 s95, s97, 0")
    srd(p, 12, 98, 99, WS_SIZE)
    srd(p, 16, 38, 39, 4 * MB)
    srd(p, 20, 40, 41, 4 * MB)
    srd(p, 52, 42, 43, 8192)
    if opt("tch", 0):
        p("v_min_u32 v4, 34, v0")
        p("s_lshl_b32 s10, s29, 5")
        p("s_sub_u32 s10, s10, 3")
        p("v_add_u32 v4, s10, v4")
        p("v_lshlrev_b32 v4, 11, v4")
        p("v_add_u32 v4, s11, v4")
        p(f"s_mul_i32 s10, s3, {opt('tchs', 1)}")
        p(f"s_add_u32 s10, s10, {opt('tch', 0)}")
        lds_wait_ge(p, "PA_T0", 1, C_LAND, "s10", 2, sleep=8)
        p("buffer_load_dword v116, v4, s[16:19], 0 offen")
        p("buffer_load_dword v117, v4, s[20:23], 0 offen")
    p(f"v_mov_b32 v1, {CNT}")
    if opt("hwk", 5):
        lds_wait_ge(p, "PA_W0", 1, C_KVL, opt("hwk", 5), 2, sleep=opt("w0slp", 8))
    else:
        lds_wait_ge(p, "PA_W0", 1, C_KVST, opt("hws", 4), 2, sleep=4)
    p(f"s_setprio {opt('cvprio', 3)}")
    stamp(p, 1)
    KR, VR, SR = 16, 38, 56
    def rowaddr(j):
        if j < 3: return v(6 + j), 0
        return v(9 + (j - 3) // 2), 2048 * ((j - 3) & 1)
    for j in range(2): p(f"buffer_load_dwordx4 {v(SR+4*j,4)}, v13, s[52:55], 0 offen offset:{16*j}")
    for j in range(11):
        a_, o_ = rowaddr(j); p(f"buffer_load_dwordx2 {v(KR+2*j,2)}, {a_}, s[16:19], 0 offen offset:{o_}")
    for j in range(8):
        a_, o_ = rowaddr(j + 3); p(f"buffer_load_dwordx2 {v(VR+2*j,2)}, {a_}, s[20:23], 0 offen offset:{o_}")
    srd(p, 16, 44, 45, 4096, off="s33")
    srd(p, 20, 46, 47, 2048)
    T, KU, AC, OUT = 64, 72, 94, 112
    for cp in range(2):
        if cp == 0:
            p("s_waitcnt vmcnt(8)"); stamp(p, 2)
        for e in range(2):
            for jj in range(2):
                src = SR + 4 * cp + 2 * e + jj
                p(f"v_lshlrev_b32 {v(T+2*(2*jj)+e)}, 16, {v(src)}")
                p(f"v_and_b32 {v(T+2*(2*jj+1)+e)}, s32, {v(src)}")
        for j in range(11):
            p(f"v_lshlrev_b32 {v(KU+2*j)}, 16, {v(KR+2*j+cp)}")
            p(f"v_and_b32 {v(KU+2*j+1)}, s32, {v(KR+2*j+cp)}")
        for t in range(8): p(f"v_pk_mul_f32 {v(AC+2*t,2)}, {v(KU+2*t,2)}, {v(T+6,2)}")
        for j in (2, 1, 0):
            for t in range(8): p(f"v_pk_fma_f32 {v(AC+2*t,2)}, {v(KU+2*(t-j+3),2)}, {v(T+2*j,2)}, {v(AC+2*t,2)}")
        if cp == 0: p("s_waitcnt vmcnt(0)")
        for j in range(8):
            p(f"v_lshlrev_b32 {v(KU+2*j)}, 16, {v(VR+2*j+cp)}")
            p(f"v_and_b32 {v(KU+2*j+1)}, s32, {v(VR+2*j+cp)}")
        for t in range(8): p(f"v_pk_mul_f32 {v(AC+2*t,2)}, {v(AC+2*t,2)}, {v(KU+2*t,2)}")
        for e in range(2):
            for i in range(4): p(f"v_cvt_pk_bf16_f32 {v(OUT+4*e+i)}, {v(AC+2*(7-2*i)+e)}, {v(AC+2*(6-2*i)+e)}")
            p(f"s_mov_b32 s10, {WS_XR + (2*cp+e)*XRS}")
            p(f"buffer_store_dwordx4 {v(OUT+4*e,4)}, v15, s[12:15], s10 offen{SC}")
    p("s_cmp_lg_u32 s29, 0")
    p(f"s_cbranch_scc1 {pre}_S1END")
    for i in range(4): p(f"v_mov_b32 {v(8+i)}, 0")
    for c in range(4):
        p(f"s_mov_b32 s10, {WS_XR + c*XRS + 4096}")
        p(f"buffer_store_dwordx4 v[8:11], v14, s[12:15], s10 offen{SC}")
    p.label(f"{pre}_S1END")
    def signal_and_wait(tag, coff, work=None):
        p(f"v_mov_b32 v1, {CNT + coff}")
        p("v_mov_b32 v2, 1")
        p("v_mov_b32 v3, s35")
        p("s_waitcnt vmcnt(0)")
        p("s_mov_b64 exec, 1")
        p("ds_add_rtn_u32 v126, v1, v2")
        p("s_mov_b32 s25, 0x4000")
        p("s_waitcnt lgkmcnt(0)")
        p("v_readfirstlane_b32 s24, v126")
        p("s_cmp_lg_u32 s24, 3")
        p(f"s_cbranch_scc1 {pre}_NOSIG{tag}")
        flag_publish(p, 126, 3, "s34")
        p.label(f"{pre}_NOSIG{tag}")
        p("s_mov_b64 exec, -1")
        if work: work()
        p("s_cmp_lg_u32 s24, 3")
        p(f"s_cbranch_scc1 {pre}_LWAIT{tag}")
        p.label(f"{pre}_POLL{tag}")
        p(f"s_sleep {opt('slp', 8)}")
        p(f"buffer_load_dwordx2 v[126:127], v123, s[12:15], s34 offen{SC}")
        p("s_sub_u32 s25, s25, 1")
        p(f"s_cbranch_scc1 {pre}_GOT{tag}")
        p("s_waitcnt vmcnt(0)")
        flag_test(p, 126)
        p("s_cmp_lg_u64 vcc, -1")
        p(f"s_cbranch_scc1 {pre}_POLL{tag}")
        p.label(f"{pre}_GOT{tag}")
        p("ds_write_b32 v1, v2 offset:4")
        p(f"s_branch {pre}_GO{tag}")
        p.label(f"{pre}_LWAIT{tag}")
        bail(p)
        p("s_sleep 4")
        p("ds_read_b32 v126, v1 offset:4")
        p("s_waitcnt lgkmcnt(0)")
        p("v_cmp_ne_u32 vcc, 1, v126")
        p(f"s_cbranch_vccnz {pre}_LWAIT{tag}")
        p.label(f"{pre}_GO{tag}")
    AB, BB, KVB, ST = 8, 12, 13, 14
    FA, FBB, ACC = 16, 48, 80
    def hload():
        p("v_and_b32 v5, 7, v0")
        p("v_lshlrev_b32 v5, 2, v5")
        p(f"v_add_u32 v5, {CNT}, v5")
        lds_wait_ge(p, "PA_W1", 5, C_PROG, opt("hw1", 1), 6, sleep=4)
        p("v_add_u32 v118, -512, v124")
        p("v_add_u32 v119, 512, v124")
        p("s_lshl_b32 s10, s27, 1")
        p("v_mov_b32 v117, s10")
        p(f"s_add_u32 m0, s30, {CV_H}")
        p("buffer_load_ushort v125, v117, s[20:23], 0 offen")
        p("buffer_load_dwordx4 v118, s[16:19], 0 offen lds")
        p(f"s_add_u32 m0, s30, {CV_H + 1024}")
        p("s_nop 0")
        for j in range(4): p(f"buffer_load_dwordx4 v119, s[16:19], 0 offen offset:{1024*j} lds")
        srd(p, 52, 48, 49, 2 * MB)
        p("s_lshl_b32 s10, s27, 11")
        p("v_lshlrev_b32 v7, 5, v0")
        p("buffer_load_dword v116, v7, s[52:55], s10 offen")
        p("v_and_b32 v5, 15, v0")
        p("v_lshrrev_b32 v6, 4, v0")
        p("v_lshrrev_b32 v3, 1, v5")
        p("v_lshlrev_b32 v4, 2, v6")
        p("v_sub_u32 v4, v4, v3")
        p("v_lshlrev_b32 v4, 2, v4")
        p("v_and_b32 v3, 1, v5")
        p("v_xor_b32 v3, 1, v3")
        p(f"v_mul_u32_u24 v3, {CV_C1}, v3")
        p(f"s_add_u32 s10, s30, {4*1023 - 32*(112+1)}")
        p(f"v_add3_u32 {v(AB)}, v4, v3, s10")
        for kk in range(1, 4): p(f"v_add_u32 {v(AB+kk)}, {1024*kk}, {v(AB)}")
        p("v_lshlrev_b32 v3, 5, v5")
        p("v_lshl_add_u32 v4, v6, 4, v3")
        p(f"s_add_u32 s10, s30, {CV_H + 512 - 32}")
        p(f"v_add_u32 {v(BB)}, s10, v4")
        p(f"v_lshl_add_u32 {v(ST)}, v6, 3, v3")
        p(f"s_add_u32 s10, s30, {4088 - 512*7}")
        p(f"v_sub_u32 {v(KVB)}, s10, {v(ST)}")
        for i in range(32): p(f"v_mov_b32 {v(ACC+i)}, 0")
        p("v_add_u32 v7, 2, v124")
    stamp(p, 3)
    signal_and_wait(1, C_A1, hload)
    stamp(p, 4)
    for (src_v, off) in ((124, 0), (7, CV_C1)):
        p(f"s_add_u32 m0, s30, {off}")
        p("s_nop 0")
        for j in range(4): p(f"buffer_load_dwordx4 {v(src_v)}, s[12:15], s31 offen offset:{1024*j}{SC} lds")
        p(f"s_add_u32 m0, s30, {off + 4096}")
        p("s_mov_b64 exec, 15")
        p(f"buffer_load_dwordx4 {v(src_v)}, s[12:15], s26 offen{SC} lds")
        p("s_mov_b64 exec, -1")
    p(f"s_add_u32 s34, s34, {FL_A2 - FL_A1}")
    p("s_mov_b32 s25, 8")
    p("s_waitcnt vmcnt(0)")
    stamp(p, 5)
    p.label(f"{pre}_CVL")
    def rdA(a):
        kk, rem = (7 - a) >> 1, 128 * ((7 - a) & 1)
        return [f"ds_read2_b32 {v(FA+4*a,2)}, {v(AB+kk)} offset0:{rem} offset1:{rem+1}",
                f"ds_read2_b32 {v(FA+4*a+2,2)}, {v(AB+kk)} offset0:{rem+2} offset1:{rem+3}"]
    cnt = [0]
    def cm(a, b):
        p(mf16(ACC+4*(a+b), FA+4*a, FBB+4*b, ACC+4*(a+b)))
        cnt[0] += 1
        if opt("cvnop", -1) >= 0 and cnt[0] % opt("cvev", 1) == 0: p(f"s_nop {opt('cvnop')}")
    def rdB(b): return [f"ds_read_b128 {v(FBB+4*b,4)}, {v(BB)} offset:{512*b}"]
    for x in range(8):
        for r_ in rdA(x) + rdB(x): p(r_)
    for kk in range(4): p(f"v_add_u32 {v(AB+kk)}, -64, {v(AB+kk)}")
    p(f"v_add_u32 {v(BB)}, -64, {v(BB)}")
    p("s_waitcnt lgkmcnt(12)")
    for a in range(4):
        for b in range(4): cm(a, b)
    p("s_waitcnt lgkmcnt(0)")
    for a in range(8):
        for b in range(8 - a):
            if a >= 4 or b >= 4: cm(a, b)
    p("s_sub_u32 s25, s25, 1")
    p("s_cmp_lg_u32 s25, 0")
    p(f"s_cbranch_scc1 {pre}_CVL")
    stamp(p, 6)
    for t in range(8): p(f"ds_read_b64 {v(FA+2*t,2)}, {v(KVB)} offset:{512*(7-t)}")
    p("v_lshlrev_b32 v125, 16, v125")
    p(f"s_add_u32 s33, s33, {WS_Y}")
    p(f"v_lshlrev_b32 {v(ST)}, 1, {v(ST)}")
    for t in range(8):
        p(f"s_waitcnt lgkmcnt({7-t})" if not STAMP else "s_waitcnt lgkmcnt(0)")
        U = FBB + 4 * (t & 3); a = ACC + 4 * t; o = FBB + 16 + 2 * t
        p(f"v_and_b32 {v(U)}, s32, {v(FA+2*t+1)}")
        p(f"v_lshlrev_b32 {v(U+1)}, 16, {v(FA+2*t+1)}")
        p(f"v_and_b32 {v(U+2)}, s32, {v(FA+2*t)}")
        p(f"v_lshlrev_b32 {v(U+3)}, 16, {v(FA+2*t)}")
        for r_ in range(4): p(f"v_fmac_f32 {v(a+r_)}, v125, {v(U+r_)}")
        p(f"v_cvt_pk_bf16_f32 {v(o)}, {v(a)}, {v(a+1)}")
        p(f"v_cvt_pk_bf16_f32 {v(o+1)}, {v(a+2)}, {v(a+3)}")
        if t & 1: p(f"buffer_store_dwordx4 {v(o-2,4)}, {v(ST)}, s[12:15], s33 offen offset:{1024*(t>>1)}{SC}")
    QR, YR, U, OUT = 16, 32, 48, 64
    def qload():
        srd(p, 16, 36, 37, 4 * MB)
        srd(p, 20, 50, 51, 8 * MB)
        p("v_add_u32 v6, 4096, v120")
        for j in range(4): p(f"buffer_load_dwordx4 {v(QR+4*j,4)}, {('v120', 'v6')[j>>1]}, s[16:19], 0 offen offset:{2048*(j&1)}")
    signal_and_wait(2, C_A2, qload)
    stamp(p, 7)
    for c in range(8):
        p(f"s_mov_b32 s10, {WS_Y + c*4096}")
        p(f"buffer_load_dwordx2 {v(YR+2*c,2)}, v121, s[12:15], s10 offen{SC}")
    p("s_waitcnt vmcnt(0)")
    for t in range(4):
        for cp in range(4):
            u = U + 4 * (cp & 1)
            q = QR + 4 * t + cp
            p(f"v_lshlrev_b32 {v(u)}, 16, {v(q)}")
            p(f"v_and_b32 {v(u+1)}, s32, {v(q)}")
            for e in range(2):
                y = YR + 2 * (2 * cp + e) + (t >> 1)
                if t & 1: p(f"v_and_b32 {v(u+2+e)}, s32, {v(y)}")
                else: p(f"v_lshlrev_b32 {v(u+2+e)}, 16, {v(y)}")
            p(f"v_pk_mul_f32 {v(u,2)}, {v(u,2)}, {v(u+2,2)}")
            p(f"v_cvt_pk_bf16_f32 {v(OUT+4*t+cp)}, {v(u)}, {v(u+1)}")
        p(f"s_mov_b32 s10, {t*4096}")
        p(f"buffer_store_dwordx4 {v(OUT+4*t,4)}, v122, s[20:23], s10 offen{SC}")
    stamp(p, 12)
    stamp_flush(p)
    p("s_endpgm")

def build(path):
    p = Prog()
    emit(p)
    hdr = open("concat_heads__ssm_conv_h3__mha_block__prompt.s.ref").read().split("\n")
    hdr = [l for l in hdr if l.startswith(";") and "@launch" not in l and "Override" not in l and "grid=ceil" not in l]
    out = "\n".join(hdr) + "\n"
    if opt("aslist", 1): out += f"; @launch kernel={NAME} grid=(256,1,1) block=(832,1,1) lds={LDS_BYTES}\n"
    else: out += f"; @launch grid=(256,1,1) block=(832,1,1) lds={LDS_BYTES}\n"
    out += '.amdgcn_target "amdgcn-amd-amdhsa--gfx950"\n.text\n'
    body = p.text()
    nbad = check(body)
    out += body
    out += f""".section .rodata,"a"
.p2align 6
.amdhsa_kernel {NAME}
  .amdhsa_next_free_vgpr 128
  .amdhsa_next_free_sgpr 102
  .amdhsa_accum_offset 128
  .amdhsa_group_segment_fixed_size 0
  .amdhsa_kernarg_size 96
  .amdhsa_user_sgpr_count 2
  .amdhsa_user_sgpr_kernarg_segment_ptr 1
  .amdhsa_system_sgpr_workgroup_id_x 1
.end_amdhsa_kernel
"""
    open(path, "w").write(out)
    return nbad

if __name__ == "__main__":
    nb = build(sys.argv[1] if len(sys.argv) > 1 else "pk.s")
    print("hazards:", nb)
```

```python
import re

class Prog:
    def __init__(self):
        self.lines = []
        self.padn = 0
        self.padc = 0
        self.npads = 0
    def pad(self):
        self.lines.append(f"WP{self.npads}:")
        self.lines.append(f"s_cbranch_execz WP{self.npads+1}")
        self.npads += 1; self.padc = 0
    def pads(self, n):
        self.padn = n
        if n: self.pad()
    def __call__(self, s):
        for ln in s.split("\n"):
            ln = ln.strip()
            if ln:
                self.lines.append(ln)
                if self.padn and not ln.startswith("."):
                    self.padc += 1
                    if self.padc >= self.padn and not ln.startswith(("s_branch", "s_endpgm", "s_getpc")): self.pad()
    def label(self, name): self.lines.append(name + ":")
    def text(self):
        out = []
        for ln in self.lines:
            if ln.endswith(":") or ln.startswith("."): out.append(ln)
            else: out.append("    " + ln)
        return "\n".join(out) + "\n"

def v(i, n=1): return f"v{i}" if n == 1 else f"v[{i}:{i+n-1}]"
def s(i, n=1): return f"s{i}" if n == 1 else f"s[{i}:{i+n-1}]"

_REG = re.compile(r"^(-|abs\(|\|)?([vsa])(\d+|\[(\d+):(\d+)\])")
def regs_of(tok):
    tok = tok.strip()
    if tok in ("vcc",): return {("s", 106), ("s", 107)}
    if tok in ("vcc_lo",): return {("s", 106)}
    if tok in ("vcc_hi",): return {("s", 107)}
    if tok == "exec": return {("exec", 0)}
    if tok == "m0": return {("m0", 0)}
    m = _REG.match(tok)
    if not m: return set()
    k = m.group(2)
    if m.group(4) is not None: return {(k, i) for i in range(int(m.group(4)), int(m.group(5)) + 1)}
    return {(k, int(m.group(3)))}

TRANS = ("v_exp_", "v_log_", "v_rcp_", "v_rsq_", "v_sqrt_", "v_sin_", "v_cos_")
class Ins:
    def __init__(self, text, idx):
        self.text = text; self.idx = idx
        t = text.split(";")[0].strip()
        p = t.split(None, 1)
        self.op = p[0]
        rest = p[1] if len(p) > 1 else ""
        ops = []; depth = 0; cur = ""
        for ch in rest:
            if ch in "[(": depth += 1
            if ch in "])": depth -= 1
            if ch == "," and depth == 0: ops.append(cur.strip()); cur = ""
            else: cur += ch
        if cur.strip(): ops.append(cur.strip())
        self.mods = ""
        if ops:
            last = ops[-1].split(None, 1)
            ops[-1] = last[0]
            if len(last) > 1: self.mods = last[1]
        self.ops = ops
        op = self.op
        self.is_mfma = op.startswith(("v_mfma", "v_smfmac"))
        self.is_valu = op.startswith("v_") and not self.is_mfma
        self.is_trans = op.startswith(TRANS)
        self.is_salu = op.startswith("s_") and not op.startswith(("s_load", "s_buffer_load", "s_waitcnt", "s_nop", "s_barrier", "s_branch", "s_cbranch", "s_endpgm", "s_setprio", "s_memtime", "s_memrealtime", "s_sleep", "s_atomic"))
        self.is_vmem = op.startswith(("buffer_", "global_", "flat_"))
        self.is_ds = op.startswith("ds_")
        self.is_dma = self.is_vmem and (" lds" in " " + self.mods or "_lds_" in op)
        self.is_dpp = any(k in self.mods for k in ("row_", "quad_perm", "wave_", "dpp"))
        R = [regs_of(o) for o in ops]
        w = set(); r = set()
        if self.is_mfma:
            w = R[0]; r = R[1] | R[2] | R[3]
            self.A, self.B, self.C, self.D = R[1], R[2], R[3], R[0]
            self.passes = 8 if "32x32x16" in op else 4 if "16x16x32" in op else None
            if op.startswith("v_smfmac"):
                r |= R[0]; self.A = R[1] | R[3]; self.C = R[0]; self.passes = 8
            assert self.passes, op
        elif self.is_valu:
            if op.startswith("v_permlane") and "swap" in op:
                w = R[0] | R[1]; r = R[0] | R[1]
            elif "_co_" in op or op.startswith(("v_mad_u64", "v_div_scale")):
                w = R[0] | R[1]; r = set().union(*R[2:])
            elif op.startswith("v_cmpx"):
                w = R[0] | {("exec", 0)}; r = set().union(*R[1:])
            elif op == "v_nop": pass
            else:
                w = R[0]; r = set().union(*R[1:]) if len(R) > 1 else set()
                if op.startswith(("v_fmac", "v_mac", "v_dot2c", "v_pk_fmac", "v_writelane")): r |= R[0]
                if op.startswith("v_cndmask") and len(ops) == 3: r |= regs_of("vcc")
                if op.startswith("v_div_fmas"): r |= regs_of("vcc")
        elif self.is_ds:
            if op.startswith(("ds_read", "ds_bpermute", "ds_permute", "ds_swizzle", "ds_append", "ds_consume")) or "_rtn" in op:
                w = R[0]; r = set().union(*R[1:]) if len(R) > 1 else set()
            else: r = set().union(*R)
        elif self.is_vmem:
            if self.is_dma: r = set().union(*R) | {("m0", 0)}
            elif "_load" in op: w = R[0]; r = set().union(*R[1:])
            elif op.startswith(("buffer_inv", "buffer_wbl2")): pass
            elif "atomic" in op and "sc0" in self.mods:
                w = R[0]; r = set().union(*R)
            else: r = set().union(*R)
            self.wide_store = ("store" in op and ("x3" in op or "x4" in op))
            if self.wide_store:
                self.data = R[0] if op.startswith("buffer") else R[1]
        elif op.startswith("s_"):
            if op.startswith(("s_cmp", "s_waitcnt", "s_nop", "s_barrier", "s_branch", "s_cbranch", "s_endpgm", "s_setprio", "s_sleep", "s_bitcmp")):
                r = set().union(*R) if R else set()
            elif "saveexec" in op:
                w = R[0] | {("exec", 0)}; r = set().union(*R[1:]) | {("exec", 0)}
            else:
                w = R[0]; r = set().union(*R[1:]) if len(R) > 1 else set()
                if op in ("s_addk_i32", "s_mulk_i32"): r |= R[0]
        self.w, self.r = w, r
        self.ws = 1
        if op == "s_nop": self.ws = int(ops[0], 0) + 1

def need(p, c):
    n = 0
    def up(x, why):
        nonlocal n, reason
        if x > n: n = x; reason = why
    reason = ""
    pw_s = {x for x in p.w if x[0] == "s"}
    pw_v = {x for x in p.w if x[0] in "va"}
    if p.is_valu:
        if pw_s:
            if c.is_vmem and (pw_s & c.r): up(5, "VALU sgpr->VMEM")
            if (c.is_valu or c.is_mfma) and (pw_s & c.r):
                up(4 if c.op.startswith(("v_readlane", "v_writelane", "v_div_fmas")) else 2, "VALU sgpr->VALU")
        if pw_v & c.r:
            if c.op.startswith(("v_readlane", "v_readfirstlane")): up(1, "VALU->readlane")
            if c.op.startswith("v_permlane"): up(2, "VALU->permlane")
            if c.is_valu and c.is_dpp: up(2, "VALU->dpp")
            if c.is_mfma: up(2, "VALU->mfma")
            if p.is_trans and c.is_valu and not c.is_trans: up(1, "trans->valu")
            if p.is_trans and (c.is_vmem or c.is_ds): up(1, "trans->mem")
            if ("op_sel" in p.mods or "sdwa" in p.op or "dst_sel" in p.mods) and not p.op.startswith("v_pk_") and c.is_valu: up(1, "opsel")
        if ("exec", 0) in p.w:
            if c.is_mfma: up(4, "exec->mfma")
            if c.op.startswith(("v_readlane", "v_readfirstlane", "v_writelane", "v_permlane")): up(4, "exec->lane")
            if c.is_valu and c.is_dpp: up(5, "exec->dpp")
    if p.is_salu and ("m0", 0) in p.w and c.is_dma: up(1, "m0->dma")
    if p.is_vmem and getattr(p, "wide_store", False) and (p.data & c.w):
        up(2 if (c.is_valu or c.is_mfma) else 1, "store data WAR")
    if p.is_mfma:
        P = p.passes
        if c.is_mfma:
            if p.D & c.C:
                if not (p.D == c.C and c.passes == P): up(P + 2, "mfma D->C overlap")
            if p.D & (c.A | c.B): up(P + 4, "mfma D->A/B")
            if (p.D & c.D) and not (p.D == c.C and c.passes == P): up(P + 2, "mfma D->D waw")
        elif c.is_valu or c.is_vmem or c.is_ds:
            if p.D & (c.r | c.w): up(P + 4, "mfma D->valu/mem")
            if c.is_valu and (p.C & c.w): up(P - 1, "mfma C WAR")
    return n, reason

def check(text, maxd=20):
    ins = []; labels = {}
    for ln in text.split("\n"):
        t = ln.split(";")[0].strip()
        if not t or t.startswith("."):
            continue
        if t.endswith(":"):
            labels[t[:-1]] = len(ins); continue
        ins.append(Ins(t, len(ins)))
    def succ(i):
        x = ins[i]
        if x.op == "s_endpgm": return []
        if x.op == "s_branch": return [labels[x.ops[0]]]
        if x.op == "s_cbranch_execz" and x.ops[0].startswith("WP"): return [i + 1]
        if x.op.startswith("s_cbranch"): return [i + 1, labels[x.ops[0]]]
        return [i + 1]
    bad = []
    for p in ins:
        if not (p.is_valu or p.is_mfma or p.is_salu or p.is_vmem): continue
        lim = 13 if p.is_mfma else 5
        seen = {}
        stack = [(j, 0) for j in succ(p.idx)]
        while stack:
            j, d = stack.pop()
            if j >= len(ins) or d >= lim: continue
            if j in seen and seen[j] <= d: continue
            seen[j] = d
            c = ins[j]
            n, why = need(p, c)
            if n > d: bad.append((p, c, n, d, why))
            for k in succ(j): stack.append((k, d + c.ws))
    for p, c, n, d, why in bad:
        print(f"HAZARD [{why}] need {n} have {d}:\n    {p.idx}: {p.text}\n    {c.idx}: {c.text}")
    return len(bad)
```

```python
import sys, os, struct, math
sys.path.insert(0, os.path.dirname(os.path.abspath(__file__)))
from asmlib import Prog, v, s, check

MB = 1 << 20
WS_KV, WS_QX, WS_O, WS_XR, WS_Y, WS_FL = 0, 8 * MB, 12 * MB, 16 * MB, 21 * MB, 25 * MB
XRS = 4224
WS_SIZE = 32 * MB
FLS = 4352
FL_A1, FL_A2, FL_KV, FL_O = [WS_FL + 16 * i * FLS for i in range(4)]
A_Q, A_K, A_V, A_SK, A_SSMK, A_D, B_X, B_WQKV, B_WO, D_OUT, D_DBG, D_WS = [8 * i for i in range(12)]
def f32bits(x): return struct.unpack("<I", struct.pack("<f", x))[0]
QSCALE = f32bits((32 ** -0.5) * math.log2(math.e))
STAMP = os.environ.get("STAMP", "0") == "1"
OPT = dict(kv.split("=") for kv in os.environ.get("OPT", "").split(",") if kv)
def opt(k, d=0): return int(OPT.get(k, d))
WS_ST = 28 * MB
SC = " sc1"
NAME = "concat_heads__ssm_conv_h3__mha_block__prompt_kernel"

WREG = 3 * 16384
RING = 6 * 16384
OWNC = 122880
QHO = OWNC + 16384
CV_BASE = 98304
CV_STRIDE = 15616
CV_C1 = 5120 + 64
CV_H = 2 * 5120 + 128
CNT = CV_BASE + 4 * CV_STRIDE
C_LAND, C_CONS, C_PROG, C_KVL, C_OWN, C_KVST, C_A1, C_A2, C_OARR, C_OMASK, C_QRDY = 0, 16, 32, 64, 68, 72, 76, 84, 92, 96, 100
LDS_BYTES = CNT + 256

def mf32(d, a, b, c): return f"v_mfma_f32_32x32x16_bf16 {v(d,16)}, {v(a,4)}, {v(b,4)}, {v(c,16) if isinstance(c,int) else c}"
def mf16(d, a, b, c): return f"v_mfma_f32_16x16x32_bf16 {v(d,4)}, {v(a,4)}, {v(b,4)}, {v(c,4) if isinstance(c,int) else c}"

def srd(p, d, lo, hi, nrec, off=None):
    if off is None:
        if lo != d: p(f"s_mov_b32 {s(d)}, {s(lo)}")
        if hi != d + 1: p(f"s_mov_b32 {s(d+1)}, {s(hi)}")
    else:
        p(f"s_add_u32 {s(d)}, {s(lo)}, {off}")
        p(f"s_addc_u32 {s(d+1)}, {s(hi)}, 0")
    p(f"s_mov_b32 {s(d+2)}, {nrec}")
    p(f"s_mov_b32 {s(d+3)}, 0x20000")

def stamp(p, i, real=True):
    if STAMP and not (opt("p1st") and i in (4, 5, 6, 7, 9, 10, 11)): p(f"{'s_memrealtime' if real else 's_memtime'} s[{60+2*i}:{61+2*i}]")
def stamp_flush(p, n=14):
    if not STAMP: return
    p("s_memtime s[90:91]")
    p("s_lshl_b32 s58, s2, 4")
    p("s_add_u32 s58, s58, s59")
    p("s_lshl_b32 s58, s58, 6")
    p(f"s_add_u32 s58, s58, {WS_ST}")
    p("s_waitcnt lgkmcnt(0)")
    p("v_mov_b32 v2, s58")
    for i in range(16):
        p(f"v_mov_b32 v3, s{60+2*i}")
        p(f"global_store_dword v2, v3, s[98:99] offset:{4*i}")

def lane_id(p, d):
    p(f"v_mbcnt_lo_u32_b32 {v(d)}, -1, 0")
    p(f"v_mbcnt_hi_u32_b32 {v(d)}, -1, {v(d)}")

def bail(p):
    p("s_sub_u32 s100, s100, 1")
    p("s_cbranch_scc1 L_END")

def lds_wait_ge(p, lab, vaddr, off, need, vt, sleep=2):
    p(f"s_branch {lab}c")
    p.label(f"{lab}s")
    bail(p)
    p(f"s_sleep {sleep}")
    p.label(f"{lab}c")
    p(f"ds_read_b32 {v(vt)}, {v(vaddr)} offset:{off}")
    p("s_waitcnt lgkmcnt(0)")
    p(f"v_cmp_gt_i32 vcc, {need}, {v(vt)}")
    p(f"s_cbranch_vccnz {lab}s")

def flag_publish(p, vt, voff, soff):
    p("s_memrealtime s[92:93]")
    p("s_waitcnt lgkmcnt(0)")
    p(f"v_mov_b32 {v(vt)}, s92")
    p(f"v_mov_b32 {v(vt+1)}, s93")
    p(f"buffer_store_dwordx2 {v(vt,2)}, {v(voff)}, s[12:15], {soff} offen{SC}")

def flag_test(p, vt):
    p(f"v_cmp_lt_u64 vcc, s[96:97], {v(vt,2)}")
    p(f"v_cmp_gt_u64 s[92:93], s[94:95], {v(vt,2)}")
    p("s_and_b64 vcc, vcc, s[92:93]")

def pf_addr(p, vx, vw, which=(0, 1)):
    if 0 in which:
        p("s_and_b32 s29, s27, 3")
        p("s_lshl_b32 s29, s29, 5")
        p("s_lshl_b32 s10, s26, 7")
        p("s_add_u32 s29, s29, s10")
        p("v_lshrrev_b32 v1, 1, v0")
        p("v_add_u32 v1, s29, v1")
        p("v_lshlrev_b32 v1, 11, v1")
        p("v_and_b32 v2, 1, v0")
        p(f"v_lshl_add_u32 {v(vx)}, v2, 7, v1")
    if 1 in which:
        p("v_lshrrev_b32 v2, 5, v0")
        p("v_lshlrev_b32 v2, 6, v2")
        p("v_bfe_u32 v3, v0, 2, 3")
        p("s_and_b32 s29, s26, 7")
        p("s_lshl_b32 s29, s29, 3")
        p("v_add3_u32 v2, v2, v3, s29")
        p("v_mul_u32_u24 v2, 6144, v2")
        p("v_and_b32 v3, 3, v0")
        p("v_min_u32 v3, 2, v3")
        p("v_lshl_add_u32 v2, v3, 11, v2")
        p("s_lshl_b32 s29, s27, 7")
        p(f"v_add_u32 {v(vw)}, s29, v2")

def tile3(p):
    p("s_and_b32 s38, s8, 3")
    p("s_lshl_b32 s38, s38, 2")
    p("s_and_b32 s10, s9, 3")
    p("s_add_u32 s38, s38, s10")
    p("s_lshr_b32 s39, s8, 2")
    p("s_lshl_b32 s39, s39, 3")
    p("s_lshr_b32 s10, s9, 2")
    p("s_add_u32 s39, s39, s10")

WTAB = 0x10543876

def emit(p):
    p(f".globl {NAME}")
    p(".p2align 8")
    p(f".type {NAME},@function")
    p.label(NAME)
    p("s_cmp_ge_u32 s2, 256")
    p("s_cbranch_scc1 L_END")
    p(f"s_load_dwordx4 s[4:7], s[0:1], {B_X}")
    p(f"s_load_dwordx2 s[98:99], s[0:1], {D_WS}")
    p("s_memrealtime s[96:97]")
    p("v_lshrrev_b32 v1, 6, v0")
    p("v_and_b32 v0, 63, v0")
    p("s_and_b32 s8, s2, 7")
    p("v_readfirstlane_b32 s3, v1")
    stamp(p, 0); stamp(p, 14, False)
    p("s_lshr_b32 s9, s2, 3")
    p("s_mov_b32 s100, 0x100000")
    if STAMP: p("s_mov_b32 s59, s3")
    p("s_and_b32 s26, s8, 1")
    p("s_lshl_b32 s26, s26, 3")
    p("s_and_b32 s10, s9, 7")
    p("s_add_u32 s26, s26, s10")
    p("s_lshr_b32 s27, s8, 1")
    p("s_lshl_b32 s27, s27, 2")
    p("s_lshr_b32 s10, s9, 3")
    p("s_add_u32 s27, s27, s10")
    p("s_cmp_ge_u32 s3, 4")
    p("s_cbranch_scc1 L_NOTLOADER")
    p(f"s_load_dwordx4 s[48:51], s[0:1], {A_K}")
    p("s_and_b32 s35, s3, 1")
    p("s_bitcmp1_b32 s3, 1")
    p("s_cbranch_scc1 P1_PFW")
    pf_addr(p, 16, 16, (0,))
    p("s_mov_b32 s36, 256")
    p("s_waitcnt lgkmcnt(0)")
    srd(p, 40, 4, 5, 4 * MB)
    srd(p, 44, 48, 49, 4 * MB)
    p("s_branch P1_PFGO")
    p.label("P1_PFW")
    pf_addr(p, 16, 16, (1,))
    p(f"s_mov_b32 s36, {128*6144}")
    p("s_waitcnt lgkmcnt(0)")
    srd(p, 40, 6, 7, 6 * MB)
    srd(p, 44, 50, 51, 4 * MB)
    p.label("P1_PFGO")
    p("s_mul_i32 s35, s35, s36")
    p("buffer_load_dword v17, v16, s[40:43], s35 offen")
    p("s_lshl_b32 s35, s36, 1")
    TL = opt("tl", 0)
    p(f"v_min_u32 v20, {max(TL,1)-1}, v0")
    p("v_lshlrev_b32 v20, 7, v20")
    p("s_lshl_b32 s37, s2, 14")
    p("s_add_u32 s46, s37, 16384")
    p("s_and_b32 s34, s3, 2")
    p("s_and_b32 s25, s3, 1")
    p("v_lshrrev_b32 v2, 3, v0")
    p("v_lshlrev_b32 v2, 11, v2")
    p("v_lshrrev_b32 v3, 4, v0")
    p("v_and_b32 v4, 7, v0")
    p("v_xor_b32 v4, v4, v3")
    p("v_lshl_add_u32 v2, v4, 4, v2")
    p("s_lshl_b32 s10, s34, 16")
    p("v_add_u32 v10, s10, v2")
    p("v_xor_b32 v11, 64, v10")
    p(f"v_add_u32 v12, {32768-2048}, v10")
    p(f"v_add_u32 v13, {49152-3072}, v11")
    p(f"v_add_u32 v11, {16384-1024}, v11")
    p("v_lshrrev_b32 v2, 5, v0")
    p("v_lshlrev_b32 v2, 2, v2")
    p("v_bfe_u32 v4, v0, 2, 2")
    p("s_lshl_b32 s10, s34, 4")
    p("v_add3_u32 v2, v2, v4, s10")
    p("v_mul_u32_u24 v2, 6144, v2")
    p("v_and_b32 v3, 1, v3")
    p("v_lshl_add_u32 v2, v3, 6, v2")
    p("v_and_b32 v4, 3, v0")
    p("v_lshl_add_u32 v14, v4, 4, v2")
    p("v_add_u32 v15, 48128, v14")
    p("v_lshlrev_b32 v4, 2, v4")
    p(f"v_add_u32 v18, {CNT}, v4")
    p("s_lshl_b32 s23, s34, 12")
    p("s_lshl_b32 s10, s25, 14")
    p("s_add_u32 s23, s23, s10")
    p("s_mul_i32 s24, s34, 6144")
    p("s_mul_i32 s10, s25, 24576")
    p("s_add_u32 s24, s24, s10")
    p(f"s_add_u32 s24, s24, {WREG}")
    p("s_lshl_b32 s20, s25, 7")
    p("s_mul_i32 s21, s25, 393216")
    p("s_lshl_b32 s10, s26, 18")
    p("s_lshl_b32 s11, s27, 7")
    p(f"s_sub_u32 s18, {1024*6144}, s11")
    p("s_mov_b32 s14, 262144")
    p("s_mov_b32 s15, 0x20000")
    p("s_mov_b32 s19, 0x20000")
    p("s_add_u32 s12, s4, s10")
    p("s_addc_u32 s13, s5, 0")
    p("s_add_u32 s16, s6, s11")
    p("s_addc_u32 s17, s7, 0")
    p("s_lshl_b64 s[32:33], 1, s3")
    p("s_cmp_eq_u32 s25, 0")
    p("s_cbranch_scc1 P1_LISSUE")
    p("s_barrier")
    p("v_mov_b32 v19, 1")
    p("s_mov_b64 exec, s[32:33]")
    p(f"ds_write_b32 v18, v19 offset:{C_LAND}")
    p("s_mov_b64 exec, -1")
    p("s_branch P1_LISSUE")
    p.label("P1_LLOOP")
    if STAMP and opt("p1st"):
        p("s_lshr_b32 s58, s25, 1")
        p("s_cmp_lg_u32 s58, 4")
        p("s_cbranch_scc1 P1_LSa")
        p("s_memrealtime s[68:69]")
        p.label("P1_LSa")
    p("s_sub_u32 s28, s25, 1")
    lds_wait_ge(p, "P1_LW", 18, C_CONS, "s28", 19, sleep=opt("lslp", 1))
    p.label("P1_LISSUE")
    if STAMP and opt("p1st"):
        p("s_lshr_b32 s58, s25, 1")
        p("s_cmp_lg_u32 s58, 4")
        p("s_cbranch_scc1 P1_LSb")
        p("s_memrealtime s[70:71]")
        p.label("P1_LSb")
    for q_ in range(2):
        p(f"s_add_u32 m0, s23, {4096*q_}")
        p(f"s_add_u32 s10, s20, {65536*q_}")
        for jj in range(4): p(f"buffer_load_dwordx4 {v(10+jj)}, s[12:15], s10 offen offset:{1024*jj} lds")
    for q_ in range(2):
        p(f"s_add_u32 m0, s24, {6144*q_}")
        p(f"s_add_u32 s10, s21, {16*6144*q_}")
        for ii in range(4): p(f"buffer_load_dwordx4 {v(14+(ii&1))}, s[16:19], s10 offen offset:{1024*ii} lds")
        p(f"s_add_u32 m0, s24, {6144*q_+4096}")
        p(f"s_add_u32 s10, s21, {16*6144*q_+4096}")
        for ii in range(2): p(f"buffer_load_dwordx4 {v(14+ii)}, s[16:19], s10 offen offset:{1024*ii} lds")
    if STAMP and opt("p1st"):
        p("s_lshr_b32 s58, s25, 1")
        p("s_cmp_lg_u32 s58, 4")
        p("s_cbranch_scc1 P1_LSc")
        p("s_memrealtime s[72:73]")
        p.label("P1_LSc")
    p("s_cmp_lg_u32 s25, 0")
    p("s_cbranch_scc1 P1_LNB")
    p("s_barrier")
    p.label("P1_LNB")
    p("s_add_u32 s20, s20, 256")
    p("s_add_u32 s21, s21, 786432")
    p("s_add_u32 s23, s23, 32768")
    p("s_add_u32 s24, s24, 49152")
    p(f"s_cmp_ge_u32 s23, {WREG}")
    p(f"s_cselect_b32 s10, {3*16384}, 0")
    p(f"s_cselect_b32 s11, {3*24576}, 0")
    p("s_sub_u32 s23, s23, s10")
    p("s_sub_u32 s24, s24, s11")
    PFS = opt("pfs", 2)
    p(f"s_sub_u32 s10, s25, {PFS}")
    p("s_bitcmp1_b32 s10, 0")
    p("s_cselect_b32 s10, 99, s10")
    p("s_cmp_lt_u32 s10, 12")
    p("s_cbranch_scc0 P1_NOPF")
    p("buffer_load_dword v17, v16, s[40:43], s35 offen")
    if TL: p("buffer_load_dword v21, v20, s[44:47], s37 offen")
    p("s_add_u32 s35, s35, s36")
    p(f"s_add_u32 s37, s37, {128*TL}")
    p(f"s_waitcnt vmcnt({2 if TL else 1})")
    p("s_branch P1_PUB")
    p.label("P1_NOPF")
    p("s_waitcnt vmcnt(0)")
    p.label("P1_PUB")
    p("s_add_u32 s25, s25, 2")
    p("v_mov_b32 v19, s25")
    p("s_mov_b64 exec, s[32:33]")
    p(f"ds_write_b32 v18, v19 offset:{C_LAND}")
    p("s_mov_b64 exec, -1")
    if STAMP and opt("p1st"):
        p("s_lshr_b32 s58, s25, 1")
        p("s_cmp_lg_u32 s58, 5")
        p("s_cbranch_scc1 P1_LSd")
        p("s_memrealtime s[74:75]")
        p.label("P1_LSd")
    p("s_cmp_lt_u32 s25, 16")
    p("s_cbranch_scc1 P1_LLOOP")
    stamp(p, 1)
    Q, ONES, L, P0, P1, F0, F1, NEGM, SA, SB, O = 4, 12, 16, 20, 24, 28, 44, 60, 76, 92, 108
    VN, VL, VC, VP, IDX, CA, CV_, ONE = 0, 1, 2, 3, 124, 125, 126, 127
    p("s_lshl_b32 s28, s26, 2")
    p("s_add_u32 s28, s28, s3")
    p("v_lshlrev_b32 v1, 4, v0")
    p(f"v_mov_b32 {v(CA)}, {CNT}")
    srd(p, 12, 98, 99, WS_SIZE)
    p("s_lshl_b32 s10, s3, 11")
    p(f"s_add_u32 s10, s10, {QHO}")
    p(f"v_add_u32 {v(SB)}, s10, v1")
    p("s_branch A_INIT")

    p.label("L_NOTLOADER")
    p("s_cmp_ge_u32 s3, 8")
    p("s_cbranch_scc1 L_HELPERS")
    ACC, XF, WF_, XC, WC, SY, VT = 32, 0, 16, 28, 29, 30, 31
    p("s_sub_u32 s31, s3, 4")
    p("s_lshr_b32 s28, s31, 1")
    p("s_and_b32 s29, s31, 1")
    p("v_and_b32 v1, 31, v0")
    p("v_lshrrev_b32 v2, 5, v0")
    p("v_bfe_u32 v3, v0, 1, 3")
    p("v_xor_b32 v3, v3, v2")
    p("v_lshlrev_b32 v3, 4, v3")
    p("v_lshl_add_u32 v3, v1, 7, v3")
    p("s_lshl_b32 s10, s28, 13")
    p(f"v_add_u32 {v(XC)}, s10, v3")
    p("v_lshlrev_b32 v2, 10, v2")
    p("v_bfe_u32 v3, v0, 2, 2")
    p("v_lshl_add_u32 v2, v3, 6, v2")
    p("v_bfe_u32 v3, v0, 4, 1")
    p("v_lshl_add_u32 v2, v3, 5, v2")
    p("v_and_b32 v3, 3, v0")
    p("v_lshl_add_u32 v2, v3, 3, v2")
    p("s_lshl_b32 s10, s29, 8")
    p(f"s_add_u32 s10, s10, {WREG}")
    p(f"v_add_u32 {v(WC)}, s10, v2")
    p("v_lshlrev_b32 v3, 2, v3")
    p(f"v_add_u32 {v(SY)}, {CNT}, v3")
    p("v_lshlrev_b32 v3, 2, v0")
    p(f"v_add_u32 v3, {CNT}, v3")
    p(f"v_mov_b32 {v(VT)}, 0")
    p(f"ds_write_b32 v3, {v(VT)}")
    p("s_lshl_b64 s[32:33], 1, s31")
    p("s_waitcnt lgkmcnt(0)")
    p("s_barrier")
    for i in range(8, 28): p(f"v_mov_b32 {v(i)}, 0")
    for i in range(ACC, ACC + 96): p(f"v_mov_b32 {v(i)}, 0")
    p("s_mov_b32 s25, 0")
    p("s_mov_b32 s24, 0")
    p(f"s_setprio {opt('cpprio', 3)}")
    def mfmas(b):
        L_ = []
        for ty in range(3):
            for rt in range(2):
                d = ACC + (rt * 3 + ty) * 16
                x, w = XF + 8 * b + 4 * rt, WF_ + 4 * ty
                L_.append(mf32(d, w, x, d) if ty < 2 else mf32(d, x, w, d))
        return L_
    def rx(b, rt): return f"ds_read_b128 {v(XF+8*b+4*rt,4)}, {v(XC)} offset:{rt*4096}"
    def rw(ks, ty): return [f"ds_read_b64_tr_b16 {v(WF_+4*ty+2*h,2)}, {v(WC)} offset:{ks*6144+ty*2048+h*512}" for h in range(2)]
    def cons():
        p("s_mov_b64 exec, s[32:33]")
        p(f"ds_inc_u32 {v(SY)}, {v(SY)} offset:{C_CONS}")
        p("s_mov_b64 exec, -1")
    w = lambda n: p(f"s_waitcnt lgkmcnt({n})")
    p("s_branch P1_CLOOP")
    p.label("P1_CSPIN")
    bail(p)
    p(f"ds_read_b32 {v(VT)}, {v(SY)} offset:{C_LAND}")
    p("s_waitcnt lgkmcnt(0)")
    p("s_branch P1_CCHK")
    p.label("P1_CLOOP")
    for ks in range(4):
        b = ks & 1
        M = mfmas(b ^ 1)
        w(4); p(M[0])
        if ks == 0:
            p(M[1])
            w(0)
            cons()
            p.label("P1_CCHK")
            p(f"v_cmp_ge_u32 vcc, s25, {v(VT)}")
            p("s_cbranch_vccnz P1_CSPIN")
            for r_ in rw(ks, 0): p(r_)
            p(M[2])
            p(rx(b, 0)); p(rx(b, 1))
            p(f"v_xor_b32 {v(XC)}, 32, {v(XC)}")
        else:
            p(rx(b, 0)); p(rx(b, 1))
            p(f"v_xor_b32 {v(XC)}, {32 if ks == 2 else 96}, {v(XC)}")
            p(M[1])
            for r_ in rw(ks, 0): p(r_)
        if ks == 3: p(f"v_add_u32 {v(XC)}, s22, {v(XC)}")
        if ks == 1:
            p("s_add_u32 s24, s24, 1")
            p("s_cmp_eq_u32 s24, 3")
            p("s_cselect_b32 s23, -2, 1")
            p("s_cselect_b32 s24, 0, s24")
            p("s_mul_i32 s22, s23, 16384")
            p("s_mul_i32 s23, s23, 24576")
        if ks: w(6); p(M[2])
        p(M[3])
        for r_ in rw(ks, 1): p(r_)
        if ks: w(6)
        p(M[4])
        if ks == 3:
            p(f"ds_read_b32 {v(VT)}, {v(SY)} offset:{C_LAND}")
            p("s_add_u32 s25, s25, 1")
            p("s_cmp_lt_u32 s25, 16")
        p(M[5])
        for r_ in rw(ks, 2): p(r_)
    p(f"v_add_u32 {v(WC)}, s23, {v(WC)}")
    if STAMP and opt("p1st"):
        for (n_, i_) in ((5, 4), (6, 5), (7, 6), (8, 7), (9, 9), (10, 10), (11, 11)):
            p(f"s_cmp_lg_u32 s25, {n_}")
            p(f"s_cbranch_scc1 P1_ST{n_}")
            p(f"s_memrealtime s[{60+2*i_}:{61+2*i_}]")
            p.label(f"P1_ST{n_}")
        p("s_cmp_lt_u32 s25, 16")
    p("s_cbranch_scc1 P1_CLOOP")
    PADN = opt("padn", 0)
    p.pads(PADN)
    M = mfmas(1)
    w(4); p(M[0]); p(M[1]); w(2); p(M[2]); p(M[3]); w(0)
    cons()
    p(M[4]); p(M[5])
    stamp(p, 1)
    lane_id(p, XC)
    p(f"v_lshlrev_b32 {v(XC)}, 4, {v(XC)}")
    srd(p, 12, 98, 99, WS_SIZE)
    p("s_lshl_b32 s10, s27, 1")
    p("s_add_u32 s10, s10, s29")
    p("s_lshl_b32 s10, s10, 4")
    p("s_add_u32 s10, s10, s26")
    p("s_lshl_b32 s10, s10, 14")
    p("s_lshl_b32 s11, s28, 12")
    p("s_add_u32 s10, s10, s11")
    p("s_add_u32 s16, s10, 8192")
    p("s_lshl_b32 s18, s27, 4")
    p("s_add_u32 s18, s18, s26")
    p("s_lshl_b32 s18, s18, 13")
    p("s_add_u32 s18, s18, s11")
    p(f"s_add_u32 s18, s18, {WS_QX}")
    p(f"s_add_u32 s11, s11, {OWNC}")
    p(f"v_add_u32 {v(WC)}, s11, {v(XC)}")
    p(f"s_mov_b32 s17, {QSCALE}")
    p("s_xor_b32 s19, s26, s29")
    p("s_bitcmp1_b32 s19, 0")
    p("s_cbranch_scc1 P1_EOTH")
    for own in (1, 0):
        n = 0
        order = ((1, 0), (0, 0), (0, 1), (2, 0), (1, 1), (2, 1)) if own else ((0, 0), (0, 1), (1, 0), (1, 1), (2, 0), (2, 1))
        keep = []
        for (ty, rt) in order:
            d = ACC + (rt * 3 + ty) * 16
            if ty == 0:
                for i in range(16): p(f"v_mul_f32 {v(d+i)}, s17, {v(d+i)}")
            for j in range(2):
                o = d + 8 * j if own else 4 * (n % 7); n += 1
                for i in range(4): p(f"v_cvt_pk_bf16_f32 {v(o+i)}, {v(d+8*j+2*i)}, {v(d+8*j+2*i+1)}")
                st = f"buffer_store_dwordx4 {v(o,4)}, {v(XC)}, s[12:15], {('s18', 's10', 's16')[ty]} offen offset:{rt*2048+j*1024}{SC}"
                if own:
                    p(f"ds_write_b128 {v(WC)}, {v(o,4)} offset:{(16384, 0, 8192)[ty]+rt*2048+j*1024}")
                    if ty: keep.append(st)
                else: p(st)
        if own:
            p(f"v_mov_b32 {v(VT)}, 1")
            p(f"v_mov_b32 {v(SY)}, {CNT}")
            for st in keep[:2]: p(st)
            p("s_waitcnt lgkmcnt(0)")
            p("s_mov_b64 exec, 1")
            p(f"ds_add_u32 {v(SY)}, {v(VT)} offset:{C_OWN}")
            p("s_mov_b64 exec, -1")
            for st in keep[2:]: p(st)
            p("s_branch P1_EDONE")
            p.label("P1_EOTH")
    p.label("P1_EDONE")
    p(f"v_mov_b32 v30, {CNT}")
    p("v_mov_b32 v31, 1")
    p(f"s_mul_i32 s34, s27, {FLS}")
    p(f"s_add_u32 s34, s34, {FL_KV}")
    p("s_lshl_b32 s10, s26, 3")
    p("v_mov_b32 v29, s10")
    p("s_waitcnt vmcnt(0)")
    p("s_mov_b64 exec, 1")
    p(f"ds_add_rtn_u32 v31, v30, v31 offset:{C_KVST}")
    p("s_waitcnt lgkmcnt(0)")
    p("v_cmp_eq_u32 vcc, 3, v31")
    p("s_cbranch_vccz P1_NOKVF")
    flag_publish(p, 30, 29, "s34")
    p.label("P1_NOKVF")
    p("s_mov_b64 exec, -1")
    stamp(p, 3)
    p("s_setprio 0")
    p(f"v_mov_b32 v1, {v(XC)}")
    p(f"v_lshrrev_b32 v0, 4, {v(XC)}")
    p(f"v_mov_b32 {v(CA)}, {CNT}")
    p("s_xor_b32 s28, s26, 1")
    p("s_lshl_b32 s18, s27, 4")
    p("s_add_u32 s18, s18, s28")
    p("s_lshl_b32 s18, s18, 13")
    p("s_lshl_b32 s10, s31, 11")
    p("s_add_u32 s18, s18, s10")
    p(f"s_add_u32 s18, s18, {WS_QX}")
    p("s_lshl_b32 s28, s28, 2")
    p("s_add_u32 s28, s28, s31")
    p.label("A_INIT")
    p("v_and_b32 v2, 2, v0")
    p("v_cmp_eq_u32 vcc, 0, v2")
    p("v_mov_b32 v3, 0x3f803f80")
    p("v_mov_b32 v2, 0")
    for i in range(2): p(f"v_cndmask_b32 {v(ONES+i)}, v2, v3, vcc")
    for i in range(2, 4): p(f"v_cndmask_b32 {v(ONES+i)}, v3, v2, vcc")
    p("v_and_b32 v2, 1, v0")
    p("v_mul_u32_u24 v2, 0xaaaa, v2")
    p(f"v_add_u32 {v(IDX)}, 0x4444, v2")
    p(f"v_mov_b32 {v(ONE)}, 1")
    for i in range(12): p(f"v_mov_b32 {v(L+i)}, 0")
    for i in range(16): p(f"v_mov_b32 {v(O+i)}, 0")
    for i in range(12, 16): p(f"v_mov_b32 {v(F1+i)}, 0")
    p("s_and_b32 s29, s26, 1")
    p("s_lshl_b32 s10, s27, 1")
    p("s_add_u32 s29, s29, s10")
    p("s_mov_b32 s22, 0")
    p(f"v_add_u32 {v(VC)}, {OWNC}, v1")
    p("s_lshl_b32 s10, s3, 2")
    p(f"s_add_u32 s10, s10, {CNT + C_PROG}")
    p(f"v_mov_b32 {v(VP)}, s10")
    p("s_mov_b32 s25, 2")
    lds_wait_ge(p, "A_OW", CA, C_OWN, 2, CV_, sleep=opt("owslp", 2))
    for j in range(2): p(f"ds_read_b128 {v(F1+4*j,4)}, {v(VC)} offset:{j*1024}")
    p("s_cmp_ge_u32 s3, 4")
    p("s_cbranch_scc1 A_FARQ")
    for j in range(2): p(f"ds_read_b128 {v(Q+4*j,4)}, {v(SB)} offset:{j*1024}")
    p("s_branch A_HAVEQ")
    p.label("A_FARQ")
    lds_wait_ge(p, "A_QW", CA, C_QRDY, 1, CV_, sleep=2)
    for j in range(2): p(f"buffer_load_dwordx4 {v(Q+4*j,4)}, v1, s[12:15], s18 offen offset:{j*1024}{SC}")
    p("s_waitcnt vmcnt(0)")
    p.label("A_HAVEQ")
    stamp(p, 2)
    p("s_waitcnt lgkmcnt(0)")
    p(mf32(SA, F1, Q, "0"))
    p(mf32(SA, F1+4, Q+4, SA))
    for j in range(2): p(f"ds_read_b128 {v(F0+4*j,4)}, {v(VC)} offset:{2048+j*1024}")
    for j in range(2): p(f"ds_read_b128 {v(F0+8+4*j,4)}, {v(VC)} offset:{8192+j*1024}")
    p("s_nop 7")
    T_ = NEGM
    p(f"v_max3_f32 {v(T_)}, {v(SA)}, {v(SA+1)}, {v(SA+2)}")
    for i in range(3, 15, 2): p(f"v_max3_f32 {v(T_)}, {v(T_)}, {v(SA+i)}, {v(SA+i+1)}")
    p(f"v_max_f32 {v(T_)}, {v(T_)}, {v(SA+15)}")
    p(f"v_mov_b32 {v(CV_)}, {v(T_)}")
    p("s_nop 1")
    p(f"v_permlane32_swap_b32 {v(T_)}, {v(CV_)}")
    p(f"v_max_f32 {v(CV_)}, {v(T_)}, {v(CV_)}")
    for i in range(16): p(f"v_sub_f32 {v(NEGM+i)}, 0, {v(CV_)}")
    for i in range(16): p(f"v_sub_f32 {v(SA+i)}, {v(SA+i)}, {v(CV_)}")
    p("s_branch A_ENTRY")
    ORDER = "w0 Y S0 r0 e3 O1p r1 e3 LS e2 S1 r2 c4 e2 O0 r3 e3 X e3 c4"
    LS = f"v_smfmac_f32_16x16x64_bf16 {v(L,4)}, {v(ONES,4)}, {v(P0,8)}, {v(IDX)}"
    def step(F, Sc, Sn, Fn, u, extra=None, head=None):
        e = 0; c = 0
        for t in ORDER.split():
            if t == "S0":
                if u is not None: p(mf32(Sn, F, Q, NEGM))
            elif t == "S1":
                if u is not None: p(mf32(Sn, F+4, Q+4, Sn))
            elif t == "O0": p(mf32(O, F+8, P0, O))
            elif t == "O1p": p(mf32(O, Fn+12, P1, O))
            elif t == "X":
                if extra: extra()
            elif t == "Y":
                if head: head()
            elif t == "LS": p(LS)
            elif t[0] == "e":
                for _ in range(int(t[1:])): p(f"v_exp_f32 {v(Sc+e)}, {v(Sc+e)}"); e += 1
            elif t[0] == "c":
                for _ in range(int(t[1:])): p(f"v_cvt_pk_bf16_f32 {v(P0+c)}, {v(Sc+2*c)}, {v(Sc+2*c+1)}"); c += 1
            elif t[0] == "r":
                if u is not None:
                    j = int(t[1:])
                    if j >= 2: p(f"ds_read_b128 {v(Fn+4*j,4)}, {v(VC)} offset:{8192+u*2048+(j-2)*1024}")
                    elif u < 3: p(f"ds_read_b128 {v(Fn+4*j,4)}, {v(VC)} offset:{(u+1)*2048+j*1024}")
                    else: p(f"ds_read_b128 {v(Fn+4*j,4)}, {v(VN)} offset:{j*1024}")
            elif t[0] == "w": p(f"s_waitcnt lgkmcnt({t[1:]})")
    def arrive():
        p("s_mov_b64 exec, 1")
        p(f"ds_add_u32 {v(VP)}, {v(ONE)}")
        p("s_mov_b64 exec, -1")
    def peek():
        p(f"ds_read_b32 {v(CV_)}, {v(CA)} offset:{C_KVL}")
        p(f"v_add_u32 {v(VN)}, s22, v1")
        p("s_add_u32 s22, s22, 16384")
        p(f"s_cmp_ge_u32 s22, {RING}")
        p("s_cselect_b32 s22, 0, s22")
    def chk():
        p.label("A_CHK")
        p(f"v_cmp_gt_u32 vcc, s25, {v(CV_)}")
        p("s_cbranch_vccnz A_SPIN")
    def flip():
        p(f"v_mov_b32 {v(VC)}, {v(VN)}")
        p("s_add_u32 s25, s25, 1")
    LAD = [int(c) for c in OPT.get("lad", "3210")]
    p.label("A_SPIN")
    bail(p)
    p("s_sleep 1")
    p(f"ds_read_b32 {v(CV_)}, {v(CA)} offset:{C_KVL}")
    p("s_waitcnt lgkmcnt(0)")
    p("s_branch A_CHK")
    p.pads(0)
    p.label("A_LOOP")
    p(f"s_setprio {LAD[0]}")
    step(F1, SB, SA, F0, 0, extra=arrive)
    p.label("A_ENTRY")
    p(f"s_setprio {LAD[1]}")
    step(F0, SA, SB, F1, 1)
    p(f"s_setprio {LAD[2]}")
    step(F1, SB, SA, F0, 2, extra=peek)
    p(f"s_setprio {LAD[3]}")
    step(F0, SA, SB, F1, 3, extra=flip, head=chk)
    if STAMP:
        for (n_, i_) in ((3, 4), (4, 5), (6, 6), (10, 7)):
            p(f"s_cmp_lg_u32 s25, {n_}")
            p(f"s_cbranch_scc1 A_ST{n_}")
            stamp(p, i_)
            p.label(f"A_ST{n_}")
    p("s_cmp_lt_u32 s25, 18")
    p("s_cbranch_scc1 A_LOOP")
    p.pads(PADN)
    step(F1, SB, SA, F0, None, extra=arrive)
    p("s_nop 1")
    p(mf32(O, F1+12, P1, O))
    p(LS)
    stamp(p, 8)
    p("v_and_b32 v2, 256, v1")
    p("v_cmp_eq_u32 vcc, 0, v2")
    p("s_lshl_b32 s10, s28, 16")
    p("s_lshl_b32 s11, s29, 11")
    p("s_add_u32 s10, s10, s11")
    p("s_nop 3")
    p(f"s_add_u32 s35, s10, {WS_O}")
    p(f"s_mov_b32 s11, {f32bits(2.0**100)}")
    p("s_nop 0")
    p(f"v_add_f32 {v(L)}, {v(L)}, {v(L+1)}")
    p(f"v_add_f32 {v(L+2)}, {v(L+2)}, {v(L+3)}")
    p(f"v_cndmask_b32 v2, {v(L+2)}, {v(L)}, vcc")
    p(f"v_add_f32 v3, abs({v(O)}), v2")
    for i in range(1, 16): p(f"v_add_f32 v3, abs({v(O+i)}), v3")
    p("v_cmp_ngt_f32 vcc, s11, v3")
    if opt("forcefb"): p("s_branch A_FALLBACK")
    p("s_cbranch_vccnz A_FALLBACK")
    p.label("A_FIN")
    p("v_rcp_f32 v2, v2")
    p("s_nop 0")
    for j in range(2):
        for i in range(8 * j, 8 * j + 8): p(f"v_mul_f32 {v(O+i)}, v2, {v(O+i)}")
        for i in range(4 * j, 4 * j + 4): p(f"v_cvt_pk_bf16_f32 {v(P0+i)}, {v(O+2*i)}, {v(O+2*i+1)}")
        p(f"buffer_store_dwordx4 {v(P0+4*j,4)}, v1, s[12:15], s35 offen offset:{1024*j}{SC}")
    OB, WF, AC3 = 76, 8, 40
    p(f"s_load_dwordx2 s[36:37], s[0:1], {D_OUT}")
    p("s_setprio 0")
    p("s_and_b32 s10, s26, 14")
    p(f"s_mul_i32 s34, s10, {FLS}")
    p(f"s_add_u32 s34, s34, {FL_O}")
    p("s_lshl_b32 s10, s29, 3")
    p("s_add_u32 s34, s34, s10")
    p("v_lshrrev_b32 v0, 4, v1")
    p(f"v_mul_u32_u24 v72, {FLS}, v0")
    p("s_waitcnt vmcnt(0)")
    p("s_mov_b64 exec, 1")
    p(f"ds_add_rtn_u32 {v(CV_)}, {v(CA)}, {v(ONE)} offset:{C_OARR}")
    p("s_waitcnt lgkmcnt(0)")
    p(f"v_cmp_eq_u32 vcc, 7, {v(CV_)}")
    p("s_cbranch_vccz G_NOFLAG")
    p("s_mov_b64 exec, 3")
    flag_publish(p, 2, 72, "s34")
    p.label("G_NOFLAG")
    p("s_mov_b64 exec, -1")
    stamp(p, 9)
    tile3(p)
    p("s_and_b32 s28, s3, 3")
    p("s_lshl_b32 s10, s38, 2")
    p("s_add_u32 s28, s28, s10")
    p("s_lshr_b32 s29, s3, 2")
    p("s_lshl_b32 s10, s28, 16")
    p("s_lshl_b32 s11, s29, 12")
    p("s_add_u32 s10, s10, s11")
    p(f"s_add_u32 s10, s10, {WS_O}")
    srd(p, 16, 98, 99, 65536, off="s10")
    srd(p, 20, 36, 37, 8 * MB)
    p("v_lshrrev_b32 v6, 5, v0")
    p("v_lshlrev_b32 v5, 9, v6")
    p("v_bfe_u32 v7, v0, 2, 2")
    p("v_lshl_add_u32 v5, v7, 6, v5")
    p("v_bfe_u32 v7, v0, 4, 1")
    p("v_lshl_add_u32 v5, v7, 5, v5")
    p("v_and_b32 v7, 3, v0")
    p("v_lshl_add_u32 v5, v7, 3, v5")
    p("s_lshl_b32 s10, s29, 13")
    p("v_add_u32 v5, s10, v5")
    for i in range(AC3, AC3 + 32): p(f"v_mov_b32 {v(i)}, 0")
    p("v_and_b32 v73, 31, v0")
    p("v_lshlrev_b32 v73, 12, v73")
    p("v_lshl_add_u32 v73, v6, 4, v73")
    p("s_lshl_b32 s10, s3, 12")
    p("v_add_u32 v74, s10, v1")
    p("v_xor_b32 v75, 16384, v74")
    p("s_lshl_b32 s30, s28, 17")
    p("s_lshl_b32 s11, s39, 7")
    p("s_add_u32 s30, s30, s11")
    p("s_lshl_b32 s11, s29, 6")
    p("s_add_u32 s30, s30, s11")
    p("s_add_u32 s30, s30, 2048")
    p("s_mov_b32 s24, 0")
    p("s_mov_b32 s25, 0")
    p(f"s_mov_b32 s31, {WTAB}")
    def acq(u):
        j = u % 3
        p("s_andn2_b32 s10, s25, s24")
        p(f"s_cbranch_scc1 G_AQ{u}b")
        p.label(f"G_AQ{u}a")
        p(f"ds_read_b32 {v(CV_)}, {v(CA)} offset:{C_OMASK}")
        p("s_waitcnt lgkmcnt(0)")
        p(f"v_readfirstlane_b32 s25, {v(CV_)}")
        p("s_andn2_b32 s10, s25, s24")
        p(f"s_cbranch_scc1 G_AQ{u}b")
        bail(p)
        p("s_sleep 2")
        p(f"s_branch G_AQ{u}a")
        p.label(f"G_AQ{u}b")
        p("s_ff1_i32_b32 s11, s10")
        p("s_bitset1_b32 s24, s11")
        p("s_lshl_b32 s10, s11, 11")
        p("s_lshr_b32 s11, s31, s11")
        p("s_and_b32 s11, s11, 15")
        p(f"s_lshl_b32 s{40+j}, s11, 14")
        for n in range(4): p(f"buffer_load_dwordx4 {v(OB+16*j+4*n,4)}, v1, s[16:19], s10 offen offset:{1024*n}{SC}")
    def rdw(u):
        p(f"v_add_u32 v4, s{40+u%3}, v5")
        for ks in range(4):
            for nt in range(2):
                for h in range(2): p(f"ds_read_b64_tr_b16 {v(WF+8*ks+4*nt+2*h,2)}, v4 offset:{ks*2048+h*1024+nt*256}")
    acq(0)
    stamp(p, 10)
    rdw(0); acq(1); acq(2)
    for u in range(8):
        rest = 4 * min(2, 7 - u)
        for ks in range(4):
            p(f"s_waitcnt vmcnt({rest + 3 - ks}) lgkmcnt({12 - 4*ks})")
            for nt in range(2): p(mf32(AC3+16*nt, WF+8*ks+4*nt, OB+16*(u%3)+4*ks, AC3+16*nt))
        if u < 7: rdw(u + 1)
        if u + 3 < 8: acq(u + 3)
    stamp(p, 11)
    p("s_barrier")
    p("s_cmp_eq_u32 s29, 0")
    p("s_cbranch_scc1 G_X0")
    p("s_nop 7")
    for j in range(4): p(f"ds_write_b128 v74, {v(AC3+4*j,4)} offset:{1024*j}")
    for i in range(16): p(f"v_mov_b32 {v(AC3+i)}, {v(AC3+16+i)}")
    p("s_branch G_X1")
    p.label("G_X0")
    p("s_nop 8")
    for j in range(4): p(f"ds_write_b128 v74, {v(AC3+16+4*j,4)} offset:{1024*j}")
    p.label("G_X1")
    p("s_waitcnt lgkmcnt(0)")
    p("s_barrier")
    for j in range(4): p(f"ds_read_b128 {v(AC3+16+4*j,4)}, v75 offset:{1024*j}")
    for pr in range(2):
        p(f"s_waitcnt lgkmcnt({2-2*pr})")
        for i in range(8 * pr, 8 * pr + 8): p(f"v_add_f32 {v(AC3+i)}, {v(AC3+i)}, {v(AC3+16+i)}")
        b = WF + 4 * pr
        for i in range(4): p(f"v_cvt_pk_bf16_f32 {v(b+i)}, {v(AC3+8*pr+2*i)}, {v(AC3+8*pr+2*i+1)}")
        p("s_nop 1")
        p(f"v_permlane32_swap_b32 {v(b)}, {v(b+2)}")
        p(f"v_permlane32_swap_b32 {v(b+1)}, {v(b+3)}")
        p(f"buffer_store_dwordx4 {v(b,4)}, v73, s[20:23], s30 offen offset:{32*pr}")
    stamp(p, 12)
    stamp_flush(p)
    p.pads(0)
    p.label("L_END")
    p("s_endpgm")
    p.label("A_FALLBACK")
    M_, AL = NEGM, NEGM + 1
    for i in range(16): p(f"v_mov_b32 {v(O+i)}, 0")
    p("v_mov_b32 v2, 0")
    p(f"v_mov_b32 {v(M_)}, 0xff7fffff")
    p("s_lshl_b32 s30, s29, 18")
    p("s_mov_b32 s25, 0")
    p.label("A_FBL")
    p("s_lshr_b32 s10, s25, 2")
    p("s_lshl_b32 s10, s10, 14")
    p("s_and_b32 s11, s25, 3")
    p("s_lshl_b32 s11, s11, 11")
    p("s_add_u32 s10, s10, s11")
    p("s_add_u32 s10, s10, s30")
    p("s_add_u32 s11, s10, 8192")
    for j in range(2): p(f"buffer_load_dwordx4 {v(F0+4*j,4)}, v1, s[12:15], s10 offen offset:{1024*j}{SC}")
    for j in range(2): p(f"buffer_load_dwordx4 {v(F0+8+4*j,4)}, v1, s[12:15], s11 offen offset:{1024*j}{SC}")
    p("s_waitcnt vmcnt(0)")
    p(mf32(SA, F0, Q, "0"))
    p(mf32(SA, F0+4, Q+4, SA))
    p("s_nop 15")
    p(f"v_max3_f32 v3, {v(SA)}, {v(SA+1)}, {v(M_)}")
    for i in range(2, 16, 2): p(f"v_max3_f32 v3, v3, {v(SA+i)}, {v(SA+i+1)}")
    p(f"v_mov_b32 {v(SB)}, v3")
    p("s_nop 1")
    p(f"v_permlane32_swap_b32 v3, {v(SB)}")
    p(f"v_max_f32 v3, v3, {v(SB)}")
    p(f"v_sub_f32 {v(AL)}, {v(M_)}, v3")
    p(f"v_exp_f32 {v(AL)}, {v(AL)}")
    p(f"v_mov_b32 {v(M_)}, v3")
    for i in range(16): p(f"v_sub_f32 {v(SA+i)}, {v(SA+i)}, v3")
    for i in range(16): p(f"v_exp_f32 {v(SA+i)}, {v(SA+i)}")
    p(f"v_mul_f32 v2, v2, {v(AL)}")
    for i in range(16): p(f"v_mul_f32 {v(O+i)}, {v(O+i)}, {v(AL)}")
    for i in range(16): p(f"v_add_f32 v2, v2, {v(SA+i)}")
    for i in range(8): p(f"v_cvt_pk_bf16_f32 {v(P0+i)}, {v(SA+2*i)}, {v(SA+2*i+1)}")
    p("s_nop 1")
    p(mf32(O, F0+8, P0, O))
    p(mf32(O, F0+12, P1, O))
    p("s_nop 15")
    p("s_add_u32 s25, s25, 1")
    p("s_cmp_lt_u32 s25, 64")
    p("s_cbranch_scc1 A_FBL")
    p("v_mov_b32 v3, v2")
    p("s_nop 1")
    p("v_permlane32_swap_b32 v2, v3")
    p("v_add_f32 v2, v2, v3")
    p("s_branch A_FIN")

    p.label("L_HELPERS")
    p("s_cmp_ge_u32 s3, 9")
    p("s_cbranch_scc1 L_PARTA")
    emit_w8(p)
    p.label("L_PARTA")
    emit_partA(p)

def emit_w8(p):
    p(f"s_load_dwordx2 s[36:37], s[0:1], {B_WO}")
    if opt("cpf", 1):
        p("s_getpc_b64 s[40:41]")
        p.label("W8_PC")
        p(f"s_sub_u32 s40, s40, W8_PC-{NAME}")
        p("s_subb_u32 s41, s41, 0")
        p("v_lshlrev_b32 v21, 7, v0")
        for j in range(2):
            p(f"v_add_u32 v22, {8192*j}, v21")
            p(f"v_min_u32 v22, L_CODE_END-{NAME}-4, v22")
            p(f"global_load_dword v{23+j}, v22, s[40:41]")
    p("s_barrier")
    p("v_and_b32 v8, 3, v0")
    p("v_lshlrev_b32 v8, 2, v8")
    p(f"v_add_u32 v8, {CNT}, v8")
    p("v_and_b32 v9, 7, v0")
    p("v_lshlrev_b32 v9, 2, v9")
    p(f"v_add_u32 v9, {CNT}, v9")
    p(f"v_mov_b32 v20, {CNT}")
    p("s_waitcnt lgkmcnt(0)")
    p("s_add_u32 s94, s96, 0x1000000")
    p("s_addc_u32 s95, s97, 0")
    p("v_lshlrev_b32 v1, 4, v0")
    p("v_and_b32 v6, 15, v0")
    p("v_lshlrev_b32 v6, 3, v6")
    srd(p, 12, 98, 99, WS_SIZE)
    p(f"s_mul_i32 s34, s27, {FLS}")
    p(f"s_add_u32 s34, s34, {FL_KV}")
    p("s_and_b32 s30, s26, 1")
    p("s_lshl_b32 s10, s27, 1")
    p("s_add_u32 s30, s30, s10")
    p("s_lshl_b32 s30, s30, 18")
    p("s_xor_b32 s31, s26, 1")
    p("s_mov_b32 s47, 0")
    p("v_and_b32 v16, 31, v0")
    p("v_lshlrev_b32 v16, 3, v16")
    p("s_lshl_b32 s44, 1, s26")
    p("s_mov_b32 s45, 0")
    p("s_mov_b32 s46, 0x4000")
    p("s_mov_b32 s21, 0")
    p("s_mov_b32 s25, 1")
    tile3(p)
    p("v_lshrrev_b32 v5, 5, v0")
    p("v_lshlrev_b32 v5, 2, v5")
    p("v_bfe_u32 v7, v0, 2, 2")
    p("v_add_u32 v5, v5, v7")
    p("v_lshlrev_b32 v5, 11, v5")
    p("v_bfe_u32 v7, v0, 4, 1")
    p("v_lshl_add_u32 v5, v7, 6, v5")
    p("v_and_b32 v7, 3, v0")
    p("v_lshl_add_u32 v10, v7, 4, v5")
    for jj in range(1, 4): p(f"v_add_u32 {v(10+jj)}, {jj*(16384-1024)}, v10")
    p("s_lshl_b32 s11, s39, 7")
    p(f"s_sub_u32 s18, {2*MB}, s11")
    p("s_add_u32 s16, s36, s11")
    p("s_addc_u32 s17, s37, 0")
    p("s_mov_b32 s19, 0x20000")
    p("s_setprio 3")
    lds_wait_ge(p, "W8_E0", 8, C_CONS, 15, 3, sleep=16)
    lds_wait_ge(p, "W8_E1", 8, C_CONS, 17, 3, sleep=2)
    if opt("kvw", 4): lds_wait_ge(p, "W8_E2", 20, C_KVST, opt("kvw", 4), 3, sleep=1)
    stamp(p, 1)
    p.label("W8_LOOP")
    p("s_cmp_eq_u32 s47, 0")
    p("s_cbranch_scc1 W8_POLL")
    p("s_andn2_b32 s10, s45, s44")
    p("s_cbranch_scc1 W8_HAVE")
    p.label("W8_POLL")
    p(f"buffer_load_dwordx2 v[14:15], v6, s[12:15], s34 offen{SC}")
    p("v_mov_b32 v3, s25")
    p("s_waitcnt vmcnt(1)")
    p(f"ds_write_b32 v20, v3 offset:{C_KVL}")
    p("s_waitcnt vmcnt(0)")
    if STAMP:
        p("s_cmp_lg_u32 s46, 0x4000")
        p("s_cbranch_scc1 W8_STP")
        stamp(p, 6)
        p.label("W8_STP")
    flag_test(p, 14)
    p("s_and_b32 s45, vcc_lo, 0xffff")
    p("s_sub_u32 s46, s46, 1")
    p("s_cselect_b32 s45, 0xffff, s45")
    p("s_lshr_b32 s47, s45, s31")
    p("s_and_b32 s47, s47, 1")
    p("v_mov_b32 v3, s47")
    p(f"ds_write_b32 v20, v3 offset:{C_QRDY}")
    p("s_andn2_b32 s10, s45, s44")
    p("s_cbranch_scc1 W8_HAVE")
    p(f"s_sleep {opt('kslp', 4)}")
    p("s_branch W8_POLL")
    p.label("W8_NOSLOT")
    p("v_mov_b32 v3, s25")
    p("s_waitcnt vmcnt(0)")
    p(f"ds_write_b32 v20, v3 offset:{C_KVL}")
    bail(p)
    p("s_sleep 4")
    p("s_branch W8_LOOP")
    p.label("W8_HAVE")
    p("s_sub_u32 s24, s25, 5")
    p(f"ds_read_b32 v3, v9 offset:{C_PROG}")
    p("s_waitcnt lgkmcnt(0)")
    p("v_cmp_gt_i32 vcc, s24, v3")
    p("s_cbranch_vccnz W8_NOSLOT")
    p("s_lshr_b32 s11, s10, s26")
    p("s_cselect_b32 s11, s11, s10")
    p("s_cselect_b32 s20, s26, 0")
    p("s_ff1_i32_b32 s11, s11")
    p("s_add_u32 s11, s11, s20")
    p("s_bitset1_b32 s44, s11")
    p("s_lshl_b32 s20, s11, 14")
    p("s_add_u32 s20, s20, s30")
    for q_ in range(4):
        p("s_mov_b32 m0, s21")
        p("s_add_u32 s21, s21, 4096")
        for j in range(4): p(f"buffer_load_dwordx4 v1, s[12:15], s20 offen offset:{1024*j}{SC} lds")
        p("s_add_u32 s20, s20, 4096")
    p(f"s_cmp_ge_u32 s21, {RING}")
    p("s_cselect_b32 s21, 0, s21")
    p("v_mov_b32 v3, s25")
    p("s_add_u32 s25, s25, 1")
    p("s_waitcnt vmcnt(16)")
    p(f"ds_write_b32 v20, v3 offset:{C_KVL}")
    if STAMP:
        for (n_, i_) in ((2, 2), (3, 3), (6, 4)):
            p(f"s_cmp_lg_u32 s25, {n_}")
            p(f"s_cbranch_scc1 W8_ST{n_}")
            stamp(p, i_)
            p.label(f"W8_ST{n_}")
    p("s_cmp_lt_u32 s25, 16")
    p("s_cbranch_scc1 W8_LOOP")
    p("v_mov_b32 v3, 17")
    p("s_waitcnt vmcnt(0)")
    p(f"ds_write_b32 v20, v3 offset:{C_KVL}")
    stamp(p, 5)
    p(f"s_mul_i32 s34, s38, {FLS}")
    p(f"s_add_u32 s34, s34, {FL_O}")
    order = [(0, 8, 4), (1, 8, 4), (2, 8, 4), (3, 11, 4), (4, 12, 4), (5, 13, 4), (6, 14, 4), (7, 15, 4)]
    pack = lambda f: sum(f(o) << (4 * i) for i, o in enumerate(order))
    p(f"s_mov_b32 s41, {WTAB}")
    p(f"s_mov_b32 s42, {pack(lambda o: o[1] - 8)}")
    p("s_mov_b32 s25, 0")
    p("s_mov_b32 s44, 0")
    p("s_mov_b32 s46, 0x4000")
    lds_wait_ge(p, "W8_CV", 20, C_A2, 4, 3, sleep=4)
    p.label("W8_WLOOP")
    p("s_and_b32 s24, s42, 15")
    p("s_add_u32 s24, s24, 8")
    p(f"ds_read_b32 v3, v9 offset:{C_PROG}")
    p("s_waitcnt lgkmcnt(0)")
    p("v_cmp_gt_i32 vcc, s24, v3")
    p("s_cbranch_vccnz W8_WSKIP")
    p("s_lshl_b32 s20, s25, 18")
    p("s_and_b32 s21, s41, 15")
    p("s_lshl_b32 s21, s21, 14")
    p("s_lshl_b32 s10, s25, 2")
    p("s_bitset1_b32 s44, s10")
    for q_ in range(4):
        p("s_mov_b32 m0, s21")
        p("s_add_u32 s21, s21, 4096")
        for jj in range(4): p(f"buffer_load_dwordx4 {v(10+jj)}, s[16:19], s20 offen offset:{1024*jj} lds")
        p("s_add_u32 s20, s20, 65536")
    for r_ in (41, 42): p(f"s_lshr_b32 s{r_}, s{r_}, 4")
    p("s_waitcnt vmcnt(32)")
    p("s_add_u32 s25, s25, 1")
    p("s_cmp_lt_u32 s25, 8")
    p("s_cbranch_scc1 W8_WLOOP")
    lds_wait_ge(p, "W8_OW", 20, C_OARR, opt("ostart", 8), 3, sleep=4)
    p.label("W8_WSKIP")
    p("s_cmp_lt_u32 s25, 8")
    p("s_cbranch_scc1 W8_WNEXT")
    p.label("W8_OPOLL")
    p(f"buffer_load_dwordx2 v[14:15], v16, s[12:15], s34 offen{SC}")
    p("s_waitcnt vmcnt(0)")
    flag_test(p, 14)
    p("s_lshr_b32 s10, vcc_lo, 1")
    p("s_and_b32 s45, vcc_lo, s10")
    p("s_lshr_b32 s10, s45, 2")
    p("s_and_b32 s45, s45, s10")
    p("s_sub_u32 s46, s46, 1")
    p("s_cselect_b32 s45, -1, s45")
    p("s_and_b32 s45, s45, s44")
    p("v_mov_b32 v3, s45")
    p(f"ds_write_b32 v20, v3 offset:{C_OMASK}")
    p("s_cmp_eq_u32 s45, 0x11111111")
    p("s_cbranch_scc1 W8_DONE")
    p.label("W8_WNEXT")
    bail(p)
    p(f"s_sleep {opt('oslp', 8)}")
    p("s_cmp_lt_u32 s25, 8")
    p("s_cbranch_scc1 W8_WLOOP")
    p("s_branch W8_OPOLL")
    p.label("W8_DONE")
    stamp(p, 12)
    stamp_flush(p)
    p("s_endpgm")

def emit_partA(p):
    pre = "PA"
    p(f"s_load_dwordx8 s[36:43], s[0:1], {A_Q}")
    p(f"s_load_dwordx4 s[44:47], s[0:1], {A_SSMK}")
    p(f"s_load_dwordx4 s[48:51], s[0:1], {B_WO}")
    p("s_barrier")
    if p.npads:
        p("s_cmp_lg_u32 s3, 9")
        p(f"s_cbranch_scc1 WP{p.npads}")
        p(f"s_sleep {opt('padslp', 64)}")
        p("s_mov_b64 exec, 0")
        p("s_branch WP0")
        p.label(f"WP{p.npads}")
        p("s_mov_b64 exec, -1")
    p("s_sub_u32 s3, s3, 9")
    p("s_and_b32 s28, s2, 15")
    p("s_and_b32 s10, s28, 7")
    p("s_lshr_b32 s11, s28, 3")
    p("s_lshl_b32 s28, s10, 1")
    p("s_add_u32 s28, s28, s11")
    p("s_lshr_b32 s29, s2, 4")
    p("s_lshl_b32 s35, s29, 3")
    p("s_lshl_b32 s29, s29, 2")
    p("s_add_u32 s29, s29, s3")
    p("s_lshl_b32 s27, s28, 6")
    p("s_add_u32 s27, s27, s29")
    p(f"s_mul_i32 s30, s3, {CV_STRIDE}")
    p(f"s_add_u32 s30, s30, {CV_BASE}")
    p("v_and_b32 v1, 7, v0")
    p("v_lshrrev_b32 v2, 3, v0")
    p("s_lshl_b32 s10, s29, 5")
    p("v_lshl_add_u32 v3, v2, 2, s10")
    p("s_lshl_b32 s11, s28, 7")
    p("v_lshl_add_u32 v4, v1, 4, s11")
    p("v_lshl_add_u32 v120, v3, 11, v4")
    p("v_lshl_add_u32 v122, v3, 12, v4")
    p("v_lshlrev_b32 v121, 11, v4")
    p("v_lshl_add_u32 v121, v2, 4, v121")
    p("s_lshr_b32 s31, s29, 4")
    p("s_lshl_b32 s31, s31, 10")
    p("s_and_b32 s26, s29, 7")
    p("s_lshl_b32 s26, s26, 7")
    p("s_add_u32 s31, s31, s26")
    p("s_and_b32 s26, s29, 8")
    p("s_add_u32 s31, s31, s26")
    p("v_add_u32 v121, s31, v121")
    p("v_and_b32 v123, 15, v0")
    p("v_lshlrev_b32 v123, 3, v123")
    p("v_lshlrev_b32 v124, 4, v0")
    p("v_and_b32 v1, 15, v0")
    p("v_lshrrev_b32 v2, 4, v0")
    p("v_lshl_add_u32 v3, v2, 3, s10")
    p("v_lshl_add_u32 v4, v1, 3, s11")
    p("v_lshl_add_u32 v9, v3, 11, v4")
    for j in range(3): p(f"v_add_u32 {v(6+j)}, {(j-3)*2048}, v9")
    for j in range(1, 4): p(f"v_add_u32 {v(9+j)}, {j*4096}, v9")
    p("v_lshlrev_b32 v13, 2, v4")
    p("v_lshrrev_b32 v14, 1, v4")
    p(f"v_mul_u32_u24 v14, {XRS}, v14")
    p("v_lshlrev_b32 v15, 1, v3")
    p("v_sub_u32 v15, 4080, v15")
    p("v_add_u32 v15, v15, v14")
    p("v_lshl_add_u32 v14, v2, 4, v14")
    p("s_lshl_b32 s33, s27, 12")
    p("s_mov_b32 s32, 0xffff0000")
    p(f"s_mul_i32 s34, s28, {FLS}")
    p(f"s_add_u32 s34, s34, {FL_A1}")
    p(f"s_mul_i32 s31, s27, {XRS}")
    p(f"s_add_u32 s31, s31, {WS_XR}")
    p("s_add_u32 s26, s31, 4096")
    p("v_and_b32 v1, 3, v0")
    p("v_lshlrev_b32 v1, 2, v1")
    p(f"v_add_u32 v1, {CNT}, v1")
    p("s_waitcnt lgkmcnt(0)")
    p("s_add_u32 s94, s96, 0x1000000")
    p("s_addc_u32 s95, s97, 0")
    srd(p, 12, 98, 99, WS_SIZE)
    srd(p, 16, 38, 39, 4 * MB)
    srd(p, 20, 40, 41, 4 * MB)
    srd(p, 52, 42, 43, 8192)
    if opt("tch", 0):
        p("v_min_u32 v4, 34, v0")
        p("s_lshl_b32 s10, s29, 5")
        p("s_sub_u32 s10, s10, 3")
        p("v_add_u32 v4, s10, v4")
        p("v_lshlrev_b32 v4, 11, v4")
        p("v_add_u32 v4, s11, v4")
        p(f"s_mul_i32 s10, s3, {opt('tchs', 1)}")
        p(f"s_add_u32 s10, s10, {opt('tch', 0)}")
        lds_wait_ge(p, "PA_T0", 1, C_LAND, "s10", 2, sleep=8)
        p("buffer_load_dword v116, v4, s[16:19], 0 offen")
        p("buffer_load_dword v117, v4, s[20:23], 0 offen")
    p(f"v_mov_b32 v1, {CNT}")
    if opt("hwk", 5):
        lds_wait_ge(p, "PA_W0", 1, C_KVL, opt("hwk", 5), 2, sleep=opt("w0slp", 8))
    else:
        lds_wait_ge(p, "PA_W0", 1, C_KVST, opt("hws", 4), 2, sleep=4)
    p(f"s_setprio {opt('cvprio', 3)}")
    stamp(p, 1)
    KR, VR, SR = 16, 38, 56
    def rowaddr(j):
        if j < 3: return v(6 + j), 0
        return v(9 + (j - 3) // 2), 2048 * ((j - 3) & 1)
    for j in range(2): p(f"buffer_load_dwordx4 {v(SR+4*j,4)}, v13, s[52:55], 0 offen offset:{16*j}")
    for j in range(11):
        a_, o_ = rowaddr(j); p(f"buffer_load_dwordx2 {v(KR+2*j,2)}, {a_}, s[16:19], 0 offen offset:{o_}")
    for j in range(8):
        a_, o_ = rowaddr(j + 3); p(f"buffer_load_dwordx2 {v(VR+2*j,2)}, {a_}, s[20:23], 0 offen offset:{o_}")
    srd(p, 16, 44, 45, 4096, off="s33")
    srd(p, 20, 46, 47, 2048)
    T, KU, AC, OUT = 64, 72, 94, 112
    for cp in range(2):
        if cp == 0:
            p("s_waitcnt vmcnt(8)"); stamp(p, 2)
        for e in range(2):
            for jj in range(2):
                src = SR + 4 * cp + 2 * e + jj
                p(f"v_lshlrev_b32 {v(T+2*(2*jj)+e)}, 16, {v(src)}")
                p(f"v_and_b32 {v(T+2*(2*jj+1)+e)}, s32, {v(src)}")
        for j in range(11):
            p(f"v_lshlrev_b32 {v(KU+2*j)}, 16, {v(KR+2*j+cp)}")
            p(f"v_and_b32 {v(KU+2*j+1)}, s32, {v(KR+2*j+cp)}")
        for t in range(8): p(f"v_pk_mul_f32 {v(AC+2*t,2)}, {v(KU+2*t,2)}, {v(T+6,2)}")
        for j in (2, 1, 0):
            for t in range(8): p(f"v_pk_fma_f32 {v(AC+2*t,2)}, {v(KU+2*(t-j+3),2)}, {v(T+2*j,2)}, {v(AC+2*t,2)}")
        if cp == 0: p("s_waitcnt vmcnt(0)")
        for j in range(8):
            p(f"v_lshlrev_b32 {v(KU+2*j)}, 16, {v(VR+2*j+cp)}")
            p(f"v_and_b32 {v(KU+2*j+1)}, s32, {v(VR+2*j+cp)}")
        for t in range(8): p(f"v_pk_mul_f32 {v(AC+2*t,2)}, {v(AC+2*t,2)}, {v(KU+2*t,2)}")
        for e in range(2):
            for i in range(4): p(f"v_cvt_pk_bf16_f32 {v(OUT+4*e+i)}, {v(AC+2*(7-2*i)+e)}, {v(AC+2*(6-2*i)+e)}")
            p(f"s_mov_b32 s10, {WS_XR + (2*cp+e)*XRS}")
            p(f"buffer_store_dwordx4 {v(OUT+4*e,4)}, v15, s[12:15], s10 offen{SC}")
    p("s_cmp_lg_u32 s29, 0")
    p(f"s_cbranch_scc1 {pre}_S1END")
    for i in range(4): p(f"v_mov_b32 {v(8+i)}, 0")
    for c in range(4):
        p(f"s_mov_b32 s10, {WS_XR + c*XRS + 4096}")
        p(f"buffer_store_dwordx4 v[8:11], v14, s[12:15], s10 offen{SC}")
    p.label(f"{pre}_S1END")
    def signal_and_wait(tag, coff, work=None):
        p(f"v_mov_b32 v1, {CNT + coff}")
        p("v_mov_b32 v2, 1")
        p("v_mov_b32 v3, s35")
        p("s_waitcnt vmcnt(0)")
        p("s_mov_b64 exec, 1")
        p("ds_add_rtn_u32 v126, v1, v2")
        p("s_mov_b32 s25, 0x4000")
        p("s_waitcnt lgkmcnt(0)")
        p("v_readfirstlane_b32 s24, v126")
        p("s_cmp_lg_u32 s24, 3")
        p(f"s_cbranch_scc1 {pre}_NOSIG{tag}")
        flag_publish(p, 126, 3, "s34")
        p.label(f"{pre}_NOSIG{tag}")
        p("s_mov_b64 exec, -1")
        if work: work()
        p("s_cmp_lg_u32 s24, 3")
        p(f"s_cbranch_scc1 {pre}_LWAIT{tag}")
        p.label(f"{pre}_POLL{tag}")
        p(f"s_sleep {opt('slp', 8)}")
        p(f"buffer_load_dwordx2 v[126:127], v123, s[12:15], s34 offen{SC}")
        p("s_sub_u32 s25, s25, 1")
        p(f"s_cbranch_scc1 {pre}_GOT{tag}")
        p("s_waitcnt vmcnt(0)")
        flag_test(p, 126)
        p("s_cmp_lg_u64 vcc, -1")
        p(f"s_cbranch_scc1 {pre}_POLL{tag}")
        p.label(f"{pre}_GOT{tag}")
        p("ds_write_b32 v1, v2 offset:4")
        p(f"s_branch {pre}_GO{tag}")
        p.label(f"{pre}_LWAIT{tag}")
        bail(p)
        p("s_sleep 4")
        p("ds_read_b32 v126, v1 offset:4")
        p("s_waitcnt lgkmcnt(0)")
        p("v_cmp_ne_u32 vcc, 1, v126")
        p(f"s_cbranch_vccnz {pre}_LWAIT{tag}")
        p.label(f"{pre}_GO{tag}")
    AB, BB, KVB, ST = 8, 12, 13, 14
    FA, FBB, ACC = 16, 48, 80
    def hload():
        p("v_and_b32 v5, 7, v0")
        p("v_lshlrev_b32 v5, 2, v5")
        p(f"v_add_u32 v5, {CNT}, v5")
        lds_wait_ge(p, "PA_W1", 5, C_PROG, opt("hw1", 1), 6, sleep=4)
        p("v_add_u32 v118, -512, v124")
        p("v_add_u32 v119, 512, v124")
        p("s_lshl_b32 s10, s27, 1")
        p("v_mov_b32 v117, s10")
        p(f"s_add_u32 m0, s30, {CV_H}")
        p("buffer_load_ushort v125, v117, s[20:23], 0 offen")
        p("buffer_load_dwordx4 v118, s[16:19], 0 offen lds")
        p(f"s_add_u32 m0, s30, {CV_H + 1024}")
        p("s_nop 0")
        for j in range(4): p(f"buffer_load_dwordx4 v119, s[16:19], 0 offen offset:{1024*j} lds")
        srd(p, 52, 48, 49, 2 * MB)
        p("s_lshl_b32 s10, s27, 11")
        p("v_lshlrev_b32 v7, 5, v0")
        p("buffer_load_dword v116, v7, s[52:55], s10 offen")
        p("v_and_b32 v5, 15, v0")
        p("v_lshrrev_b32 v6, 4, v0")
        p("v_lshrrev_b32 v3, 1, v5")
        p("v_lshlrev_b32 v4, 2, v6")
        p("v_sub_u32 v4, v4, v3")
        p("v_lshlrev_b32 v4, 2, v4")
        p("v_and_b32 v3, 1, v5")
        p("v_xor_b32 v3, 1, v3")
        p(f"v_mul_u32_u24 v3, {CV_C1}, v3")
        p(f"s_add_u32 s10, s30, {4*1023 - 32*(112+1)}")
        p(f"v_add3_u32 {v(AB)}, v4, v3, s10")
        for kk in range(1, 4): p(f"v_add_u32 {v(AB+kk)}, {1024*kk}, {v(AB)}")
        p("v_lshlrev_b32 v3, 5, v5")
        p("v_lshl_add_u32 v4, v6, 4, v3")
        p(f"s_add_u32 s10, s30, {CV_H + 512 - 32}")
        p(f"v_add_u32 {v(BB)}, s10, v4")
        p(f"v_lshl_add_u32 {v(ST)}, v6, 3, v3")
        p(f"s_add_u32 s10, s30, {4088 - 512*7}")
        p(f"v_sub_u32 {v(KVB)}, s10, {v(ST)}")
        for i in range(32): p(f"v_mov_b32 {v(ACC+i)}, 0")
        p("v_add_u32 v7, 2, v124")
    stamp(p, 3)
    signal_and_wait(1, C_A1, hload)
    stamp(p, 4)
    for (src_v, off) in ((124, 0), (7, CV_C1)):
        p(f"s_add_u32 m0, s30, {off}")
        p("s_nop 0")
        for j in range(4): p(f"buffer_load_dwordx4 {v(src_v)}, s[12:15], s31 offen offset:{1024*j}{SC} lds")
        p(f"s_add_u32 m0, s30, {off + 4096}")
        p("s_mov_b64 exec, 15")
        p(f"buffer_load_dwordx4 {v(src_v)}, s[12:15], s26 offen{SC} lds")
        p("s_mov_b64 exec, -1")
    p(f"s_add_u32 s34, s34, {FL_A2 - FL_A1}")
    p("s_mov_b32 s25, 8")
    p("s_waitcnt vmcnt(0)")
    stamp(p, 5)
    p.label(f"{pre}_CVL")
    def rdA(a):
        kk, rem = (7 - a) >> 1, 128 * ((7 - a) & 1)
        return [f"ds_read2_b32 {v(FA+4*a,2)}, {v(AB+kk)} offset0:{rem} offset1:{rem+1}",
                f"ds_read2_b32 {v(FA+4*a+2,2)}, {v(AB+kk)} offset0:{rem+2} offset1:{rem+3}"]
    cnt = [0]
    def cm(a, b):
        p(mf16(ACC+4*(a+b), FA+4*a, FBB+4*b, ACC+4*(a+b)))
        cnt[0] += 1
        if opt("cvnop", -1) >= 0 and cnt[0] % opt("cvev", 1) == 0: p(f"s_nop {opt('cvnop')}")
    def rdB(b): return [f"ds_read_b128 {v(FBB+4*b,4)}, {v(BB)} offset:{512*b}"]
    for x in range(8):
        for r_ in rdA(x) + rdB(x): p(r_)
    for kk in range(4): p(f"v_add_u32 {v(AB+kk)}, -64, {v(AB+kk)}")
    p(f"v_add_u32 {v(BB)}, -64, {v(BB)}")
    p("s_waitcnt lgkmcnt(12)")
    for a in range(4):
        for b in range(4): cm(a, b)
    p("s_waitcnt lgkmcnt(0)")
    for a in range(8):
        for b in range(8 - a):
            if a >= 4 or b >= 4: cm(a, b)
    p("s_sub_u32 s25, s25, 1")
    p("s_cmp_lg_u32 s25, 0")
    p(f"s_cbranch_scc1 {pre}_CVL")
    stamp(p, 6)
    for t in range(8): p(f"ds_read_b64 {v(FA+2*t,2)}, {v(KVB)} offset:{512*(7-t)}")
    p("v_lshlrev_b32 v125, 16, v125")
    p(f"s_add_u32 s33, s33, {WS_Y}")
    p(f"v_lshlrev_b32 {v(ST)}, 1, {v(ST)}")
    for t in range(8):
        p(f"s_waitcnt lgkmcnt({7-t})" if not STAMP else "s_waitcnt lgkmcnt(0)")
        U = FBB + 4 * (t & 3); a = ACC + 4 * t; o = FBB + 16 + 2 * t
        p(f"v_and_b32 {v(U)}, s32, {v(FA+2*t+1)}")
        p(f"v_lshlrev_b32 {v(U+1)}, 16, {v(FA+2*t+1)}")
        p(f"v_and_b32 {v(U+2)}, s32, {v(FA+2*t)}")
        p(f"v_lshlrev_b32 {v(U+3)}, 16, {v(FA+2*t)}")
        for r_ in range(4): p(f"v_fmac_f32 {v(a+r_)}, v125, {v(U+r_)}")
        p(f"v_cvt_pk_bf16_f32 {v(o)}, {v(a)}, {v(a+1)}")
        p(f"v_cvt_pk_bf16_f32 {v(o+1)}, {v(a+2)}, {v(a+3)}")
        if t & 1: p(f"buffer_store_dwordx4 {v(o-2,4)}, {v(ST)}, s[12:15], s33 offen offset:{1024*(t>>1)}{SC}")
    QR, YR, U, OUT = 16, 32, 48, 64
    def qload():
        srd(p, 16, 36, 37, 4 * MB)
        srd(p, 20, 50, 51, 8 * MB)
        p("v_add_u32 v6, 4096, v120")
        for j in range(4): p(f"buffer_load_dwordx4 {v(QR+4*j,4)}, {('v120', 'v6')[j>>1]}, s[16:19], 0 offen offset:{2048*(j&1)}")
    signal_and_wait(2, C_A2, qload)
    stamp(p, 7)
    for c in range(8):
        p(f"s_mov_b32 s10, {WS_Y + c*4096}")
        p(f"buffer_load_dwordx2 {v(YR+2*c,2)}, v121, s[12:15], s10 offen{SC}")
    p("s_waitcnt vmcnt(0)")
    for t in range(4):
        for cp in range(4):
            u = U + 4 * (cp & 1)
            q = QR + 4 * t + cp
            p(f"v_lshlrev_b32 {v(u)}, 16, {v(q)}")
            p(f"v_and_b32 {v(u+1)}, s32, {v(q)}")
            for e in range(2):
                y = YR + 2 * (2 * cp + e) + (t >> 1)
                if t & 1: p(f"v_and_b32 {v(u+2+e)}, s32, {v(y)}")
                else: p(f"v_lshlrev_b32 {v(u+2+e)}, 16, {v(y)}")
            p(f"v_pk_mul_f32 {v(u,2)}, {v(u,2)}, {v(u+2,2)}")
            p(f"v_cvt_pk_bf16_f32 {v(OUT+4*t+cp)}, {v(u)}, {v(u+1)}")
        p(f"s_mov_b32 s10, {t*4096}")
        p(f"buffer_store_dwordx4 {v(OUT+4*t,4)}, v122, s[20:23], s10 offen{SC}")
    stamp(p, 12)
    stamp_flush(p)
    p("s_endpgm")

def build(path):
    p = Prog()
    emit(p)
    p.label("L_CODE_END")
    hdr = open("concat_heads__ssm_conv_h3__mha_block__prompt.s.ref").read().split("\n")
    hdr = [l for l in hdr if l.startswith(";") and "@launch" not in l and "Override" not in l and "grid=ceil" not in l]
    out = "\n".join(hdr) + "\n"
    if opt("aslist", 1): out += f"; @launch kernel={NAME} grid=(256,1,1) block=(832,1,1) lds={LDS_BYTES}\n"
    else: out += f"; @launch grid=(256,1,1) block=(832,1,1) lds={LDS_BYTES}\n"
    out += '.amdgcn_target "amdgcn-amd-amdhsa--gfx950"\n.text\n'
    body = p.text()
    nbad = check(body)
    out += body
    out += f""".section .rodata,"a"
.p2align 6
.amdhsa_kernel {NAME}
  .amdhsa_next_free_vgpr 128
  .amdhsa_next_free_sgpr 102
  .amdhsa_accum_offset 128
  .amdhsa_group_segment_fixed_size 0
  .amdhsa_kernarg_size 96
  .amdhsa_user_sgpr_count 2
  .amdhsa_user_sgpr_kernarg_segment_ptr 1
  .amdhsa_system_sgpr_workgroup_id_x 1
.end_amdhsa_kernel
"""
    open(path, "w").write(out)
    return nbad

if __name__ == "__main__":
    nb = build(sys.argv[1] if len(sys.argv) > 1 else "pk.s")
    print("hazards:", nb)
```

```python
import sys, os, struct, math
sys.path.insert(0, os.path.dirname(os.path.abspath(__file__)))
from asmlib import Prog, v, s, check

MB = 1 << 20
WS_KV, WS_QX, WS_O, WS_XR, WS_Y, WS_FL = 0, 8 * MB, 12 * MB, 16 * MB, 21 * MB, 25 * MB
XRS = 4224
WS_SIZE = 32 * MB
FLS = 4352
FL_A1, FL_A2, FL_KV, FL_O = [WS_FL + 16 * i * FLS for i in range(4)]
A_Q, A_K, A_V, A_SK, A_SSMK, A_D, B_X, B_WQKV, B_WO, D_OUT, D_DBG, D_WS = [8 * i for i in range(12)]
def f32bits(x): return struct.unpack("<I", struct.pack("<f", x))[0]
QSCALE = f32bits((32 ** -0.5) * math.log2(math.e))
STAMP = os.environ.get("STAMP", "0") == "1"
LIGHT = os.environ.get("STAMP", "0") == "2"
OPT = dict(kv.split("=") for kv in os.environ.get("OPT", "").split(",") if kv)
def opt(k, d=0): return int(OPT.get(k, d))
WS_ST = 28 * MB
SC = " sc1"
NAME = "concat_heads__ssm_conv_h3__mha_block__prompt_kernel"

WREG = 3 * 16384
RING = 6 * 16384
OWNC = 122880
QHO = OWNC + 16384
CV_BASE = 98304
CV_STRIDE = 15616
CV_C1 = 5120 + 64
CV_H = 2 * 5120 + 128
CNT = CV_BASE + 4 * CV_STRIDE
C_LAND, C_CONS, C_PROG, C_KVL, C_OWN, C_KVST, C_A1, C_A2, C_OARR, C_OMASK, C_QRDY = 0, 16, 32, 64, 68, 72, 76, 84, 92, 96, 100
LDS_BYTES = CNT + 256

def mf32(d, a, b, c): return f"v_mfma_f32_32x32x16_bf16 {v(d,16)}, {v(a,4)}, {v(b,4)}, {v(c,16) if isinstance(c,int) else c}"
def mf16(d, a, b, c): return f"v_mfma_f32_16x16x32_bf16 {v(d,4)}, {v(a,4)}, {v(b,4)}, {v(c,4) if isinstance(c,int) else c}"

def srd(p, d, lo, hi, nrec, off=None):
    if off is None:
        if lo != d: p(f"s_mov_b32 {s(d)}, {s(lo)}")
        if hi != d + 1: p(f"s_mov_b32 {s(d+1)}, {s(hi)}")
    else:
        p(f"s_add_u32 {s(d)}, {s(lo)}, {off}")
        p(f"s_addc_u32 {s(d+1)}, {s(hi)}, 0")
    p(f"s_mov_b32 {s(d+2)}, {nrec}")
    p(f"s_mov_b32 {s(d+3)}, 0x20000")

def stamp(p, i, real=True):
    if STAMP and not (opt("p1st") and i in (4, 5, 6, 7, 9, 10, 11)): p(f"{'s_memrealtime' if real else 's_memtime'} s[{60+2*i}:{61+2*i}]")
def stamp_flush(p, n=14):
    if LIGHT:
        p("s_memrealtime s[90:91]")
        p("s_lshl_b32 s58, s2, 4")
        p("s_add_u32 s58, s58, s59")
        p("s_lshl_b32 s58, s58, 3")
        p(f"s_add_u32 s58, s58, {WS_ST}")
        p("s_waitcnt lgkmcnt(0)")
        p("v_mov_b32 v1, s58")
        p("v_mov_b32 v2, s96")
        p("v_mov_b32 v3, s90")
        p("global_store_dwordx2 v1, v[2:3], s[98:99]")
    if not STAMP: return
    p("s_memtime s[90:91]")
    p("s_lshl_b32 s58, s2, 4")
    p("s_add_u32 s58, s58, s59")
    p("s_lshl_b32 s58, s58, 6")
    p(f"s_add_u32 s58, s58, {WS_ST}")
    p("s_waitcnt lgkmcnt(0)")
    p("v_mov_b32 v2, s58")
    for i in range(16):
        p(f"v_mov_b32 v3, s{60+2*i}")
        p(f"global_store_dword v2, v3, s[98:99] offset:{4*i}")

def lane_id(p, d):
    p(f"v_mbcnt_lo_u32_b32 {v(d)}, -1, 0")
    p(f"v_mbcnt_hi_u32_b32 {v(d)}, -1, {v(d)}")

def bail(p):
    p("s_sub_u32 s100, s100, 1")
    p("s_cbranch_scc1 L_END")

def lds_wait_ge(p, lab, vaddr, off, need, vt, sleep=2):
    p(f"s_branch {lab}c")
    p.label(f"{lab}s")
    bail(p)
    p(f"s_sleep {sleep}")
    p.label(f"{lab}c")
    p(f"ds_read_b32 {v(vt)}, {v(vaddr)} offset:{off}")
    p("s_waitcnt lgkmcnt(0)")
    p(f"v_cmp_gt_i32 vcc, {need}, {v(vt)}")
    p(f"s_cbranch_vccnz {lab}s")

def flag_publish(p, vt, voff, soff):
    p("s_memrealtime s[92:93]")
    p("s_waitcnt lgkmcnt(0)")
    p(f"v_mov_b32 {v(vt)}, s92")
    p(f"v_mov_b32 {v(vt+1)}, s93")
    p(f"buffer_store_dwordx2 {v(vt,2)}, {v(voff)}, s[12:15], {soff} offen{SC}")

def flag_test(p, vt):
    p(f"v_cmp_lt_u64 vcc, s[96:97], {v(vt,2)}")
    p(f"v_cmp_gt_u64 s[92:93], s[94:95], {v(vt,2)}")
    p("s_and_b64 vcc, vcc, s[92:93]")

def pf_addr(p, vx, vw, which=(0, 1)):
    if 0 in which:
        p("s_and_b32 s29, s27, 3")
        p("s_lshl_b32 s29, s29, 5")
        p("s_lshl_b32 s10, s26, 7")
        p("s_add_u32 s29, s29, s10")
        p("v_lshrrev_b32 v1, 1, v0")
        p("v_add_u32 v1, s29, v1")
        p("v_lshlrev_b32 v1, 11, v1")
        p("v_and_b32 v2, 1, v0")
        p(f"v_lshl_add_u32 {v(vx)}, v2, 7, v1")
    if 1 in which:
        p("v_lshrrev_b32 v2, 5, v0")
        p("v_lshlrev_b32 v2, 6, v2")
        p("v_bfe_u32 v3, v0, 2, 3")
        p("s_and_b32 s29, s26, 7")
        p("s_lshl_b32 s29, s29, 3")
        p("v_add3_u32 v2, v2, v3, s29")
        p("v_mul_u32_u24 v2, 6144, v2")
        p("v_and_b32 v3, 3, v0")
        p("v_min_u32 v3, 2, v3")
        p("v_lshl_add_u32 v2, v3, 11, v2")
        p("s_lshl_b32 s29, s27, 7")
        p(f"v_add_u32 {v(vw)}, s29, v2")

def tile3(p):
    p("s_and_b32 s38, s8, 3")
    p("s_lshl_b32 s38, s38, 2")
    p("s_and_b32 s10, s9, 3")
    p("s_add_u32 s38, s38, s10")
    p("s_lshr_b32 s39, s8, 2")
    p("s_lshl_b32 s39, s39, 3")
    p("s_lshr_b32 s10, s9, 2")
    p("s_add_u32 s39, s39, s10")

WTAB = 0x10876543

def emit(p):
    p(f".globl {NAME}")
    p(".p2align 8")
    p(f".type {NAME},@function")
    p.label(NAME)
    p("s_cmp_ge_u32 s2, 256")
    p("s_cbranch_scc1 L_END")
    p(f"s_load_dwordx4 s[4:7], s[0:1], {B_X}")
    p(f"s_load_dwordx2 s[98:99], s[0:1], {D_WS}")
    p("s_memrealtime s[96:97]")
    p("v_lshrrev_b32 v1, 6, v0")
    p("v_and_b32 v0, 63, v0")
    p("s_and_b32 s8, s2, 7")
    p("v_readfirstlane_b32 s3, v1")
    stamp(p, 0); stamp(p, 14, False)
    p("s_lshr_b32 s9, s2, 3")
    p("s_mov_b32 s100, 0x100000")
    if STAMP or LIGHT: p("s_mov_b32 s59, s3")
    p("s_and_b32 s26, s8, 1")
    p("s_lshl_b32 s26, s26, 3")
    p("s_and_b32 s10, s9, 7")
    p("s_add_u32 s26, s26, s10")
    p("s_lshr_b32 s27, s8, 1")
    p("s_lshl_b32 s27, s27, 2")
    p("s_lshr_b32 s10, s9, 3")
    p("s_add_u32 s27, s27, s10")
    p("s_cmp_ge_u32 s3, 4")
    p("s_cbranch_scc1 L_NOTLOADER")
    p(f"s_load_dwordx4 s[48:51], s[0:1], {A_K}")
    p("s_and_b32 s35, s3, 1")
    p("s_bitcmp1_b32 s3, 1")
    p("s_cbranch_scc1 P1_PFW")
    pf_addr(p, 16, 16, (0,))
    p("s_mov_b32 s36, 256")
    p("s_waitcnt lgkmcnt(0)")
    srd(p, 40, 4, 5, 4 * MB)
    srd(p, 44, 48, 49, 4 * MB)
    p("s_branch P1_PFGO")
    p.label("P1_PFW")
    pf_addr(p, 16, 16, (1,))
    p(f"s_mov_b32 s36, {128*6144}")
    p("s_waitcnt lgkmcnt(0)")
    srd(p, 40, 6, 7, 6 * MB)
    srd(p, 44, 50, 51, 4 * MB)
    p.label("P1_PFGO")
    p("s_mul_i32 s35, s35, s36")
    p("buffer_load_dword v17, v16, s[40:43], s35 offen")
    p("s_lshl_b32 s35, s36, 1")
    TL = opt("tl", 22)
    p(f"v_min_u32 v20, {max(TL,1)-1}, v0")
    p("v_lshlrev_b32 v20, 7, v20")
    p("s_lshl_b32 s37, s2, 14")
    p("s_add_u32 s46, s37, 16384")
    p("s_and_b32 s34, s3, 2")
    p("s_and_b32 s25, s3, 1")
    p("v_lshrrev_b32 v2, 3, v0")
    p("v_lshlrev_b32 v2, 11, v2")
    p("v_lshrrev_b32 v3, 4, v0")
    p("v_and_b32 v4, 7, v0")
    p("v_xor_b32 v4, v4, v3")
    p("v_lshl_add_u32 v2, v4, 4, v2")
    p("s_lshl_b32 s10, s34, 16")
    p("v_add_u32 v10, s10, v2")
    p("v_xor_b32 v11, 64, v10")
    p(f"v_add_u32 v12, {32768-2048}, v10")
    p(f"v_add_u32 v13, {49152-3072}, v11")
    p(f"v_add_u32 v11, {16384-1024}, v11")
    p("v_lshrrev_b32 v2, 5, v0")
    p("v_lshlrev_b32 v2, 2, v2")
    p("v_bfe_u32 v4, v0, 2, 2")
    p("s_lshl_b32 s10, s34, 4")
    p("v_add3_u32 v2, v2, v4, s10")
    p("v_mul_u32_u24 v2, 6144, v2")
    p("v_and_b32 v3, 1, v3")
    p("v_lshl_add_u32 v2, v3, 6, v2")
    p("v_and_b32 v4, 3, v0")
    p("v_lshl_add_u32 v14, v4, 4, v2")
    p("v_add_u32 v15, 48128, v14")
    p("v_lshlrev_b32 v4, 2, v4")
    p(f"v_add_u32 v18, {CNT}, v4")
    p("s_lshl_b32 s23, s34, 12")
    p("s_lshl_b32 s10, s25, 14")
    p("s_add_u32 s23, s23, s10")
    p("s_mul_i32 s24, s34, 6144")
    p("s_mul_i32 s10, s25, 24576")
    p("s_add_u32 s24, s24, s10")
    p(f"s_add_u32 s24, s24, {WREG}")
    p("s_lshl_b32 s20, s25, 7")
    p("s_mul_i32 s21, s25, 393216")
    p("s_lshl_b32 s10, s26, 18")
    p("s_lshl_b32 s11, s27, 7")
    p(f"s_sub_u32 s18, {1024*6144}, s11")
    p("s_mov_b32 s14, 262144")
    p("s_mov_b32 s15, 0x20000")
    p("s_mov_b32 s19, 0x20000")
    p("s_add_u32 s12, s4, s10")
    p("s_addc_u32 s13, s5, 0")
    p("s_add_u32 s16, s6, s11")
    p("s_addc_u32 s17, s7, 0")
    p("s_lshl_b64 s[32:33], 1, s3")
    p("s_cmp_eq_u32 s25, 0")
    p("s_cbranch_scc1 P1_LISSUE")
    p("s_barrier")
    p("v_mov_b32 v19, 1")
    p("s_mov_b64 exec, s[32:33]")
    p(f"ds_write_b32 v18, v19 offset:{C_LAND}")
    p("s_mov_b64 exec, -1")
    p("s_branch P1_LISSUE")
    p.label("P1_LLOOP")
    if STAMP and opt("p1st"):
        p("s_lshr_b32 s58, s25, 1")
        p("s_cmp_lg_u32 s58, 4")
        p("s_cbranch_scc1 P1_LSa")
        p("s_memrealtime s[68:69]")
        p.label("P1_LSa")
    p("s_sub_u32 s28, s25, 1")
    lds_wait_ge(p, "P1_LW", 18, C_CONS, "s28", 19, sleep=opt("lslp", 1))
    p.label("P1_LISSUE")
    if STAMP and opt("p1st"):
        p("s_lshr_b32 s58, s25, 1")
        p("s_cmp_lg_u32 s58, 4")
        p("s_cbranch_scc1 P1_LSb")
        p("s_memrealtime s[70:71]")
        p.label("P1_LSb")
    for q_ in range(2):
        p(f"s_add_u32 m0, s23, {4096*q_}")
        p(f"s_add_u32 s10, s20, {65536*q_}")
        for jj in range(4): p(f"buffer_load_dwordx4 {v(10+jj)}, s[12:15], s10 offen offset:{1024*jj} lds")
    for q_ in range(2):
        p(f"s_add_u32 m0, s24, {6144*q_}")
        p(f"s_add_u32 s10, s21, {16*6144*q_}")
        for ii in range(4): p(f"buffer_load_dwordx4 {v(14+(ii&1))}, s[16:19], s10 offen offset:{1024*ii} lds")
        p(f"s_add_u32 m0, s24, {6144*q_+4096}")
        p(f"s_add_u32 s10, s21, {16*6144*q_+4096}")
        for ii in range(2): p(f"buffer_load_dwordx4 {v(14+ii)}, s[16:19], s10 offen offset:{1024*ii} lds")
    if STAMP and opt("p1st"):
        p("s_lshr_b32 s58, s25, 1")
        p("s_cmp_lg_u32 s58, 4")
        p("s_cbranch_scc1 P1_LSc")
        p("s_memrealtime s[72:73]")
        p.label("P1_LSc")
    p("s_cmp_lg_u32 s25, 0")
    p("s_cbranch_scc1 P1_LNB")
    p("s_barrier")
    p.label("P1_LNB")
    p("s_add_u32 s20, s20, 256")
    p("s_add_u32 s21, s21, 786432")
    p("s_add_u32 s23, s23, 32768")
    p("s_add_u32 s24, s24, 49152")
    p(f"s_cmp_ge_u32 s23, {WREG}")
    p(f"s_cselect_b32 s10, {3*16384}, 0")
    p(f"s_cselect_b32 s11, {3*24576}, 0")
    p("s_sub_u32 s23, s23, s10")
    p("s_sub_u32 s24, s24, s11")
    PFS = opt("pfs", 2)
    p(f"s_sub_u32 s10, s25, {PFS}")
    p("s_bitcmp1_b32 s10, 0")
    p("s_cselect_b32 s10, 99, s10")
    p("s_cmp_lt_u32 s10, 12")
    p("s_cbranch_scc0 P1_NOPF")
    p("buffer_load_dword v17, v16, s[40:43], s35 offen")
    if TL: p("buffer_load_dword v21, v20, s[44:47], s37 offen")
    p("s_add_u32 s35, s35, s36")
    p(f"s_add_u32 s37, s37, {128*TL}")
    p(f"s_waitcnt vmcnt({2 if TL else 1})")
    p("s_branch P1_PUB")
    p.label("P1_NOPF")
    p("s_waitcnt vmcnt(0)")
    p.label("P1_PUB")
    p("s_add_u32 s25, s25, 2")
    p("v_mov_b32 v19, s25")
    p("s_mov_b64 exec, s[32:33]")
    p(f"ds_write_b32 v18, v19 offset:{C_LAND}")
    p("s_mov_b64 exec, -1")
    if STAMP and opt("p1st"):
        p("s_lshr_b32 s58, s25, 1")
        p("s_cmp_lg_u32 s58, 5")
        p("s_cbranch_scc1 P1_LSd")
        p("s_memrealtime s[74:75]")
        p.label("P1_LSd")
    p("s_cmp_lt_u32 s25, 16")
    p("s_cbranch_scc1 P1_LLOOP")
    stamp(p, 1)
    Q, ONES, L, P0, P1, F0, F1, NEGM, SA, SB, O = 4, 12, 16, 20, 24, 28, 44, 60, 76, 92, 108
    VN, VL, VC, VP, IDX, CA, CV_, ONE = 0, 1, 2, 3, 124, 125, 126, 127
    p("s_lshl_b32 s28, s26, 2")
    p("s_add_u32 s28, s28, s3")
    p("v_lshlrev_b32 v1, 4, v0")
    p(f"v_mov_b32 {v(CA)}, {CNT}")
    srd(p, 12, 98, 99, WS_SIZE)
    p("s_lshl_b32 s10, s3, 11")
    p(f"s_add_u32 s10, s10, {QHO}")
    p(f"v_add_u32 {v(SB)}, s10, v1")
    p("s_branch A_INIT")

    p.label("L_NOTLOADER")
    p("s_cmp_ge_u32 s3, 8")
    p("s_cbranch_scc1 L_HELPERS")
    ACC, XF, WF_, XC, WC, SY, VT = 32, 0, 16, 28, 29, 30, 31
    p("s_sub_u32 s31, s3, 4")
    p("s_lshr_b32 s28, s31, 1")
    p("s_and_b32 s29, s31, 1")
    p("v_and_b32 v1, 31, v0")
    p("v_lshrrev_b32 v2, 5, v0")
    p("v_bfe_u32 v3, v0, 1, 3")
    p("v_xor_b32 v3, v3, v2")
    p("v_lshlrev_b32 v3, 4, v3")
    p("v_lshl_add_u32 v3, v1, 7, v3")
    p("s_lshl_b32 s10, s28, 13")
    p(f"v_add_u32 {v(XC)}, s10, v3")
    p("v_lshlrev_b32 v2, 10, v2")
    p("v_bfe_u32 v3, v0, 2, 2")
    p("v_lshl_add_u32 v2, v3, 6, v2")
    p("v_bfe_u32 v3, v0, 4, 1")
    p("v_lshl_add_u32 v2, v3, 5, v2")
    p("v_and_b32 v3, 3, v0")
    p("v_lshl_add_u32 v2, v3, 3, v2")
    p("s_lshl_b32 s10, s29, 8")
    p(f"s_add_u32 s10, s10, {WREG}")
    p(f"v_add_u32 {v(WC)}, s10, v2")
    p("v_lshlrev_b32 v3, 2, v3")
    p(f"v_add_u32 {v(SY)}, {CNT}, v3")
    p("v_lshlrev_b32 v3, 2, v0")
    p(f"v_add_u32 v3, {CNT}, v3")
    p(f"v_mov_b32 {v(VT)}, 0")
    p(f"ds_write_b32 v3, {v(VT)}")
    p("s_lshl_b64 s[32:33], 1, s31")
    p("s_waitcnt lgkmcnt(0)")
    p("s_barrier")
    for i in range(8, 28): p(f"v_mov_b32 {v(i)}, 0")
    for i in range(ACC, ACC + 96): p(f"v_mov_b32 {v(i)}, 0")
    p("s_mov_b32 s25, 0")
    p("s_mov_b32 s24, 0")
    p(f"s_setprio {opt('cpprio', 3)}")
    def mfmas(b):
        L_ = []
        for ty in range(3):
            for rt in range(2):
                d = ACC + (rt * 3 + ty) * 16
                x, w = XF + 8 * b + 4 * rt, WF_ + 4 * ty
                L_.append(mf32(d, w, x, d) if ty < 2 else mf32(d, x, w, d))
        return L_
    def rx(b, rt): return f"ds_read_b128 {v(XF+8*b+4*rt,4)}, {v(XC)} offset:{rt*4096}"
    def rw(ks, ty): return [f"ds_read_b64_tr_b16 {v(WF_+4*ty+2*h,2)}, {v(WC)} offset:{ks*6144+ty*2048+h*512}" for h in range(2)]
    def cons():
        p("s_mov_b64 exec, s[32:33]")
        p(f"ds_inc_u32 {v(SY)}, {v(SY)} offset:{C_CONS}")
        p("s_mov_b64 exec, -1")
    w = lambda n: p(f"s_waitcnt lgkmcnt({n})")
    p("s_branch P1_CLOOP")
    p.label("P1_CSPIN")
    bail(p)
    p(f"ds_read_b32 {v(VT)}, {v(SY)} offset:{C_LAND}")
    p("s_waitcnt lgkmcnt(0)")
    p("s_branch P1_CCHK")
    p.label("P1_CLOOP")
    for ks in range(4):
        b = ks & 1
        M = mfmas(b ^ 1)
        w(4); p(M[0])
        if ks == 0:
            p(M[1])
            w(0)
            cons()
            p.label("P1_CCHK")
            p(f"v_cmp_ge_u32 vcc, s25, {v(VT)}")
            p("s_cbranch_vccnz P1_CSPIN")
            for r_ in rw(ks, 0): p(r_)
            p(M[2])
            p(rx(b, 0)); p(rx(b, 1))
            p(f"v_xor_b32 {v(XC)}, 32, {v(XC)}")
        else:
            p(rx(b, 0)); p(rx(b, 1))
            p(f"v_xor_b32 {v(XC)}, {32 if ks == 2 else 96}, {v(XC)}")
            p(M[1])
            for r_ in rw(ks, 0): p(r_)
        if ks == 3: p(f"v_add_u32 {v(XC)}, s22, {v(XC)}")
        if ks == 1:
            p("s_add_u32 s24, s24, 1")
            p("s_cmp_eq_u32 s24, 3")
            p("s_cselect_b32 s23, -2, 1")
            p("s_cselect_b32 s24, 0, s24")
            p("s_mul_i32 s22, s23, 16384")
            p("s_mul_i32 s23, s23, 24576")
        if ks: w(6); p(M[2])
        p(M[3])
        for r_ in rw(ks, 1): p(r_)
        if ks: w(6)
        p(M[4])
        if ks == 3:
            p(f"ds_read_b32 {v(VT)}, {v(SY)} offset:{C_LAND}")
            p("s_add_u32 s25, s25, 1")
            p("s_cmp_lt_u32 s25, 16")
        p(M[5])
        for r_ in rw(ks, 2): p(r_)
    p(f"v_add_u32 {v(WC)}, s23, {v(WC)}")
    if STAMP and opt("p1st"):
        for (n_, i_) in ((5, 4), (6, 5), (7, 6), (8, 7), (9, 9), (10, 10), (11, 11)):
            p(f"s_cmp_lg_u32 s25, {n_}")
            p(f"s_cbranch_scc1 P1_ST{n_}")
            p(f"s_memrealtime s[{60+2*i_}:{61+2*i_}]")
            p.label(f"P1_ST{n_}")
        p("s_cmp_lt_u32 s25, 16")
    p("s_cbranch_scc1 P1_CLOOP")
    PADN = opt("padn", 0)
    p.pads(PADN)
    M = mfmas(1)
    w(4); p(M[0]); p(M[1]); w(2); p(M[2]); p(M[3]); w(0)
    cons()
    p(M[4]); p(M[5])
    stamp(p, 1)
    lane_id(p, XC)
    p(f"v_lshlrev_b32 {v(XC)}, 4, {v(XC)}")
    srd(p, 12, 98, 99, WS_SIZE)
    p("s_lshl_b32 s10, s27, 1")
    p("s_add_u32 s10, s10, s29")
    p("s_lshl_b32 s10, s10, 4")
    p("s_add_u32 s10, s10, s26")
    p("s_lshl_b32 s10, s10, 14")
    p("s_lshl_b32 s11, s28, 12")
    p("s_add_u32 s10, s10, s11")
    p("s_add_u32 s16, s10, 8192")
    p("s_lshl_b32 s18, s27, 4")
    p("s_add_u32 s18, s18, s26")
    p("s_lshl_b32 s18, s18, 13")
    p("s_add_u32 s18, s18, s11")
    p(f"s_add_u32 s18, s18, {WS_QX}")
    p(f"s_add_u32 s11, s11, {OWNC}")
    p(f"v_add_u32 {v(WC)}, s11, {v(XC)}")
    p(f"s_mov_b32 s17, {QSCALE}")
    p("s_xor_b32 s19, s26, s29")
    p("s_bitcmp1_b32 s19, 0")
    p("s_cbranch_scc1 P1_EOTH")
    for own in (1, 0):
        n = 0
        order = (((1, 0), (1, 1), (2, 0), (2, 1), (0, 0), (0, 1)) if opt("stf", 1) else ((1, 0), (0, 0), (0, 1), (2, 0), (1, 1), (2, 1))) if own else ((0, 0), (0, 1), (1, 0), (1, 1), (2, 0), (2, 1))
        keep = []
        for (ty, rt) in order:
            d = ACC + (rt * 3 + ty) * 16
            if ty == 0:
                for i in range(16): p(f"v_mul_f32 {v(d+i)}, s17, {v(d+i)}")
            for j in range(2):
                o = d + 8 * j if own else 4 * (n % 7); n += 1
                for i in range(4): p(f"v_cvt_pk_bf16_f32 {v(o+i)}, {v(d+8*j+2*i)}, {v(d+8*j+2*i+1)}")
                st = f"buffer_store_dwordx4 {v(o,4)}, {v(XC)}, s[12:15], {('s18', 's10', 's16')[ty]} offen offset:{rt*2048+j*1024}{SC}"
                if own:
                    if ty and opt("stf", 1): p(st)
                    p(f"ds_write_b128 {v(WC)}, {v(o,4)} offset:{(16384, 0, 8192)[ty]+rt*2048+j*1024}")
                    if ty and not opt("stf", 1): keep.append(st)
                else: p(st)
        if own:
            p(f"v_mov_b32 {v(VT)}, 1")
            p(f"v_mov_b32 {v(SY)}, {CNT}")
            for st in keep[:2]: p(st)
            p("s_waitcnt lgkmcnt(0)")
            p("s_mov_b64 exec, 1")
            p(f"ds_add_u32 {v(SY)}, {v(VT)} offset:{C_OWN}")
            p("s_mov_b64 exec, -1")
            for st in keep[2:]: p(st)
            p("s_branch P1_EDONE")
            p.label("P1_EOTH")
    p.label("P1_EDONE")
    p(f"v_mov_b32 v30, {CNT}")
    p("v_mov_b32 v31, 1")
    p(f"s_mul_i32 s34, s27, {FLS}")
    p(f"s_add_u32 s34, s34, {FL_KV}")
    p("s_lshl_b32 s10, s26, 3")
    p("v_mov_b32 v29, s10")
    p("s_waitcnt vmcnt(0)")
    p("s_mov_b64 exec, 1")
    p(f"ds_add_rtn_u32 v31, v30, v31 offset:{C_KVST}")
    p("s_waitcnt lgkmcnt(0)")
    p("v_cmp_eq_u32 vcc, 3, v31")
    p("s_cbranch_vccz P1_NOKVF")
    flag_publish(p, 30, 29, "s34")
    p.label("P1_NOKVF")
    p("s_mov_b64 exec, -1")
    stamp(p, 3)
    p("s_setprio 0")
    p(f"v_mov_b32 v1, {v(XC)}")
    p(f"v_lshrrev_b32 v0, 4, {v(XC)}")
    p(f"v_mov_b32 {v(CA)}, {CNT}")
    p("s_xor_b32 s28, s26, 1")
    p("s_lshl_b32 s18, s27, 4")
    p("s_add_u32 s18, s18, s28")
    p("s_lshl_b32 s18, s18, 13")
    p("s_lshl_b32 s10, s31, 11")
    p("s_add_u32 s18, s18, s10")
    p(f"s_add_u32 s18, s18, {WS_QX}")
    p("s_lshl_b32 s28, s28, 2")
    p("s_add_u32 s28, s28, s31")
    p.label("A_INIT")
    p("v_and_b32 v2, 2, v0")
    p("v_cmp_eq_u32 vcc, 0, v2")
    p("v_mov_b32 v3, 0x3f803f80")
    p("v_mov_b32 v2, 0")
    for i in range(2): p(f"v_cndmask_b32 {v(ONES+i)}, v2, v3, vcc")
    for i in range(2, 4): p(f"v_cndmask_b32 {v(ONES+i)}, v3, v2, vcc")
    p("v_and_b32 v2, 1, v0")
    p("v_mul_u32_u24 v2, 0xaaaa, v2")
    p(f"v_add_u32 {v(IDX)}, 0x4444, v2")
    p(f"v_mov_b32 {v(ONE)}, 1")
    for i in range(12): p(f"v_mov_b32 {v(L+i)}, 0")
    for i in range(16): p(f"v_mov_b32 {v(O+i)}, 0")
    for i in range(12, 16): p(f"v_mov_b32 {v(F1+i)}, 0")
    p("s_and_b32 s29, s26, 1")
    p("s_lshl_b32 s10, s27, 1")
    p("s_add_u32 s29, s29, s10")
    p("s_mov_b32 s22, 0")
    p(f"v_add_u32 {v(VC)}, {OWNC}, v1")
    p("s_lshl_b32 s10, s3, 2")
    p(f"s_add_u32 s10, s10, {CNT + C_PROG}")
    p(f"v_mov_b32 {v(VP)}, s10")
    p("s_mov_b32 s25, 2")
    lds_wait_ge(p, "A_OW", CA, C_OWN, 2, CV_, sleep=opt("owslp", 2))
    for j in range(2): p(f"ds_read_b128 {v(F1+4*j,4)}, {v(VC)} offset:{j*1024}")
    p("s_cmp_ge_u32 s3, 4")
    p("s_cbranch_scc1 A_FARQ")
    for j in range(2): p(f"ds_read_b128 {v(Q+4*j,4)}, {v(SB)} offset:{j*1024}")
    p("s_branch A_HAVEQ")
    p.label("A_FARQ")
    lds_wait_ge(p, "A_QW", CA, C_QRDY, 1, CV_, sleep=2)
    for j in range(2): p(f"buffer_load_dwordx4 {v(Q+4*j,4)}, v1, s[12:15], s18 offen offset:{j*1024}{SC}")
    p("s_waitcnt vmcnt(0)")
    p.label("A_HAVEQ")
    stamp(p, 2)
    p("s_waitcnt lgkmcnt(0)")
    p(mf32(SA, F1, Q, "0"))
    p(mf32(SA, F1+4, Q+4, SA))
    for j in range(2): p(f"ds_read_b128 {v(F0+4*j,4)}, {v(VC)} offset:{2048+j*1024}")
    for j in range(2): p(f"ds_read_b128 {v(F0+8+4*j,4)}, {v(VC)} offset:{8192+j*1024}")
    p("s_nop 7")
    T_ = NEGM
    p(f"v_max3_f32 {v(T_)}, {v(SA)}, {v(SA+1)}, {v(SA+2)}")
    for i in range(3, 15, 2): p(f"v_max3_f32 {v(T_)}, {v(T_)}, {v(SA+i)}, {v(SA+i+1)}")
    p(f"v_max_f32 {v(T_)}, {v(T_)}, {v(SA+15)}")
    p(f"v_mov_b32 {v(CV_)}, {v(T_)}")
    p("s_nop 1")
    p(f"v_permlane32_swap_b32 {v(T_)}, {v(CV_)}")
    p(f"v_max_f32 {v(CV_)}, {v(T_)}, {v(CV_)}")
    for i in range(16): p(f"v_sub_f32 {v(NEGM+i)}, 0, {v(CV_)}")
    for i in range(16): p(f"v_sub_f32 {v(SA+i)}, {v(SA+i)}, {v(CV_)}")
    p("s_branch A_ENTRY")
    ORDER = "w0 Y S0 r0 e3 O1p r1 e3 LS e2 S1 r2 c4 e2 O0 r3 e3 X e3 c4"
    LS = f"v_smfmac_f32_16x16x64_bf16 {v(L,4)}, {v(ONES,4)}, {v(P0,8)}, {v(IDX)}"
    def step(F, Sc, Sn, Fn, u, extra=None, head=None):
        e = 0; c = 0
        for t in ORDER.split():
            if t == "S0":
                if u is not None: p(mf32(Sn, F, Q, NEGM))
            elif t == "S1":
                if u is not None: p(mf32(Sn, F+4, Q+4, Sn))
            elif t == "O0": p(mf32(O, F+8, P0, O))
            elif t == "O1p": p(mf32(O, Fn+12, P1, O))
            elif t == "X":
                if extra: extra()
            elif t == "Y":
                if head: head()
            elif t == "LS": p(LS)
            elif t[0] == "e":
                for _ in range(int(t[1:])): p(f"v_exp_f32 {v(Sc+e)}, {v(Sc+e)}"); e += 1
            elif t[0] == "c":
                for _ in range(int(t[1:])): p(f"v_cvt_pk_bf16_f32 {v(P0+c)}, {v(Sc+2*c)}, {v(Sc+2*c+1)}"); c += 1
            elif t[0] == "r":
                if u is not None:
                    j = int(t[1:])
                    if j >= 2: p(f"ds_read_b128 {v(Fn+4*j,4)}, {v(VC)} offset:{8192+u*2048+(j-2)*1024}")
                    elif u < 3: p(f"ds_read_b128 {v(Fn+4*j,4)}, {v(VC)} offset:{(u+1)*2048+j*1024}")
                    else: p(f"ds_read_b128 {v(Fn+4*j,4)}, {v(VN)} offset:{j*1024}")
            elif t[0] == "w": p(f"s_waitcnt lgkmcnt({t[1:]})")
    def arrive():
        p("s_mov_b64 exec, 1")
        p(f"ds_add_u32 {v(VP)}, {v(ONE)}")
        p("s_mov_b64 exec, -1")
    def peek():
        p(f"ds_read_b32 {v(CV_)}, {v(CA)} offset:{C_KVL}")
        p(f"v_add_u32 {v(VN)}, s22, v1")
        p("s_add_u32 s22, s22, 16384")
        p(f"s_cmp_ge_u32 s22, {RING}")
        p("s_cselect_b32 s22, 0, s22")
    def chk():
        p.label("A_CHK")
        p(f"v_cmp_gt_u32 vcc, s25, {v(CV_)}")
        p("s_cbranch_vccnz A_SPIN")
    def flip():
        p(f"v_mov_b32 {v(VC)}, {v(VN)}")
        p("s_add_u32 s25, s25, 1")
    LAD = [int(c) for c in OPT.get("lad", "3210")]
    p.label("A_SPIN")
    bail(p)
    p("s_sleep 1")
    p(f"ds_read_b32 {v(CV_)}, {v(CA)} offset:{C_KVL}")
    p("s_waitcnt lgkmcnt(0)")
    p("s_branch A_CHK")
    p.pads(0)
    p.label("A_LOOP")
    p(f"s_setprio {LAD[0]}")
    step(F1, SB, SA, F0, 0, extra=arrive)
    p.label("A_ENTRY")
    p(f"s_setprio {LAD[1]}")
    step(F0, SA, SB, F1, 1)
    p(f"s_setprio {LAD[2]}")
    step(F1, SB, SA, F0, 2, extra=peek)
    p(f"s_setprio {LAD[3]}")
    step(F0, SA, SB, F1, 3, extra=flip, head=chk)
    if STAMP:
        for (n_, i_) in ((3, 4), (4, 5), (6, 6), (10, 7)):
            p(f"s_cmp_lg_u32 s25, {n_}")
            p(f"s_cbranch_scc1 A_ST{n_}")
            stamp(p, i_)
            p.label(f"A_ST{n_}")
    p("s_cmp_lt_u32 s25, 18")
    p("s_cbranch_scc1 A_LOOP")
    p.pads(PADN)
    step(F1, SB, SA, F0, None, extra=arrive)
    p("s_nop 1")
    p(mf32(O, F1+12, P1, O))
    p(LS)
    stamp(p, 8)
    p("v_and_b32 v2, 256, v1")
    p("v_cmp_eq_u32 vcc, 0, v2")
    p("s_lshl_b32 s10, s28, 16")
    p("s_lshl_b32 s11, s29, 11")
    p("s_add_u32 s10, s10, s11")
    p("s_nop 3")
    p(f"s_add_u32 s35, s10, {WS_O}")
    p(f"s_mov_b32 s11, {f32bits(2.0**100)}")
    p("s_nop 0")
    p(f"v_add_f32 {v(L)}, {v(L)}, {v(L+1)}")
    p(f"v_add_f32 {v(L+2)}, {v(L+2)}, {v(L+3)}")
    p(f"v_cndmask_b32 v2, {v(L+2)}, {v(L)}, vcc")
    p(f"v_add_f32 v3, abs({v(O)}), v2")
    for i in range(1, 16): p(f"v_add_f32 v3, abs({v(O+i)}), v3")
    p("v_cmp_ngt_f32 vcc, s11, v3")
    if opt("forcefb"): p("s_branch A_FALLBACK")
    p("s_cbranch_vccnz A_FALLBACK")
    p.label("A_FIN")
    p("v_rcp_f32 v2, v2")
    p("s_nop 0")
    for j in range(2):
        for i in range(8 * j, 8 * j + 8): p(f"v_mul_f32 {v(O+i)}, v2, {v(O+i)}")
        for i in range(4 * j, 4 * j + 4): p(f"v_cvt_pk_bf16_f32 {v(P0+i)}, {v(O+2*i)}, {v(O+2*i+1)}")
        p(f"buffer_store_dwordx4 {v(P0+4*j,4)}, v1, s[12:15], s35 offen offset:{1024*j}{SC}")
    OB, WF, AC3 = 76, 8, 40
    p(f"s_load_dwordx2 s[36:37], s[0:1], {D_OUT}")
    p("s_setprio 0")
    p("s_and_b32 s10, s26, 14")
    p(f"s_mul_i32 s34, s10, {FLS}")
    p(f"s_add_u32 s34, s34, {FL_O}")
    p("s_lshl_b32 s10, s29, 3")
    p("s_add_u32 s34, s34, s10")
    p("v_lshrrev_b32 v0, 4, v1")
    p(f"v_mul_u32_u24 v72, {FLS}, v0")
    p("s_waitcnt vmcnt(0)")
    p("s_mov_b64 exec, 1")
    p(f"ds_add_rtn_u32 {v(CV_)}, {v(CA)}, {v(ONE)} offset:{C_OARR}")
    p("s_waitcnt lgkmcnt(0)")
    p(f"v_cmp_eq_u32 vcc, 7, {v(CV_)}")
    p("s_cbranch_vccz G_NOFLAG")
    p("s_mov_b64 exec, 3")
    flag_publish(p, 2, 72, "s34")
    p.label("G_NOFLAG")
    p("s_mov_b64 exec, -1")
    stamp(p, 9)
    if opt("p3w", 4) == 4:
        p("s_cmp_ge_u32 s3, 4")
        p("s_cbranch_scc1 G_FIN")
        OB, WF, AC3 = 56, 8, 24
        tile3(p)
        p("s_lshl_b32 s28, s38, 2")
        p("s_add_u32 s28, s28, s3")
        p("s_lshl_b32 s10, s28, 16")
        p(f"s_add_u32 s10, s10, {WS_O}")
        srd(p, 16, 98, 99, 65536, off="s10")
        srd(p, 20, 36, 37, 8 * MB)
        p("v_add_u32 v2, 4096, v1")
        p("v_lshrrev_b32 v6, 5, v0")
        p("v_lshlrev_b32 v5, 9, v6")
        p("v_bfe_u32 v7, v0, 2, 2")
        p("v_lshl_add_u32 v5, v7, 6, v5")
        p("v_bfe_u32 v7, v0, 4, 1")
        p("v_lshl_add_u32 v5, v7, 5, v5")
        p("v_and_b32 v7, 3, v0")
        p("v_lshl_add_u32 v5, v7, 3, v5")
        for i in range(AC3, AC3 + 32): p(f"v_mov_b32 {v(i)}, 0")
        p("v_and_b32 v7, 31, v0")
        p("v_lshlrev_b32 v7, 12, v7")
        p("v_lshl_add_u32 v7, v6, 4, v7")
        p("s_lshl_b32 s30, s28, 17")
        p("s_lshl_b32 s11, s39, 7")
        p("s_add_u32 s30, s30, s11")
        p("s_add_u32 s30, s30, 2048")
        p("s_mov_b32 s24, 0")
        p("s_mov_b32 s25, 0")
        p(f"s_mov_b32 s31, {WTAB}")
        p("s_mov_b32 s29, 3")
        def acq(u, j):
            p("s_andn2_b32 s10, s25, s24")
            p(f"s_cbranch_scc1 G_AQ{u}b")
            p.label(f"G_AQ{u}a")
            p(f"ds_read_b32 {v(CV_)}, {v(CA)} offset:{C_OMASK}")
            p("s_waitcnt lgkmcnt(0)")
            p(f"v_readfirstlane_b32 s25, {v(CV_)}")
            p("s_andn2_b32 s10, s25, s24")
            p(f"s_cbranch_scc1 G_AQ{u}b")
            bail(p)
            p("s_sleep 2")
            p(f"s_branch G_AQ{u}a")
            p.label(f"G_AQ{u}b")
            p("s_ff1_i32_b32 s11, s10")
            p("s_bitset1_b32 s24, s11")
            p("s_lshl_b32 s10, s11, 11")
            p("s_lshr_b32 s11, s31, s11")
            p("s_and_b32 s11, s11, 15")
            p(f"s_lshl_b32 s{40+j}, s11, 14")
            for n in range(8): p(f"buffer_load_dwordx4 {v(OB+32*j+4*n,4)}, {v(1+(n>>2))}, s[16:19], s10 offen offset:{1024*(n&3)}{SC}")
        def rd(b, ks, va): return [f"ds_read_b64_tr_b16 {v(WF+8*b+4*nt+2*h,2)}, {va} offset:{ks*2048+h*1024+nt*256}" for nt in range(2) for h in range(2)]
        def group(j, rest, nxt):
            va, vb = f"v{3+j}", f"v{4-j}"
            if nxt: p(f"v_add_u32 {vb}, s{41-j}, v5")
            for ks in range(8):
                R = rd((ks + 1) & 1, ks + 1, va) if ks < 7 else (rd(0, 0, vb) if nxt else [])
                M = [mf32(AC3+16*nt, WF+8*(ks&1)+4*nt, OB+32*j+4*ks, AC3+16*nt) for nt in range(2)]
                p(f"s_waitcnt vmcnt({rest + 7 - ks}) lgkmcnt(2)")
                p(M[0])
                for r_ in R[:2]: p(r_)
                p(f"s_waitcnt lgkmcnt({2 if R else 0})")
                p(M[1])
                for r_ in R[2:]: p(r_)
        acq(0, 0)
        stamp(p, 10)
        p("s_setprio 3")
        p("v_add_u32 v3, s40, v5")
        for r_ in rd(0, 0, "v3"): p(r_)
        acq(1, 1)
        p.label("G_LOOP")
        group(0, 8, True); acq(2, 0)
        group(1, 8, True); acq(3, 1)
        p("s_sub_u32 s29, s29, 1")
        p("s_cmp_lg_u32 s29, 0")
        p("s_cbranch_scc1 G_LOOP")
        group(0, 8, True)
        group(1, 0, False)
        stamp(p, 11)
        p("s_nop 9")
        for nt in range(2):
            if nt: p("s_nop 0")
            for i in range(8): p(f"v_cvt_pk_bf16_f32 {v(WF+8*nt+i)}, {v(AC3+16*nt+2*i)}, {v(AC3+16*nt+2*i+1)}")
            p("s_nop 1")
            for pr in range(2):
                b_ = WF + 8 * nt + 4 * pr
                p(f"v_permlane32_swap_b32 {v(b_)}, {v(b_+2)}")
                p(f"v_permlane32_swap_b32 {v(b_+1)}, {v(b_+3)}")
                p(f"buffer_store_dwordx4 {v(b_,4)}, v7, s[20:23], s30 offen offset:{64*nt+32*pr}")
        p.label("G_FIN")
    else:
        tile3(p)
        p("s_and_b32 s28, s3, 3")
        p("s_lshl_b32 s10, s38, 2")
        p("s_add_u32 s28, s28, s10")
        p("s_lshr_b32 s29, s3, 2")
        p("s_lshl_b32 s10, s28, 16")
        p("s_lshl_b32 s11, s29, 12")
        p("s_add_u32 s10, s10, s11")
        p(f"s_add_u32 s10, s10, {WS_O}")
        srd(p, 16, 98, 99, 65536, off="s10")
        srd(p, 20, 36, 37, 8 * MB)
        p("v_lshrrev_b32 v6, 5, v0")
        p("v_lshlrev_b32 v5, 9, v6")
        p("v_bfe_u32 v7, v0, 2, 2")
        p("v_lshl_add_u32 v5, v7, 6, v5")
        p("v_bfe_u32 v7, v0, 4, 1")
        p("v_lshl_add_u32 v5, v7, 5, v5")
        p("v_and_b32 v7, 3, v0")
        p("v_lshl_add_u32 v5, v7, 3, v5")
        p("s_lshl_b32 s10, s29, 13")
        p("v_add_u32 v5, s10, v5")
        for i in range(AC3, AC3 + 32): p(f"v_mov_b32 {v(i)}, 0")
        p("v_and_b32 v73, 31, v0")
        p("v_lshlrev_b32 v73, 12, v73")
        p("v_lshl_add_u32 v73, v6, 4, v73")
        p("s_lshl_b32 s10, s3, 12")
        p("v_add_u32 v74, s10, v1")
        p("v_xor_b32 v75, 16384, v74")
        p("s_lshl_b32 s30, s28, 17")
        p("s_lshl_b32 s11, s39, 7")
        p("s_add_u32 s30, s30, s11")
        p("s_lshl_b32 s11, s29, 6")
        p("s_add_u32 s30, s30, s11")
        p("s_add_u32 s30, s30, 2048")
        p("s_mov_b32 s24, 0")
        p("s_mov_b32 s25, 0")
        p(f"s_mov_b32 s31, {WTAB}")
        def acq(u):
            j = u % 3
            p("s_andn2_b32 s10, s25, s24")
            p(f"s_cbranch_scc1 G_AQ{u}b")
            p.label(f"G_AQ{u}a")
            p(f"ds_read_b32 {v(CV_)}, {v(CA)} offset:{C_OMASK}")
            p("s_waitcnt lgkmcnt(0)")
            p(f"v_readfirstlane_b32 s25, {v(CV_)}")
            p("s_andn2_b32 s10, s25, s24")
            p(f"s_cbranch_scc1 G_AQ{u}b")
            bail(p)
            p("s_sleep 2")
            p(f"s_branch G_AQ{u}a")
            p.label(f"G_AQ{u}b")
            p("s_ff1_i32_b32 s11, s10")
            p("s_bitset1_b32 s24, s11")
            p("s_lshl_b32 s10, s11, 11")
            p("s_lshr_b32 s11, s31, s11")
            p("s_and_b32 s11, s11, 15")
            p(f"s_lshl_b32 s{40+j}, s11, 14")
            for n in range(4): p(f"buffer_load_dwordx4 {v(OB+16*j+4*n,4)}, v1, s[16:19], s10 offen offset:{1024*n}{SC}")
        def rdw(u):
            p(f"v_add_u32 v4, s{40+u%3}, v5")
            for ks in range(4):
                for nt in range(2):
                    for h in range(2): p(f"ds_read_b64_tr_b16 {v(WF+8*ks+4*nt+2*h,2)}, v4 offset:{ks*2048+h*1024+nt*256}")
        acq(0)
        stamp(p, 10)
        rdw(0); acq(1); acq(2)
        for u in range(8):
            rest = 4 * min(2, 7 - u)
            for ks in range(4):
                p(f"s_waitcnt vmcnt({rest + 3 - ks}) lgkmcnt({12 - 4*ks})")
                for nt in range(2): p(mf32(AC3+16*nt, WF+8*ks+4*nt, OB+16*(u%3)+4*ks, AC3+16*nt))
            if u < 7: rdw(u + 1)
            if u + 3 < 8: acq(u + 3)
        stamp(p, 11)
        p("s_barrier")
        p("s_cmp_eq_u32 s29, 0")
        p("s_cbranch_scc1 G_X0")
        p("s_nop 7")
        for j in range(4): p(f"ds_write_b128 v74, {v(AC3+4*j,4)} offset:{1024*j}")
        for i in range(16): p(f"v_mov_b32 {v(AC3+i)}, {v(AC3+16+i)}")
        p("s_branch G_X1")
        p.label("G_X0")
        p("s_nop 8")
        for j in range(4): p(f"ds_write_b128 v74, {v(AC3+16+4*j,4)} offset:{1024*j}")
        p.label("G_X1")
        p("s_waitcnt lgkmcnt(0)")
        p("s_barrier")
        for j in range(4): p(f"ds_read_b128 {v(AC3+16+4*j,4)}, v75 offset:{1024*j}")
        for pr in range(2):
            p(f"s_waitcnt lgkmcnt({2-2*pr})")
            for i in range(8 * pr, 8 * pr + 8): p(f"v_add_f32 {v(AC3+i)}, {v(AC3+i)}, {v(AC3+16+i)}")
            b = WF + 4 * pr
            for i in range(4): p(f"v_cvt_pk_bf16_f32 {v(b+i)}, {v(AC3+8*pr+2*i)}, {v(AC3+8*pr+2*i+1)}")
            p("s_nop 1")
            p(f"v_permlane32_swap_b32 {v(b)}, {v(b+2)}")
            p(f"v_permlane32_swap_b32 {v(b+1)}, {v(b+3)}")
            p(f"buffer_store_dwordx4 {v(b,4)}, v73, s[20:23], s30 offen offset:{32*pr}")
    stamp(p, 12)
    stamp_flush(p)
    p.pads(0)
    p.label("L_END")
    p("s_endpgm")
    p.label("A_FALLBACK")
    M_, AL = NEGM, NEGM + 1
    for i in range(16): p(f"v_mov_b32 {v(O+i)}, 0")
    p("v_mov_b32 v2, 0")
    p(f"v_mov_b32 {v(M_)}, 0xff7fffff")
    p("s_lshl_b32 s30, s29, 18")
    p("s_mov_b32 s25, 0")
    p.label("A_FBL")
    p("s_lshr_b32 s10, s25, 2")
    p("s_lshl_b32 s10, s10, 14")
    p("s_and_b32 s11, s25, 3")
    p("s_lshl_b32 s11, s11, 11")
    p("s_add_u32 s10, s10, s11")
    p("s_add_u32 s10, s10, s30")
    p("s_add_u32 s11, s10, 8192")
    for j in range(2): p(f"buffer_load_dwordx4 {v(F0+4*j,4)}, v1, s[12:15], s10 offen offset:{1024*j}{SC}")
    for j in range(2): p(f"buffer_load_dwordx4 {v(F0+8+4*j,4)}, v1, s[12:15], s11 offen offset:{1024*j}{SC}")
    p("s_waitcnt vmcnt(0)")
    p(mf32(SA, F0, Q, "0"))
    p(mf32(SA, F0+4, Q+4, SA))
    p("s_nop 15")
    p(f"v_max3_f32 v3, {v(SA)}, {v(SA+1)}, {v(M_)}")
    for i in range(2, 16, 2): p(f"v_max3_f32 v3, v3, {v(SA+i)}, {v(SA+i+1)}")
    p(f"v_mov_b32 {v(SB)}, v3")
    p("s_nop 1")
    p(f"v_permlane32_swap_b32 v3, {v(SB)}")
    p(f"v_max_f32 v3, v3, {v(SB)}")
    p(f"v_sub_f32 {v(AL)}, {v(M_)}, v3")
    p(f"v_exp_f32 {v(AL)}, {v(AL)}")
    p(f"v_mov_b32 {v(M_)}, v3")
    for i in range(16): p(f"v_sub_f32 {v(SA+i)}, {v(SA+i)}, v3")
    for i in range(16): p(f"v_exp_f32 {v(SA+i)}, {v(SA+i)}")
    p(f"v_mul_f32 v2, v2, {v(AL)}")
    for i in range(16): p(f"v_mul_f32 {v(O+i)}, {v(O+i)}, {v(AL)}")
    for i in range(16): p(f"v_add_f32 v2, v2, {v(SA+i)}")
    for i in range(8): p(f"v_cvt_pk_bf16_f32 {v(P0+i)}, {v(SA+2*i)}, {v(SA+2*i+1)}")
    p("s_nop 1")
    p(mf32(O, F0+8, P0, O))
    p(mf32(O, F0+12, P1, O))
    p("s_nop 15")
    p("s_add_u32 s25, s25, 1")
    p("s_cmp_lt_u32 s25, 64")
    p("s_cbranch_scc1 A_FBL")
    p("v_mov_b32 v3, v2")
    p("s_nop 1")
    p("v_permlane32_swap_b32 v2, v3")
    p("v_add_f32 v2, v2, v3")
    p("s_branch A_FIN")

    p.label("L_HELPERS")
    p("s_cmp_ge_u32 s3, 9")
    p("s_cbranch_scc1 L_PARTA")
    emit_w8(p)
    p.label("L_PARTA")
    emit_partA(p)

def emit_w8(p):
    p(f"s_load_dwordx2 s[36:37], s[0:1], {B_WO}")
    if opt("cpf", 1):
        p("s_getpc_b64 s[40:41]")
        p.label("W8_PC")
        p(f"s_sub_u32 s40, s40, W8_PC-{NAME}")
        p("s_subb_u32 s41, s41, 0")
        p("v_lshlrev_b32 v21, 7, v0")
        for j in range(2):
            p(f"v_add_u32 v22, {8192*j}, v21")
            p(f"v_min_u32 v22, L_CODE_END-{NAME}-4, v22")
            p(f"global_load_dword v{23+j}, v22, s[40:41]")
    p("s_barrier")
    p("v_and_b32 v8, 3, v0")
    p("v_lshlrev_b32 v8, 2, v8")
    p(f"v_add_u32 v8, {CNT}, v8")
    p("v_and_b32 v9, 7, v0")
    p("v_lshlrev_b32 v9, 2, v9")
    p(f"v_add_u32 v9, {CNT}, v9")
    p(f"v_mov_b32 v20, {CNT}")
    p("s_waitcnt lgkmcnt(0)")
    p("s_add_u32 s94, s96, 0x1000000")
    p("s_addc_u32 s95, s97, 0")
    p("v_lshlrev_b32 v1, 4, v0")
    p("v_and_b32 v6, 15, v0")
    p("v_lshlrev_b32 v6, 3, v6")
    srd(p, 12, 98, 99, WS_SIZE)
    p(f"s_mul_i32 s34, s27, {FLS}")
    p(f"s_add_u32 s34, s34, {FL_KV}")
    p("s_and_b32 s30, s26, 1")
    p("s_lshl_b32 s10, s27, 1")
    p("s_add_u32 s30, s30, s10")
    p("s_lshl_b32 s30, s30, 18")
    p("s_xor_b32 s31, s26, 1")
    p("s_mov_b32 s47, 0")
    p("v_and_b32 v16, 31, v0")
    p("v_lshlrev_b32 v16, 3, v16")
    p("s_lshl_b32 s44, 1, s26")
    p("s_mov_b32 s45, 0")
    p("s_mov_b32 s46, 0x4000")
    p("s_mov_b32 s21, 0")
    p("s_mov_b32 s25, 1")
    tile3(p)
    p("v_lshrrev_b32 v5, 5, v0")
    p("v_lshlrev_b32 v5, 2, v5")
    p("v_bfe_u32 v7, v0, 2, 2")
    p("v_add_u32 v5, v5, v7")
    p("v_lshlrev_b32 v5, 11, v5")
    p("v_bfe_u32 v7, v0, 4, 1")
    p("v_lshl_add_u32 v5, v7, 6, v5")
    p("v_and_b32 v7, 3, v0")
    p("v_lshl_add_u32 v10, v7, 4, v5")
    for jj in range(1, 4): p(f"v_add_u32 {v(10+jj)}, {jj*(16384-1024)}, v10")
    p("s_lshl_b32 s11, s39, 7")
    p(f"s_sub_u32 s18, {2*MB}, s11")
    p("s_add_u32 s16, s36, s11")
    p("s_addc_u32 s17, s37, 0")
    p("s_mov_b32 s19, 0x20000")
    p("s_setprio 3")
    lds_wait_ge(p, "W8_E0", 8, C_CONS, 15, 3, sleep=16)
    lds_wait_ge(p, "W8_E1", 8, C_CONS, 17, 3, sleep=2)
    if opt("kvw", 4): lds_wait_ge(p, "W8_E2", 20, C_KVST, opt("kvw", 4), 3, sleep=1)
    stamp(p, 1)
    p.pads(opt("pada"))
    p.label("W8_LOOP")
    p("s_cmp_eq_u32 s47, 0")
    p("s_cbranch_scc1 W8_POLL")
    p("s_andn2_b32 s10, s45, s44")
    p("s_cbranch_scc1 W8_HAVE")
    p.label("W8_POLL")
    p(f"buffer_load_dwordx2 v[14:15], v6, s[12:15], s34 offen{SC}")
    p("v_mov_b32 v3, s25")
    p("s_waitcnt vmcnt(1)")
    p(f"ds_write_b32 v20, v3 offset:{C_KVL}")
    p("s_waitcnt vmcnt(0)")
    if STAMP:
        p("s_cmp_lg_u32 s46, 0x4000")
        p("s_cbranch_scc1 W8_STP")
        stamp(p, 6)
        p.label("W8_STP")
    flag_test(p, 14)
    p("s_and_b32 s45, vcc_lo, 0xffff")
    p("s_sub_u32 s46, s46, 1")
    p("s_cselect_b32 s45, 0xffff, s45")
    p("s_lshr_b32 s47, s45, s31")
    p("s_and_b32 s47, s47, 1")
    p("v_mov_b32 v3, s47")
    p(f"ds_write_b32 v20, v3 offset:{C_QRDY}")
    p("s_andn2_b32 s10, s45, s44")
    p("s_cbranch_scc1 W8_HAVE")
    p(f"s_sleep {opt('kslp', 4)}")
    p("s_branch W8_POLL")
    p.label("W8_NOSLOT")
    p("v_mov_b32 v3, s25")
    p("s_waitcnt vmcnt(0)")
    p(f"ds_write_b32 v20, v3 offset:{C_KVL}")
    bail(p)
    p("s_sleep 4")
    p("s_branch W8_LOOP")
    p.label("W8_HAVE")
    p("s_sub_u32 s24, s25, 5")
    p(f"ds_read_b32 v3, v9 offset:{C_PROG}")
    p("s_waitcnt lgkmcnt(0)")
    p("v_cmp_gt_i32 vcc, s24, v3")
    p("s_cbranch_vccnz W8_NOSLOT")
    p("s_lshr_b32 s11, s10, s26")
    p("s_cselect_b32 s11, s11, s10")
    p("s_cselect_b32 s20, s26, 0")
    p("s_ff1_i32_b32 s11, s11")
    p("s_add_u32 s11, s11, s20")
    p("s_bitset1_b32 s44, s11")
    p("s_lshl_b32 s20, s11, 14")
    p("s_add_u32 s20, s20, s30")
    for q_ in range(4):
        p("s_mov_b32 m0, s21")
        p("s_add_u32 s21, s21, 4096")
        for j in range(4): p(f"buffer_load_dwordx4 v1, s[12:15], s20 offen offset:{1024*j}{SC} lds")
        p("s_add_u32 s20, s20, 4096")
    p(f"s_cmp_ge_u32 s21, {RING}")
    p("s_cselect_b32 s21, 0, s21")
    p("v_mov_b32 v3, s25")
    p("s_add_u32 s25, s25, 1")
    p("s_waitcnt vmcnt(16)")
    p(f"ds_write_b32 v20, v3 offset:{C_KVL}")
    if STAMP:
        for (n_, i_) in ((2, 2), (3, 3), (6, 4)):
            p(f"s_cmp_lg_u32 s25, {n_}")
            p(f"s_cbranch_scc1 W8_ST{n_}")
            stamp(p, i_)
            p.label(f"W8_ST{n_}")
    p("s_cmp_lt_u32 s25, 16")
    p("s_cbranch_scc1 W8_LOOP")
    p("v_mov_b32 v3, 17")
    p("s_waitcnt vmcnt(0)")
    p(f"ds_write_b32 v20, v3 offset:{C_KVL}")
    stamp(p, 5)
    p(f"s_mul_i32 s34, s38, {FLS}")
    p(f"s_add_u32 s34, s34, {FL_O}")
    order = [(0, 11, 0), (1, 12, 0), (2, 13, 0), (3, 13, 4), (4, 13, 4), (5, 13, 4), (6, 14, 4), (7, 15, 4)]
    pack = lambda f: sum(f(o) << (4 * i) for i, o in enumerate(order))
    p(f"s_mov_b32 s41, {WTAB}")
    p(f"s_mov_b32 s42, {pack(lambda o: o[1] - 8)}")
    p("s_mov_b32 s25, 0")
    p("s_mov_b32 s44, 0")
    p("s_mov_b32 s46, 0x4000")
    p.label("W8_WLOOP")
    p("s_cmp_lg_u32 s25, 3")
    p("s_cbranch_scc1 W8_WNC")
    lds_wait_ge(p, "W8_CV", 20, C_A2, 4, 3, sleep=4)
    p.label("W8_WNC")
    p("s_and_b32 s24, s42, 15")
    p("s_add_u32 s24, s24, 8")
    p(f"ds_read_b32 v3, v9 offset:{C_PROG}")
    p("s_waitcnt lgkmcnt(0)")
    p("v_cmp_gt_i32 vcc, s24, v3")
    p("s_cbranch_vccnz W8_WSKIP")
    p("s_lshl_b32 s20, s25, 18")
    p("s_and_b32 s21, s41, 15")
    p("s_lshl_b32 s21, s21, 14")
    p("s_lshl_b32 s10, s25, 2")
    p("s_bitset1_b32 s44, s10")
    for q_ in range(4):
        p("s_mov_b32 m0, s21")
        p("s_add_u32 s21, s21, 4096")
        for jj in range(4): p(f"buffer_load_dwordx4 {v(10+jj)}, s[16:19], s20 offen offset:{1024*jj} lds")
        p("s_add_u32 s20, s20, 65536")
    for r_ in (41, 42): p(f"s_lshr_b32 s{r_}, s{r_}, 4")
    p("s_waitcnt vmcnt(32)")
    p("s_add_u32 s25, s25, 1")
    p("s_cmp_lt_u32 s25, 8")
    p("s_cbranch_scc1 W8_WLOOP")
    lds_wait_ge(p, "W8_OW", 20, C_OARR, opt("ostart", 4), 3, sleep=4)
    p.label("W8_WSKIP")
    p("s_cmp_lt_u32 s25, 8")
    p("s_cbranch_scc1 W8_WNEXT")
    p.label("W8_OPOLL")
    p(f"buffer_load_dwordx2 v[14:15], v16, s[12:15], s34 offen{SC}")
    p("s_waitcnt vmcnt(0)")
    flag_test(p, 14)
    p("s_lshr_b32 s10, vcc_lo, 1")
    p("s_and_b32 s45, vcc_lo, s10")
    p("s_lshr_b32 s10, s45, 2")
    p("s_and_b32 s45, s45, s10")
    p("s_sub_u32 s46, s46, 1")
    p("s_cselect_b32 s45, -1, s45")
    p("s_and_b32 s45, s45, s44")
    lds_wait_ge(p, "W8_OX", 20, C_OARR, 8, 3, sleep=1)
    p("v_mov_b32 v3, s45")
    p(f"ds_write_b32 v20, v3 offset:{C_OMASK}")
    p("s_cmp_eq_u32 s45, 0x11111111")
    p("s_cbranch_scc1 W8_DONE")
    p.label("W8_WNEXT")
    bail(p)
    p(f"s_sleep {opt('oslp', 8)}")
    p("s_cmp_lt_u32 s25, 8")
    p("s_cbranch_scc1 W8_WLOOP")
    p("s_branch W8_OPOLL")
    p.pads(0)
    p.label("W8_DONE")
    stamp(p, 12)
    stamp_flush(p)
    p("s_endpgm")

def emit_partA(p):
    pre = "PA"
    p(f"s_load_dwordx8 s[36:43], s[0:1], {A_Q}")
    p(f"s_load_dwordx4 s[44:47], s[0:1], {A_SSMK}")
    p(f"s_load_dwordx4 s[48:51], s[0:1], {B_WO}")
    p("s_barrier")
    p("s_sub_u32 s3, s3, 9")
    p("s_and_b32 s28, s2, 15")
    p("s_and_b32 s10, s28, 7")
    p("s_lshr_b32 s11, s28, 3")
    p("s_lshl_b32 s28, s10, 1")
    p("s_add_u32 s28, s28, s11")
    p("s_lshr_b32 s29, s2, 4")
    p("s_lshl_b32 s35, s29, 3")
    p("s_lshl_b32 s29, s29, 2")
    p("s_add_u32 s29, s29, s3")
    p("s_lshl_b32 s27, s28, 6")
    p("s_add_u32 s27, s27, s29")
    p(f"s_mul_i32 s30, s3, {CV_STRIDE}")
    p(f"s_add_u32 s30, s30, {CV_BASE}")
    p("v_and_b32 v1, 7, v0")
    p("v_lshrrev_b32 v2, 3, v0")
    p("s_lshl_b32 s10, s29, 5")
    p("v_lshl_add_u32 v3, v2, 2, s10")
    p("s_lshl_b32 s11, s28, 7")
    p("v_lshl_add_u32 v4, v1, 4, s11")
    p("v_lshl_add_u32 v120, v3, 11, v4")
    p("v_lshl_add_u32 v122, v3, 12, v4")
    p("v_lshlrev_b32 v121, 11, v4")
    p("v_lshl_add_u32 v121, v2, 4, v121")
    p("s_lshr_b32 s31, s29, 4")
    p("s_lshl_b32 s31, s31, 10")
    p("s_and_b32 s26, s29, 7")
    p("s_lshl_b32 s26, s26, 7")
    p("s_add_u32 s31, s31, s26")
    p("s_and_b32 s26, s29, 8")
    p("s_add_u32 s31, s31, s26")
    p("v_add_u32 v121, s31, v121")
    p("v_and_b32 v123, 15, v0")
    p("v_lshlrev_b32 v123, 3, v123")
    p("v_lshlrev_b32 v124, 4, v0")
    p("v_and_b32 v1, 15, v0")
    p("v_lshrrev_b32 v2, 4, v0")
    p("v_lshl_add_u32 v3, v2, 3, s10")
    p("v_lshl_add_u32 v4, v1, 3, s11")
    p("v_lshl_add_u32 v9, v3, 11, v4")
    for j in range(3): p(f"v_add_u32 {v(6+j)}, {(j-3)*2048}, v9")
    for j in range(1, 4): p(f"v_add_u32 {v(9+j)}, {j*4096}, v9")
    p("v_lshlrev_b32 v13, 2, v4")
    p("v_lshrrev_b32 v14, 1, v4")
    p(f"v_mul_u32_u24 v14, {XRS}, v14")
    p("v_lshlrev_b32 v15, 1, v3")
    p("v_sub_u32 v15, 4080, v15")
    p("v_add_u32 v15, v15, v14")
    p("v_lshl_add_u32 v14, v2, 4, v14")
    p("s_lshl_b32 s33, s27, 12")
    p("s_mov_b32 s32, 0xffff0000")
    p(f"s_mul_i32 s34, s28, {FLS}")
    p(f"s_add_u32 s34, s34, {FL_A1}")
    p(f"s_mul_i32 s31, s27, {XRS}")
    p(f"s_add_u32 s31, s31, {WS_XR}")
    p("s_add_u32 s26, s31, 4096")
    p("v_and_b32 v1, 3, v0")
    p("v_lshlrev_b32 v1, 2, v1")
    p(f"v_add_u32 v1, {CNT}, v1")
    p("s_waitcnt lgkmcnt(0)")
    p("s_add_u32 s94, s96, 0x1000000")
    p("s_addc_u32 s95, s97, 0")
    srd(p, 12, 98, 99, WS_SIZE)
    srd(p, 16, 38, 39, 4 * MB)
    srd(p, 20, 40, 41, 4 * MB)
    srd(p, 52, 42, 43, 8192)
    if opt("tch", 0):
        p("v_min_u32 v4, 34, v0")
        p("s_lshl_b32 s10, s29, 5")
        p("s_sub_u32 s10, s10, 3")
        p("v_add_u32 v4, s10, v4")
        p("v_lshlrev_b32 v4, 11, v4")
        p("v_add_u32 v4, s11, v4")
        p(f"s_mul_i32 s10, s3, {opt('tchs', 1)}")
        p(f"s_add_u32 s10, s10, {opt('tch', 0)}")
        lds_wait_ge(p, "PA_T0", 1, C_LAND, "s10", 2, sleep=8)
        p("buffer_load_dword v116, v4, s[16:19], 0 offen")
        p("buffer_load_dword v117, v4, s[20:23], 0 offen")
    if opt("padn") or opt("pada"):
        p("s_cmp_lg_u32 s3, 0")
        p("s_cbranch_scc1 WP_END")
        lds_wait_ge(p, "PA_WP", 1, C_LAND, opt("padat", 8), 2, sleep=16)
        p("s_mov_b64 exec, 0")
        p("s_branch WP0")
        p.label("WP_END")
        p("s_mov_b64 exec, -1")
    p(f"v_mov_b32 v1, {CNT}")
    p.pads(opt("pada"))
    if opt("hwk", 5):
        lds_wait_ge(p, "PA_W0", 1, C_KVL, opt("hwk", 5), 2, sleep=opt("w0slp", 8))
    else:
        lds_wait_ge(p, "PA_W0", 1, C_KVST, opt("hws", 4), 2, sleep=4)
    p(f"s_setprio {opt('cvprio', 3)}")
    stamp(p, 1)
    KR, VR, SR = 16, 38, 56
    def rowaddr(j):
        if j < 3: return v(6 + j), 0
        return v(9 + (j - 3) // 2), 2048 * ((j - 3) & 1)
    for j in range(2): p(f"buffer_load_dwordx4 {v(SR+4*j,4)}, v13, s[52:55], 0 offen offset:{16*j}")
    for j in range(11):
        a_, o_ = rowaddr(j); p(f"buffer_load_dwordx2 {v(KR+2*j,2)}, {a_}, s[16:19], 0 offen offset:{o_}")
    for j in range(8):
        a_, o_ = rowaddr(j + 3); p(f"buffer_load_dwordx2 {v(VR+2*j,2)}, {a_}, s[20:23], 0 offen offset:{o_}")
    srd(p, 16, 44, 45, 4096, off="s33")
    srd(p, 20, 46, 47, 2048)
    EARLYH = opt("earlyh", 0)
    def hdma(t, u):
        p(f"v_and_b32 {v(u)}, 7, v0")
        p(f"v_lshlrev_b32 {v(u)}, 2, {v(u)}")
        p(f"v_add_u32 {v(u)}, {CNT}, {v(u)}")
        lds_wait_ge(p, "PA_W1", u, C_PROG, 1, u + 1, sleep=4)
        p(f"v_add_u32 {v(t+1)}, -512, v124")
        p(f"v_add_u32 {v(t+2)}, 512, v124")
        p("s_lshl_b32 s10, s27, 1")
        p(f"v_mov_b32 {v(t)}, s10")
        p(f"s_add_u32 m0, s30, {CV_H}")
        p(f"buffer_load_ushort v125, {v(t)}, s[20:23], 0 offen")
        p(f"buffer_load_dwordx4 {v(t+1)}, s[16:19], 0 offen lds")
        p(f"s_add_u32 m0, s30, {CV_H + 1024}")
        p("s_nop 0")
        for j in range(4): p(f"buffer_load_dwordx4 {v(t+2)}, s[16:19], 0 offen offset:{1024*j} lds")
        srd(p, 52, 48, 49, 2 * MB)
        p("s_lshl_b32 s10, s27, 11")
        p(f"v_lshlrev_b32 {v(u)}, 5, v0")
        p(f"buffer_load_dword v127, {v(u)}, s[52:55], s10 offen")
    if EARLYH: hdma(1, 4)
    XH = 7 if EARLYH else 0
    T, KU, AC, OUT = 64, 72, 94, 112
    for cp in range(2):
        if cp == 0:
            p(f"s_waitcnt vmcnt({8 + XH})"); stamp(p, 2)
        for e in range(2):
            for jj in range(2):
                src = SR + 4 * cp + 2 * e + jj
                p(f"v_lshlrev_b32 {v(T+2*(2*jj)+e)}, 16, {v(src)}")
                p(f"v_and_b32 {v(T+2*(2*jj+1)+e)}, s32, {v(src)}")
        for j in range(11):
            p(f"v_lshlrev_b32 {v(KU+2*j)}, 16, {v(KR+2*j+cp)}")
            p(f"v_and_b32 {v(KU+2*j+1)}, s32, {v(KR+2*j+cp)}")
        for t in range(8): p(f"v_pk_mul_f32 {v(AC+2*t,2)}, {v(KU+2*t,2)}, {v(T+6,2)}")
        for j in (2, 1, 0):
            for t in range(8): p(f"v_pk_fma_f32 {v(AC+2*t,2)}, {v(KU+2*(t-j+3),2)}, {v(T+2*j,2)}, {v(AC+2*t,2)}")
        if cp == 0: p(f"s_waitcnt vmcnt({XH})")
        for j in range(8):
            p(f"v_lshlrev_b32 {v(KU+2*j)}, 16, {v(VR+2*j+cp)}")
            p(f"v_and_b32 {v(KU+2*j+1)}, s32, {v(VR+2*j+cp)}")
        for t in range(8): p(f"v_pk_mul_f32 {v(AC+2*t,2)}, {v(AC+2*t,2)}, {v(KU+2*t,2)}")
        for e in range(2):
            for i in range(4): p(f"v_cvt_pk_bf16_f32 {v(OUT+4*e+i)}, {v(AC+2*(7-2*i)+e)}, {v(AC+2*(6-2*i)+e)}")
            p(f"s_mov_b32 s10, {WS_XR + (2*cp+e)*XRS}")
            p(f"buffer_store_dwordx4 {v(OUT+4*e,4)}, v15, s[12:15], s10 offen{SC}")
    p("s_cmp_lg_u32 s29, 0")
    p(f"s_cbranch_scc1 {pre}_S1END")
    for i in range(4): p(f"v_mov_b32 {v(8+i)}, 0")
    for c in range(4):
        p(f"s_mov_b32 s10, {WS_XR + c*XRS + 4096}")
        p(f"buffer_store_dwordx4 v[8:11], v14, s[12:15], s10 offen{SC}")
    p.label(f"{pre}_S1END")
    def signal_and_wait(tag, coff, work=None):
        p(f"v_mov_b32 v1, {CNT + coff}")
        p("v_mov_b32 v2, 1")
        p("v_mov_b32 v3, s35")
        p("s_waitcnt vmcnt(0)")
        p("s_mov_b64 exec, 1")
        p("ds_add_rtn_u32 v126, v1, v2")
        p("s_mov_b32 s25, 0x4000")
        p("s_waitcnt lgkmcnt(0)")
        p("v_readfirstlane_b32 s24, v126")
        p("s_cmp_lg_u32 s24, 3")
        p(f"s_cbranch_scc1 {pre}_NOSIG{tag}")
        flag_publish(p, 126, 3, "s34")
        p.label(f"{pre}_NOSIG{tag}")
        p("s_mov_b64 exec, -1")
        if work: work()
        p("s_cmp_lg_u32 s24, 3")
        p(f"s_cbranch_scc1 {pre}_LWAIT{tag}")
        p.label(f"{pre}_POLL{tag}")
        p(f"s_sleep {opt('slp', 8)}")
        p(f"buffer_load_dwordx2 v[126:127], v123, s[12:15], s34 offen{SC}")
        p("s_sub_u32 s25, s25, 1")
        p(f"s_cbranch_scc1 {pre}_GOT{tag}")
        p("s_waitcnt vmcnt(0)")
        flag_test(p, 126)
        p("s_cmp_lg_u64 vcc, -1")
        p(f"s_cbranch_scc1 {pre}_POLL{tag}")
        p.label(f"{pre}_GOT{tag}")
        p("ds_write_b32 v1, v2 offset:4")
        p(f"s_branch {pre}_GO{tag}")
        p.label(f"{pre}_LWAIT{tag}")
        bail(p)
        p("s_sleep 4")
        p("ds_read_b32 v126, v1 offset:4")
        p("s_waitcnt lgkmcnt(0)")
        p("v_cmp_ne_u32 vcc, 1, v126")
        p(f"s_cbranch_vccnz {pre}_LWAIT{tag}")
        p.label(f"{pre}_GO{tag}")
    AB, BB, KVB, ST = 8, 12, 13, 14
    FA, FBB, ACC = 16, 48, 80
    def hload():
        if not EARLYH: hdma(117, 5)
        p("v_and_b32 v5, 15, v0")
        p("v_lshrrev_b32 v6, 4, v0")
        p("v_lshrrev_b32 v3, 1, v5")
        p("v_lshlrev_b32 v4, 2, v6")
        p("v_sub_u32 v4, v4, v3")
        p("v_lshlrev_b32 v4, 2, v4")
        p("v_and_b32 v3, 1, v5")
        p("v_xor_b32 v3, 1, v3")
        p(f"v_mul_u32_u24 v3, {CV_C1}, v3")
        p(f"s_add_u32 s10, s30, {4*1023 - 32*(112+1)}")
        p(f"v_add3_u32 {v(AB)}, v4, v3, s10")
        for kk in range(1, 4): p(f"v_add_u32 {v(AB+kk)}, {1024*kk}, {v(AB)}")
        p("v_lshlrev_b32 v3, 5, v5")
        p("v_lshl_add_u32 v4, v6, 4, v3")
        p(f"s_add_u32 s10, s30, {CV_H + 512 - 32}")
        p(f"v_add_u32 {v(BB)}, s10, v4")
        p(f"v_lshl_add_u32 {v(ST)}, v6, 3, v3")
        p(f"s_add_u32 s10, s30, {4088 - 512*7}")
        p(f"v_sub_u32 {v(KVB)}, s10, {v(ST)}")
        for i in range(32): p(f"v_mov_b32 {v(ACC+i)}, 0")
        p("v_add_u32 v7, 2, v124")
    stamp(p, 3)
    signal_and_wait(1, C_A1, hload)
    stamp(p, 4)
    for (src_v, off) in ((124, 0), (7, CV_C1)):
        p(f"s_add_u32 m0, s30, {off}")
        p("s_nop 0")
        for j in range(4): p(f"buffer_load_dwordx4 {v(src_v)}, s[12:15], s31 offen offset:{1024*j}{SC} lds")
        p(f"s_add_u32 m0, s30, {off + 4096}")
        p("s_mov_b64 exec, 15")
        p(f"buffer_load_dwordx4 {v(src_v)}, s[12:15], s26 offen{SC} lds")
        p("s_mov_b64 exec, -1")
    p(f"s_add_u32 s34, s34, {FL_A2 - FL_A1}")
    p("s_mov_b32 s25, 8")
    p("s_waitcnt vmcnt(0)")
    if opt("qt", 1):
        srd(p, 16, 36, 37, 4 * MB)
        p("v_and_b32 v3, 3, v0")
        p("v_lshl_add_u32 v3, v3, 11, v120")
        p("buffer_load_dword v116, v3, s[16:19], 0 offen")
    stamp(p, 5)
    p.padn = opt("pada") * 2
    p.label(f"{pre}_CVL")
    def rdA(a):
        kk, rem = (7 - a) >> 1, 128 * ((7 - a) & 1)
        return [f"ds_read2_b32 {v(FA+4*a,2)}, {v(AB+kk)} offset0:{rem} offset1:{rem+1}",
                f"ds_read2_b32 {v(FA+4*a+2,2)}, {v(AB+kk)} offset0:{rem+2} offset1:{rem+3}"]
    cnt = [0]
    def cm(a, b):
        p(mf16(ACC+4*(a+b), FA+4*a, FBB+4*b, ACC+4*(a+b)))
        cnt[0] += 1
        if opt("cvnop", -1) >= 0 and cnt[0] % opt("cvev", 1) == 0: p(f"s_nop {opt('cvnop')}")
    def rdB(b): return [f"ds_read_b128 {v(FBB+4*b,4)}, {v(BB)} offset:{512*b}"]
    for x in range(8):
        for r_ in rdA(x) + rdB(x): p(r_)
    for kk in range(4): p(f"v_add_u32 {v(AB+kk)}, -64, {v(AB+kk)}")
    p(f"v_add_u32 {v(BB)}, -64, {v(BB)}")
    p("s_waitcnt lgkmcnt(12)")
    for a in range(4):
        for b in range(4): cm(a, b)
    p("s_waitcnt lgkmcnt(0)")
    for a in range(8):
        for b in range(8 - a):
            if a >= 4 or b >= 4: cm(a, b)
    p("s_sub_u32 s25, s25, 1")
    p("s_cmp_lg_u32 s25, 0")
    p(f"s_cbranch_scc1 {pre}_CVL")
    stamp(p, 6)
    p.padn = opt("pada")
    for t in range(8): p(f"ds_read_b64 {v(FA+2*t,2)}, {v(KVB)} offset:{512*(7-t)}")
    p("v_lshlrev_b32 v125, 16, v125")
    p(f"s_add_u32 s33, s33, {WS_Y}")
    p(f"v_lshlrev_b32 {v(ST)}, 1, {v(ST)}")
    for t in range(8):
        p(f"s_waitcnt lgkmcnt({7-t})" if not STAMP else "s_waitcnt lgkmcnt(0)")
        U = FBB + 4 * (t & 3); a = ACC + 4 * t; o = FBB + 16 + 2 * t
        p(f"v_and_b32 {v(U)}, s32, {v(FA+2*t+1)}")
        p(f"v_lshlrev_b32 {v(U+1)}, 16, {v(FA+2*t+1)}")
        p(f"v_and_b32 {v(U+2)}, s32, {v(FA+2*t)}")
        p(f"v_lshlrev_b32 {v(U+3)}, 16, {v(FA+2*t)}")
        for r_ in range(4): p(f"v_fmac_f32 {v(a+r_)}, v125, {v(U+r_)}")
        p(f"v_cvt_pk_bf16_f32 {v(o)}, {v(a)}, {v(a+1)}")
        p(f"v_cvt_pk_bf16_f32 {v(o+1)}, {v(a+2)}, {v(a+3)}")
        if t & 1: p(f"buffer_store_dwordx4 {v(o-2,4)}, {v(ST)}, s[12:15], s33 offen offset:{1024*(t>>1)}{SC}")
    QR, YR, U, OUT = 16, 32, 48, 64
    def qload():
        srd(p, 16, 36, 37, 4 * MB)
        srd(p, 20, 50, 51, 8 * MB)
        p("v_add_u32 v6, 4096, v120")
        for j in range(4): p(f"buffer_load_dwordx4 {v(QR+4*j,4)}, {('v120', 'v6')[j>>1]}, s[16:19], 0 offen offset:{2048*(j&1)}")
    signal_and_wait(2, C_A2, qload)
    stamp(p, 7)
    for c in range(8):
        p(f"s_mov_b32 s10, {WS_Y + c*4096}")
        p(f"buffer_load_dwordx2 {v(YR+2*c,2)}, v121, s[12:15], s10 offen{SC}")
    p("s_waitcnt vmcnt(0)")
    for t in range(4):
        for cp in range(4):
            u = U + 4 * (cp & 1)
            q = QR + 4 * t + cp
            p(f"v_lshlrev_b32 {v(u)}, 16, {v(q)}")
            p(f"v_and_b32 {v(u+1)}, s32, {v(q)}")
            for e in range(2):
                y = YR + 2 * (2 * cp + e) + (t >> 1)
                if t & 1: p(f"v_and_b32 {v(u+2+e)}, s32, {v(y)}")
                else: p(f"v_lshlrev_b32 {v(u+2+e)}, 16, {v(y)}")
            p(f"v_pk_mul_f32 {v(u,2)}, {v(u,2)}, {v(u+2,2)}")
            p(f"v_cvt_pk_bf16_f32 {v(OUT+4*t+cp)}, {v(u)}, {v(u+1)}")
        p(f"s_mov_b32 s10, {t*4096}")
        p(f"buffer_store_dwordx4 {v(OUT+4*t,4)}, v122, s[20:23], s10 offen{SC}")
    stamp(p, 12)
    stamp_flush(p)
    p("s_endpgm")

def build(path):
    p = Prog()
    emit(p)
    p.pads(0)
    if p.npads:
        p.label(f"WP{p.npads}")
        p("s_branch WP_END")
    p.label("L_CODE_END")
    hdr = open("concat_heads__ssm_conv_h3__mha_block__prompt.s.ref").read().split("\n")
    hdr = [l for l in hdr if l.startswith(";") and "@launch" not in l and "Override" not in l and "grid=ceil" not in l]
    out = "\n".join(hdr) + "\n"
    if opt("aslist", 1): out += f"; @launch kernel={NAME} grid=(256,1,1) block=(832,1,1) lds={LDS_BYTES}\n"
    else: out += f"; @launch grid=(256,1,1) block=(832,1,1) lds={LDS_BYTES}\n"
    out += '.amdgcn_target "amdgcn-amd-amdhsa--gfx950"\n.text\n'
    body = p.text()
    nbad = check(body)
    out += body
    out += f""".section .rodata,"a"
.p2align 6
.amdhsa_kernel {NAME}
  .amdhsa_next_free_vgpr 128
  .amdhsa_next_free_sgpr 102
  .amdhsa_accum_offset 128
  .amdhsa_group_segment_fixed_size 0
  .amdhsa_kernarg_size 96
  .amdhsa_user_sgpr_count 2
  .amdhsa_user_sgpr_kernarg_segment_ptr 1
  .amdhsa_system_sgpr_workgroup_id_x 1
.end_amdhsa_kernel
"""
    open(path, "w").write(out)
    return nbad

if __name__ == "__main__":
    nb = build(sys.argv[1] if len(sys.argv) > 1 else "pk.s")
    print("hazards:", nb)
```

```python
import sys, os, struct, math
sys.path.insert(0, os.path.dirname(os.path.abspath(__file__)))
from asmlib import Prog, v, s, check

MB = 1 << 20
WS_KV, WS_QX, WS_O, WS_XR, WS_Y, WS_FL = 0, 8 * MB, 12 * MB, 16 * MB, 21 * MB, 25 * MB
XRS = 4224
WS_SIZE = 64 * MB
LOC = 32 * MB
FLS = 4352
FL_A1, FL_A2, FL_KV, FL_O, FL_KVL = [WS_FL + 16 * i * FLS for i in range(5)]
A_Q, A_K, A_V, A_SK, A_SSMK, A_D, B_X, B_WQKV, B_WO, D_OUT, D_DBG, D_WS = [8 * i for i in range(12)]
def f32bits(x): return struct.unpack("<I", struct.pack("<f", x))[0]
QSCALE = f32bits((32 ** -0.5) * math.log2(math.e))
STAMP = os.environ.get("STAMP", "0") == "1"
LIGHT = os.environ.get("STAMP", "0") == "2"
OPT = dict(kv.split("=") for kv in os.environ.get("OPT", "").split(",") if kv)
def opt(k, d=0): return int(OPT.get(k, d))
WS_ST = 28 * MB
SC = " sc1"
NAME = "concat_heads__ssm_conv_h3__mha_block__prompt_kernel"

WREG = 5 * 16384
RING = 6 * 16384
OWNC = WREG + 24576
QHO = OWNC + 16384
CV_BASE = 98304
CV_STRIDE = 15616
CV_C1 = 5120 + 64
CV_H = 2 * 5120 + 128
CNT = CV_BASE + 4 * CV_STRIDE
C_LAND, C_CONS, C_PROG, C_KVL, C_OWN, C_KVST, C_A1, C_A2, C_OARR, C_OMASK, C_QRDY, C_CPY, C_GALL, C_CP2 = 0, 16, 32, 64, 68, 72, 76, 84, 92, 96, 100, 104, 108, 112
LDS_BYTES = CNT + 256

def mf32(d, a, b, c): return f"v_mfma_f32_32x32x16_bf16 {v(d,16)}, {v(a,4)}, {v(b,4)}, {v(c,16) if isinstance(c,int) else c}"
def mf16(d, a, b, c): return f"v_mfma_f32_16x16x32_bf16 {v(d,4)}, {v(a,4)}, {v(b,4)}, {v(c,4) if isinstance(c,int) else c}"

def srd(p, d, lo, hi, nrec, off=None):
    if off is None:
        if lo != d: p(f"s_mov_b32 {s(d)}, {s(lo)}")
        if hi != d + 1: p(f"s_mov_b32 {s(d+1)}, {s(hi)}")
    else:
        p(f"s_add_u32 {s(d)}, {s(lo)}, {off}")
        p(f"s_addc_u32 {s(d+1)}, {s(hi)}, 0")
    p(f"s_mov_b32 {s(d+2)}, {nrec}")
    p(f"s_mov_b32 {s(d+3)}, 0x20000")

def stamp(p, i, real=True):
    if STAMP and not (opt("p1st") and i in (4, 5, 6, 7, 9, 10, 11)): p(f"{'s_memrealtime' if real else 's_memtime'} s[{60+2*i}:{61+2*i}]")
def stamp_flush(p, n=14):
    if LIGHT:
        p("s_memrealtime s[90:91]")
        p("s_lshl_b32 s58, s2, 4")
        p("s_add_u32 s58, s58, s59")
        p("s_lshl_b32 s58, s58, 3")
        p(f"s_add_u32 s58, s58, {WS_ST}")
        p("s_waitcnt lgkmcnt(0)")
        p("v_mov_b32 v1, s58")
        p("v_mov_b32 v2, s96")
        p("v_mov_b32 v3, s90")
        p("global_store_dwordx2 v1, v[2:3], s[98:99]")
    if not STAMP: return
    p("s_memtime s[90:91]")
    p("s_lshl_b32 s58, s2, 4")
    p("s_add_u32 s58, s58, s59")
    p("s_lshl_b32 s58, s58, 6")
    p(f"s_add_u32 s58, s58, {WS_ST}")
    p("s_waitcnt lgkmcnt(0)")
    p("v_mov_b32 v2, s58")
    for i in range(16):
        p(f"v_mov_b32 v3, s{60+2*i}")
        p(f"global_store_dword v2, v3, s[98:99] offset:{4*i}")

def lane_id(p, d):
    p(f"v_mbcnt_lo_u32_b32 {v(d)}, -1, 0")
    p(f"v_mbcnt_hi_u32_b32 {v(d)}, -1, {v(d)}")

def bail(p):
    p("s_sub_u32 s100, s100, 1")
    p("s_cbranch_scc1 L_END")

def lds_wait_ge(p, lab, vaddr, off, need, vt, sleep=2):
    p(f"s_branch {lab}c")
    p.label(f"{lab}s")
    bail(p)
    p(f"s_sleep {sleep}")
    p.label(f"{lab}c")
    p(f"ds_read_b32 {v(vt)}, {v(vaddr)} offset:{off}")
    p("s_waitcnt lgkmcnt(0)")
    p(f"v_cmp_gt_i32 vcc, {need}, {v(vt)}")
    p(f"s_cbranch_vccnz {lab}s")

def local_flag_base(p, d):
    p(f"s_getreg_b32 s{d}, hwreg(HW_REG_XCC_ID)")
    p(f"s_and_b32 s{d}, s{d}, 15")
    p(f"s_lshl_b32 s{d}, s{d}, 4")
    p(f"s_add_u32 s{d}, s{d}, s27")
    p(f"s_lshl_b32 s{d}, s{d}, 9")
    p(f"s_add_u32 s{d}, s{d}, {FL_KVL}")

def flag_publish(p, vt, voff, soff, SC=" sc1"):
    p("s_memrealtime s[92:93]")
    p("s_waitcnt lgkmcnt(0)")
    p(f"v_mov_b32 {v(vt)}, s92")
    p(f"v_mov_b32 {v(vt+1)}, s93")
    p(f"buffer_store_dwordx2 {v(vt,2)}, {v(voff)}, s[12:15], {soff} offen{SC}")

def flag_test(p, vt):
    p(f"v_cmp_lt_u64 vcc, s[96:97], {v(vt,2)}")
    p(f"v_cmp_gt_u64 s[92:93], s[94:95], {v(vt,2)}")
    p("s_and_b64 vcc, vcc, s[92:93]")

def pf_addr(p, vx, vw, which=(0, 1)):
    if 0 in which:
        p("s_and_b32 s29, s27, 1")
        p("s_lshl_b32 s29, s29, 6")
        p("s_lshl_b32 s10, s26, 7")
        p("s_add_u32 s29, s29, s10")
        p("v_add_u32 v1, s29, v0")
        p(f"v_lshlrev_b32 {v(vx)}, 11, v1")
    if 1 in which:
        p("v_bfe_u32 v2, v0, 2, 2")
        p("s_lshl_b32 s29, s26, 2")
        p("v_add_u32 v2, s29, v2")
        if opt("wup", 0):
            p("v_lshrrev_b32 v3, 4, v0")
            p("v_lshl_add_u32 v2, v3, 8, v2")
        p("v_mul_u32_u24 v2, 6144, v2")
        p("v_and_b32 v3, 3, v0")
        p("v_min_u32 v3, 2, v3")
        p("v_lshl_add_u32 v2, v3, 11, v2")
        p("s_lshl_b32 s29, s27, 7")
        p(f"v_add_u32 {v(vw)}, s29, v2")

def tile3(p):
    p("s_and_b32 s38, s8, 3")
    p("s_lshl_b32 s38, s38, 2")
    p("s_and_b32 s10, s9, 3")
    p("s_add_u32 s38, s38, s10")
    p("s_lshr_b32 s39, s8, 2")
    p("s_lshl_b32 s39, s39, 3")
    p("s_lshr_b32 s10, s9, 2")
    p("s_add_u32 s39, s39, s10")

WTAB = 0x10876543

def emit(p):
    p(f".globl {NAME}")
    p(".p2align 8")
    p(f".type {NAME},@function")
    p.label(NAME)
    p("s_cmp_ge_u32 s2, 256")
    p("s_cbranch_scc1 L_END")
    p(f"s_load_dwordx4 s[4:7], s[0:1], {B_X}")
    p(f"s_load_dwordx2 s[98:99], s[0:1], {D_WS}")
    p("s_memrealtime s[96:97]")
    p("v_lshrrev_b32 v1, 6, v0")
    p("v_and_b32 v0, 63, v0")
    p("s_and_b32 s8, s2, 7")
    p("v_readfirstlane_b32 s3, v1")
    stamp(p, 0); stamp(p, 14, False)
    p("s_lshr_b32 s9, s2, 3")
    p("s_mov_b32 s100, 0x100000")
    if STAMP or LIGHT: p("s_mov_b32 s59, s3")
    p("s_and_b32 s26, s9, 15")
    p("s_lshl_b32 s27, s8, 1")
    p("s_lshr_b32 s10, s9, 4")
    p("s_add_u32 s27, s27, s10")
    p("s_cmp_ge_u32 s3, 4")
    p("s_cbranch_scc1 L_NOTLOADER")
    p("s_and_b32 s34, s3, 2")
    p("s_and_b32 s25, s3, 1")
    p("v_lshrrev_b32 v2, 3, v0")
    p("v_lshlrev_b32 v2, 11, v2")
    p("v_lshrrev_b32 v3, 4, v0")
    p("v_and_b32 v4, 7, v0")
    p("v_xor_b32 v4, v4, v3")
    p("v_lshl_add_u32 v2, v4, 4, v2")
    p("s_lshl_b32 s10, s34, 16")
    p("v_add_u32 v10, s10, v2")
    p("v_xor_b32 v11, 64, v10")
    p(f"v_add_u32 v12, {32768-2048}, v10")
    p(f"v_add_u32 v13, {49152-3072}, v11")
    p(f"v_add_u32 v11, {16384-1024}, v11")
    p("s_lshl_b32 s23, s34, 12")
    p("s_lshl_b32 s10, s25, 14")
    p("s_add_u32 s23, s23, s10")
    p(f"s_mul_i32 s39, s8, {opt('xrot', 0)}")
    p("s_and_b32 s36, s27, 1")
    p(f"s_mul_i32 s36, s36, {opt('nrot', 0)}")
    p("s_add_u32 s39, s39, s36")
    p("s_add_u32 s36, s39, s25")
    p("s_and_b32 s36, s36, 15")
    p("s_lshl_b32 s20, s36, 7")
    p("s_lshl_b32 s10, s26, 18")
    p("s_mov_b32 s14, 262144")
    p("s_mov_b32 s15, 0x20000")
    pf_addr(p, 16, 16, (1,))
    p("s_add_u32 s35, s39, s3")
    p(f"s_and_b32 s35, s35, {3 if opt('wup', 0) else 15}")
    p(f"s_mul_i32 s35, s35, {64*6144}")
    p("s_waitcnt lgkmcnt(0)")
    srd(p, 40, 6, 7, 6 * MB)
    p("buffer_load_dword v17, v16, s[40:43], s35 offen")
    p("s_add_u32 s12, s4, s10")
    p("s_addc_u32 s13, s5, 0")
    def xissue():
        for q_ in range(2):
            p(f"s_add_u32 m0, s23, {4096*q_}")
            p(f"s_add_u32 s10, s20, {65536*q_}")
            for jj in range(4): p(f"buffer_load_dwordx4 {v(10+jj)}, s[12:15], s10 offen offset:{1024*jj} lds")
        p("s_add_u32 s20, s20, 256")
        p("s_and_b32 s20, s20, 2047")
        p("s_add_u32 s23, s23, 32768")
        p(f"s_cmp_ge_u32 s23, {WREG}")
        p(f"s_cselect_b32 s10, {WREG}, 0")
        p("s_sub_u32 s23, s23, s10")
    xissue()
    p("v_lshrrev_b32 v2, 5, v0")
    p("v_lshlrev_b32 v2, 2, v2")
    p("v_bfe_u32 v4, v0, 2, 2")
    p("s_lshl_b32 s10, s34, 4")
    p("v_add3_u32 v2, v2, v4, s10")
    p("v_mul_u32_u24 v2, 6144, v2")
    p("v_bfe_u32 v3, v0, 4, 1")
    p("v_lshl_add_u32 v2, v3, 6, v2")
    p("v_and_b32 v4, 3, v0")
    p("v_lshl_add_u32 v14, v4, 4, v2")
    p("v_add_u32 v15, 48128, v14")
    p("v_lshlrev_b32 v4, 2, v4")
    p(f"v_add_u32 v18, {CNT}, v4")
    p("s_mul_i32 s24, s34, 6144")
    p("s_mul_i32 s10, s25, 24576")
    p("s_add_u32 s24, s24, s10")
    p(f"s_add_u32 s24, s24, {WREG}")
    p("s_mul_i32 s21, s36, 393216")
    p("s_lshl_b32 s11, s27, 7")
    p(f"s_sub_u32 s18, {1024*6144}, s11")
    p("s_mov_b32 s19, 0x20000")
    p("s_add_u32 s16, s6, s11")
    p("s_addc_u32 s17, s7, 0")
    p("s_lshl_b64 s[32:33], 1, s3")
    XPF = opt("xpf", 4)
    if XPF:
        p("s_mov_b32 s37, 393216")
        p("s_cmp_lg_u32 s3, 0")
        p("s_cbranch_scc1 P1_NX")
        pf_addr(p, 16, 16, (0,))
        srd(p, 40, 4, 5, 4 * MB)
        p("s_mov_b32 s37, 128")
        p.label("P1_NX")
        p("s_cmp_lg_u32 s25, 0")
    else:
        p(f"s_cmp_ge_u32 s3, {0 if opt('wup', 0) else 2}")
    p("s_cselect_b32 s42, 0, s42")
    p.label("P1_LISSUE")
    for q_ in range(2):
        p(f"s_add_u32 m0, s24, {6144*q_}")
        p(f"s_add_u32 s10, s21, {16*6144*q_}")
        for ii in range(4): p(f"buffer_load_dwordx4 {v(14+(ii&1))}, s[16:19], s10 offen offset:{1024*ii} lds")
        p(f"s_add_u32 m0, s24, {6144*q_+4096}")
        p(f"s_add_u32 s10, s21, {16*6144*q_+4096}")
        for ii in range(2): p(f"buffer_load_dwordx4 {v(14+ii)}, s[16:19], s10 offen offset:{1024*ii} lds")
    p("s_add_u32 s36, s36, 2")
    p("s_and_b32 s36, s36, 15")
    p("s_mul_i32 s21, s36, 393216")
    p(f"s_add_u32 s35, s36, {XPF - 2 if XPF else 2}")
    p("s_and_b32 s35, s35, 15")
    p("s_mul_i32 s35, s35, s37" if XPF else "s_mul_i32 s35, s35, 393216")
    p(f"s_cmp_ge_u32 s25, {16 - XPF if XPF else 12}")
    p("s_cselect_b32 s42, 0, s42")
    p("s_add_u32 s24, s24, 49152")
    p(f"s_cmp_ge_u32 s24, {WREG + 3*24576}")
    p(f"s_cselect_b32 s11, {3*24576}, 0")
    p("s_sub_u32 s24, s24, s11")
    p("s_add_u32 s25, s25, 2")
    p("s_cmp_ge_u32 s25, 16")
    p("s_cbranch_scc1 P1_LLAST")
    xissue()
    p("buffer_load_dword v17, v16, s[40:43], s35 offen")
    if XPF:
        p("s_add_u32 s35, s35, s37")
        p("buffer_load_dword v17, v16, s[40:43], s35 offen")
    p("s_cmp_eq_u32 s25, 2")
    p("s_cbranch_scc1 P1_LNB")
    p("s_barrier")
    p.label("P1_LNB")
    p(f"s_waitcnt vmcnt({10 if XPF else 9})")
    p("s_barrier")
    p("s_branch P1_LISSUE")
    p.label("P1_LLAST")
    p("s_barrier")
    p("s_waitcnt vmcnt(0)")
    p("s_barrier")
    p("s_cmp_lg_u32 s25, 16")
    p("s_cbranch_scc1 P1_LDONE")
    p("s_barrier")
    p.label("P1_LDONE")
    stamp(p, 1)
    Q, ONES, L, P0, P1, F0, F1, NEGM, SA, SB, O = 4, 12, 16, 20, 24, 28, 44, 60, 76, 92, 108
    VN, VL, VC, VP, IDX, CA, CV_, ONE = 0, 1, 2, 3, 124, 125, 126, 127
    p("s_lshl_b32 s28, s26, 2")
    p("s_add_u32 s28, s28, s3")
    p("v_lshlrev_b32 v1, 4, v0")
    p(f"v_mov_b32 {v(CA)}, {CNT}")
    srd(p, 12, 98, 99, WS_SIZE)
    p("s_lshl_b32 s10, s3, 11")
    p(f"s_add_u32 s10, s10, {QHO}")
    p(f"v_add_u32 {v(SB)}, s10, v1")
    p("s_branch A_INIT")

    p.label("L_NOTLOADER")
    p("s_cmp_ge_u32 s3, 8")
    p("s_cbranch_scc1 L_HELPERS")
    ACC, XF, WF_, XC, WC, SY, VT = 32, 0, 16, 28, 29, 30, 31
    p("s_sub_u32 s31, s3, 4")
    p("s_lshr_b32 s28, s31, 1")
    p("s_and_b32 s29, s31, 1")
    p("v_and_b32 v1, 31, v0")
    p("v_lshrrev_b32 v2, 5, v0")
    p("v_bfe_u32 v3, v0, 1, 3")
    p("v_xor_b32 v3, v3, v2")
    p("v_lshlrev_b32 v3, 4, v3")
    p("v_lshl_add_u32 v3, v1, 7, v3")
    p("s_lshl_b32 s10, s28, 13")
    p(f"v_add_u32 {v(XC)}, s10, v3")
    p("v_lshlrev_b32 v2, 10, v2")
    p("v_bfe_u32 v3, v0, 2, 2")
    p("v_lshl_add_u32 v2, v3, 6, v2")
    p("v_bfe_u32 v3, v0, 4, 1")
    p("v_lshl_add_u32 v2, v3, 5, v2")
    p("v_and_b32 v3, 3, v0")
    p("v_lshl_add_u32 v2, v3, 3, v2")
    p("s_lshl_b32 s10, s29, 8")
    p(f"s_add_u32 s10, s10, {WREG}")
    p(f"v_add_u32 {v(WC)}, s10, v2")
    p("v_lshlrev_b32 v3, 2, v3")
    p(f"v_add_u32 {v(SY)}, {CNT}, v3")
    p("v_lshlrev_b32 v3, 2, v0")
    p(f"v_add_u32 v3, {CNT}, v3")
    p(f"v_mov_b32 {v(VT)}, 0")
    p(f"ds_write_b32 v3, {v(VT)}")
    for i in range(8, 28): p(f"v_mov_b32 {v(i)}, 0")
    for i in range(ACC, ACC + 96): p(f"v_mov_b32 {v(i)}, 0")
    p("s_mov_b32 s25, 0")
    p("s_mov_b32 s24, 0")
    p("s_mov_b32 s21, 0")
    p(f"s_setprio {opt('cpprio', 3)}")
    def mfmas(b):
        L_ = []
        for ty in range(3):
            for rt in range(2):
                d = ACC + (rt * 3 + ty) * 16
                x, w = XF + 8 * b + 4 * rt, WF_ + 4 * ty
                L_.append(mf32(d, w, x, d) if ty < 2 else mf32(d, x, w, d))
        return L_
    def rx(b, rt): return f"ds_read_b128 {v(XF+8*b+4*rt,4)}, {v(XC)} offset:{rt*4096}"
    def rw(ks, ty): return [f"ds_read_b64_tr_b16 {v(WF_+4*ty+2*h,2)}, {v(WC)} offset:{ks*6144+ty*2048+h*512}" for h in range(2)]
    def cons():
        p("s_mov_b64 exec, s[32:33]")
        p(f"ds_inc_u32 {v(SY)}, {v(SY)} offset:{C_CONS}")
        p("s_mov_b64 exec, -1")
    w = lambda n: p(f"s_waitcnt lgkmcnt({n})")
    if opt("al1", -1) >= 0:
        p(".p2align 6")
        for _ in range(opt("al1")): p("s_nop 0")
    p.label("P1_CLOOP")
    for ks in range(4):
        b = ks & 1
        M = mfmas(b ^ 1)
        w(4); p(M[0])
        if ks == 0:
            p(M[1])
            w(0)
            p("s_barrier")
            for r_ in rw(ks, 0): p(r_)
            p(rx(b, 0))
            p(M[2])
            p(rx(b, 1))
            p(f"v_xor_b32 {v(XC)}, 32, {v(XC)}")
        else:
            p(rx(b, 0)); p(rx(b, 1))
            p(f"v_xor_b32 {v(XC)}, {32 if ks == 2 else 96}, {v(XC)}")
            p(M[1])
            for r_ in rw(ks, 0): p(r_)
        if ks == 3: p(f"v_add_u32 {v(XC)}, s22, {v(XC)}")
        if ks == 1:
            p("s_add_u32 s24, s24, 1")
            p("s_cmp_eq_u32 s24, 3")
            p("s_cselect_b32 s23, -2, 1")
            p("s_cselect_b32 s24, 0, s24")
            p("s_mul_i32 s23, s23, 24576")
        if ks == 2:
            p("s_add_u32 s21, s21, 1")
            p("s_cmp_eq_u32 s21, 5")
            p("s_cselect_b32 s22, -4, 1")
            p("s_cselect_b32 s21, 0, s21")
            p("s_mul_i32 s22, s22, 16384")
        if ks: w(6); p(M[2])
        p(M[3])
        for r_ in rw(ks, 1): p(r_)
        if ks: w(6)
        p(M[4])
        if ks == 3:
            p("s_add_u32 s25, s25, 1")
            p("s_cmp_lt_u32 s25, 16")
        p(M[5])
        for r_ in rw(ks, 2): p(r_)
    p(f"v_add_u32 {v(WC)}, s23, {v(WC)}")
    if STAMP and opt("p1st") == 2:
        p("s_and_b32 s58, s25, 7")
        p("s_cmp_lg_u32 s58, 6")
        p("s_cbranch_scc1 P1_STX")
        p("s_mov_b64 s[68:69], s[72:73]")
        p("s_mov_b64 s[70:71], s[74:75]")
        p("s_memrealtime s[72:73]")
        p("s_memtime s[74:75]")
        p("s_mov_b32 s78, s80")
        p("s_mov_b32 s80, s100")
        p.label("P1_STX")
        p("s_cmp_lt_u32 s25, 16")
    if STAMP and opt("p1st") == 1:
        for (n_, i_) in ((5, 4), (6, 5), (7, 6), (8, 7), (9, 9), (10, 10), (11, 11)):
            p(f"s_cmp_lg_u32 s25, {n_}")
            p(f"s_cbranch_scc1 P1_ST{n_}")
            p(f"s_memrealtime s[{60+2*i_}:{61+2*i_}]")
            p.label(f"P1_ST{n_}")
        p("s_cmp_lt_u32 s25, 16")
    p("s_cbranch_scc1 P1_CLOOP")
    PADN = opt("padn", 0)
    p.pads(PADN)
    M = mfmas(1)
    w(4); p(M[0]); p(M[1]); w(2); p(M[2]); p(M[3]); w(0)
    p(M[4]); p(M[5])
    stamp(p, 1)
    lane_id(p, XC)
    p(f"v_lshlrev_b32 {v(XC)}, 4, {v(XC)}")
    srd(p, 12, 98, 99, WS_SIZE)
    p("s_lshl_b32 s10, s27, 1")
    p("s_add_u32 s10, s10, s29")
    p("s_lshl_b32 s10, s10, 4")
    p("s_add_u32 s10, s10, s26")
    p("s_lshl_b32 s10, s10, 14")
    p("s_lshl_b32 s11, s28, 12")
    p("s_add_u32 s10, s10, s11")
    p(f"s_add_u32 s10, s10, {LOC}")
    p("s_add_u32 s16, s10, 8192")
    p("s_lshl_b32 s18, s27, 4")
    p("s_add_u32 s18, s18, s26")
    p("s_lshl_b32 s18, s18, 13")
    p("s_add_u32 s18, s18, s11")
    p(f"s_add_u32 s18, s18, {WS_QX + LOC}")
    p(f"s_add_u32 s11, s11, {OWNC}")
    p(f"v_add_u32 {v(WC)}, s11, {v(XC)}")
    p(f"s_mov_b32 s17, {QSCALE}")
    p("s_xor_b32 s19, s26, s29")
    p("s_bitcmp1_b32 s19, 0")
    p("s_cbranch_scc1 P1_EOTH")
    p("s_nop 3")
    for own in (1, 0):
        n = 0
        order = (((1, 0), (1, 1), (2, 0), (2, 1), (0, 0), (0, 1)) if opt("stf", 1) else ((1, 0), (0, 0), (0, 1), (2, 0), (1, 1), (2, 1))) if own else ((0, 0), (0, 1), (1, 0), (1, 1), (2, 0), (2, 1))
        keep = []
        for (ty, rt) in order:
            d = ACC + (rt * 3 + ty) * 16
            if ty == 0:
                for i in range(16): p(f"v_mul_f32 {v(d+i)}, s17, {v(d+i)}")
            for j in range(2):
                o = d + 8 * j if own else 4 * (n % 7); n += 1
                for i in range(4): p(f"v_cvt_pk_bf16_f32 {v(o+i)}, {v(d+8*j+2*i)}, {v(d+8*j+2*i+1)}")
                st = f"buffer_store_dwordx4 {v(o,4)}, {v(XC)}, s[12:15], {('s18', 's10', 's16')[ty]} offen offset:{rt*2048+j*1024}"
                if own:
                    if ty and opt("stf", 1): p(st)
                    p(f"ds_write_b128 {v(WC)}, {v(o,4)} offset:{(16384, 0, 8192)[ty]+rt*2048+j*1024}")
                    if ty and not opt("stf", 1): keep.append(st)
                else: p(st)
        if own:
            p(f"v_mov_b32 {v(VT)}, 1")
            p(f"v_mov_b32 {v(SY)}, {CNT}")
            for st in keep[:2]: p(st)
            p("s_waitcnt lgkmcnt(0)")
            p("s_mov_b64 exec, 1")
            p(f"ds_add_u32 {v(SY)}, {v(VT)} offset:{C_OWN}")
            p("s_mov_b64 exec, -1")
            for st in keep[2:]: p(st)
            p("s_branch P1_EDONE")
            p.label("P1_EOTH")
    p.label("P1_EDONE")
    p(f"v_mov_b32 v30, {CNT}")
    p("v_mov_b32 v31, 1")
    local_flag_base(p, 34)
    p("s_lshl_b32 s10, s26, 3")
    p("v_mov_b32 v29, s10")
    p("s_waitcnt vmcnt(0)")
    p("s_mov_b64 exec, 1")
    p(f"ds_add_rtn_u32 v31, v30, v31 offset:{C_KVST}")
    p("s_waitcnt lgkmcnt(0)")
    p("v_cmp_eq_u32 vcc, 3, v31")
    p("s_cbranch_vccz P1_NOKVF")
    flag_publish(p, 30, 29, "s34", SC="")
    p.label("P1_NOKVF")
    p("s_mov_b64 exec, -1")
    stamp(p, 3)
    p("s_setprio 0")
    p(f"v_mov_b32 v1, {v(XC)}")
    p(f"v_lshrrev_b32 v0, 4, {v(XC)}")
    p(f"v_mov_b32 {v(CA)}, {CNT}")
    p("s_xor_b32 s28, s26, 1")
    p("s_lshl_b32 s18, s27, 4")
    p("s_add_u32 s18, s18, s28")
    p("s_lshl_b32 s18, s18, 13")
    p("s_lshl_b32 s10, s31, 11")
    p("s_add_u32 s18, s18, s10")
    p(f"s_add_u32 s18, s18, {WS_QX}")
    p("s_lshl_b32 s28, s28, 2")
    p("s_add_u32 s28, s28, s31")
    p.label("A_INIT")
    p("v_and_b32 v2, 2, v0")
    p("v_cmp_eq_u32 vcc, 0, v2")
    p("v_mov_b32 v3, 0x3f803f80")
    p("v_mov_b32 v2, 0")
    for i in range(2): p(f"v_cndmask_b32 {v(ONES+i)}, v2, v3, vcc")
    for i in range(2, 4): p(f"v_cndmask_b32 {v(ONES+i)}, v3, v2, vcc")
    p("v_and_b32 v2, 1, v0")
    p("v_mul_u32_u24 v2, 0xaaaa, v2")
    p(f"v_add_u32 {v(IDX)}, 0x4444, v2")
    p(f"v_mov_b32 {v(ONE)}, 1")
    for i in range(12): p(f"v_mov_b32 {v(L+i)}, 0")
    for i in range(16): p(f"v_mov_b32 {v(O+i)}, 0")
    for i in range(12, 16): p(f"v_mov_b32 {v(F1+i)}, 0")
    p("s_and_b32 s29, s26, 1")
    p("s_lshl_b32 s10, s27, 1")
    p("s_add_u32 s29, s29, s10")
    p("s_mov_b32 s22, 0")
    p(f"v_add_u32 {v(VC)}, {OWNC}, v1")
    p("s_lshl_b32 s10, s3, 2")
    p(f"s_add_u32 s10, s10, {CNT + C_PROG}")
    p(f"v_mov_b32 {v(VP)}, s10")
    p("s_mov_b32 s25, 2")
    p("s_cmp_lt_u32 s3, 4")
    p("s_cselect_b32 s23, 1, 0")
    lds_wait_ge(p, "A_OW", CA, C_OWN, 2, CV_, sleep=opt("owslp", 2))
    for j in range(2): p(f"ds_read_b128 {v(F1+4*j,4)}, {v(VC)} offset:{j*1024}")
    p("s_cmp_ge_u32 s3, 4")
    p("s_cbranch_scc1 A_FARQ")
    for j in range(2): p(f"ds_read_b128 {v(Q+4*j,4)}, {v(SB)} offset:{j*1024}")
    p("s_branch A_HAVEQ")
    p.label("A_FARQ")
    lds_wait_ge(p, "A_QW", CA, C_QRDY, 1, CV_, sleep=1)
    p(f"v_readfirstlane_b32 s10, {v(CV_)}")
    p("s_cmp_eq_u32 s10, 1")
    p(f"s_cselect_b32 s10, {LOC}, 0")
    p("s_add_u32 s18, s18, s10")
    for j in range(2): p(f"buffer_load_dwordx4 {v(Q+4*j,4)}, v1, s[12:15], s18 offen offset:{j*1024}{SC}")
    p("s_waitcnt vmcnt(0)")
    p.label("A_HAVEQ")
    stamp(p, 2)
    p("s_waitcnt lgkmcnt(0)")
    p(mf32(SA, F1, Q, "0"))
    p(mf32(SA, F1+4, Q+4, SA))
    for j in range(2): p(f"ds_read_b128 {v(F0+4*j,4)}, {v(VC)} offset:{2048+j*1024}")
    for j in range(2): p(f"ds_read_b128 {v(F0+8+4*j,4)}, {v(VC)} offset:{8192+j*1024}")
    p("s_nop 7")
    T_ = NEGM
    p(f"v_max3_f32 {v(T_)}, {v(SA)}, {v(SA+1)}, {v(SA+2)}")
    for i in range(3, 15, 2): p(f"v_max3_f32 {v(T_)}, {v(T_)}, {v(SA+i)}, {v(SA+i+1)}")
    p(f"v_max_f32 {v(T_)}, {v(T_)}, {v(SA+15)}")
    p(f"v_mov_b32 {v(CV_)}, {v(T_)}")
    p("s_nop 1")
    p(f"v_permlane32_swap_b32 {v(T_)}, {v(CV_)}")
    p(f"v_max_f32 {v(CV_)}, {v(T_)}, {v(CV_)}")
    for i in range(16): p(f"v_sub_f32 {v(NEGM+i)}, 0, {v(CV_)}")
    for i in range(16): p(f"v_sub_f32 {v(SA+i)}, {v(SA+i)}, {v(CV_)}")
    p(f"v_mov_b32 {v(CV_)}, 0")
    p("s_branch A_ENTRY")
    ORDER = "w0 Y S0 r0 e3 O1p r1 e3 LS e2 S1 r2 c4 e2 O0 r3 e3 X e3 c4"
    LS = f"v_smfmac_f32_16x16x64_bf16 {v(L,4)}, {v(ONES,4)}, {v(P0,8)}, {v(IDX)}"
    def step(F, Sc, Sn, Fn, u, extra=None, head=None):
        e = 0; c = 0
        for t in ORDER.split():
            if t == "S0":
                if u is not None: p(mf32(Sn, F, Q, NEGM))
            elif t == "S1":
                if u is not None: p(mf32(Sn, F+4, Q+4, Sn))
            elif t == "O0": p(mf32(O, F+8, P0, O))
            elif t == "O1p": p(mf32(O, Fn+12, P1, O))
            elif t == "X":
                if extra: extra()
            elif t == "Y":
                if head: head()
            elif t == "LS": p(LS)
            elif t[0] == "e":
                for _ in range(int(t[1:])): p(f"v_exp_f32 {v(Sc+e)}, {v(Sc+e)}"); e += 1
            elif t[0] == "c":
                for _ in range(int(t[1:])): p(f"v_cvt_pk_bf16_f32 {v(P0+c)}, {v(Sc+2*c)}, {v(Sc+2*c+1)}"); c += 1
            elif t[0] == "r":
                if u is not None:
                    j = int(t[1:])
                    if j >= 2: p(f"ds_read_b128 {v(Fn+4*j,4)}, {v(VC)} offset:{8192+u*2048+(j-2)*1024}")
                    elif u < 3: p(f"ds_read_b128 {v(Fn+4*j,4)}, {v(VC)} offset:{(u+1)*2048+j*1024}")
                    else: p(f"ds_read_b128 {v(Fn+4*j,4)}, {v(VN)} offset:{j*1024}")
            elif t[0] == "w": p(f"s_waitcnt lgkmcnt({t[1:]})")
    def arrive():
        p("s_mov_b64 exec, 1")
        p(f"ds_add_u32 {v(VP)}, {v(ONE)}")
        p("s_mov_b64 exec, -1")
        if opt("dyn", 0):
            p(f"v_xor_b32 {v(CV_)}, 16, {v(VP)}")
            p(f"ds_read_b32 {v(CV_)}, {v(CV_)}")
    def lead():
        p(f"v_readfirstlane_b32 s10, {v(CV_)}")
        p("s_add_u32 s10, s10, 2")
        p("s_cmp_gt_u32 s25, s10")
        p("s_cselect_b32 s23, 1, 0")
    def peek():
        p(f"ds_read_b32 {v(CV_)}, {v(CA)} offset:{C_KVL}")
        p(f"v_add_u32 {v(VN)}, s22, v1")
        p("s_add_u32 s22, s22, 16384")
        p(f"s_cmp_ge_u32 s22, {RING}")
        p("s_cselect_b32 s22, 0, s22")
    def chk():
        p.label("A_CHK")
        p(f"v_cmp_gt_u32 vcc, s25, {v(CV_)}")
        p("s_cbranch_vccnz A_SPIN")
    def flip():
        p(f"v_mov_b32 {v(VC)}, {v(VN)}")
        p("s_add_u32 s25, s25, 1")
    LAD = [int(c) for c in OPT.get("lad", "3210")]
    LAD2 = [int(c) for c in OPT.get("lad2", OPT.get("lad", "3210"))]
    DYN = opt("dyn", 0)
    def prio(i):
        p(f"s_setprio {LAD[i]}")
        if LAD2[i] != LAD[i]:
            p("s_cmp_eq_u32 s23, 0")
            p(f"s_cbranch_scc1 A_PR{i}")
            p(f"s_setprio {LAD2[i]}")
            p.label(f"A_PR{i}")
    p.label("A_SPIN")
    bail(p)
    p("s_sleep 1")
    p(f"ds_read_b32 {v(CV_)}, {v(CA)} offset:{C_KVL}")
    p("s_waitcnt lgkmcnt(0)")
    p("s_branch A_CHK")
    p.pads(0)
    if opt("al2", -1) >= 0:
        p(".p2align 6")
        for _ in range(opt("al2")): p("s_nop 0")
    p.label("A_LOOP")
    prio(0)
    step(F1, SB, SA, F0, 0, extra=arrive)
    p.label("A_ENTRY")
    prio(1)
    step(F0, SA, SB, F1, 1, extra=lead if opt("dyn", 0) else None)
    prio(2)
    step(F1, SB, SA, F0, 2, extra=peek)
    prio(3)
    step(F0, SA, SB, F1, 3, extra=flip, head=chk)
    if STAMP:
        for (n_, i_) in ((3, 4), (4, 5), (6, 6), (10, 7)):
            p(f"s_cmp_lg_u32 s25, {n_}")
            p(f"s_cbranch_scc1 A_ST{n_}")
            stamp(p, i_)
            p.label(f"A_ST{n_}")
    p("s_cmp_lt_u32 s25, 18")
    p("s_cbranch_scc1 A_LOOP")
    p.pads(PADN)
    step(F1, SB, SA, F0, None, extra=arrive)
    p("s_nop 1")
    p(mf32(O, F1+12, P1, O))
    p(LS)
    stamp(p, 8)
    p("v_and_b32 v2, 256, v1")
    p("v_cmp_eq_u32 vcc, 0, v2")
    p("s_lshl_b32 s10, s28, 16")
    p("s_lshl_b32 s11, s29, 11")
    p("s_add_u32 s10, s10, s11")
    p("s_nop 3")
    p(f"s_add_u32 s35, s10, {WS_O}")
    p(f"s_mov_b32 s11, {f32bits(2.0**100)}")
    p("s_nop 0")
    p(f"v_add_f32 {v(L)}, {v(L)}, {v(L+1)}")
    p(f"v_add_f32 {v(L+2)}, {v(L+2)}, {v(L+3)}")
    p(f"v_cndmask_b32 v2, {v(L+2)}, {v(L)}, vcc")
    p(f"v_add_f32 v3, abs({v(O)}), v2")
    for i in range(1, 16): p(f"v_add_f32 v3, abs({v(O+i)}), v3")
    p("v_cmp_ngt_f32 vcc, s11, v3")
    if opt("forcefb"): p("s_branch A_FALLBACK")
    p("s_cbranch_vccnz A_FALLBACK")
    p.label("A_FIN")
    p("v_rcp_f32 v2, v2")
    p("s_nop 0")
    for j in range(2):
        for i in range(8 * j, 8 * j + 8): p(f"v_mul_f32 {v(O+i)}, v2, {v(O+i)}")
        for i in range(4 * j, 4 * j + 4): p(f"v_cvt_pk_bf16_f32 {v(P0+i)}, {v(O+2*i)}, {v(O+2*i+1)}")
        p(f"buffer_store_dwordx4 {v(P0+4*j,4)}, v1, s[12:15], s35 offen offset:{1024*j}{SC}")
    OB, WF, AC3 = 76, 8, 40
    p(f"s_load_dwordx2 s[36:37], s[0:1], {D_OUT}")
    p("s_setprio 0")
    p("s_and_b32 s10, s26, 14")
    p(f"s_mul_i32 s34, s10, {FLS}")
    p(f"s_add_u32 s34, s34, {FL_O}")
    p("s_lshl_b32 s10, s29, 3")
    p("s_add_u32 s34, s34, s10")
    p("v_lshrrev_b32 v0, 4, v1")
    p(f"v_mul_u32_u24 v72, {FLS}, v0")
    p("s_waitcnt vmcnt(0)")
    p("s_mov_b64 exec, 1")
    p(f"ds_add_rtn_u32 {v(CV_)}, {v(CA)}, {v(ONE)} offset:{C_OARR}")
    p("s_waitcnt lgkmcnt(0)")
    p(f"v_cmp_eq_u32 vcc, 7, {v(CV_)}")
    p("s_cbranch_vccz G_NOFLAG")
    p("s_mov_b64 exec, 3")
    flag_publish(p, 2, 72, "s34")
    p.label("G_NOFLAG")
    p("s_mov_b64 exec, -1")
    stamp(p, 9)
    if opt("p3w", 4) == 4:
        p("s_cmp_ge_u32 s3, 4")
        p("s_cbranch_scc1 G_FIN")
        OB, WF, AC3 = 56, 8, 24
        tile3(p)
        p("s_lshl_b32 s28, s38, 2")
        p("s_add_u32 s28, s28, s3")
        p("s_lshl_b32 s10, s28, 16")
        p(f"s_add_u32 s10, s10, {WS_O}")
        srd(p, 16, 98, 99, 65536, off="s10")
        srd(p, 20, 36, 37, 8 * MB)
        p("v_add_u32 v2, 4096, v1")
        p("v_lshrrev_b32 v6, 5, v0")
        p("v_lshlrev_b32 v5, 9, v6")
        p("v_bfe_u32 v7, v0, 2, 2")
        p("v_lshl_add_u32 v5, v7, 6, v5")
        p("v_bfe_u32 v7, v0, 4, 1")
        p("v_lshl_add_u32 v5, v7, 5, v5")
        p("v_and_b32 v7, 3, v0")
        p("v_lshl_add_u32 v5, v7, 3, v5")
        for i in range(AC3, AC3 + 32): p(f"v_mov_b32 {v(i)}, 0")
        p("v_and_b32 v7, 31, v0")
        p("v_lshlrev_b32 v7, 12, v7")
        p("v_lshl_add_u32 v7, v6, 4, v7")
        p("s_lshl_b32 s30, s28, 17")
        p("s_lshl_b32 s11, s39, 7")
        p("s_add_u32 s30, s30, s11")
        p("s_add_u32 s30, s30, 2048")
        p("s_mov_b32 s24, 0")
        p("s_mov_b32 s25, 0")
        p(f"s_mov_b32 s31, {WTAB}")
        p("s_mov_b32 s29, 3")
        def acq(u, j):
            p("s_andn2_b32 s10, s25, s24")
            p(f"s_cbranch_scc1 G_AQ{u}b")
            p.label(f"G_AQ{u}a")
            p(f"ds_read_b32 {v(CV_)}, {v(CA)} offset:{C_OMASK}")
            p("s_waitcnt lgkmcnt(0)")
            p(f"v_readfirstlane_b32 s25, {v(CV_)}")
            p("s_andn2_b32 s10, s25, s24")
            p(f"s_cbranch_scc1 G_AQ{u}b")
            bail(p)
            p("s_sleep 2")
            p(f"s_branch G_AQ{u}a")
            p.label(f"G_AQ{u}b")
            p("s_ff1_i32_b32 s11, s10")
            p("s_bitset1_b32 s24, s11")
            p("s_lshl_b32 s10, s11, 11")
            p("s_lshr_b32 s11, s31, s11")
            p("s_and_b32 s11, s11, 15")
            p(f"s_lshl_b32 s{40+j}, s11, 14")
            for n in range(8): p(f"buffer_load_dwordx4 {v(OB+32*j+4*n,4)}, {v(1+(n>>2))}, s[16:19], s10 offen offset:{1024*(n&3)}{SC}")
        def rd(b, ks, va): return [f"ds_read_b64_tr_b16 {v(WF+8*b+4*nt+2*h,2)}, {va} offset:{ks*2048+h*1024+nt*256}" for nt in range(2) for h in range(2)]
        def group(j, rest, nxt):
            va, vb = f"v{3+j}", f"v{4-j}"
            if nxt: p(f"v_add_u32 {vb}, s{41-j}, v5")
            for ks in range(8):
                R = rd((ks + 1) & 1, ks + 1, va) if ks < 7 else (rd(0, 0, vb) if nxt else [])
                M = [mf32(AC3+16*nt, WF+8*(ks&1)+4*nt, OB+32*j+4*ks, AC3+16*nt) for nt in range(2)]
                p(f"s_waitcnt vmcnt({rest + 7 - ks}) lgkmcnt(2)")
                p(M[0])
                for r_ in R[:2]: p(r_)
                p(f"s_waitcnt lgkmcnt({2 if R else 0})")
                p(M[1])
                for r_ in R[2:]: p(r_)
        acq(0, 0)
        stamp(p, 10)
        p("s_setprio 3")
        p("v_add_u32 v3, s40, v5")
        for r_ in rd(0, 0, "v3"): p(r_)
        acq(1, 1)
        p.label("G_LOOP")
        group(0, 8, True); acq(2, 0)
        group(1, 8, True); acq(3, 1)
        p("s_sub_u32 s29, s29, 1")
        p("s_cmp_lg_u32 s29, 0")
        p("s_cbranch_scc1 G_LOOP")
        group(0, 8, True)
        group(1, 0, False)
        stamp(p, 11)
        p("s_nop 9")
        for nt in range(2):
            if nt: p("s_nop 0")
            for i in range(8): p(f"v_cvt_pk_bf16_f32 {v(WF+8*nt+i)}, {v(AC3+16*nt+2*i)}, {v(AC3+16*nt+2*i+1)}")
            p("s_nop 1")
            for pr in range(2):
                b_ = WF + 8 * nt + 4 * pr
                p(f"v_permlane32_swap_b32 {v(b_)}, {v(b_+2)}")
                p(f"v_permlane32_swap_b32 {v(b_+1)}, {v(b_+3)}")
                p(f"buffer_store_dwordx4 {v(b_,4)}, v7, s[20:23], s30 offen offset:{64*nt+32*pr}")
        p.label("G_FIN")
    else:
        tile3(p)
        p("s_and_b32 s28, s3, 3")
        p("s_lshl_b32 s10, s38, 2")
        p("s_add_u32 s28, s28, s10")
        p("s_lshr_b32 s29, s3, 2")
        p("s_lshl_b32 s10, s28, 16")
        p("s_lshl_b32 s11, s29, 12")
        p("s_add_u32 s10, s10, s11")
        p(f"s_add_u32 s10, s10, {WS_O}")
        srd(p, 16, 98, 99, 65536, off="s10")
        srd(p, 20, 36, 37, 8 * MB)
        p("v_lshrrev_b32 v6, 5, v0")
        p("v_lshlrev_b32 v5, 9, v6")
        p("v_bfe_u32 v7, v0, 2, 2")
        p("v_lshl_add_u32 v5, v7, 6, v5")
        p("v_bfe_u32 v7, v0, 4, 1")
        p("v_lshl_add_u32 v5, v7, 5, v5")
        p("v_and_b32 v7, 3, v0")
        p("v_lshl_add_u32 v5, v7, 3, v5")
        p("s_lshl_b32 s10, s29, 13")
        p("v_add_u32 v5, s10, v5")
        for i in range(AC3, AC3 + 32): p(f"v_mov_b32 {v(i)}, 0")
        p("v_and_b32 v73, 31, v0")
        p("v_lshlrev_b32 v73, 12, v73")
        p("v_lshl_add_u32 v73, v6, 4, v73")
        p("s_lshl_b32 s10, s3, 12")
        p("v_add_u32 v74, s10, v1")
        p("v_xor_b32 v75, 16384, v74")
        p("s_lshl_b32 s30, s28, 17")
        p("s_lshl_b32 s11, s39, 7")
        p("s_add_u32 s30, s30, s11")
        p("s_lshl_b32 s11, s29, 6")
        p("s_add_u32 s30, s30, s11")
        p("s_add_u32 s30, s30, 2048")
        p("s_mov_b32 s24, 0")
        p("s_mov_b32 s25, 0")
        p(f"s_mov_b32 s31, {WTAB}")
        def acq(u):
            j = u % 3
            p("s_andn2_b32 s10, s25, s24")
            p(f"s_cbranch_scc1 G_AQ{u}b")
            p.label(f"G_AQ{u}a")
            p(f"ds_read_b32 {v(CV_)}, {v(CA)} offset:{C_OMASK}")
            p("s_waitcnt lgkmcnt(0)")
            p(f"v_readfirstlane_b32 s25, {v(CV_)}")
            p("s_andn2_b32 s10, s25, s24")
            p(f"s_cbranch_scc1 G_AQ{u}b")
            bail(p)
            p("s_sleep 2")
            p(f"s_branch G_AQ{u}a")
            p.label(f"G_AQ{u}b")
            p("s_ff1_i32_b32 s11, s10")
            p("s_bitset1_b32 s24, s11")
            p("s_lshl_b32 s10, s11, 11")
            p("s_lshr_b32 s11, s31, s11")
            p("s_and_b32 s11, s11, 15")
            p(f"s_lshl_b32 s{40+j}, s11, 14")
            for n in range(4): p(f"buffer_load_dwordx4 {v(OB+16*j+4*n,4)}, v1, s[16:19], s10 offen offset:{1024*n}{SC}")
        def rdw(u):
            p(f"v_add_u32 v4, s{40+u%3}, v5")
            for ks in range(4):
                for nt in range(2):
                    for h in range(2): p(f"ds_read_b64_tr_b16 {v(WF+8*ks+4*nt+2*h,2)}, v4 offset:{ks*2048+h*1024+nt*256}")
        acq(0)
        stamp(p, 10)
        rdw(0); acq(1); acq(2)
        for u in range(8):
            rest = 4 * min(2, 7 - u)
            for ks in range(4):
                p(f"s_waitcnt vmcnt({rest + 3 - ks}) lgkmcnt({12 - 4*ks})")
                for nt in range(2): p(mf32(AC3+16*nt, WF+8*ks+4*nt, OB+16*(u%3)+4*ks, AC3+16*nt))
            if u < 7: rdw(u + 1)
            if u + 3 < 8: acq(u + 3)
        stamp(p, 11)
        p("s_barrier")
        p("s_cmp_eq_u32 s29, 0")
        p("s_cbranch_scc1 G_X0")
        p("s_nop 7")
        for j in range(4): p(f"ds_write_b128 v74, {v(AC3+4*j,4)} offset:{1024*j}")
        for i in range(16): p(f"v_mov_b32 {v(AC3+i)}, {v(AC3+16+i)}")
        p("s_branch G_X1")
        p.label("G_X0")
        p("s_nop 8")
        for j in range(4): p(f"ds_write_b128 v74, {v(AC3+16+4*j,4)} offset:{1024*j}")
        p.label("G_X1")
        p("s_waitcnt lgkmcnt(0)")
        p("s_barrier")
        for j in range(4): p(f"ds_read_b128 {v(AC3+16+4*j,4)}, v75 offset:{1024*j}")
        for pr in range(2):
            p(f"s_waitcnt lgkmcnt({2-2*pr})")
            for i in range(8 * pr, 8 * pr + 8): p(f"v_add_f32 {v(AC3+i)}, {v(AC3+i)}, {v(AC3+16+i)}")
            b = WF + 4 * pr
            for i in range(4): p(f"v_cvt_pk_bf16_f32 {v(b+i)}, {v(AC3+8*pr+2*i)}, {v(AC3+8*pr+2*i+1)}")
            p("s_nop 1")
            p(f"v_permlane32_swap_b32 {v(b)}, {v(b+2)}")
            p(f"v_permlane32_swap_b32 {v(b+1)}, {v(b+3)}")
            p(f"buffer_store_dwordx4 {v(b,4)}, v73, s[20:23], s30 offen offset:{32*pr}")
    stamp(p, 12)
    stamp_flush(p)
    p.pads(0)
    p.label("L_END")
    p("s_endpgm")
    p.label("A_FALLBACK")
    p(f"ds_read_b32 {v(CV_)}, {v(CA)} offset:{C_GALL}")
    p("s_waitcnt lgkmcnt(0)")
    p(f"v_readfirstlane_b32 s31, {v(CV_)}")
    M_, AL = NEGM, NEGM + 1
    for i in range(16): p(f"v_mov_b32 {v(O+i)}, 0")
    p("v_mov_b32 v2, 0")
    p(f"v_mov_b32 {v(M_)}, 0xff7fffff")
    p("s_lshl_b32 s30, s29, 18")
    p("s_mov_b32 s25, 0")
    p.label("A_FBL")
    p("s_lshr_b32 s10, s25, 2")
    p("s_bitcmp1_b32 s31, s10")
    p(f"s_cselect_b32 s11, {LOC}, 0")
    p("s_lshl_b32 s10, s10, 14")
    p("s_add_u32 s10, s10, s11")
    p("s_and_b32 s11, s25, 3")
    p("s_lshl_b32 s11, s11, 11")
    p("s_add_u32 s10, s10, s11")
    p("s_add_u32 s10, s10, s30")
    p("s_add_u32 s11, s10, 8192")
    for j in range(2): p(f"buffer_load_dwordx4 {v(F0+4*j,4)}, v1, s[12:15], s10 offen offset:{1024*j}{SC}")
    for j in range(2): p(f"buffer_load_dwordx4 {v(F0+8+4*j,4)}, v1, s[12:15], s11 offen offset:{1024*j}{SC}")
    p("s_waitcnt vmcnt(0)")
    p(mf32(SA, F0, Q, "0"))
    p(mf32(SA, F0+4, Q+4, SA))
    p("s_nop 15")
    p(f"v_max3_f32 v3, {v(SA)}, {v(SA+1)}, {v(M_)}")
    for i in range(2, 16, 2): p(f"v_max3_f32 v3, v3, {v(SA+i)}, {v(SA+i+1)}")
    p(f"v_mov_b32 {v(SB)}, v3")
    p("s_nop 1")
    p(f"v_permlane32_swap_b32 v3, {v(SB)}")
    p(f"v_max_f32 v3, v3, {v(SB)}")
    p(f"v_sub_f32 {v(AL)}, {v(M_)}, v3")
    p(f"v_exp_f32 {v(AL)}, {v(AL)}")
    p(f"v_mov_b32 {v(M_)}, v3")
    for i in range(16): p(f"v_sub_f32 {v(SA+i)}, {v(SA+i)}, v3")
    for i in range(16): p(f"v_exp_f32 {v(SA+i)}, {v(SA+i)}")
    p(f"v_mul_f32 v2, v2, {v(AL)}")
    for i in range(16): p(f"v_mul_f32 {v(O+i)}, {v(O+i)}, {v(AL)}")
    for i in range(16): p(f"v_add_f32 v2, v2, {v(SA+i)}")
    for i in range(8): p(f"v_cvt_pk_bf16_f32 {v(P0+i)}, {v(SA+2*i)}, {v(SA+2*i+1)}")
    p("s_nop 1")
    p(mf32(O, F0+8, P0, O))
    p(mf32(O, F0+12, P1, O))
    p("s_nop 15")
    p("s_add_u32 s25, s25, 1")
    p("s_cmp_lt_u32 s25, 64")
    p("s_cbranch_scc1 A_FBL")
    p("v_mov_b32 v3, v2")
    p("s_nop 1")
    p("v_permlane32_swap_b32 v2, v3")
    p("v_add_f32 v2, v2, v3")
    p("s_branch A_FIN")

    p.label("L_HELPERS")
    p("s_cmp_ge_u32 s3, 9")
    p("s_cbranch_scc1 L_PARTA")
    emit_w8(p)
    p.label("L_PARTA")
    emit_partA(p)

def emit_w8(p):
    p(f"s_load_dwordx2 s[36:37], s[0:1], {B_WO}")
    if opt("cpf", 1):
        p("s_getpc_b64 s[40:41]")
        p.label("W8_PC")
        p(f"s_sub_u32 s40, s40, W8_PC-{NAME}")
        p("s_subb_u32 s41, s41, 0")
        p("v_lshlrev_b32 v21, 7, v0")
        for j in range(2):
            p(f"v_add_u32 v22, {8192*j}, v21")
            p(f"v_min_u32 v22, L_CODE_END-{NAME}-4, v22")
            p(f"global_load_dword v{23+j}, v22, s[40:41]")
    p("v_and_b32 v8, 3, v0")
    p("v_lshlrev_b32 v8, 2, v8")
    p(f"v_add_u32 v8, {CNT}, v8")
    p("v_and_b32 v9, 7, v0")
    p("v_lshlrev_b32 v9, 2, v9")
    p(f"v_add_u32 v9, {CNT}, v9")
    p(f"v_mov_b32 v20, {CNT}")
    p("s_waitcnt lgkmcnt(0)")
    p("s_add_u32 s94, s96, 0x1000000")
    p("s_addc_u32 s95, s97, 0")
    p("v_lshlrev_b32 v1, 4, v0")
    p("v_and_b32 v6, 15, v0")
    p("v_lshlrev_b32 v6, 3, v6")
    srd(p, 12, 98, 99, WS_SIZE)
    p(f"s_mul_i32 s34, s27, {FLS}")
    p(f"s_add_u32 s34, s34, {FL_KV}")
    p("s_and_b32 s30, s26, 1")
    p("s_lshl_b32 s10, s27, 1")
    p("s_add_u32 s30, s30, s10")
    p("s_lshl_b32 s30, s30, 18")
    p("s_xor_b32 s31, s26, 1")
    p("s_mov_b32 s47, 0")
    local_flag_base(p, 35)
    p("s_mov_b32 s48, 0")
    p("s_mov_b32 s49, 0")
    p("s_lshl_b32 s10, s26, 3")
    p("s_add_u32 s10, s10, 128")
    p("v_mov_b32 v17, s10")
    for _ in range(4): p("s_barrier")
    p("s_mov_b64 exec, 1")
    flag_publish(p, 18, 17, "s35", SC="")
    p("s_mov_b64 exec, -1")
    p("v_and_b32 v16, 31, v0")
    p("v_lshlrev_b32 v16, 3, v16")
    p("s_lshl_b32 s44, 1, s26")
    p("s_mov_b32 s45, 0")
    p("s_mov_b32 s46, 0x4000")
    p("s_mov_b32 s21, 0")
    p("s_mov_b32 s25, 1")
    tile3(p)
    p("v_lshrrev_b32 v5, 5, v0")
    p("v_lshlrev_b32 v5, 2, v5")
    p("v_bfe_u32 v7, v0, 2, 2")
    p("v_add_u32 v5, v5, v7")
    p("v_lshlrev_b32 v5, 11, v5")
    p("v_bfe_u32 v7, v0, 4, 1")
    p("v_lshl_add_u32 v5, v7, 6, v5")
    p("v_and_b32 v7, 3, v0")
    p("v_lshl_add_u32 v10, v7, 4, v5")
    for jj in range(1, 4): p(f"v_add_u32 {v(10+jj)}, {jj*(16384-1024)}, v10")
    p("s_lshl_b32 s11, s39, 7")
    p(f"s_sub_u32 s18, {2*MB}, s11")
    p("s_add_u32 s16, s36, s11")
    p("s_addc_u32 s17, s37, 0")
    p("s_mov_b32 s19, 0x20000")
    p("s_setprio 3")
    for _ in range(8): p("s_barrier")
    p(f"buffer_load_dwordx2 v[18:19], v6, s[12:15], s35 offen offset:128{SC}")
    for _ in range(4): p("s_barrier")
    p("s_waitcnt vmcnt(0)")
    flag_test(p, 18)
    p("s_cmp_eq_u64 vcc, -1")
    p("s_cselect_b32 s50, 1, 2")
    if opt("forceg"): p("s_mov_b32 s50, 2")
    p("v_mov_b32 v3, s50")
    p(f"ds_write_b32 v20, v3 offset:{C_CPY}")
    lds_wait_ge(p, "W8_E2", 20, C_KVST, 4, 3, sleep=1)
    stamp(p, 1)
    p.pads(opt("pada"))
    p.label("W8_LOOP")
    p("s_cmp_eq_u32 s47, 0")
    p("s_cbranch_scc1 W8_POLL")
    p("s_andn2_b32 s10, s45, s44")
    p("s_cbranch_scc1 W8_HAVE")
    p.label("W8_POLL")
    p(f"buffer_load_dwordx2 v[18:19], v6, s[12:15], s35 offen{SC}")
    p("s_add_u32 s49, s49, 1")
    bail(p)
    p("s_cmp_eq_u32 s50, 1")
    p("s_cbranch_scc1 W8_PL")
    p(f"buffer_load_dwordx2 v[14:15], v6, s[12:15], s34 offen{SC}")
    p("s_waitcnt vmcnt(0)")
    flag_test(p, 14)
    p("s_and_b32 s45, vcc_lo, 0xffff")
    p("s_sub_u32 s46, s46, 1")
    p("s_cselect_b32 s45, 0xffff, s45")
    p.label("W8_PL")
    p("v_mov_b32 v3, s25")
    p("s_waitcnt vmcnt(0)")
    p(f"ds_write_b32 v20, v3 offset:{C_KVL}")
    if STAMP:
        p("s_cmp_lg_u32 s49, 1")
        p("s_cbranch_scc1 W8_STP")
        stamp(p, 6)
        p.label("W8_STP")
    flag_test(p, 18)
    p("s_and_b32 s48, vcc_lo, 0xffff")
    p("s_or_b32 s45, s45, s48")
    p("s_cmp_lg_u32 s47, 0")
    p("s_cbranch_scc1 W8_QD")
    p("s_bitcmp1_b32 s45, s31")
    p("s_cselect_b32 s47, 2, 0")
    p("s_bitcmp1_b32 s48, s31")
    p("s_cselect_b32 s47, 1, s47")
    p("v_mov_b32 v3, s47")
    p(f"ds_write_b32 v20, v3 offset:{C_QRDY}")
    p.label("W8_QD")
    p("s_andn2_b32 s10, s45, s44")
    p("s_cbranch_scc1 W8_HAVE")
    p(f"s_sleep {opt('kslp', 2)}")
    p("s_branch W8_POLL")
    p.label("W8_NOSLOT")
    p("v_mov_b32 v3, s25")
    p("s_waitcnt vmcnt(0)")
    p(f"ds_write_b32 v20, v3 offset:{C_KVL}")
    bail(p)
    p("s_sleep 4")
    p("s_branch W8_LOOP")
    p.label("W8_HAVE")
    p("s_sub_u32 s24, s25, 5")
    p(f"ds_read_b32 v3, v9 offset:{C_PROG}")
    p("s_waitcnt lgkmcnt(0)")
    p("v_cmp_gt_i32 vcc, s24, v3")
    p("s_cbranch_vccnz W8_NOSLOT")
    p("s_lshr_b32 s11, s10, s26")
    p("s_cselect_b32 s11, s11, s10")
    p("s_cselect_b32 s20, s26, 0")
    p("s_ff1_i32_b32 s11, s11")
    p("s_add_u32 s11, s11, s20")
    p("s_bitset1_b32 s44, s11")
    p("s_lshl_b32 s20, s11, 14")
    p("s_add_u32 s20, s20, s30")
    p("s_bitcmp1_b32 s48, s11")
    p(f"s_cselect_b32 s10, {LOC}, 0")
    p("s_add_u32 s20, s20, s10")
    for q_ in range(4):
        p("s_mov_b32 m0, s21")
        p("s_add_u32 s21, s21, 4096")
        for j in range(4): p(f"buffer_load_dwordx4 v1, s[12:15], s20 offen offset:{1024*j}{SC} lds")
        p("s_add_u32 s20, s20, 4096")
    p(f"s_cmp_ge_u32 s21, {RING}")
    p("s_cselect_b32 s21, 0, s21")
    p("v_mov_b32 v3, s25")
    p("s_add_u32 s25, s25, 1")
    p("s_waitcnt vmcnt(16)")
    p(f"ds_write_b32 v20, v3 offset:{C_KVL}")
    if STAMP:
        for (n_, i_) in ((2, 2), (3, 3), (6, 4)):
            p(f"s_cmp_lg_u32 s25, {n_}")
            p(f"s_cbranch_scc1 W8_ST{n_}")
            stamp(p, i_)
            p.label(f"W8_ST{n_}")
    p("s_cmp_lt_u32 s25, 16")
    p("s_cbranch_scc1 W8_LOOP")
    p("s_bitset1_b32 s48, s26")
    p("v_mov_b32 v7, s48")
    p(f"ds_write_b32 v20, v7 offset:{C_GALL}")
    p("v_mov_b32 v3, 17")
    p("s_waitcnt vmcnt(0)")
    p(f"ds_write_b32 v20, v3 offset:{C_KVL}")
    stamp(p, 5)
    p(f"s_mul_i32 s34, s38, {FLS}")
    p(f"s_add_u32 s34, s34, {FL_O}")
    order = [(0, 11, 0), (1, 12, 0), (2, 13, 0), (3, 13, 4), (4, 13, 4), (5, 13, 4), (6, 14, 4), (7, 15, 4)]
    pack = lambda f: sum(f(o) << (4 * i) for i, o in enumerate(order))
    p(f"s_mov_b32 s41, {WTAB}")
    p(f"s_mov_b32 s42, {pack(lambda o: o[1] - 8)}")
    p("s_mov_b32 s25, 0")
    p("s_mov_b32 s44, 0")
    p("s_mov_b32 s46, 0x4000")
    p.label("W8_WLOOP")
    p("s_cmp_lg_u32 s25, 3")
    p("s_cbranch_scc1 W8_WNC")
    lds_wait_ge(p, "W8_CV", 20, C_A2, 4, 3, sleep=4)
    p.label("W8_WNC")
    p("s_and_b32 s24, s42, 15")
    p("s_add_u32 s24, s24, 8")
    p(f"ds_read_b32 v3, v9 offset:{C_PROG}")
    p("s_waitcnt lgkmcnt(0)")
    p("v_cmp_gt_i32 vcc, s24, v3")
    p("s_cbranch_vccnz W8_WSKIP")
    p("s_lshl_b32 s20, s25, 18")
    p("s_and_b32 s21, s41, 15")
    p("s_lshl_b32 s21, s21, 14")
    p("s_lshl_b32 s10, s25, 2")
    p("s_bitset1_b32 s44, s10")
    for q_ in range(4):
        p("s_mov_b32 m0, s21")
        p("s_add_u32 s21, s21, 4096")
        for jj in range(4): p(f"buffer_load_dwordx4 {v(10+jj)}, s[16:19], s20 offen offset:{1024*jj} lds")
        p("s_add_u32 s20, s20, 65536")
    for r_ in (41, 42): p(f"s_lshr_b32 s{r_}, s{r_}, 4")
    p("s_waitcnt vmcnt(32)")
    p("s_add_u32 s25, s25, 1")
    p("s_cmp_lt_u32 s25, 8")
    p("s_cbranch_scc1 W8_WLOOP")
    lds_wait_ge(p, "W8_OW", 20, C_OARR, opt("ostart", 4), 3, sleep=4)
    p.label("W8_WSKIP")
    p("s_cmp_lt_u32 s25, 8")
    p("s_cbranch_scc1 W8_WNEXT")
    p.label("W8_OPOLL")
    p(f"buffer_load_dwordx2 v[14:15], v16, s[12:15], s34 offen{SC}")
    p("s_waitcnt vmcnt(0)")
    flag_test(p, 14)
    p("s_lshr_b32 s10, vcc_lo, 1")
    p("s_and_b32 s45, vcc_lo, s10")
    p("s_lshr_b32 s10, s45, 2")
    p("s_and_b32 s45, s45, s10")
    p("s_sub_u32 s46, s46, 1")
    p("s_cselect_b32 s45, -1, s45")
    p("s_and_b32 s45, s45, s44")
    lds_wait_ge(p, "W8_OX", 20, C_OARR, 8, 3, sleep=1)
    p("v_mov_b32 v3, s45")
    p(f"ds_write_b32 v20, v3 offset:{C_OMASK}")
    p("s_cmp_eq_u32 s45, 0x11111111")
    p("s_cbranch_scc1 W8_DONE")
    p.label("W8_WNEXT")
    bail(p)
    p(f"s_sleep {opt('oslp', 8)}")
    p("s_cmp_lt_u32 s25, 8")
    p("s_cbranch_scc1 W8_WLOOP")
    p("s_branch W8_OPOLL")
    p.pads(0)
    p.label("W8_DONE")
    stamp(p, 12)
    stamp_flush(p)
    p("s_endpgm")

def emit_partA(p):
    pre = "PA"
    nst = [0]
    def st2(L_):
        nst[0] += 1
        p("s_cmp_eq_u32 s9, 1")
        p(f"s_cbranch_scc1 PA_SP{nst[0]}")
        for x in L_: p(x + (SC if x.startswith("buffer") else ""))
        p(f"s_branch PA_SE{nst[0]}")
        p.label(f"PA_SP{nst[0]}")
        for x in L_: p(x)
        p.label(f"PA_SE{nst[0]}")
    p(f"s_load_dwordx8 s[36:43], s[0:1], {A_Q}")
    p(f"s_load_dwordx4 s[44:47], s[0:1], {A_SSMK}")
    p(f"s_load_dwordx4 s[48:51], s[0:1], {B_WO}")
    p("s_sub_u32 s3, s3, 9")
    p("s_lshl_b32 s56, s27, 1")
    p("s_lshr_b32 s10, s3, 1")
    p("s_add_u32 s56, s56, s10")
    p("s_lshl_b32 s56, s56, 4")
    p("s_add_u32 s56, s56, s26")
    p("s_lshl_b32 s56, s56, 14")
    p("s_and_b32 s10, s3, 1")
    p("s_lshl_b32 s10, s10, 13")
    p("s_add_u32 s56, s56, s10")
    p("s_lshl_b32 s57, s27, 4")
    p("s_add_u32 s57, s57, s26")
    p("s_lshl_b32 s57, s57, 13")
    p("s_lshl_b32 s10, s3, 11")
    p("s_add_u32 s57, s57, s10")
    p(f"s_add_u32 s57, s57, {WS_QX}")
    p(f"s_mul_i32 s101, s27, {FLS}")
    p(f"s_add_u32 s101, s101, {FL_KV}")
    p("s_lshl_b32 s10, s26, 3")
    p("s_add_u32 s101, s101, s10")
    if opt("spf", 0):
        p("s_waitcnt lgkmcnt(0)")
        p("s_and_b32 s10, s27, 1")
        p("s_lshl_b32 s10, s10, 2")
        p("s_add_u32 s10, s10, s3")
        p("s_lshl_b32 s10, s10, 15")
        p("s_lshl_b32 s11, s26, 18")
        p("s_add_u32 s10, s10, s11")
        p("s_add_u32 s10, s10, 512")
        p("s_add_u32 s12, s4, s10")
        p("s_addc_u32 s13, s5, 0")
        p("s_lshl_b32 s10, s26, 2")
        p("s_add_u32 s10, s10, s3")
        p("s_add_u32 s10, s10, 256")
        p("s_mul_i32 s10, s10, 6144")
        p("s_lshl_b32 s11, s27, 7")
        p("s_add_u32 s10, s10, s11")
        p("s_add_u32 s14, s6, s10")
        p("s_addc_u32 s15, s7, 0")
        p("v_and_b32 v1, 3, v0")
        p("v_lshlrev_b32 v1, 2, v1")
        p(f"v_add_u32 v1, {CNT}, v1")
        p(f"s_mov_b32 s16, {4 - opt('spf')}")
        p.label("PA_SPF")
        lds_wait_ge(p, "PA_SPW", 1, C_LAND, "s16", 2, sleep=2)
        for hf in range(opt("sph", 1)):
            for r_ in range(16): p(f"s_load_dword s17, s[12:13], {r_*2048 + 64*hf}")
            for t_ in range(3): p(f"s_load_dword s17, s[14:15], {t_*2048 + 64*hf}")
        p("s_add_u32 s12, s12, 128")
        p("s_addc_u32 s13, s13, 0")
        p(f"s_add_u32 s14, s14, {64*6144}")
        p("s_addc_u32 s15, s15, 0")
        p("s_add_u32 s16, s16, 1")
        p(f"s_cmp_lt_i32 s16, {16 - opt('spf')}")
        p("s_cbranch_scc1 PA_SPF")
        p("s_waitcnt lgkmcnt(0)")
    local_flag_base(p, 8)
    p("s_add_u32 s8, s8, 256")
    p("s_mov_b32 s28, s27")
    p("s_lshl_b32 s35, s26, 3")
    p("s_lshl_b32 s29, s26, 2")
    p("s_add_u32 s29, s29, s3")
    p("s_lshl_b32 s27, s28, 6")
    p("s_add_u32 s27, s27, s29")
    p(f"s_mul_i32 s30, s3, {CV_STRIDE}")
    p(f"s_add_u32 s30, s30, {CV_BASE}")
    p("v_and_b32 v1, 7, v0")
    p("v_lshrrev_b32 v2, 3, v0")
    p("s_lshl_b32 s10, s29, 5")
    p("v_lshl_add_u32 v3, v2, 2, s10")
    p("s_lshl_b32 s11, s28, 7")
    p("v_lshl_add_u32 v4, v1, 4, s11")
    p("v_lshl_add_u32 v120, v3, 11, v4")
    p("v_lshl_add_u32 v122, v3, 12, v4")
    p("v_lshlrev_b32 v121, 11, v4")
    p("v_lshl_add_u32 v121, v2, 4, v121")
    p("s_lshr_b32 s31, s29, 4")
    p("s_lshl_b32 s31, s31, 10")
    p("s_and_b32 s26, s29, 7")
    p("s_lshl_b32 s26, s26, 7")
    p("s_add_u32 s31, s31, s26")
    p("s_and_b32 s26, s29, 8")
    p("s_add_u32 s31, s31, s26")
    p("v_add_u32 v121, s31, v121")
    p("v_and_b32 v123, 15, v0")
    p("v_lshlrev_b32 v123, 3, v123")
    p("v_lshlrev_b32 v124, 4, v0")
    p("v_and_b32 v1, 15, v0")
    p("v_lshrrev_b32 v2, 4, v0")
    p("v_lshl_add_u32 v3, v2, 3, s10")
    p("v_lshl_add_u32 v4, v1, 3, s11")
    p("v_lshl_add_u32 v9, v3, 11, v4")
    for j in range(3): p(f"v_add_u32 {v(6+j)}, {(j-3)*2048}, v9")
    for j in range(1, 4): p(f"v_add_u32 {v(9+j)}, {j*4096}, v9")
    p("v_lshlrev_b32 v13, 2, v4")
    p("v_lshrrev_b32 v14, 1, v4")
    p(f"v_mul_u32_u24 v14, {XRS}, v14")
    p("v_lshlrev_b32 v15, 1, v3")
    p("v_sub_u32 v15, 4080, v15")
    p("v_add_u32 v15, v15, v14")
    p("v_lshl_add_u32 v14, v2, 4, v14")
    p("s_lshl_b32 s33, s27, 12")
    p("s_mov_b32 s32, 0xffff0000")
    p(f"s_mul_i32 s34, s28, {FLS}")
    p(f"s_add_u32 s34, s34, {FL_A1}")
    p(f"s_mul_i32 s31, s27, {XRS}")
    p(f"s_add_u32 s31, s31, {WS_XR}")
    p("s_add_u32 s26, s31, 4096")
    p("v_and_b32 v1, 3, v0")
    p("v_lshlrev_b32 v1, 2, v1")
    p(f"v_add_u32 v1, {CNT}, v1")
    p("s_waitcnt lgkmcnt(0)")
    p("s_add_u32 s94, s96, 0x1000000")
    p("s_addc_u32 s95, s97, 0")
    srd(p, 12, 98, 99, WS_SIZE)
    srd(p, 16, 38, 39, 4 * MB)
    srd(p, 20, 40, 41, 4 * MB)
    srd(p, 52, 42, 43, 8192)
    if opt("tch", 0):
        p("v_min_u32 v4, 34, v0")
        p("s_lshl_b32 s10, s29, 5")
        p("s_sub_u32 s10, s10, 3")
        p("v_add_u32 v4, s10, v4")
        p("v_lshlrev_b32 v4, 11, v4")
        p("v_add_u32 v4, s11, v4")
        p(f"s_mul_i32 s10, s3, {opt('tchs', 1)}")
        p(f"s_add_u32 s10, s10, {opt('tch', 0)}")
        lds_wait_ge(p, "PA_T0", 1, C_LAND, "s10", 2, sleep=8)
        p("buffer_load_dword v116, v4, s[16:19], 0 offen")
        p("buffer_load_dword v117, v4, s[20:23], 0 offen")
    if opt("padn") or opt("pada"):
        p("s_cmp_lg_u32 s3, 0")
        p("s_cbranch_scc1 WP_END")
        lds_wait_ge(p, "PA_WP", 1, C_LAND, opt("padat", 8), 2, sleep=16)
        p("s_mov_b64 exec, 0")
        p("s_branch WP0")
        p.label("WP_END")
        p("s_mov_b64 exec, -1")
    for _ in range(16): p("s_barrier")
    p(f"v_mov_b32 v1, {CNT}")
    p.pads(opt("pada"))
    lds_wait_ge(p, "PA_C0", 1, C_CPY, 1, 2, sleep=4)
    p("v_readfirstlane_b32 s9, v2")
    if not opt("pal", 1): p("s_mov_b32 s9, 2")
    p("v_cmp_eq_u32 vcc, 1, v2")
    p("s_cbranch_vccnz PA_C3")
    lds_wait_ge(p, "PA_C1", 1, C_KVST, 4, 2, sleep=2)
    p("v_add_u32 v2, 4096, v124")
    p(f"s_add_u32 s10, s56, {LOC}")
    p(f"s_add_u32 s11, s57, {LOC}")
    for n in range(8): p(f"buffer_load_dwordx4 {v(64+4*n,4)}, {('v124', 'v2')[n>>2]}, s[12:15], s10 offen offset:{1024*(n&3)}{SC}")
    for n in range(2): p(f"buffer_load_dwordx4 {v(96+4*n,4)}, v124, s[12:15], s11 offen offset:{1024*n}{SC}")
    p("s_waitcnt vmcnt(0)")
    for n in range(8): p(f"buffer_store_dwordx4 {v(64+4*n,4)}, {('v124', 'v2')[n>>2]}, s[12:15], s56 offen offset:{1024*(n&3)}{SC}")
    for n in range(2): p(f"buffer_store_dwordx4 {v(96+4*n,4)}, v124, s[12:15], s57 offen offset:{1024*n}{SC}")
    p("v_mov_b32 v2, 1")
    p("v_mov_b32 v3, 0")
    p("s_waitcnt vmcnt(0)")
    p("s_mov_b64 exec, 1")
    p(f"ds_add_rtn_u32 v2, v1, v2 offset:{C_CP2}")
    p("s_waitcnt lgkmcnt(0)")
    p("v_cmp_eq_u32 vcc, 3, v2")
    p("s_cbranch_vccz PA_C2")
    flag_publish(p, 126, 3, "s101")
    p.label("PA_C2")
    p("s_mov_b64 exec, -1")
    p.label("PA_C3")
    lds_wait_ge(p, "PA_W0", 1, C_KVL, opt("hwk", 5), 2, sleep=opt("w0slp", 4))
    p(f"s_setprio {opt('cvprio', 3)}")
    stamp(p, 1)
    KR, VR, SR = 16, 38, 56
    def rowaddr(j):
        if j < 3: return v(6 + j), 0
        return v(9 + (j - 3) // 2), 2048 * ((j - 3) & 1)
    for j in range(2): p(f"buffer_load_dwordx4 {v(SR+4*j,4)}, v13, s[52:55], 0 offen offset:{16*j}")
    for j in range(11):
        a_, o_ = rowaddr(j); p(f"buffer_load_dwordx2 {v(KR+2*j,2)}, {a_}, s[16:19], 0 offen offset:{o_}")
    for j in range(8):
        a_, o_ = rowaddr(j + 3); p(f"buffer_load_dwordx2 {v(VR+2*j,2)}, {a_}, s[20:23], 0 offen offset:{o_}")
    srd(p, 16, 44, 45, 4096, off="s33")
    srd(p, 20, 46, 47, 2048)
    EARLYH = opt("earlyh", 0)
    def hdma(t, u):
        p(f"v_and_b32 {v(u)}, 7, v0")
        p(f"v_lshlrev_b32 {v(u)}, 2, {v(u)}")
        p(f"v_add_u32 {v(u)}, {CNT}, {v(u)}")
        lds_wait_ge(p, "PA_W1", u, C_PROG, 1, u + 1, sleep=4)
        p(f"v_add_u32 {v(t+1)}, -512, v124")
        p(f"v_add_u32 {v(t+2)}, 512, v124")
        p("s_lshl_b32 s10, s27, 1")
        p(f"v_mov_b32 {v(t)}, s10")
        p(f"s_add_u32 m0, s30, {CV_H}")
        p(f"buffer_load_ushort v125, {v(t)}, s[20:23], 0 offen")
        p(f"buffer_load_dwordx4 {v(t+1)}, s[16:19], 0 offen lds")
        p(f"s_add_u32 m0, s30, {CV_H + 1024}")
        p("s_nop 0")
        for j in range(4): p(f"buffer_load_dwordx4 {v(t+2)}, s[16:19], 0 offen offset:{1024*j} lds")
        srd(p, 52, 48, 49, 2 * MB)
        p("s_lshl_b32 s10, s27, 11")
        p(f"v_lshlrev_b32 {v(u)}, 5, v0")
        p(f"buffer_load_dword v127, {v(u)}, s[52:55], s10 offen")
    if EARLYH: hdma(1, 4)
    XH = 7 if EARLYH else 0
    T, KU, AC, OUT = 64, 72, 94, 112
    for cp in range(2):
        if cp == 0:
            p(f"s_waitcnt vmcnt({8 + XH})"); stamp(p, 2)
        for e in range(2):
            for jj in range(2):
                src = SR + 4 * cp + 2 * e + jj
                p(f"v_lshlrev_b32 {v(T+2*(2*jj)+e)}, 16, {v(src)}")
                p(f"v_and_b32 {v(T+2*(2*jj+1)+e)}, s32, {v(src)}")
        for j in range(11):
            p(f"v_lshlrev_b32 {v(KU+2*j)}, 16, {v(KR+2*j+cp)}")
            p(f"v_and_b32 {v(KU+2*j+1)}, s32, {v(KR+2*j+cp)}")
        for t in range(8): p(f"v_pk_mul_f32 {v(AC+2*t,2)}, {v(KU+2*t,2)}, {v(T+6,2)}")
        for j in (2, 1, 0):
            for t in range(8): p(f"v_pk_fma_f32 {v(AC+2*t,2)}, {v(KU+2*(t-j+3),2)}, {v(T+2*j,2)}, {v(AC+2*t,2)}")
        if cp == 0: p(f"s_waitcnt vmcnt({XH})")
        for j in range(8):
            p(f"v_lshlrev_b32 {v(KU+2*j)}, 16, {v(VR+2*j+cp)}")
            p(f"v_and_b32 {v(KU+2*j+1)}, s32, {v(VR+2*j+cp)}")
        for t in range(8): p(f"v_pk_mul_f32 {v(AC+2*t,2)}, {v(AC+2*t,2)}, {v(KU+2*t,2)}")
        L_ = []
        for e in range(2):
            for i in range(4): p(f"v_cvt_pk_bf16_f32 {v(OUT+4*e+i)}, {v(AC+2*(7-2*i)+e)}, {v(AC+2*(6-2*i)+e)}")
            L_ += [f"s_mov_b32 s10, {WS_XR + (2*cp+e)*XRS}", f"buffer_store_dwordx4 {v(OUT+4*e,4)}, v15, s[12:15], s10 offen"]
        st2(L_)
    p("s_cmp_lg_u32 s29, 0")
    p(f"s_cbranch_scc1 {pre}_S1END")
    for i in range(4): p(f"v_mov_b32 {v(8+i)}, 0")
    L_ = []
    for c in range(4): L_ += [f"s_mov_b32 s10, {WS_XR + c*XRS + 4096}", "buffer_store_dwordx4 v[8:11], v14, s[12:15], s10 offen"]
    st2(L_)
    p.label(f"{pre}_S1END")
    def signal_and_wait(tag, coff, work=None):
        p(f"v_mov_b32 v1, {CNT + coff}")
        p("v_mov_b32 v2, 1")
        p("v_mov_b32 v3, s35")
        p("s_waitcnt vmcnt(0)")
        p("s_mov_b64 exec, 1")
        p("ds_add_rtn_u32 v126, v1, v2")
        p("s_mov_b32 s25, 0x4000")
        p("s_waitcnt lgkmcnt(0)")
        p("v_readfirstlane_b32 s24, v126")
        p("s_cmp_lg_u32 s24, 3")
        p(f"s_cbranch_scc1 {pre}_NOSIG{tag}")
        flag_publish(p, 126, 3, "s8", SC="")
        p("s_cmp_eq_u32 s9, 1")
        p(f"s_cbranch_scc1 {pre}_NOSIG{tag}")
        p(f"buffer_store_dwordx2 v[126:127], v3, s[12:15], s34 offen{SC}")
        p.label(f"{pre}_NOSIG{tag}")
        p("s_mov_b64 exec, -1")
        if work: work()
        p("s_cmp_lg_u32 s24, 3")
        p(f"s_cbranch_scc1 {pre}_LWAIT{tag}")
        p.label(f"{pre}_POLL{tag}")
        p(f"s_sleep {opt('slp', 4)}")
        p(f"buffer_load_dwordx2 v[126:127], v123, s[12:15], s8 offen{SC}")
        p("s_sub_u32 s25, s25, 1")
        p(f"s_cbranch_scc1 {pre}_GOT{tag}")
        p("s_waitcnt vmcnt(0)")
        flag_test(p, 126)
        p("s_cmp_eq_u32 s9, 1")
        p(f"s_cbranch_scc1 {pre}_PT{tag}")
        p("s_mov_b64 s[10:11], vcc")
        p(f"buffer_load_dwordx2 v[126:127], v123, s[12:15], s34 offen{SC}")
        p("s_waitcnt vmcnt(0)")
        flag_test(p, 126)
        p("s_or_b64 vcc, vcc, s[10:11]")
        p.label(f"{pre}_PT{tag}")
        p("s_cmp_lg_u64 vcc, -1")
        p(f"s_cbranch_scc1 {pre}_POLL{tag}")
        p.label(f"{pre}_GOT{tag}")
        p("ds_write_b32 v1, v2 offset:4")
        p(f"s_branch {pre}_GO{tag}")
        p.label(f"{pre}_LWAIT{tag}")
        bail(p)
        p("s_sleep 4")
        p("ds_read_b32 v126, v1 offset:4")
        p("s_waitcnt lgkmcnt(0)")
        p("v_cmp_ne_u32 vcc, 1, v126")
        p(f"s_cbranch_vccnz {pre}_LWAIT{tag}")
        p.label(f"{pre}_GO{tag}")
    AB, BB, KVB, ST = 8, 12, 13, 14
    FA, FBB, ACC = 16, 48, 80
    def hload():
        if not EARLYH: hdma(117, 5)
        p("v_and_b32 v5, 15, v0")
        p("v_lshrrev_b32 v6, 4, v0")
        p("v_lshrrev_b32 v3, 1, v5")
        p("v_lshlrev_b32 v4, 2, v6")
        p("v_sub_u32 v4, v4, v3")
        p("v_lshlrev_b32 v4, 2, v4")
        p("v_and_b32 v3, 1, v5")
        p("v_xor_b32 v3, 1, v3")
        p(f"v_mul_u32_u24 v3, {CV_C1}, v3")
        p(f"s_add_u32 s10, s30, {4*1023 - 32*(112+1)}")
        p(f"v_add3_u32 {v(AB)}, v4, v3, s10")
        for kk in range(1, 4): p(f"v_add_u32 {v(AB+kk)}, {1024*kk}, {v(AB)}")
        p("v_lshlrev_b32 v3, 5, v5")
        p("v_lshl_add_u32 v4, v6, 4, v3")
        p(f"s_add_u32 s10, s30, {CV_H + 512 - 32}")
        p(f"v_add_u32 {v(BB)}, s10, v4")
        p(f"v_lshl_add_u32 {v(ST)}, v6, 3, v3")
        p(f"s_add_u32 s10, s30, {4088 - 512*7}")
        p(f"v_sub_u32 {v(KVB)}, s10, {v(ST)}")
        for i in range(32): p(f"v_mov_b32 {v(ACC+i)}, 0")
        p("v_add_u32 v7, 2, v124")
    stamp(p, 3)
    signal_and_wait(1, C_A1, hload)
    stamp(p, 4)
    for (src_v, off) in ((124, 0), (7, CV_C1)):
        p(f"s_add_u32 m0, s30, {off}")
        p("s_nop 0")
        for j in range(4): p(f"buffer_load_dwordx4 {v(src_v)}, s[12:15], s31 offen offset:{1024*j}{SC} lds")
        p(f"s_add_u32 m0, s30, {off + 4096}")
        p("s_mov_b64 exec, 15")
        p(f"buffer_load_dwordx4 {v(src_v)}, s[12:15], s26 offen{SC} lds")
        p("s_mov_b64 exec, -1")
    p(f"s_add_u32 s34, s34, {FL_A2 - FL_A1}")
    p("s_add_u32 s8, s8, 128")
    p("s_mov_b32 s25, 8")
    p("s_waitcnt vmcnt(0)")
    if opt("qt", 1):
        srd(p, 16, 36, 37, 4 * MB)
        p("v_and_b32 v3, 3, v0")
        p("v_lshl_add_u32 v3, v3, 11, v120")
        p("buffer_load_dword v116, v3, s[16:19], 0 offen")
    if opt("wb", 0):
        p(f"s_and_b32 s10, s29, {opt('wb')}")
        p("s_cbranch_scc1 PA_NOWB")
        p("buffer_wbl2 sc1")
        p.label("PA_NOWB")
    stamp(p, 5)
    p.padn = opt("pada") * 2
    p.label(f"{pre}_CVL")
    def rdA(a):
        kk, rem = (7 - a) >> 1, 128 * ((7 - a) & 1)
        return [f"ds_read2_b32 {v(FA+4*a,2)}, {v(AB+kk)} offset0:{rem} offset1:{rem+1}",
                f"ds_read2_b32 {v(FA+4*a+2,2)}, {v(AB+kk)} offset0:{rem+2} offset1:{rem+3}"]
    cnt = [0]
    def cm(a, b):
        p(mf16(ACC+4*(a+b), FA+4*a, FBB+4*b, ACC+4*(a+b)))
        cnt[0] += 1
        if opt("cvnop", -1) >= 0 and cnt[0] % opt("cvev", 1) == 0: p(f"s_nop {opt('cvnop')}")
    def rdB(b): return [f"ds_read_b128 {v(FBB+4*b,4)}, {v(BB)} offset:{512*b}"]
    for x in range(8):
        for r_ in rdA(x) + rdB(x): p(r_)
    for kk in range(4): p(f"v_add_u32 {v(AB+kk)}, -64, {v(AB+kk)}")
    p(f"v_add_u32 {v(BB)}, -64, {v(BB)}")
    p("s_waitcnt lgkmcnt(12)")
    for a in range(4):
        for b in range(4): cm(a, b)
    p("s_waitcnt lgkmcnt(0)")
    for a in range(8):
        for b in range(8 - a):
            if a >= 4 or b >= 4: cm(a, b)
    p("s_sub_u32 s25, s25, 1")
    p("s_cmp_lg_u32 s25, 0")
    p(f"s_cbranch_scc1 {pre}_CVL")
    stamp(p, 6)
    p.padn = opt("pada")
    for t in range(8): p(f"ds_read_b64 {v(FA+2*t,2)}, {v(KVB)} offset:{512*(7-t)}")
    p("v_lshlrev_b32 v125, 16, v125")
    p(f"s_add_u32 s33, s33, {WS_Y}")
    p(f"v_lshlrev_b32 {v(ST)}, 1, {v(ST)}")
    for t in range(8):
        p(f"s_waitcnt lgkmcnt({7-t})" if not STAMP else "s_waitcnt lgkmcnt(0)")
        U = FBB + 4 * (t & 3); a = ACC + 4 * t; o = FBB + 16 + 2 * t
        p(f"v_and_b32 {v(U)}, s32, {v(FA+2*t+1)}")
        p(f"v_lshlrev_b32 {v(U+1)}, 16, {v(FA+2*t+1)}")
        p(f"v_and_b32 {v(U+2)}, s32, {v(FA+2*t)}")
        p(f"v_lshlrev_b32 {v(U+3)}, 16, {v(FA+2*t)}")
        for r_ in range(4): p(f"v_fmac_f32 {v(a+r_)}, v125, {v(U+r_)}")
        p(f"v_cvt_pk_bf16_f32 {v(o)}, {v(a)}, {v(a+1)}")
        p(f"v_cvt_pk_bf16_f32 {v(o+1)}, {v(a+2)}, {v(a+3)}")
    st2([f"buffer_store_dwordx4 {v(FBB+16+4*tp,4)}, {v(ST)}, s[12:15], s33 offen offset:{1024*tp}" for tp in range(4)])
    QR, YR, U, OUT = 16, 32, 48, 64
    def qload():
        srd(p, 16, 36, 37, 4 * MB)
        srd(p, 20, 50, 51, 8 * MB)
        p("v_add_u32 v6, 4096, v120")
        for j in range(4): p(f"buffer_load_dwordx4 {v(QR+4*j,4)}, {('v120', 'v6')[j>>1]}, s[16:19], 0 offen offset:{2048*(j&1)}")
    signal_and_wait(2, C_A2, qload)
    stamp(p, 7)
    for c in range(8):
        p(f"s_mov_b32 s10, {WS_Y + c*4096}")
        p(f"buffer_load_dwordx2 {v(YR+2*c,2)}, v121, s[12:15], s10 offen{SC}")
    p("s_waitcnt vmcnt(0)")
    for t in range(4):
        for cp in range(4):
            u = U + 4 * (cp & 1)
            q = QR + 4 * t + cp
            p(f"v_lshlrev_b32 {v(u)}, 16, {v(q)}")
            p(f"v_and_b32 {v(u+1)}, s32, {v(q)}")
            for e in range(2):
                y = YR + 2 * (2 * cp + e) + (t >> 1)
                if t & 1: p(f"v_and_b32 {v(u+2+e)}, s32, {v(y)}")
                else: p(f"v_lshlrev_b32 {v(u+2+e)}, 16, {v(y)}")
            p(f"v_pk_mul_f32 {v(u,2)}, {v(u,2)}, {v(u+2,2)}")
            p(f"v_cvt_pk_bf16_f32 {v(OUT+4*t+cp)}, {v(u)}, {v(u+1)}")
        p(f"s_mov_b32 s10, {t*4096}")
        p(f"buffer_store_dwordx4 {v(OUT+4*t,4)}, v122, s[20:23], s10 offen{SC}")
    stamp(p, 12)
    stamp_flush(p)
    p("s_endpgm")

def build(path):
    p = Prog()
    emit(p)
    p.pads(0)
    if p.npads:
        p.label(f"WP{p.npads}")
        p("s_branch WP_END")
    p.label("L_CODE_END")
    hdr = open("concat_heads__ssm_conv_h3__mha_block__prompt.s.ref").read().split("\n")
    hdr = [l for l in hdr if l.startswith(";") and "@launch" not in l and "Override" not in l and "grid=ceil" not in l]
    out = "\n".join(hdr) + "\n"
    if opt("aslist", 1): out += f"; @launch kernel={NAME} grid=(256,1,1) block=(832,1,1) lds={LDS_BYTES}\n"
    else: out += f"; @launch grid=(256,1,1) block=(832,1,1) lds={LDS_BYTES}\n"
    out += '.amdgcn_target "amdgcn-amd-amdhsa--gfx950"\n.text\n'
    body = p.text()
    nbad = check(body)
    out += body
    out += f""".section .rodata,"a"
.p2align 6
.amdhsa_kernel {NAME}
  .amdhsa_next_free_vgpr 128
  .amdhsa_next_free_sgpr 102
  .amdhsa_accum_offset 128
  .amdhsa_group_segment_fixed_size 0
  .amdhsa_kernarg_size 96
  .amdhsa_user_sgpr_count 2
  .amdhsa_user_sgpr_kernarg_segment_ptr 1
  .amdhsa_system_sgpr_workgroup_id_x 1
.end_amdhsa_kernel
"""
    open(path, "w").write(out)
    return nbad

if __name__ == "__main__":
    nb = build(sys.argv[1] if len(sys.argv) > 1 else "pk.s")
    print("hazards:", nb)
```

```python
import sys, os, struct, math
sys.path.insert(0, os.path.dirname(os.path.abspath(__file__)))
from asmlib import Prog, v, s, check

MB = 1 << 20
WS_KV, WS_QX, WS_O, WS_XR, WS_Y, WS_FL = 0, 8 * MB, 12 * MB, 16 * MB, 21 * MB, 25 * MB
XRS = 4224
WS_SIZE = 64 * MB
LOC = 32 * MB
FLS = 4352
FL_A1, FL_A2, FL_KV, FL_O, FL_KVL = [WS_FL + 16 * i * FLS for i in range(5)]
A_Q, A_K, A_V, A_SK, A_SSMK, A_D, B_X, B_WQKV, B_WO, D_OUT, D_DBG, D_WS = [8 * i for i in range(12)]
def f32bits(x): return struct.unpack("<I", struct.pack("<f", x))[0]
QSCALE = f32bits((32 ** -0.5) * math.log2(math.e))
STAMP = os.environ.get("STAMP", "0") == "1"
LIGHT = os.environ.get("STAMP", "0") == "2"
OPT = dict(kv.split("=") for kv in os.environ.get("OPT", "").split(",") if kv)
def opt(k, d=0): return int(OPT.get(k, d))
WS_ST = 28 * MB
SC = " sc1"
NAME = "concat_heads__ssm_conv_h3__mha_block__prompt_kernel"

WREG = 5 * 16384
RING = 6 * 16384
OWNC = WREG + 24576
QHO = OWNC + 16384
CV_BASE = 98304
CV_STRIDE = 15616
CV_C1 = 5120 + 64
CV_H = 2 * 5120 + 128
CNT = CV_BASE + 4 * CV_STRIDE
C_LAND, C_CONS, C_PROG, C_KVL, C_OWN, C_KVST, C_A1, C_A2, C_OARR, C_OMASK, C_QRDY, C_CPY, C_GALL, C_CP2 = 0, 16, 32, 64, 68, 72, 76, 84, 92, 96, 100, 104, 108, 112
LDS_BYTES = CNT + 256

def mf32(d, a, b, c): return f"v_mfma_f32_32x32x16_bf16 {v(d,16)}, {v(a,4)}, {v(b,4)}, {v(c,16) if isinstance(c,int) else c}"
def mf16(d, a, b, c): return f"v_mfma_f32_16x16x32_bf16 {v(d,4)}, {v(a,4)}, {v(b,4)}, {v(c,4) if isinstance(c,int) else c}"

def srd(p, d, lo, hi, nrec, off=None):
    if off is None:
        if lo != d: p(f"s_mov_b32 {s(d)}, {s(lo)}")
        if hi != d + 1: p(f"s_mov_b32 {s(d+1)}, {s(hi)}")
    else:
        p(f"s_add_u32 {s(d)}, {s(lo)}, {off}")
        p(f"s_addc_u32 {s(d+1)}, {s(hi)}, 0")
    p(f"s_mov_b32 {s(d+2)}, {nrec}")
    p(f"s_mov_b32 {s(d+3)}, 0x20000")

def stamp(p, i, real=True):
    if STAMP and not (opt("p1st") and i in (4, 5, 6, 7, 9, 10, 11)): p(f"{'s_memrealtime' if real else 's_memtime'} s[{60+2*i}:{61+2*i}]")
def stamp_flush(p, n=14):
    if LIGHT:
        p("s_memrealtime s[90:91]")
        p("s_lshl_b32 s58, s2, 4")
        p("s_add_u32 s58, s58, s59")
        p("s_lshl_b32 s58, s58, 3")
        p(f"s_add_u32 s58, s58, {WS_ST}")
        p("s_waitcnt lgkmcnt(0)")
        p("v_mov_b32 v1, s58")
        p("v_mov_b32 v2, s96")
        p("v_mov_b32 v3, s90")
        p("global_store_dwordx2 v1, v[2:3], s[98:99]")
    if not STAMP: return
    p("s_memtime s[90:91]")
    p("s_lshl_b32 s58, s2, 4")
    p("s_add_u32 s58, s58, s59")
    p("s_lshl_b32 s58, s58, 6")
    p(f"s_add_u32 s58, s58, {WS_ST}")
    p("s_waitcnt lgkmcnt(0)")
    p("v_mov_b32 v2, s58")
    for i in range(16):
        p(f"v_mov_b32 v3, s{60+2*i}")
        p(f"global_store_dword v2, v3, s[98:99] offset:{4*i}")

def lane_id(p, d):
    p(f"v_mbcnt_lo_u32_b32 {v(d)}, -1, 0")
    p(f"v_mbcnt_hi_u32_b32 {v(d)}, -1, {v(d)}")

def bail(p):
    p("s_sub_u32 s100, s100, 1")
    p("s_cbranch_scc1 L_END")

def lds_wait_ge(p, lab, vaddr, off, need, vt, sleep=2):
    p(f"s_branch {lab}c")
    p.label(f"{lab}s")
    bail(p)
    p(f"s_sleep {sleep}")
    p.label(f"{lab}c")
    p(f"ds_read_b32 {v(vt)}, {v(vaddr)} offset:{off}")
    p("s_waitcnt lgkmcnt(0)")
    p(f"v_cmp_gt_i32 vcc, {need}, {v(vt)}")
    p(f"s_cbranch_vccnz {lab}s")

def local_flag_base(p, d):
    p(f"s_getreg_b32 s{d}, hwreg(HW_REG_XCC_ID)")
    p(f"s_and_b32 s{d}, s{d}, 15")
    p(f"s_lshl_b32 s{d}, s{d}, 4")
    p(f"s_add_u32 s{d}, s{d}, s27")
    p(f"s_lshl_b32 s{d}, s{d}, 9")
    p(f"s_add_u32 s{d}, s{d}, {FL_KVL}")

def flag_publish(p, vt, voff, soff, SC=" sc1"):
    p("s_memrealtime s[92:93]")
    p("s_waitcnt lgkmcnt(0)")
    p(f"v_mov_b32 {v(vt)}, s92")
    p(f"v_mov_b32 {v(vt+1)}, s93")
    p(f"buffer_store_dwordx2 {v(vt,2)}, {v(voff)}, s[12:15], {soff} offen{SC}")

def flag_test(p, vt):
    p(f"v_cmp_lt_u64 vcc, s[96:97], {v(vt,2)}")
    p(f"v_cmp_gt_u64 s[92:93], s[94:95], {v(vt,2)}")
    p("s_and_b64 vcc, vcc, s[92:93]")

def pf_addr(p, vx, vw, which=(0, 1)):
    if 0 in which:
        p("s_and_b32 s29, s27, 1")
        p("s_lshl_b32 s29, s29, 6")
        p("s_lshl_b32 s10, s26, 7")
        p("s_add_u32 s29, s29, s10")
        p("v_add_u32 v1, s29, v0")
        p(f"v_lshlrev_b32 {v(vx)}, 11, v1")
    if 1 in which:
        p("v_bfe_u32 v2, v0, 2, 2")
        p("s_lshl_b32 s29, s26, 2")
        p("v_add_u32 v2, s29, v2")
        if opt("wup", 0):
            p("v_lshrrev_b32 v3, 4, v0")
            p("v_lshl_add_u32 v2, v3, 8, v2")
        p("v_mul_u32_u24 v2, 6144, v2")
        p("v_and_b32 v3, 3, v0")
        p("v_min_u32 v3, 2, v3")
        p("v_lshl_add_u32 v2, v3, 11, v2")
        p("s_lshl_b32 s29, s27, 7")
        p(f"v_add_u32 {v(vw)}, s29, v2")

def tile3(p):
    p("s_and_b32 s38, s8, 3")
    p("s_lshl_b32 s38, s38, 2")
    p("s_and_b32 s10, s9, 3")
    p("s_add_u32 s38, s38, s10")
    p("s_lshr_b32 s39, s8, 2")
    p("s_lshl_b32 s39, s39, 3")
    p("s_lshr_b32 s10, s9, 2")
    p("s_add_u32 s39, s39, s10")

WTAB = 0x10876543

def emit(p):
    p(f".globl {NAME}")
    p(".p2align 8")
    p(f".type {NAME},@function")
    p.label(NAME)
    p("s_cmp_ge_u32 s2, 256")
    p("s_cbranch_scc1 L_END")
    p(f"s_load_dwordx4 s[4:7], s[0:1], {B_X}")
    p(f"s_load_dwordx2 s[98:99], s[0:1], {D_WS}")
    p("s_memrealtime s[96:97]")
    p("v_lshrrev_b32 v1, 6, v0")
    p("v_and_b32 v0, 63, v0")
    p("s_and_b32 s8, s2, 7")
    p("v_readfirstlane_b32 s3, v1")
    stamp(p, 0); stamp(p, 14, False)
    p("s_lshr_b32 s9, s2, 3")
    p("s_mov_b32 s100, 0x100000")
    if STAMP or LIGHT: p("s_mov_b32 s59, s3")
    p("s_and_b32 s26, s9, 15")
    p("s_lshl_b32 s27, s8, 1")
    p("s_lshr_b32 s10, s9, 4")
    p("s_add_u32 s27, s27, s10")
    p("s_cmp_ge_u32 s3, 4")
    p("s_cbranch_scc1 L_NOTLOADER")
    p("s_and_b32 s34, s3, 2")
    p("s_and_b32 s25, s3, 1")
    p("v_lshrrev_b32 v2, 3, v0")
    p("v_lshlrev_b32 v2, 11, v2")
    p("v_lshrrev_b32 v3, 4, v0")
    p("v_and_b32 v4, 7, v0")
    p("v_xor_b32 v4, v4, v3")
    p("v_lshl_add_u32 v2, v4, 4, v2")
    p("s_lshl_b32 s10, s34, 16")
    p("v_add_u32 v10, s10, v2")
    p("v_xor_b32 v11, 64, v10")
    p(f"v_add_u32 v12, {32768-2048}, v10")
    p(f"v_add_u32 v13, {49152-3072}, v11")
    p(f"v_add_u32 v11, {16384-1024}, v11")
    p("s_lshl_b32 s23, s34, 12")
    p("s_lshl_b32 s10, s25, 14")
    p("s_add_u32 s23, s23, s10")
    p(f"s_mul_i32 s39, s8, {opt('xrot', 0)}")
    p("s_and_b32 s36, s27, 1")
    p(f"s_mul_i32 s36, s36, {opt('nrot', 0)}")
    p("s_add_u32 s39, s39, s36")
    p("s_add_u32 s36, s39, s25")
    p("s_and_b32 s36, s36, 15")
    p("s_lshl_b32 s20, s36, 7")
    p("s_lshl_b32 s10, s26, 18")
    p("s_mov_b32 s14, 262144")
    p("s_mov_b32 s15, 0x20000")
    pf_addr(p, 16, 16, (1,))
    p("s_add_u32 s35, s39, s3")
    p(f"s_and_b32 s35, s35, {3 if opt('wup', 0) else 15}")
    p(f"s_mul_i32 s35, s35, {64*6144}")
    p("s_waitcnt lgkmcnt(0)")
    srd(p, 40, 6, 7, 6 * MB)
    p("buffer_load_dword v17, v16, s[40:43], s35 offen")
    p("s_add_u32 s12, s4, s10")
    p("s_addc_u32 s13, s5, 0")
    def xissue():
        for q_ in range(2):
            p(f"s_add_u32 m0, s23, {4096*q_}")
            p(f"s_add_u32 s10, s20, {65536*q_}")
            for jj in range(4): p(f"buffer_load_dwordx4 {v(10+jj)}, s[12:15], s10 offen offset:{1024*jj} lds")
        p("s_add_u32 s20, s20, 256")
        p("s_and_b32 s20, s20, 2047")
        p("s_add_u32 s23, s23, 32768")
        p(f"s_cmp_ge_u32 s23, {WREG}")
        p(f"s_cselect_b32 s10, {WREG}, 0")
        p("s_sub_u32 s23, s23, s10")
    xissue()
    p("v_lshrrev_b32 v2, 5, v0")
    p("v_lshlrev_b32 v2, 2, v2")
    p("v_bfe_u32 v4, v0, 2, 2")
    p("s_lshl_b32 s10, s34, 4")
    p("v_add3_u32 v2, v2, v4, s10")
    p("v_mul_u32_u24 v2, 6144, v2")
    p("v_bfe_u32 v3, v0, 4, 1")
    p("v_lshl_add_u32 v2, v3, 6, v2")
    p("v_and_b32 v4, 3, v0")
    p("v_lshl_add_u32 v14, v4, 4, v2")
    p("v_add_u32 v15, 48128, v14")
    p("v_lshlrev_b32 v4, 2, v4")
    p(f"v_add_u32 v18, {CNT}, v4")
    p("s_mul_i32 s24, s34, 6144")
    p("s_mul_i32 s10, s25, 24576")
    p("s_add_u32 s24, s24, s10")
    p(f"s_add_u32 s24, s24, {WREG}")
    p("s_mul_i32 s21, s36, 393216")
    p("s_lshl_b32 s11, s27, 7")
    p(f"s_sub_u32 s18, {1024*6144}, s11")
    p("s_mov_b32 s19, 0x20000")
    p("s_add_u32 s16, s6, s11")
    p("s_addc_u32 s17, s7, 0")
    p("s_lshl_b64 s[32:33], 1, s3")
    XPF = opt("xpf", 4)
    if XPF:
        p("s_mov_b32 s37, 393216")
        p("s_cmp_lg_u32 s3, 0")
        p("s_cbranch_scc1 P1_NX")
        pf_addr(p, 16, 16, (0,))
        srd(p, 40, 4, 5, 4 * MB)
        p("s_mov_b32 s37, 128")
        p.label("P1_NX")
        p("s_cmp_lg_u32 s25, 0")
    else:
        p(f"s_cmp_ge_u32 s3, {0 if opt('wup', 0) else 2}")
    p("s_cselect_b32 s42, 0, s42")
    p.label("P1_LISSUE")
    for q_ in range(2):
        p(f"s_add_u32 m0, s24, {6144*q_}")
        p(f"s_add_u32 s10, s21, {16*6144*q_}")
        for ii in range(4): p(f"buffer_load_dwordx4 {v(14+(ii&1))}, s[16:19], s10 offen offset:{1024*ii} lds")
        p(f"s_add_u32 m0, s24, {6144*q_+4096}")
        p(f"s_add_u32 s10, s21, {16*6144*q_+4096}")
        for ii in range(2): p(f"buffer_load_dwordx4 {v(14+ii)}, s[16:19], s10 offen offset:{1024*ii} lds")
    p("s_add_u32 s36, s36, 2")
    p("s_and_b32 s36, s36, 15")
    p("s_mul_i32 s21, s36, 393216")
    p(f"s_add_u32 s35, s36, {XPF - 2 if XPF else 2}")
    p("s_and_b32 s35, s35, 15")
    p("s_mul_i32 s35, s35, s37" if XPF else "s_mul_i32 s35, s35, 393216")
    p(f"s_cmp_ge_u32 s25, {16 - XPF if XPF else 12}")
    p("s_cselect_b32 s42, 0, s42")
    p("s_add_u32 s24, s24, 49152")
    p(f"s_cmp_ge_u32 s24, {WREG + 3*24576}")
    p(f"s_cselect_b32 s11, {3*24576}, 0")
    p("s_sub_u32 s24, s24, s11")
    p("s_add_u32 s25, s25, 2")
    p("s_cmp_ge_u32 s25, 16")
    p("s_cbranch_scc1 P1_LLAST")
    xissue()
    p("buffer_load_dword v17, v16, s[40:43], s35 offen")
    if XPF:
        p("s_add_u32 s35, s35, s37")
        p("buffer_load_dword v17, v16, s[40:43], s35 offen")
    p("s_cmp_eq_u32 s25, 2")
    p("s_cbranch_scc1 P1_LNB")
    p("s_barrier")
    p.label("P1_LNB")
    p(f"s_waitcnt vmcnt({10 if XPF else 9})")
    p("s_barrier")
    p("s_branch P1_LISSUE")
    p.label("P1_LLAST")
    p("s_barrier")
    p("s_waitcnt vmcnt(0)")
    p("s_barrier")
    p("s_cmp_lg_u32 s25, 16")
    p("s_cbranch_scc1 P1_LDONE")
    p("s_barrier")
    p.label("P1_LDONE")
    stamp(p, 1)
    Q, ONES, L, P0, P1, F0, F1, NEGM, SA, SB, O = 4, 12, 16, 20, 24, 28, 44, 60, 76, 92, 108
    VN, VL, VC, VP, IDX, CA, CV_, ONE = 0, 1, 2, 3, 124, 125, 126, 127
    p("s_lshl_b32 s28, s26, 2")
    p("s_add_u32 s28, s28, s3")
    p("v_lshlrev_b32 v1, 4, v0")
    p(f"v_mov_b32 {v(CA)}, {CNT}")
    srd(p, 12, 98, 99, WS_SIZE)
    p("s_lshl_b32 s10, s3, 11")
    p(f"s_add_u32 s10, s10, {QHO}")
    p(f"v_add_u32 {v(SB)}, s10, v1")
    p("s_branch A_INIT")

    p.label("L_NOTLOADER")
    p("s_cmp_ge_u32 s3, 8")
    p("s_cbranch_scc1 L_HELPERS")
    ACC, XF, WF_, XC, WC, SY, VT = 32, 0, 16, 28, 29, 30, 31
    p("s_sub_u32 s31, s3, 4")
    p("s_lshr_b32 s28, s31, 1")
    p("s_and_b32 s29, s31, 1")
    p("v_and_b32 v1, 31, v0")
    p("v_lshrrev_b32 v2, 5, v0")
    p("v_bfe_u32 v3, v0, 1, 3")
    p("v_xor_b32 v3, v3, v2")
    p("v_lshlrev_b32 v3, 4, v3")
    p("v_lshl_add_u32 v3, v1, 7, v3")
    p("s_lshl_b32 s10, s28, 13")
    p(f"v_add_u32 {v(XC)}, s10, v3")
    p("v_lshlrev_b32 v2, 10, v2")
    p("v_bfe_u32 v3, v0, 2, 2")
    p("v_lshl_add_u32 v2, v3, 6, v2")
    p("v_bfe_u32 v3, v0, 4, 1")
    p("v_lshl_add_u32 v2, v3, 5, v2")
    p("v_and_b32 v3, 3, v0")
    p("v_lshl_add_u32 v2, v3, 3, v2")
    p("s_lshl_b32 s10, s29, 8")
    p(f"s_add_u32 s10, s10, {WREG}")
    p(f"v_add_u32 {v(WC)}, s10, v2")
    p("v_lshlrev_b32 v3, 2, v3")
    p(f"v_add_u32 {v(SY)}, {CNT}, v3")
    p("v_lshlrev_b32 v3, 2, v0")
    p(f"v_add_u32 v3, {CNT}, v3")
    p(f"v_mov_b32 {v(VT)}, 0")
    p(f"ds_write_b32 v3, {v(VT)}")
    for i in range(8, 28): p(f"v_mov_b32 {v(i)}, 0")
    for i in range(ACC, ACC + 96): p(f"v_mov_b32 {v(i)}, 0")
    p("s_mov_b32 s25, 0")
    p("s_mov_b32 s24, 0")
    p("s_mov_b32 s21, 0")
    p(f"s_setprio {opt('cpprio', 3)}")
    def mfmas(b):
        L_ = []
        for ty in range(3):
            for rt in range(2):
                d = ACC + (rt * 3 + ty) * 16
                x, w = XF + 8 * b + 4 * rt, WF_ + 4 * ty
                L_.append(mf32(d, w, x, d) if ty < 2 else mf32(d, x, w, d))
        return L_
    def rx(b, rt): return f"ds_read_b128 {v(XF+8*b+4*rt,4)}, {v(XC)} offset:{rt*4096}"
    def rw(ks, ty): return [f"ds_read_b64_tr_b16 {v(WF_+4*ty+2*h,2)}, {v(WC)} offset:{ks*6144+ty*2048+h*512}" for h in range(2)]
    def cons():
        p("s_mov_b64 exec, s[32:33]")
        p(f"ds_inc_u32 {v(SY)}, {v(SY)} offset:{C_CONS}")
        p("s_mov_b64 exec, -1")
    w = lambda n: p(f"s_waitcnt lgkmcnt({n})")
    if opt("al1", -1) >= 0:
        p(".p2align 6")
        for _ in range(opt("al1")): p("s_nop 0")
    p.label("P1_CLOOP")
    for ks in range(4):
        b = ks & 1
        M = mfmas(b ^ 1)
        w(4); p(M[0])
        if ks == 0:
            p(M[1])
            w(0)
            p("s_barrier")
            for r_ in rw(ks, 0): p(r_)
            p(rx(b, 0))
            p(M[2])
            p(rx(b, 1))
            p(f"v_xor_b32 {v(XC)}, 32, {v(XC)}")
        else:
            p(rx(b, 0)); p(rx(b, 1))
            p(f"v_xor_b32 {v(XC)}, {32 if ks == 2 else 96}, {v(XC)}")
            p(M[1])
            for r_ in rw(ks, 0): p(r_)
        if ks == 3: p(f"v_add_u32 {v(XC)}, s22, {v(XC)}")
        if ks == 1:
            p("s_add_u32 s24, s24, 1")
            p("s_cmp_eq_u32 s24, 3")
            p("s_cselect_b32 s23, -2, 1")
            p("s_cselect_b32 s24, 0, s24")
            p("s_mul_i32 s23, s23, 24576")
        if ks == 2:
            p("s_add_u32 s21, s21, 1")
            p("s_cmp_eq_u32 s21, 5")
            p("s_cselect_b32 s22, -4, 1")
            p("s_cselect_b32 s21, 0, s21")
            p("s_mul_i32 s22, s22, 16384")
        if ks: w(6); p(M[2])
        p(M[3])
        for r_ in rw(ks, 1): p(r_)
        if ks: w(6)
        p(M[4])
        if ks == 3:
            p("s_add_u32 s25, s25, 1")
            p("s_cmp_lt_u32 s25, 16")
        p(M[5])
        for r_ in rw(ks, 2): p(r_)
    p(f"v_add_u32 {v(WC)}, s23, {v(WC)}")
    if STAMP and opt("p1st") == 2:
        p("s_and_b32 s58, s25, 7")
        p("s_cmp_lg_u32 s58, 6")
        p("s_cbranch_scc1 P1_STX")
        p("s_mov_b64 s[68:69], s[72:73]")
        p("s_mov_b64 s[70:71], s[74:75]")
        p("s_memrealtime s[72:73]")
        p("s_memtime s[74:75]")
        p("s_mov_b32 s78, s80")
        p("s_mov_b32 s80, s100")
        p.label("P1_STX")
        p("s_cmp_lt_u32 s25, 16")
    if STAMP and opt("p1st") == 1:
        for (n_, i_) in ((5, 4), (6, 5), (7, 6), (8, 7), (9, 9), (10, 10), (11, 11)):
            p(f"s_cmp_lg_u32 s25, {n_}")
            p(f"s_cbranch_scc1 P1_ST{n_}")
            p(f"s_memrealtime s[{60+2*i_}:{61+2*i_}]")
            p.label(f"P1_ST{n_}")
        p("s_cmp_lt_u32 s25, 16")
    p("s_cbranch_scc1 P1_CLOOP")
    PADN = opt("padn", 0)
    p.pads(PADN)
    M = mfmas(1)
    w(4); p(M[0]); p(M[1]); w(2); p(M[2]); p(M[3]); w(0)
    p(M[4]); p(M[5])
    stamp(p, 1)
    lane_id(p, XC)
    p(f"v_lshlrev_b32 {v(XC)}, 4, {v(XC)}")
    srd(p, 12, 98, 99, WS_SIZE)
    p("s_lshl_b32 s10, s27, 1")
    p("s_add_u32 s10, s10, s29")
    p("s_lshl_b32 s10, s10, 4")
    p("s_add_u32 s10, s10, s26")
    p("s_lshl_b32 s10, s10, 14")
    p("s_lshl_b32 s11, s28, 12")
    p("s_add_u32 s10, s10, s11")
    p(f"s_add_u32 s10, s10, {LOC}")
    p("s_add_u32 s16, s10, 8192")
    p("s_lshl_b32 s18, s27, 4")
    p("s_add_u32 s18, s18, s26")
    p("s_lshl_b32 s18, s18, 13")
    p("s_add_u32 s18, s18, s11")
    p(f"s_add_u32 s18, s18, {WS_QX + LOC}")
    p(f"s_add_u32 s11, s11, {OWNC}")
    p(f"v_add_u32 {v(WC)}, s11, {v(XC)}")
    p(f"s_mov_b32 s17, {QSCALE}")
    p("s_xor_b32 s19, s26, s29")
    p("s_bitcmp1_b32 s19, 0")
    p("s_cbranch_scc1 P1_EOTH")
    p("s_nop 3")
    for own in (1, 0):
        n = 0
        order = (((1, 0), (1, 1), (2, 0), (2, 1), (0, 0), (0, 1)) if opt("stf", 1) else ((1, 0), (0, 0), (0, 1), (2, 0), (1, 1), (2, 1))) if own else ((0, 0), (0, 1), (1, 0), (1, 1), (2, 0), (2, 1))
        keep = []
        for (ty, rt) in order:
            d = ACC + (rt * 3 + ty) * 16
            if ty == 0:
                for i in range(16): p(f"v_mul_f32 {v(d+i)}, s17, {v(d+i)}")
            for j in range(2):
                o = d + 8 * j if own else 4 * (n % 7); n += 1
                for i in range(4): p(f"v_cvt_pk_bf16_f32 {v(o+i)}, {v(d+8*j+2*i)}, {v(d+8*j+2*i+1)}")
                st = f"buffer_store_dwordx4 {v(o,4)}, {v(XC)}, s[12:15], {('s18', 's10', 's16')[ty]} offen offset:{rt*2048+j*1024}"
                if own:
                    if ty and opt("stf", 1): p(st)
                    p(f"ds_write_b128 {v(WC)}, {v(o,4)} offset:{(16384, 0, 8192)[ty]+rt*2048+j*1024}")
                    if ty and not opt("stf", 1): keep.append(st)
                else: p(st)
        if own:
            p(f"v_mov_b32 {v(VT)}, 1")
            p(f"v_mov_b32 {v(SY)}, {CNT}")
            for st in keep[:2]: p(st)
            p("s_waitcnt lgkmcnt(0)")
            p("s_mov_b64 exec, 1")
            p(f"ds_add_u32 {v(SY)}, {v(VT)} offset:{C_OWN}")
            p("s_mov_b64 exec, -1")
            for st in keep[2:]: p(st)
            p("s_branch P1_EDONE")
            p.label("P1_EOTH")
    p.label("P1_EDONE")
    p(f"v_mov_b32 v30, {CNT}")
    p("v_mov_b32 v31, 1")
    local_flag_base(p, 34)
    p("s_lshl_b32 s10, s26, 3")
    p("v_mov_b32 v29, s10")
    p("s_waitcnt vmcnt(0)")
    p("s_mov_b64 exec, 1")
    p(f"ds_add_rtn_u32 v31, v30, v31 offset:{C_KVST}")
    p("s_waitcnt lgkmcnt(0)")
    p("v_cmp_eq_u32 vcc, 3, v31")
    p("s_cbranch_vccz P1_NOKVF")
    flag_publish(p, 30, 29, "s34", SC="")
    p.label("P1_NOKVF")
    p("s_mov_b64 exec, -1")
    stamp(p, 3)
    p("s_setprio 0")
    p(f"v_mov_b32 v1, {v(XC)}")
    p(f"v_lshrrev_b32 v0, 4, {v(XC)}")
    p(f"v_mov_b32 {v(CA)}, {CNT}")
    p("s_xor_b32 s28, s26, 1")
    p("s_lshl_b32 s18, s27, 4")
    p("s_add_u32 s18, s18, s28")
    p("s_lshl_b32 s18, s18, 13")
    p("s_lshl_b32 s10, s31, 11")
    p("s_add_u32 s18, s18, s10")
    p(f"s_add_u32 s18, s18, {WS_QX}")
    p("s_lshl_b32 s28, s28, 2")
    p("s_add_u32 s28, s28, s31")
    p.label("A_INIT")
    p("v_and_b32 v2, 2, v0")
    p("v_cmp_eq_u32 vcc, 0, v2")
    p("v_mov_b32 v3, 0x3f803f80")
    p("v_mov_b32 v2, 0")
    for i in range(2): p(f"v_cndmask_b32 {v(ONES+i)}, v2, v3, vcc")
    for i in range(2, 4): p(f"v_cndmask_b32 {v(ONES+i)}, v3, v2, vcc")
    p("v_and_b32 v2, 1, v0")
    p("v_mul_u32_u24 v2, 0xaaaa, v2")
    p(f"v_add_u32 {v(IDX)}, 0x4444, v2")
    p(f"v_mov_b32 {v(ONE)}, 1")
    for i in range(12): p(f"v_mov_b32 {v(L+i)}, 0")
    for i in range(16): p(f"v_mov_b32 {v(O+i)}, 0")
    for i in range(12, 16): p(f"v_mov_b32 {v(F1+i)}, 0")
    p("s_and_b32 s29, s26, 1")
    p("s_lshl_b32 s10, s27, 1")
    p("s_add_u32 s29, s29, s10")
    p("s_mov_b32 s22, 0")
    p(f"v_add_u32 {v(VC)}, {OWNC}, v1")
    p("s_lshl_b32 s10, s3, 2")
    p(f"s_add_u32 s10, s10, {CNT + C_PROG}")
    p(f"v_mov_b32 {v(VP)}, s10")
    p("s_mov_b32 s25, 2")
    p("s_cmp_lt_u32 s3, 4")
    p("s_cselect_b32 s23, 1, 0")
    lds_wait_ge(p, "A_OW", CA, C_OWN, 2, CV_, sleep=opt("owslp", 2))
    for j in range(2): p(f"ds_read_b128 {v(F1+4*j,4)}, {v(VC)} offset:{j*1024}")
    p("s_cmp_ge_u32 s3, 4")
    p("s_cbranch_scc1 A_FARQ")
    for j in range(2): p(f"ds_read_b128 {v(Q+4*j,4)}, {v(SB)} offset:{j*1024}")
    p("s_branch A_HAVEQ")
    p.label("A_FARQ")
    lds_wait_ge(p, "A_QW", CA, C_QRDY, 1, CV_, sleep=1)
    p(f"v_readfirstlane_b32 s10, {v(CV_)}")
    p("s_cmp_eq_u32 s10, 1")
    p(f"s_cselect_b32 s10, {LOC}, 0")
    p("s_add_u32 s18, s18, s10")
    for j in range(2): p(f"buffer_load_dwordx4 {v(Q+4*j,4)}, v1, s[12:15], s18 offen offset:{j*1024}{SC}")
    p("s_waitcnt vmcnt(0)")
    p.label("A_HAVEQ")
    stamp(p, 2)
    p("s_waitcnt lgkmcnt(0)")
    p(mf32(SA, F1, Q, "0"))
    p(mf32(SA, F1+4, Q+4, SA))
    for j in range(2): p(f"ds_read_b128 {v(F0+4*j,4)}, {v(VC)} offset:{2048+j*1024}")
    for j in range(2): p(f"ds_read_b128 {v(F0+8+4*j,4)}, {v(VC)} offset:{8192+j*1024}")
    p("s_nop 7")
    T_ = NEGM
    p(f"v_max3_f32 {v(T_)}, {v(SA)}, {v(SA+1)}, {v(SA+2)}")
    for i in range(3, 15, 2): p(f"v_max3_f32 {v(T_)}, {v(T_)}, {v(SA+i)}, {v(SA+i+1)}")
    p(f"v_max_f32 {v(T_)}, {v(T_)}, {v(SA+15)}")
    p(f"v_mov_b32 {v(CV_)}, {v(T_)}")
    p("s_nop 1")
    p(f"v_permlane32_swap_b32 {v(T_)}, {v(CV_)}")
    p(f"v_max_f32 {v(CV_)}, {v(T_)}, {v(CV_)}")
    for i in range(16): p(f"v_sub_f32 {v(NEGM+i)}, 0, {v(CV_)}")
    for i in range(16): p(f"v_sub_f32 {v(SA+i)}, {v(SA+i)}, {v(CV_)}")
    p(f"v_mov_b32 {v(CV_)}, 0")
    p("s_branch A_ENTRY")
    ORDER = "w0 Y S0 r0 e3 O1p r1 e3 LS e2 S1 r2 c4 e2 O0 r3 e3 X e3 c4"
    LS = f"v_smfmac_f32_16x16x64_bf16 {v(L,4)}, {v(ONES,4)}, {v(P0,8)}, {v(IDX)}"
    def step(F, Sc, Sn, Fn, u, extra=None, head=None):
        e = 0; c = 0
        for t in ORDER.split():
            if t == "S0":
                if u is not None: p(mf32(Sn, F, Q, NEGM))
            elif t == "S1":
                if u is not None: p(mf32(Sn, F+4, Q+4, Sn))
            elif t == "O0": p(mf32(O, F+8, P0, O))
            elif t == "O1p": p(mf32(O, Fn+12, P1, O))
            elif t == "X":
                if extra: extra()
            elif t == "Y":
                if head: head()
            elif t == "LS": p(LS)
            elif t[0] == "e":
                for _ in range(int(t[1:])): p(f"v_exp_f32 {v(Sc+e)}, {v(Sc+e)}"); e += 1
            elif t[0] == "c":
                for _ in range(int(t[1:])): p(f"v_cvt_pk_bf16_f32 {v(P0+c)}, {v(Sc+2*c)}, {v(Sc+2*c+1)}"); c += 1
            elif t[0] == "r":
                if u is not None:
                    j = int(t[1:])
                    if j >= 2: p(f"ds_read_b128 {v(Fn+4*j,4)}, {v(VC)} offset:{8192+u*2048+(j-2)*1024}")
                    elif u < 3: p(f"ds_read_b128 {v(Fn+4*j,4)}, {v(VC)} offset:{(u+1)*2048+j*1024}")
                    else: p(f"ds_read_b128 {v(Fn+4*j,4)}, {v(VN)} offset:{j*1024}")
            elif t[0] == "w": p(f"s_waitcnt lgkmcnt({t[1:]})")
    def arrive():
        p("s_mov_b64 exec, 1")
        p(f"ds_add_u32 {v(VP)}, {v(ONE)}")
        p("s_mov_b64 exec, -1")
        if opt("dyn", 0):
            p(f"v_xor_b32 {v(CV_)}, 16, {v(VP)}")
            p(f"ds_read_b32 {v(CV_)}, {v(CV_)}")
    def lead():
        p(f"v_readfirstlane_b32 s10, {v(CV_)}")
        p("s_add_u32 s10, s10, 2")
        p("s_cmp_gt_u32 s25, s10")
        p("s_cselect_b32 s23, 1, 0")
    def peek():
        p(f"ds_read_b32 {v(CV_)}, {v(CA)} offset:{C_KVL}")
        p(f"v_add_u32 {v(VN)}, s22, v1")
        p("s_add_u32 s22, s22, 16384")
        p(f"s_cmp_ge_u32 s22, {RING}")
        p("s_cselect_b32 s22, 0, s22")
    def chk():
        p.label("A_CHK")
        p(f"v_cmp_gt_u32 vcc, s25, {v(CV_)}")
        p("s_cbranch_vccnz A_SPIN")
    def flip():
        p(f"v_mov_b32 {v(VC)}, {v(VN)}")
        p("s_add_u32 s25, s25, 1")
    LAD = [int(c) for c in OPT.get("lad", "3210")]
    LAD2 = [int(c) for c in OPT.get("lad2", OPT.get("lad", "3210"))]
    DYN = opt("dyn", 0)
    def prio(i):
        p(f"s_setprio {LAD[i]}")
        if LAD2[i] != LAD[i]:
            p("s_cmp_eq_u32 s23, 0")
            p(f"s_cbranch_scc1 A_PR{i}")
            p(f"s_setprio {LAD2[i]}")
            p.label(f"A_PR{i}")
    p.label("A_SPIN")
    bail(p)
    p("s_sleep 1")
    p(f"ds_read_b32 {v(CV_)}, {v(CA)} offset:{C_KVL}")
    p("s_waitcnt lgkmcnt(0)")
    p("s_branch A_CHK")
    p.pads(0)
    if opt("al2", -1) >= 0:
        p(".p2align 6")
        for _ in range(opt("al2")): p("s_nop 0")
    p.label("A_LOOP")
    prio(0)
    step(F1, SB, SA, F0, 0, extra=arrive)
    p.label("A_ENTRY")
    prio(1)
    step(F0, SA, SB, F1, 1, extra=lead if opt("dyn", 0) else None)
    prio(2)
    step(F1, SB, SA, F0, 2, extra=peek)
    prio(3)
    step(F0, SA, SB, F1, 3, extra=flip, head=chk)
    if STAMP:
        for (n_, i_) in ((3, 4), (4, 5), (6, 6), (10, 7)):
            p(f"s_cmp_lg_u32 s25, {n_}")
            p(f"s_cbranch_scc1 A_ST{n_}")
            stamp(p, i_)
            p.label(f"A_ST{n_}")
    p("s_cmp_lt_u32 s25, 18")
    p("s_cbranch_scc1 A_LOOP")
    p.pads(PADN)
    step(F1, SB, SA, F0, None, extra=arrive)
    p("s_nop 1")
    p(mf32(O, F1+12, P1, O))
    p(LS)
    stamp(p, 8)
    p("v_and_b32 v2, 256, v1")
    p("v_cmp_eq_u32 vcc, 0, v2")
    p("s_lshl_b32 s10, s28, 16")
    p("s_lshl_b32 s11, s29, 11")
    p("s_add_u32 s10, s10, s11")
    p("s_nop 3")
    p(f"s_add_u32 s35, s10, {WS_O}")
    p(f"s_mov_b32 s11, {f32bits(2.0**100)}")
    p("s_nop 0")
    p(f"v_add_f32 {v(L)}, {v(L)}, {v(L+1)}")
    p(f"v_add_f32 {v(L+2)}, {v(L+2)}, {v(L+3)}")
    p(f"v_cndmask_b32 v2, {v(L+2)}, {v(L)}, vcc")
    p(f"v_add_f32 v3, abs({v(O)}), v2")
    for i in range(1, 16): p(f"v_add_f32 v3, abs({v(O+i)}), v3")
    p("v_cmp_ngt_f32 vcc, s11, v3")
    if opt("forcefb"): p("s_branch A_FALLBACK")
    p("s_cbranch_vccnz A_FALLBACK")
    p.label("A_FIN")
    p("v_rcp_f32 v2, v2")
    p("s_nop 0")
    for j in range(2):
        for i in range(8 * j, 8 * j + 8): p(f"v_mul_f32 {v(O+i)}, v2, {v(O+i)}")
        for i in range(4 * j, 4 * j + 4): p(f"v_cvt_pk_bf16_f32 {v(P0+i)}, {v(O+2*i)}, {v(O+2*i+1)}")
        p(f"buffer_store_dwordx4 {v(P0+4*j,4)}, v1, s[12:15], s35 offen offset:{1024*j}{SC}")
    OB, WF, AC3 = 76, 8, 40
    p(f"s_load_dwordx2 s[36:37], s[0:1], {D_OUT}")
    p("s_setprio 0")
    p("s_and_b32 s10, s26, 14")
    p(f"s_mul_i32 s34, s10, {FLS}")
    p(f"s_add_u32 s34, s34, {FL_O}")
    p("s_lshl_b32 s10, s29, 3")
    p("s_add_u32 s34, s34, s10")
    p("v_lshrrev_b32 v0, 4, v1")
    p(f"v_mul_u32_u24 v72, {FLS}, v0")
    p("s_waitcnt vmcnt(0)")
    p("s_mov_b64 exec, 1")
    p(f"ds_add_rtn_u32 {v(CV_)}, {v(CA)}, {v(ONE)} offset:{C_OARR}")
    p("s_waitcnt lgkmcnt(0)")
    p(f"v_cmp_eq_u32 vcc, 7, {v(CV_)}")
    p("s_cbranch_vccz G_NOFLAG")
    p("s_mov_b64 exec, 3")
    flag_publish(p, 2, 72, "s34")
    p.label("G_NOFLAG")
    p("s_mov_b64 exec, -1")
    stamp(p, 9)
    if opt("p3w", 4) == 4:
        p("s_cmp_ge_u32 s3, 4")
        p("s_cbranch_scc1 G_FIN")
        OB, WF, AC3 = 56, 8, 24
        tile3(p)
        p("s_lshl_b32 s28, s38, 2")
        p("s_add_u32 s28, s28, s3")
        p("s_lshl_b32 s10, s28, 16")
        p(f"s_add_u32 s10, s10, {WS_O}")
        srd(p, 16, 98, 99, 65536, off="s10")
        srd(p, 20, 36, 37, 8 * MB)
        p("v_add_u32 v2, 4096, v1")
        p("v_lshrrev_b32 v6, 5, v0")
        p("v_lshlrev_b32 v5, 9, v6")
        p("v_bfe_u32 v7, v0, 2, 2")
        p("v_lshl_add_u32 v5, v7, 6, v5")
        p("v_bfe_u32 v7, v0, 4, 1")
        p("v_lshl_add_u32 v5, v7, 5, v5")
        p("v_and_b32 v7, 3, v0")
        p("v_lshl_add_u32 v5, v7, 3, v5")
        for i in range(AC3, AC3 + 32): p(f"v_mov_b32 {v(i)}, 0")
        p("v_and_b32 v7, 31, v0")
        p("v_lshlrev_b32 v7, 12, v7")
        p("v_lshl_add_u32 v7, v6, 4, v7")
        p("s_lshl_b32 s30, s28, 17")
        p("s_lshl_b32 s11, s39, 7")
        p("s_add_u32 s30, s30, s11")
        p("s_add_u32 s30, s30, 2048")
        p("s_mov_b32 s24, 0")
        p("s_mov_b32 s25, 0")
        p(f"s_mov_b32 s31, {WTAB}")
        p("s_mov_b32 s29, 3")
        def acq(u, j):
            p("s_andn2_b32 s10, s25, s24")
            p(f"s_cbranch_scc1 G_AQ{u}b")
            p.label(f"G_AQ{u}a")
            p(f"ds_read_b32 {v(CV_)}, {v(CA)} offset:{C_OMASK}")
            p("s_waitcnt lgkmcnt(0)")
            p(f"v_readfirstlane_b32 s25, {v(CV_)}")
            p("s_andn2_b32 s10, s25, s24")
            p(f"s_cbranch_scc1 G_AQ{u}b")
            bail(p)
            p("s_sleep 2")
            p(f"s_branch G_AQ{u}a")
            p.label(f"G_AQ{u}b")
            p("s_ff1_i32_b32 s11, s10")
            p("s_bitset1_b32 s24, s11")
            p("s_lshl_b32 s10, s11, 11")
            p("s_lshr_b32 s11, s31, s11")
            p("s_and_b32 s11, s11, 15")
            p(f"s_lshl_b32 s{40+j}, s11, 14")
            for n in range(8): p(f"buffer_load_dwordx4 {v(OB+32*j+4*n,4)}, {v(1+(n>>2))}, s[16:19], s10 offen offset:{1024*(n&3)}{SC}")
        def rd(b, ks, va): return [f"ds_read_b64_tr_b16 {v(WF+8*b+4*nt+2*h,2)}, {va} offset:{ks*2048+h*1024+nt*256}" for nt in range(2) for h in range(2)]
        def group(j, rest, nxt):
            va, vb = f"v{3+j}", f"v{4-j}"
            if nxt: p(f"v_add_u32 {vb}, s{41-j}, v5")
            for ks in range(8):
                R = rd((ks + 1) & 1, ks + 1, va) if ks < 7 else (rd(0, 0, vb) if nxt else [])
                M = [mf32(AC3+16*nt, WF+8*(ks&1)+4*nt, OB+32*j+4*ks, AC3+16*nt) for nt in range(2)]
                p(f"s_waitcnt vmcnt({rest + 7 - ks}) lgkmcnt(2)")
                p(M[0])
                for r_ in R[:2]: p(r_)
                p(f"s_waitcnt lgkmcnt({2 if R else 0})")
                p(M[1])
                for r_ in R[2:]: p(r_)
        acq(0, 0)
        stamp(p, 10)
        p("s_setprio 3")
        p("v_add_u32 v3, s40, v5")
        for r_ in rd(0, 0, "v3"): p(r_)
        acq(1, 1)
        p.label("G_LOOP")
        group(0, 8, True); acq(2, 0)
        group(1, 8, True); acq(3, 1)
        p("s_sub_u32 s29, s29, 1")
        p("s_cmp_lg_u32 s29, 0")
        p("s_cbranch_scc1 G_LOOP")
        group(0, 8, True)
        group(1, 0, False)
        stamp(p, 11)
        p("s_nop 9")
        for nt in range(2):
            if nt: p("s_nop 0")
            for i in range(8): p(f"v_cvt_pk_bf16_f32 {v(WF+8*nt+i)}, {v(AC3+16*nt+2*i)}, {v(AC3+16*nt+2*i+1)}")
            p("s_nop 1")
            for pr in range(2):
                b_ = WF + 8 * nt + 4 * pr
                p(f"v_permlane32_swap_b32 {v(b_)}, {v(b_+2)}")
                p(f"v_permlane32_swap_b32 {v(b_+1)}, {v(b_+3)}")
                p(f"buffer_store_dwordx4 {v(b_,4)}, v7, s[20:23], s30 offen offset:{64*nt+32*pr}")
        p.label("G_FIN")
    else:
        tile3(p)
        p("s_and_b32 s28, s3, 3")
        p("s_lshl_b32 s10, s38, 2")
        p("s_add_u32 s28, s28, s10")
        p("s_lshr_b32 s29, s3, 2")
        p("s_lshl_b32 s10, s28, 16")
        p("s_lshl_b32 s11, s29, 12")
        p("s_add_u32 s10, s10, s11")
        p(f"s_add_u32 s10, s10, {WS_O}")
        srd(p, 16, 98, 99, 65536, off="s10")
        srd(p, 20, 36, 37, 8 * MB)
        p("v_lshrrev_b32 v6, 5, v0")
        p("v_lshlrev_b32 v5, 9, v6")
        p("v_bfe_u32 v7, v0, 2, 2")
        p("v_lshl_add_u32 v5, v7, 6, v5")
        p("v_bfe_u32 v7, v0, 4, 1")
        p("v_lshl_add_u32 v5, v7, 5, v5")
        p("v_and_b32 v7, 3, v0")
        p("v_lshl_add_u32 v5, v7, 3, v5")
        p("s_lshl_b32 s10, s29, 13")
        p("v_add_u32 v5, s10, v5")
        for i in range(AC3, AC3 + 32): p(f"v_mov_b32 {v(i)}, 0")
        p("v_and_b32 v73, 31, v0")
        p("v_lshlrev_b32 v73, 12, v73")
        p("v_lshl_add_u32 v73, v6, 4, v73")
        p("s_lshl_b32 s10, s3, 12")
        p("v_add_u32 v74, s10, v1")
        p("v_xor_b32 v75, 16384, v74")
        p("s_lshl_b32 s30, s28, 17")
        p("s_lshl_b32 s11, s39, 7")
        p("s_add_u32 s30, s30, s11")
        p("s_lshl_b32 s11, s29, 6")
        p("s_add_u32 s30, s30, s11")
        p("s_add_u32 s30, s30, 2048")
        p("s_mov_b32 s24, 0")
        p("s_mov_b32 s25, 0")
        p(f"s_mov_b32 s31, {WTAB}")
        def acq(u):
            j = u % 3
            p("s_andn2_b32 s10, s25, s24")
            p(f"s_cbranch_scc1 G_AQ{u}b")
            p.label(f"G_AQ{u}a")
            p(f"ds_read_b32 {v(CV_)}, {v(CA)} offset:{C_OMASK}")
            p("s_waitcnt lgkmcnt(0)")
            p(f"v_readfirstlane_b32 s25, {v(CV_)}")
            p("s_andn2_b32 s10, s25, s24")
            p(f"s_cbranch_scc1 G_AQ{u}b")
            bail(p)
            p("s_sleep 2")
            p(f"s_branch G_AQ{u}a")
            p.label(f"G_AQ{u}b")
            p("s_ff1_i32_b32 s11, s10")
            p("s_bitset1_b32 s24, s11")
            p("s_lshl_b32 s10, s11, 11")
            p("s_lshr_b32 s11, s31, s11")
            p("s_and_b32 s11, s11, 15")
            p(f"s_lshl_b32 s{40+j}, s11, 14")
            for n in range(4): p(f"buffer_load_dwordx4 {v(OB+16*j+4*n,4)}, v1, s[16:19], s10 offen offset:{1024*n}{SC}")
        def rdw(u):
            p(f"v_add_u32 v4, s{40+u%3}, v5")
            for ks in range(4):
                for nt in range(2):
                    for h in range(2): p(f"ds_read_b64_tr_b16 {v(WF+8*ks+4*nt+2*h,2)}, v4 offset:{ks*2048+h*1024+nt*256}")
        acq(0)
        stamp(p, 10)
        rdw(0); acq(1); acq(2)
        for u in range(8):
            rest = 4 * min(2, 7 - u)
            for ks in range(4):
                p(f"s_waitcnt vmcnt({rest + 3 - ks}) lgkmcnt({12 - 4*ks})")
                for nt in range(2): p(mf32(AC3+16*nt, WF+8*ks+4*nt, OB+16*(u%3)+4*ks, AC3+16*nt))
            if u < 7: rdw(u + 1)
            if u + 3 < 8: acq(u + 3)
        stamp(p, 11)
        p("s_barrier")
        p("s_cmp_eq_u32 s29, 0")
        p("s_cbranch_scc1 G_X0")
        p("s_nop 7")
        for j in range(4): p(f"ds_write_b128 v74, {v(AC3+4*j,4)} offset:{1024*j}")
        for i in range(16): p(f"v_mov_b32 {v(AC3+i)}, {v(AC3+16+i)}")
        p("s_branch G_X1")
        p.label("G_X0")
        p("s_nop 8")
        for j in range(4): p(f"ds_write_b128 v74, {v(AC3+16+4*j,4)} offset:{1024*j}")
        p.label("G_X1")
        p("s_waitcnt lgkmcnt(0)")
        p("s_barrier")
        for j in range(4): p(f"ds_read_b128 {v(AC3+16+4*j,4)}, v75 offset:{1024*j}")
        for pr in range(2):
            p(f"s_waitcnt lgkmcnt({2-2*pr})")
            for i in range(8 * pr, 8 * pr + 8): p(f"v_add_f32 {v(AC3+i)}, {v(AC3+i)}, {v(AC3+16+i)}")
            b = WF + 4 * pr
            for i in range(4): p(f"v_cvt_pk_bf16_f32 {v(b+i)}, {v(AC3+8*pr+2*i)}, {v(AC3+8*pr+2*i+1)}")
            p("s_nop 1")
            p(f"v_permlane32_swap_b32 {v(b)}, {v(b+2)}")
            p(f"v_permlane32_swap_b32 {v(b+1)}, {v(b+3)}")
            p(f"buffer_store_dwordx4 {v(b,4)}, v73, s[20:23], s30 offen offset:{32*pr}")
    stamp(p, 12)
    stamp_flush(p)
    p.pads(0)
    p.label("L_END")
    p("s_endpgm")
    p.label("A_FALLBACK")
    p(f"ds_read_b32 {v(CV_)}, {v(CA)} offset:{C_GALL}")
    p("s_waitcnt lgkmcnt(0)")
    p(f"v_readfirstlane_b32 s31, {v(CV_)}")
    M_, AL = NEGM, NEGM + 1
    for i in range(16): p(f"v_mov_b32 {v(O+i)}, 0")
    p("v_mov_b32 v2, 0")
    p(f"v_mov_b32 {v(M_)}, 0xff7fffff")
    p("s_lshl_b32 s30, s29, 18")
    p("s_mov_b32 s25, 0")
    p.label("A_FBL")
    p("s_lshr_b32 s10, s25, 2")
    p("s_bitcmp1_b32 s31, s10")
    p(f"s_cselect_b32 s11, {LOC}, 0")
    p("s_lshl_b32 s10, s10, 14")
    p("s_add_u32 s10, s10, s11")
    p("s_and_b32 s11, s25, 3")
    p("s_lshl_b32 s11, s11, 11")
    p("s_add_u32 s10, s10, s11")
    p("s_add_u32 s10, s10, s30")
    p("s_add_u32 s11, s10, 8192")
    for j in range(2): p(f"buffer_load_dwordx4 {v(F0+4*j,4)}, v1, s[12:15], s10 offen offset:{1024*j}{SC}")
    for j in range(2): p(f"buffer_load_dwordx4 {v(F0+8+4*j,4)}, v1, s[12:15], s11 offen offset:{1024*j}{SC}")
    p("s_waitcnt vmcnt(0)")
    p(mf32(SA, F0, Q, "0"))
    p(mf32(SA, F0+4, Q+4, SA))
    p("s_nop 15")
    p(f"v_max3_f32 v3, {v(SA)}, {v(SA+1)}, {v(M_)}")
    for i in range(2, 16, 2): p(f"v_max3_f32 v3, v3, {v(SA+i)}, {v(SA+i+1)}")
    p(f"v_mov_b32 {v(SB)}, v3")
    p("s_nop 1")
    p(f"v_permlane32_swap_b32 v3, {v(SB)}")
    p(f"v_max_f32 v3, v3, {v(SB)}")
    p(f"v_sub_f32 {v(AL)}, {v(M_)}, v3")
    p(f"v_exp_f32 {v(AL)}, {v(AL)}")
    p(f"v_mov_b32 {v(M_)}, v3")
    for i in range(16): p(f"v_sub_f32 {v(SA+i)}, {v(SA+i)}, v3")
    for i in range(16): p(f"v_exp_f32 {v(SA+i)}, {v(SA+i)}")
    p(f"v_mul_f32 v2, v2, {v(AL)}")
    for i in range(16): p(f"v_mul_f32 {v(O+i)}, {v(O+i)}, {v(AL)}")
    for i in range(16): p(f"v_add_f32 v2, v2, {v(SA+i)}")
    for i in range(8): p(f"v_cvt_pk_bf16_f32 {v(P0+i)}, {v(SA+2*i)}, {v(SA+2*i+1)}")
    p("s_nop 1")
    p(mf32(O, F0+8, P0, O))
    p(mf32(O, F0+12, P1, O))
    p("s_nop 15")
    p("s_add_u32 s25, s25, 1")
    p("s_cmp_lt_u32 s25, 64")
    p("s_cbranch_scc1 A_FBL")
    p("v_mov_b32 v3, v2")
    p("s_nop 1")
    p("v_permlane32_swap_b32 v2, v3")
    p("v_add_f32 v2, v2, v3")
    p("s_branch A_FIN")

    p.label("L_HELPERS")
    p("s_cmp_ge_u32 s3, 9")
    p("s_cbranch_scc1 L_PARTA")
    emit_w8(p)
    p.label("L_PARTA")
    emit_partA(p)

def emit_w8(p):
    p(f"s_load_dwordx2 s[36:37], s[0:1], {B_WO}")
    if opt("cpf", 1):
        p("s_getpc_b64 s[40:41]")
        p.label("W8_PC")
        p(f"s_sub_u32 s40, s40, W8_PC-{NAME}")
        p("s_subb_u32 s41, s41, 0")
        p("v_lshlrev_b32 v21, 7, v0")
        for j in range(2):
            p(f"v_add_u32 v22, {8192*j}, v21")
            p(f"v_min_u32 v22, L_CODE_END-{NAME}-4, v22")
            p(f"global_load_dword v{23+j}, v22, s[40:41]")
    p("v_and_b32 v8, 3, v0")
    p("v_lshlrev_b32 v8, 2, v8")
    p(f"v_add_u32 v8, {CNT}, v8")
    p("v_and_b32 v9, 7, v0")
    p("v_lshlrev_b32 v9, 2, v9")
    p(f"v_add_u32 v9, {CNT}, v9")
    p(f"v_mov_b32 v20, {CNT}")
    p("s_waitcnt lgkmcnt(0)")
    p("s_add_u32 s94, s96, 0x1000000")
    p("s_addc_u32 s95, s97, 0")
    p("v_lshlrev_b32 v1, 4, v0")
    p("v_and_b32 v6, 15, v0")
    p("v_lshlrev_b32 v6, 3, v6")
    srd(p, 12, 98, 99, WS_SIZE)
    p(f"s_mul_i32 s34, s27, {FLS}")
    p(f"s_add_u32 s34, s34, {FL_KV}")
    p("s_and_b32 s30, s26, 1")
    p("s_lshl_b32 s10, s27, 1")
    p("s_add_u32 s30, s30, s10")
    p("s_lshl_b32 s30, s30, 18")
    p("s_xor_b32 s31, s26, 1")
    p("s_mov_b32 s47, 0")
    local_flag_base(p, 35)
    p("s_mov_b32 s48, 0")
    p("s_mov_b32 s49, 0")
    p("s_lshl_b32 s10, s26, 3")
    p("s_add_u32 s10, s10, 128")
    p("v_mov_b32 v17, s10")
    for _ in range(4): p("s_barrier")
    p("s_mov_b64 exec, 1")
    flag_publish(p, 18, 17, "s35", SC="")
    p("s_mov_b64 exec, -1")
    p("v_and_b32 v16, 31, v0")
    p("v_lshlrev_b32 v16, 3, v16")
    p("s_lshl_b32 s44, 1, s26")
    p("s_mov_b32 s45, 0")
    p("s_mov_b32 s46, 0x4000")
    p("s_mov_b32 s21, 0")
    p("s_mov_b32 s25, 1")
    tile3(p)
    p("v_lshrrev_b32 v5, 5, v0")
    p("v_lshlrev_b32 v5, 2, v5")
    p("v_bfe_u32 v7, v0, 2, 2")
    p("v_add_u32 v5, v5, v7")
    p("v_lshlrev_b32 v5, 11, v5")
    p("v_bfe_u32 v7, v0, 4, 1")
    p("v_lshl_add_u32 v5, v7, 6, v5")
    p("v_and_b32 v7, 3, v0")
    p("v_lshl_add_u32 v10, v7, 4, v5")
    for jj in range(1, 4): p(f"v_add_u32 {v(10+jj)}, {jj*(16384-1024)}, v10")
    p("s_lshl_b32 s11, s39, 7")
    p(f"s_sub_u32 s18, {2*MB}, s11")
    p("s_add_u32 s16, s36, s11")
    p("s_addc_u32 s17, s37, 0")
    p("s_mov_b32 s19, 0x20000")
    p("s_setprio 3")
    for _ in range(8): p("s_barrier")
    p(f"buffer_load_dwordx2 v[18:19], v6, s[12:15], s35 offen offset:128{SC}")
    for _ in range(4): p("s_barrier")
    p("s_waitcnt vmcnt(0)")
    flag_test(p, 18)
    p("s_cmp_eq_u64 vcc, -1")
    p("s_cselect_b32 s50, 1, 2")
    if opt("forceg"): p("s_mov_b32 s50, 2")
    p("v_mov_b32 v3, s50")
    p(f"ds_write_b32 v20, v3 offset:{C_CPY}")
    lds_wait_ge(p, "W8_E2", 20, C_KVST, 4, 3, sleep=1)
    stamp(p, 1)
    p.pads(opt("pada"))
    p.label("W8_LOOP")
    p("s_cmp_eq_u32 s47, 0")
    p("s_cbranch_scc1 W8_POLL")
    p("s_andn2_b32 s10, s45, s44")
    p("s_cbranch_scc1 W8_HAVE")
    p.label("W8_POLL")
    p(f"buffer_load_dwordx2 v[18:19], v6, s[12:15], s35 offen{SC}")
    p("s_add_u32 s49, s49, 1")
    bail(p)
    p("s_cmp_eq_u32 s50, 1")
    p("s_cbranch_scc1 W8_PL")
    p(f"buffer_load_dwordx2 v[14:15], v6, s[12:15], s34 offen{SC}")
    p("s_waitcnt vmcnt(0)")
    flag_test(p, 14)
    p("s_and_b32 s45, vcc_lo, 0xffff")
    p("s_sub_u32 s46, s46, 1")
    p("s_cselect_b32 s45, 0xffff, s45")
    p.label("W8_PL")
    p("v_mov_b32 v3, s25")
    p("s_waitcnt vmcnt(0)")
    p(f"ds_write_b32 v20, v3 offset:{C_KVL}")
    if STAMP:
        p("s_cmp_lg_u32 s49, 1")
        p("s_cbranch_scc1 W8_STP")
        stamp(p, 6)
        p.label("W8_STP")
    flag_test(p, 18)
    p("s_and_b32 s48, vcc_lo, 0xffff")
    p("s_or_b32 s45, s45, s48")
    p("s_cmp_lg_u32 s47, 0")
    p("s_cbranch_scc1 W8_QD")
    p("s_bitcmp1_b32 s45, s31")
    p("s_cselect_b32 s47, 2, 0")
    p("s_bitcmp1_b32 s48, s31")
    p("s_cselect_b32 s47, 1, s47")
    p("v_mov_b32 v3, s47")
    p(f"ds_write_b32 v20, v3 offset:{C_QRDY}")
    p.label("W8_QD")
    p("s_andn2_b32 s10, s45, s44")
    p("s_cbranch_scc1 W8_HAVE")
    p(f"s_sleep {opt('kslp', 2)}")
    p("s_branch W8_POLL")
    p.label("W8_NOSLOT")
    p("v_mov_b32 v3, s25")
    p("s_waitcnt vmcnt(0)")
    p(f"ds_write_b32 v20, v3 offset:{C_KVL}")
    bail(p)
    p("s_sleep 4")
    p("s_branch W8_LOOP")
    p.label("W8_HAVE")
    p("s_sub_u32 s24, s25, 5")
    p(f"ds_read_b32 v3, v9 offset:{C_PROG}")
    p("s_waitcnt lgkmcnt(0)")
    p("v_cmp_gt_i32 vcc, s24, v3")
    p("s_cbranch_vccnz W8_NOSLOT")
    p("s_lshr_b32 s11, s10, s26")
    p("s_cselect_b32 s11, s11, s10")
    p("s_cselect_b32 s20, s26, 0")
    p("s_ff1_i32_b32 s11, s11")
    p("s_add_u32 s11, s11, s20")
    p("s_bitset1_b32 s44, s11")
    p("s_lshl_b32 s20, s11, 14")
    p("s_add_u32 s20, s20, s30")
    p("s_bitcmp1_b32 s48, s11")
    p(f"s_cselect_b32 s10, {LOC}, 0")
    p("s_add_u32 s20, s20, s10")
    for q_ in range(4):
        p("s_mov_b32 m0, s21")
        p("s_add_u32 s21, s21, 4096")
        for j in range(4): p(f"buffer_load_dwordx4 v1, s[12:15], s20 offen offset:{1024*j}{SC} lds")
        p("s_add_u32 s20, s20, 4096")
    p(f"s_cmp_ge_u32 s21, {RING}")
    p("s_cselect_b32 s21, 0, s21")
    p("v_mov_b32 v3, s25")
    p("s_add_u32 s25, s25, 1")
    p("s_waitcnt vmcnt(16)")
    p(f"ds_write_b32 v20, v3 offset:{C_KVL}")
    if STAMP:
        for (n_, i_) in ((2, 2), (3, 3), (6, 4)):
            p(f"s_cmp_lg_u32 s25, {n_}")
            p(f"s_cbranch_scc1 W8_ST{n_}")
            stamp(p, i_)
            p.label(f"W8_ST{n_}")
    p("s_cmp_lt_u32 s25, 16")
    p("s_cbranch_scc1 W8_LOOP")
    p("s_bitset1_b32 s48, s26")
    p("v_mov_b32 v7, s48")
    p(f"ds_write_b32 v20, v7 offset:{C_GALL}")
    p("v_mov_b32 v3, 17")
    p("s_waitcnt vmcnt(0)")
    p(f"ds_write_b32 v20, v3 offset:{C_KVL}")
    stamp(p, 5)
    p(f"s_mul_i32 s34, s38, {FLS}")
    p(f"s_add_u32 s34, s34, {FL_O}")
    order = [(0, 11, 0), (1, 12, 0), (2, 13, 0), (3, 13, 4), (4, 13, 4), (5, 13, 4), (6, 14, 4), (7, 15, 4)]
    pack = lambda f: sum(f(o) << (4 * i) for i, o in enumerate(order))
    p(f"s_mov_b32 s41, {WTAB}")
    p(f"s_mov_b32 s42, {pack(lambda o: o[1] - 8)}")
    p("s_mov_b32 s25, 0")
    p("s_mov_b32 s44, 0")
    p("s_mov_b32 s46, 0x4000")
    p.label("W8_WLOOP")
    p("s_cmp_lg_u32 s25, 3")
    p("s_cbranch_scc1 W8_WNC")
    lds_wait_ge(p, "W8_CV", 20, C_A2, 4, 3, sleep=4)
    p.label("W8_WNC")
    p("s_and_b32 s24, s42, 15")
    p("s_add_u32 s24, s24, 8")
    p(f"ds_read_b32 v3, v9 offset:{C_PROG}")
    p("s_waitcnt lgkmcnt(0)")
    p("v_cmp_gt_i32 vcc, s24, v3")
    p("s_cbranch_vccnz W8_WSKIP")
    p("s_lshl_b32 s20, s25, 18")
    p("s_and_b32 s21, s41, 15")
    p("s_lshl_b32 s21, s21, 14")
    p("s_lshl_b32 s10, s25, 2")
    p("s_bitset1_b32 s44, s10")
    for q_ in range(4):
        p("s_mov_b32 m0, s21")
        p("s_add_u32 s21, s21, 4096")
        for jj in range(4): p(f"buffer_load_dwordx4 {v(10+jj)}, s[16:19], s20 offen offset:{1024*jj} lds")
        p("s_add_u32 s20, s20, 65536")
    for r_ in (41, 42): p(f"s_lshr_b32 s{r_}, s{r_}, 4")
    p("s_waitcnt vmcnt(32)")
    p("s_add_u32 s25, s25, 1")
    p("s_cmp_lt_u32 s25, 8")
    p("s_cbranch_scc1 W8_WLOOP")
    lds_wait_ge(p, "W8_OW", 20, C_OARR, opt("ostart", 4), 3, sleep=4)
    p.label("W8_WSKIP")
    p("s_cmp_lt_u32 s25, 8")
    p("s_cbranch_scc1 W8_WNEXT")
    p.label("W8_OPOLL")
    p(f"buffer_load_dwordx2 v[14:15], v16, s[12:15], s34 offen{SC}")
    p("s_waitcnt vmcnt(0)")
    flag_test(p, 14)
    p("s_lshr_b32 s10, vcc_lo, 1")
    p("s_and_b32 s45, vcc_lo, s10")
    p("s_lshr_b32 s10, s45, 2")
    p("s_and_b32 s45, s45, s10")
    p("s_sub_u32 s46, s46, 1")
    p("s_cselect_b32 s45, -1, s45")
    p("s_and_b32 s45, s45, s44")
    lds_wait_ge(p, "W8_OX", 20, C_OARR, 8, 3, sleep=1)
    p("v_mov_b32 v3, s45")
    p(f"ds_write_b32 v20, v3 offset:{C_OMASK}")
    p("s_cmp_eq_u32 s45, 0x11111111")
    p("s_cbranch_scc1 W8_DONE")
    p.label("W8_WNEXT")
    bail(p)
    p(f"s_sleep {opt('oslp', 8)}")
    p("s_cmp_lt_u32 s25, 8")
    p("s_cbranch_scc1 W8_WLOOP")
    p("s_branch W8_OPOLL")
    p.pads(0)
    p.label("W8_DONE")
    stamp(p, 12)
    stamp_flush(p)
    p("s_endpgm")

def emit_partA(p):
    pre = "PA"
    nst = [0]
    def st2(L_):
        nst[0] += 1
        p("s_cmp_eq_u32 s9, 1")
        p(f"s_cbranch_scc1 PA_SP{nst[0]}")
        for x in L_: p(x + (SC if x.startswith("buffer") else ""))
        p(f"s_branch PA_SE{nst[0]}")
        p.label(f"PA_SP{nst[0]}")
        for x in L_: p(x)
        p.label(f"PA_SE{nst[0]}")
    p(f"s_load_dwordx8 s[36:43], s[0:1], {A_Q}")
    p(f"s_load_dwordx4 s[44:47], s[0:1], {A_SSMK}")
    p(f"s_load_dwordx4 s[48:51], s[0:1], {B_WO}")
    p("s_sub_u32 s3, s3, 9")
    p("s_lshl_b32 s56, s27, 1")
    p("s_lshr_b32 s10, s3, 1")
    p("s_add_u32 s56, s56, s10")
    p("s_lshl_b32 s56, s56, 4")
    p("s_add_u32 s56, s56, s26")
    p("s_lshl_b32 s56, s56, 14")
    p("s_and_b32 s10, s3, 1")
    p("s_lshl_b32 s10, s10, 13")
    p("s_add_u32 s56, s56, s10")
    p("s_lshl_b32 s57, s27, 4")
    p("s_add_u32 s57, s57, s26")
    p("s_lshl_b32 s57, s57, 13")
    p("s_lshl_b32 s10, s3, 11")
    p("s_add_u32 s57, s57, s10")
    p(f"s_add_u32 s57, s57, {WS_QX}")
    p(f"s_mul_i32 s101, s27, {FLS}")
    p(f"s_add_u32 s101, s101, {FL_KV}")
    p("s_lshl_b32 s10, s26, 3")
    p("s_add_u32 s101, s101, s10")
    if opt("spf", 0):
        p("s_waitcnt lgkmcnt(0)")
        p("s_and_b32 s10, s27, 1")
        p("s_lshl_b32 s10, s10, 2")
        p("s_add_u32 s10, s10, s3")
        p("s_lshl_b32 s10, s10, 15")
        p("s_lshl_b32 s11, s26, 18")
        p("s_add_u32 s10, s10, s11")
        p("s_add_u32 s10, s10, 512")
        p("s_add_u32 s12, s4, s10")
        p("s_addc_u32 s13, s5, 0")
        p("s_lshl_b32 s10, s26, 2")
        p("s_add_u32 s10, s10, s3")
        p("s_add_u32 s10, s10, 256")
        p("s_mul_i32 s10, s10, 6144")
        p("s_lshl_b32 s11, s27, 7")
        p("s_add_u32 s10, s10, s11")
        p("s_add_u32 s14, s6, s10")
        p("s_addc_u32 s15, s7, 0")
        p("v_and_b32 v1, 3, v0")
        p("v_lshlrev_b32 v1, 2, v1")
        p(f"v_add_u32 v1, {CNT}, v1")
        p(f"s_mov_b32 s16, {4 - opt('spf')}")
        p.label("PA_SPF")
        lds_wait_ge(p, "PA_SPW", 1, C_LAND, "s16", 2, sleep=2)
        for hf in range(opt("sph", 1)):
            for r_ in range(16): p(f"s_load_dword s17, s[12:13], {r_*2048 + 64*hf}")
            for t_ in range(3): p(f"s_load_dword s17, s[14:15], {t_*2048 + 64*hf}")
        p("s_add_u32 s12, s12, 128")
        p("s_addc_u32 s13, s13, 0")
        p(f"s_add_u32 s14, s14, {64*6144}")
        p("s_addc_u32 s15, s15, 0")
        p("s_add_u32 s16, s16, 1")
        p(f"s_cmp_lt_i32 s16, {16 - opt('spf')}")
        p("s_cbranch_scc1 PA_SPF")
        p("s_waitcnt lgkmcnt(0)")
    local_flag_base(p, 8)
    p("s_add_u32 s8, s8, 256")
    p("s_mov_b32 s28, s27")
    p("s_lshl_b32 s35, s26, 3")
    p("s_lshl_b32 s29, s26, 2")
    p("s_add_u32 s29, s29, s3")
    p("s_lshl_b32 s27, s28, 6")
    p("s_add_u32 s27, s27, s29")
    p(f"s_mul_i32 s30, s3, {CV_STRIDE}")
    p(f"s_add_u32 s30, s30, {CV_BASE}")
    p("v_and_b32 v1, 7, v0")
    p("v_lshrrev_b32 v2, 3, v0")
    p("s_lshl_b32 s10, s29, 5")
    p("v_lshl_add_u32 v3, v2, 2, s10")
    p("s_lshl_b32 s11, s28, 7")
    p("v_lshl_add_u32 v4, v1, 4, s11")
    p("v_lshl_add_u32 v120, v3, 11, v4")
    p("v_lshl_add_u32 v122, v3, 12, v4")
    p("v_lshlrev_b32 v121, 11, v4")
    p("v_lshl_add_u32 v121, v2, 4, v121")
    p("s_lshr_b32 s31, s29, 4")
    p("s_lshl_b32 s31, s31, 10")
    p("s_and_b32 s26, s29, 7")
    p("s_lshl_b32 s26, s26, 7")
    p("s_add_u32 s31, s31, s26")
    p("s_and_b32 s26, s29, 8")
    p("s_add_u32 s31, s31, s26")
    p("v_add_u32 v121, s31, v121")
    p("v_and_b32 v123, 15, v0")
    p("v_lshlrev_b32 v123, 3, v123")
    p("v_lshlrev_b32 v124, 4, v0")
    p("v_and_b32 v1, 15, v0")
    p("v_lshrrev_b32 v2, 4, v0")
    p("v_lshl_add_u32 v3, v2, 3, s10")
    p("v_lshl_add_u32 v4, v1, 3, s11")
    p("v_lshl_add_u32 v9, v3, 11, v4")
    for j in range(3): p(f"v_add_u32 {v(6+j)}, {(j-3)*2048}, v9")
    for j in range(1, 4): p(f"v_add_u32 {v(9+j)}, {j*4096}, v9")
    p("v_lshlrev_b32 v13, 2, v4")
    p("v_lshrrev_b32 v14, 1, v4")
    p(f"v_mul_u32_u24 v14, {XRS}, v14")
    p("v_lshlrev_b32 v15, 1, v3")
    p("v_sub_u32 v15, 4080, v15")
    p("v_add_u32 v15, v15, v14")
    p("v_lshl_add_u32 v14, v2, 4, v14")
    p("s_lshl_b32 s33, s27, 12")
    p("s_mov_b32 s32, 0xffff0000")
    p(f"s_mul_i32 s34, s28, {FLS}")
    p(f"s_add_u32 s34, s34, {FL_A1}")
    p(f"s_mul_i32 s31, s27, {XRS}")
    p(f"s_add_u32 s31, s31, {WS_XR}")
    p("s_add_u32 s26, s31, 4096")
    p("v_and_b32 v1, 3, v0")
    p("v_lshlrev_b32 v1, 2, v1")
    p(f"v_add_u32 v1, {CNT}, v1")
    p("s_waitcnt lgkmcnt(0)")
    p("s_add_u32 s94, s96, 0x1000000")
    p("s_addc_u32 s95, s97, 0")
    srd(p, 12, 98, 99, WS_SIZE)
    srd(p, 16, 38, 39, 4 * MB)
    srd(p, 20, 40, 41, 4 * MB)
    srd(p, 52, 42, 43, 8192)
    if opt("tch", 0):
        p("v_min_u32 v4, 34, v0")
        p("s_lshl_b32 s10, s29, 5")
        p("s_sub_u32 s10, s10, 3")
        p("v_add_u32 v4, s10, v4")
        p("v_lshlrev_b32 v4, 11, v4")
        p("v_add_u32 v4, s11, v4")
        p(f"s_mul_i32 s10, s3, {opt('tchs', 1)}")
        p(f"s_add_u32 s10, s10, {opt('tch', 0)}")
        lds_wait_ge(p, "PA_T0", 1, C_LAND, "s10", 2, sleep=8)
        p("buffer_load_dword v116, v4, s[16:19], 0 offen")
        p("buffer_load_dword v117, v4, s[20:23], 0 offen")
    if opt("padn") or opt("pada"):
        p("s_cmp_lg_u32 s3, 0")
        p("s_cbranch_scc1 WP_END")
        lds_wait_ge(p, "PA_WP", 1, C_LAND, opt("padat", 8), 2, sleep=16)
        p("s_mov_b64 exec, 0")
        p("s_branch WP0")
        p.label("WP_END")
        p("s_mov_b64 exec, -1")
    if opt("tlb", 0):
        for _ in range(opt("tlbat", 6)): p("s_barrier")
        p("s_cmp_lg_u32 s3, 0")
        p("s_cbranch_scc1 PA_NOTLB")
        p("v_lshlrev_b32 v1, 20, v0")
        p("buffer_load_dword v2, v1, s[12:15], 0 offen")
        p("s_mov_b64 exec, 255")
        for lo, n_ in ((36, 4), (38, 4), (40, 4), (44, 4), (48, 2), (50, 8)):
            srd(p, 60, lo, lo + 1, n_ * MB)
            p("buffer_load_dword v2, v1, s[60:63], 0 offen")
        p("s_mov_b64 exec, -1")
        p.label("PA_NOTLB")
        for _ in range(16 - opt("tlbat", 6)): p("s_barrier")
        p("s_waitcnt vmcnt(0)")
    else:
        for _ in range(16): p("s_barrier")
    p(f"v_mov_b32 v1, {CNT}")
    p.pads(opt("pada"))
    lds_wait_ge(p, "PA_C0", 1, C_CPY, 1, 2, sleep=4)
    p("v_readfirstlane_b32 s9, v2")
    if not opt("pal", 1): p("s_mov_b32 s9, 2")
    p("v_cmp_eq_u32 vcc, 1, v2")
    p("s_cbranch_vccnz PA_C3")
    lds_wait_ge(p, "PA_C1", 1, C_KVST, 4, 2, sleep=2)
    p("v_add_u32 v2, 4096, v124")
    p(f"s_add_u32 s10, s56, {LOC}")
    p(f"s_add_u32 s11, s57, {LOC}")
    for n in range(8): p(f"buffer_load_dwordx4 {v(64+4*n,4)}, {('v124', 'v2')[n>>2]}, s[12:15], s10 offen offset:{1024*(n&3)}{SC}")
    for n in range(2): p(f"buffer_load_dwordx4 {v(96+4*n,4)}, v124, s[12:15], s11 offen offset:{1024*n}{SC}")
    p("s_waitcnt vmcnt(0)")
    for n in range(8): p(f"buffer_store_dwordx4 {v(64+4*n,4)}, {('v124', 'v2')[n>>2]}, s[12:15], s56 offen offset:{1024*(n&3)}{SC}")
    for n in range(2): p(f"buffer_store_dwordx4 {v(96+4*n,4)}, v124, s[12:15], s57 offen offset:{1024*n}{SC}")
    p("v_mov_b32 v2, 1")
    p("v_mov_b32 v3, 0")
    p("s_waitcnt vmcnt(0)")
    p("s_mov_b64 exec, 1")
    p(f"ds_add_rtn_u32 v2, v1, v2 offset:{C_CP2}")
    p("s_waitcnt lgkmcnt(0)")
    p("v_cmp_eq_u32 vcc, 3, v2")
    p("s_cbranch_vccz PA_C2")
    flag_publish(p, 126, 3, "s101")
    p.label("PA_C2")
    p("s_mov_b64 exec, -1")
    p.label("PA_C3")
    lds_wait_ge(p, "PA_W0", 1, C_KVL, opt("hwk", 5), 2, sleep=opt("w0slp", 4))
    p(f"s_setprio {opt('cvprio', 3)}")
    stamp(p, 1)
    KR, VR, SR = 16, 38, 56
    def rowaddr(j):
        if j < 3: return v(6 + j), 0
        return v(9 + (j - 3) // 2), 2048 * ((j - 3) & 1)
    for j in range(2): p(f"buffer_load_dwordx4 {v(SR+4*j,4)}, v13, s[52:55], 0 offen offset:{16*j}")
    for j in range(11):
        a_, o_ = rowaddr(j); p(f"buffer_load_dwordx2 {v(KR+2*j,2)}, {a_}, s[16:19], 0 offen offset:{o_}")
    for j in range(8):
        a_, o_ = rowaddr(j + 3); p(f"buffer_load_dwordx2 {v(VR+2*j,2)}, {a_}, s[20:23], 0 offen offset:{o_}")
    srd(p, 16, 44, 45, 4096, off="s33")
    srd(p, 20, 46, 47, 2048)
    EARLYH = opt("earlyh", 0)
    def hdma(t, u):
        p(f"v_and_b32 {v(u)}, 7, v0")
        p(f"v_lshlrev_b32 {v(u)}, 2, {v(u)}")
        p(f"v_add_u32 {v(u)}, {CNT}, {v(u)}")
        lds_wait_ge(p, "PA_W1", u, C_PROG, 1, u + 1, sleep=4)
        p(f"v_add_u32 {v(t+1)}, -512, v124")
        p(f"v_add_u32 {v(t+2)}, 512, v124")
        p("s_lshl_b32 s10, s27, 1")
        p(f"v_mov_b32 {v(t)}, s10")
        p(f"s_add_u32 m0, s30, {CV_H}")
        p(f"buffer_load_ushort v125, {v(t)}, s[20:23], 0 offen")
        p(f"buffer_load_dwordx4 {v(t+1)}, s[16:19], 0 offen lds")
        p(f"s_add_u32 m0, s30, {CV_H + 1024}")
        p("s_nop 0")
        for j in range(4): p(f"buffer_load_dwordx4 {v(t+2)}, s[16:19], 0 offen offset:{1024*j} lds")
        srd(p, 52, 48, 49, 2 * MB)
        p("s_lshl_b32 s10, s27, 11")
        p(f"v_lshlrev_b32 {v(u)}, 5, v0")
        p(f"buffer_load_dword v127, {v(u)}, s[52:55], s10 offen")
    if EARLYH: hdma(1, 4)
    XH = 7 if EARLYH else 0
    T, KU, AC, OUT = 64, 72, 94, 112
    for cp in range(2):
        if cp == 0:
            p(f"s_waitcnt vmcnt({8 + XH})"); stamp(p, 2)
        for e in range(2):
            for jj in range(2):
                src = SR + 4 * cp + 2 * e + jj
                p(f"v_lshlrev_b32 {v(T+2*(2*jj)+e)}, 16, {v(src)}")
                p(f"v_and_b32 {v(T+2*(2*jj+1)+e)}, s32, {v(src)}")
        for j in range(11):
            p(f"v_lshlrev_b32 {v(KU+2*j)}, 16, {v(KR+2*j+cp)}")
            p(f"v_and_b32 {v(KU+2*j+1)}, s32, {v(KR+2*j+cp)}")
        for t in range(8): p(f"v_pk_mul_f32 {v(AC+2*t,2)}, {v(KU+2*t,2)}, {v(T+6,2)}")
        for j in (2, 1, 0):
            for t in range(8): p(f"v_pk_fma_f32 {v(AC+2*t,2)}, {v(KU+2*(t-j+3),2)}, {v(T+2*j,2)}, {v(AC+2*t,2)}")
        if cp == 0: p(f"s_waitcnt vmcnt({XH})")
        for j in range(8):
            p(f"v_lshlrev_b32 {v(KU+2*j)}, 16, {v(VR+2*j+cp)}")
            p(f"v_and_b32 {v(KU+2*j+1)}, s32, {v(VR+2*j+cp)}")
        for t in range(8): p(f"v_pk_mul_f32 {v(AC+2*t,2)}, {v(AC+2*t,2)}, {v(KU+2*t,2)}")
        L_ = []
        for e in range(2):
            for i in range(4): p(f"v_cvt_pk_bf16_f32 {v(OUT+4*e+i)}, {v(AC+2*(7-2*i)+e)}, {v(AC+2*(6-2*i)+e)}")
            L_ += [f"s_mov_b32 s10, {WS_XR + (2*cp+e)*XRS}", f"buffer_store_dwordx4 {v(OUT+4*e,4)}, v15, s[12:15], s10 offen"]
        st2(L_)
    p("s_cmp_lg_u32 s29, 0")
    p(f"s_cbranch_scc1 {pre}_S1END")
    for i in range(4): p(f"v_mov_b32 {v(8+i)}, 0")
    L_ = []
    for c in range(4): L_ += [f"s_mov_b32 s10, {WS_XR + c*XRS + 4096}", "buffer_store_dwordx4 v[8:11], v14, s[12:15], s10 offen"]
    st2(L_)
    p.label(f"{pre}_S1END")
    def signal_and_wait(tag, coff, work=None):
        p(f"v_mov_b32 v1, {CNT + coff}")
        p("v_mov_b32 v2, 1")
        p("v_mov_b32 v3, s35")
        p("s_waitcnt vmcnt(0)")
        p("s_mov_b64 exec, 1")
        p("ds_add_rtn_u32 v126, v1, v2")
        p("s_mov_b32 s25, 0x4000")
        p("s_waitcnt lgkmcnt(0)")
        p("v_readfirstlane_b32 s24, v126")
        p("s_cmp_lg_u32 s24, 3")
        p(f"s_cbranch_scc1 {pre}_NOSIG{tag}")
        flag_publish(p, 126, 3, "s8", SC="")
        p("s_cmp_eq_u32 s9, 1")
        p(f"s_cbranch_scc1 {pre}_NOSIG{tag}")
        p(f"buffer_store_dwordx2 v[126:127], v3, s[12:15], s34 offen{SC}")
        p.label(f"{pre}_NOSIG{tag}")
        p("s_mov_b64 exec, -1")
        if work: work()
        p("s_cmp_lg_u32 s24, 3")
        p(f"s_cbranch_scc1 {pre}_LWAIT{tag}")
        p.label(f"{pre}_POLL{tag}")
        p(f"s_sleep {opt('slp', 4)}")
        p(f"buffer_load_dwordx2 v[126:127], v123, s[12:15], s8 offen{SC}")
        p("s_sub_u32 s25, s25, 1")
        p(f"s_cbranch_scc1 {pre}_GOT{tag}")
        p("s_waitcnt vmcnt(0)")
        flag_test(p, 126)
        p("s_cmp_eq_u32 s9, 1")
        p(f"s_cbranch_scc1 {pre}_PT{tag}")
        p("s_mov_b64 s[10:11], vcc")
        p(f"buffer_load_dwordx2 v[126:127], v123, s[12:15], s34 offen{SC}")
        p("s_waitcnt vmcnt(0)")
        flag_test(p, 126)
        p("s_or_b64 vcc, vcc, s[10:11]")
        p.label(f"{pre}_PT{tag}")
        p("s_cmp_lg_u64 vcc, -1")
        p(f"s_cbranch_scc1 {pre}_POLL{tag}")
        p.label(f"{pre}_GOT{tag}")
        p("ds_write_b32 v1, v2 offset:4")
        p(f"s_branch {pre}_GO{tag}")
        p.label(f"{pre}_LWAIT{tag}")
        bail(p)
        p("s_sleep 4")
        p("ds_read_b32 v126, v1 offset:4")
        p("s_waitcnt lgkmcnt(0)")
        p("v_cmp_ne_u32 vcc, 1, v126")
        p(f"s_cbranch_vccnz {pre}_LWAIT{tag}")
        p.label(f"{pre}_GO{tag}")
    AB, BB, KVB, ST = 8, 12, 13, 14
    FA, FBB, ACC = 16, 48, 80
    def hload():
        if not EARLYH: hdma(117, 5)
        p("v_and_b32 v5, 15, v0")
        p("v_lshrrev_b32 v6, 4, v0")
        p("v_lshrrev_b32 v3, 1, v5")
        p("v_lshlrev_b32 v4, 2, v6")
        p("v_sub_u32 v4, v4, v3")
        p("v_lshlrev_b32 v4, 2, v4")
        p("v_and_b32 v3, 1, v5")
        p("v_xor_b32 v3, 1, v3")
        p(f"v_mul_u32_u24 v3, {CV_C1}, v3")
        p(f"s_add_u32 s10, s30, {4*1023 - 32*(112+1)}")
        p(f"v_add3_u32 {v(AB)}, v4, v3, s10")
        for kk in range(1, 4): p(f"v_add_u32 {v(AB+kk)}, {1024*kk}, {v(AB)}")
        p("v_lshlrev_b32 v3, 5, v5")
        p("v_lshl_add_u32 v4, v6, 4, v3")
        p(f"s_add_u32 s10, s30, {CV_H + 512 - 32}")
        p(f"v_add_u32 {v(BB)}, s10, v4")
        p(f"v_lshl_add_u32 {v(ST)}, v6, 3, v3")
        p(f"s_add_u32 s10, s30, {4088 - 512*7}")
        p(f"v_sub_u32 {v(KVB)}, s10, {v(ST)}")
        for i in range(32): p(f"v_mov_b32 {v(ACC+i)}, 0")
        p("v_add_u32 v7, 2, v124")
    stamp(p, 3)
    signal_and_wait(1, C_A1, hload)
    stamp(p, 4)
    for (src_v, off) in ((124, 0), (7, CV_C1)):
        p(f"s_add_u32 m0, s30, {off}")
        p("s_nop 0")
        for j in range(4): p(f"buffer_load_dwordx4 {v(src_v)}, s[12:15], s31 offen offset:{1024*j}{SC} lds")
        p(f"s_add_u32 m0, s30, {off + 4096}")
        p("s_mov_b64 exec, 15")
        p(f"buffer_load_dwordx4 {v(src_v)}, s[12:15], s26 offen{SC} lds")
        p("s_mov_b64 exec, -1")
    p(f"s_add_u32 s34, s34, {FL_A2 - FL_A1}")
    p("s_add_u32 s8, s8, 128")
    p("s_mov_b32 s25, 8")
    p("s_waitcnt vmcnt(0)")
    if opt("qt", 1):
        srd(p, 16, 36, 37, 4 * MB)
        p("v_and_b32 v3, 3, v0")
        p("v_lshl_add_u32 v3, v3, 11, v120")
        p("buffer_load_dword v116, v3, s[16:19], 0 offen")
    if opt("wb", 0):
        p(f"s_and_b32 s10, s29, {opt('wb')}")
        p("s_cbranch_scc1 PA_NOWB")
        p("buffer_wbl2 sc1")
        p.label("PA_NOWB")
    stamp(p, 5)
    p.padn = opt("pada") * 2
    p.label(f"{pre}_CVL")
    def rdA(a):
        kk, rem = (7 - a) >> 1, 128 * ((7 - a) & 1)
        return [f"ds_read2_b32 {v(FA+4*a,2)}, {v(AB+kk)} offset0:{rem} offset1:{rem+1}",
                f"ds_read2_b32 {v(FA+4*a+2,2)}, {v(AB+kk)} offset0:{rem+2} offset1:{rem+3}"]
    cnt = [0]
    def cm(a, b):
        p(mf16(ACC+4*(a+b), FA+4*a, FBB+4*b, ACC+4*(a+b)))
        cnt[0] += 1
        if opt("cvnop", -1) >= 0 and cnt[0] % opt("cvev", 1) == 0: p(f"s_nop {opt('cvnop')}")
    def rdB(b): return [f"ds_read_b128 {v(FBB+4*b,4)}, {v(BB)} offset:{512*b}"]
    for x in range(8):
        for r_ in rdA(x) + rdB(x): p(r_)
    for kk in range(4): p(f"v_add_u32 {v(AB+kk)}, -64, {v(AB+kk)}")
    p(f"v_add_u32 {v(BB)}, -64, {v(BB)}")
    p("s_waitcnt lgkmcnt(12)")
    for a in range(4):
        for b in range(4): cm(a, b)
    p("s_waitcnt lgkmcnt(0)")
    for a in range(8):
        for b in range(8 - a):
            if a >= 4 or b >= 4: cm(a, b)
    p("s_sub_u32 s25, s25, 1")
    p("s_cmp_lg_u32 s25, 0")
    p(f"s_cbranch_scc1 {pre}_CVL")
    stamp(p, 6)
    p.padn = opt("pada")
    for t in range(8): p(f"ds_read_b64 {v(FA+2*t,2)}, {v(KVB)} offset:{512*(7-t)}")
    p("v_lshlrev_b32 v125, 16, v125")
    p(f"s_add_u32 s33, s33, {WS_Y}")
    p(f"v_lshlrev_b32 {v(ST)}, 1, {v(ST)}")
    for t in range(8):
        p(f"s_waitcnt lgkmcnt({7-t})" if not STAMP else "s_waitcnt lgkmcnt(0)")
        U = FBB + 4 * (t & 3); a = ACC + 4 * t; o = FBB + 16 + 2 * t
        p(f"v_and_b32 {v(U)}, s32, {v(FA+2*t+1)}")
        p(f"v_lshlrev_b32 {v(U+1)}, 16, {v(FA+2*t+1)}")
        p(f"v_and_b32 {v(U+2)}, s32, {v(FA+2*t)}")
        p(f"v_lshlrev_b32 {v(U+3)}, 16, {v(FA+2*t)}")
        for r_ in range(4): p(f"v_fmac_f32 {v(a+r_)}, v125, {v(U+r_)}")
        p(f"v_cvt_pk_bf16_f32 {v(o)}, {v(a)}, {v(a+1)}")
        p(f"v_cvt_pk_bf16_f32 {v(o+1)}, {v(a+2)}, {v(a+3)}")
    st2([f"buffer_store_dwordx4 {v(FBB+16+4*tp,4)}, {v(ST)}, s[12:15], s33 offen offset:{1024*tp}" for tp in range(4)])
    QR, YR, U, OUT = 16, 32, 48, 64
    def qload():
        srd(p, 16, 36, 37, 4 * MB)
        srd(p, 20, 50, 51, 8 * MB)
        p("v_add_u32 v6, 4096, v120")
        for j in range(4): p(f"buffer_load_dwordx4 {v(QR+4*j,4)}, {('v120', 'v6')[j>>1]}, s[16:19], 0 offen offset:{2048*(j&1)}")
    signal_and_wait(2, C_A2, qload)
    stamp(p, 7)
    for c in range(8):
        p(f"s_mov_b32 s10, {WS_Y + c*4096}")
        p(f"buffer_load_dwordx2 {v(YR+2*c,2)}, v121, s[12:15], s10 offen{SC}")
    p("s_waitcnt vmcnt(0)")
    for t in range(4):
        for cp in range(4):
            u = U + 4 * (cp & 1)
            q = QR + 4 * t + cp
            p(f"v_lshlrev_b32 {v(u)}, 16, {v(q)}")
            p(f"v_and_b32 {v(u+1)}, s32, {v(q)}")
            for e in range(2):
                y = YR + 2 * (2 * cp + e) + (t >> 1)
                if t & 1: p(f"v_and_b32 {v(u+2+e)}, s32, {v(y)}")
                else: p(f"v_lshlrev_b32 {v(u+2+e)}, 16, {v(y)}")
            p(f"v_pk_mul_f32 {v(u,2)}, {v(u,2)}, {v(u+2,2)}")
            p(f"v_cvt_pk_bf16_f32 {v(OUT+4*t+cp)}, {v(u)}, {v(u+1)}")
        p(f"s_mov_b32 s10, {t*4096}")
        p(f"buffer_store_dwordx4 {v(OUT+4*t,4)}, v122, s[20:23], s10 offen{SC}")
    stamp(p, 12)
    stamp_flush(p)
    p("s_endpgm")

def build(path):
    p = Prog()
    emit(p)
    p.pads(0)
    if p.npads:
        p.label(f"WP{p.npads}")
        p("s_branch WP_END")
    p.label("L_CODE_END")
    hdr = open("concat_heads__ssm_conv_h3__mha_block__prompt.s.ref").read().split("\n")
    hdr = [l for l in hdr if l.startswith(";") and "@launch" not in l and "Override" not in l and "grid=ceil" not in l]
    out = "\n".join(hdr) + "\n"
    if opt("aslist", 1): out += f"; @launch kernel={NAME} grid=(256,1,1) block=(832,1,1) lds={LDS_BYTES}\n"
    else: out += f"; @launch grid=(256,1,1) block=(832,1,1) lds={LDS_BYTES}\n"
    out += '.amdgcn_target "amdgcn-amd-amdhsa--gfx950"\n.text\n'
    body = p.text()
    nbad = check(body)
    out += body
    out += f""".section .rodata,"a"
.p2align 6
.amdhsa_kernel {NAME}
  .amdhsa_next_free_vgpr 128
  .amdhsa_next_free_sgpr 102
  .amdhsa_accum_offset 128
  .amdhsa_group_segment_fixed_size 0
  .amdhsa_kernarg_size 96
  .amdhsa_user_sgpr_count 2
  .amdhsa_user_sgpr_kernarg_segment_ptr 1
  .amdhsa_system_sgpr_workgroup_id_x 1
.end_amdhsa_kernel
"""
    open(path, "w").write(out)
    return nbad

if __name__ == "__main__":
    nb = build(sys.argv[1] if len(sys.argv) > 1 else "pk.s")
    print("hazards:", nb)
```

```python
import sys, os, struct, math
sys.path.insert(0, os.path.dirname(os.path.abspath(__file__)))
from asmlib import Prog, v, s, check

MB = 1 << 20
WS_KV, WS_QX, WS_O, WS_XR, WS_Y, WS_FL = 0, 8 * MB, 12 * MB, 16 * MB, 21 * MB, 25 * MB
XRS = 4224
WS_SIZE = 64 * MB
LOC = 32 * MB
FLS = 4352
FL_A1, FL_A2, FL_KV, FL_O, FL_KVL = [WS_FL + 16 * i * FLS for i in range(5)]
A_Q, A_K, A_V, A_SK, A_SSMK, A_D, B_X, B_WQKV, B_WO, D_OUT, D_DBG, D_WS = [8 * i for i in range(12)]
def f32bits(x): return struct.unpack("<I", struct.pack("<f", x))[0]
QSCALE = f32bits((32 ** -0.5) * math.log2(math.e))
STAMP = os.environ.get("STAMP", "0") == "1"
LIGHT = os.environ.get("STAMP", "0") == "2"
OPT = dict(kv.split("=") for kv in os.environ.get("OPT", "").split(",") if kv)
def opt(k, d=0): return int(OPT.get(k, d))
WS_ST = 28 * MB
SC = " sc1"
NAME = "concat_heads__ssm_conv_h3__mha_block__prompt_kernel"

WREG = 5 * 16384
RING = 6 * 16384
OWNC = WREG + 24576
QHO = OWNC + 16384
CV_BASE = 98304
CV_STRIDE = 15616
CV_C1 = 5120 + 64
CV_H = 2 * 5120 + 128
CNT = CV_BASE + 4 * CV_STRIDE
C_LAND, C_CONS, C_PROG, C_KVL, C_OWN, C_KVST, C_A1, C_A2, C_OARR, C_OMASK, C_QRDY, C_CPY, C_GALL, C_CP2 = 0, 16, 32, 64, 68, 72, 76, 84, 92, 96, 100, 104, 108, 112
LDS_BYTES = CNT + 256

def mf32(d, a, b, c): return f"v_mfma_f32_32x32x16_bf16 {v(d,16)}, {v(a,4)}, {v(b,4)}, {v(c,16) if isinstance(c,int) else c}"
def mf16(d, a, b, c): return f"v_mfma_f32_16x16x32_bf16 {v(d,4)}, {v(a,4)}, {v(b,4)}, {v(c,4) if isinstance(c,int) else c}"

def srd(p, d, lo, hi, nrec, off=None):
    if off is None:
        if lo != d: p(f"s_mov_b32 {s(d)}, {s(lo)}")
        if hi != d + 1: p(f"s_mov_b32 {s(d+1)}, {s(hi)}")
    else:
        p(f"s_add_u32 {s(d)}, {s(lo)}, {off}")
        p(f"s_addc_u32 {s(d+1)}, {s(hi)}, 0")
    p(f"s_mov_b32 {s(d+2)}, {nrec}")
    p(f"s_mov_b32 {s(d+3)}, 0x20000")

def stamp(p, i, real=True):
    if STAMP and not (opt("p1st") and i in (4, 5, 6, 7, 9, 10, 11)): p(f"{'s_memrealtime' if real else 's_memtime'} s[{60+2*i}:{61+2*i}]")
def stamp_flush(p, n=14):
    if LIGHT:
        p("s_memrealtime s[90:91]")
        p("s_lshl_b32 s58, s2, 4")
        p("s_add_u32 s58, s58, s59")
        p("s_lshl_b32 s58, s58, 3")
        p(f"s_add_u32 s58, s58, {WS_ST}")
        p("s_waitcnt lgkmcnt(0)")
        p("v_mov_b32 v1, s58")
        p("v_mov_b32 v2, s96")
        p("v_mov_b32 v3, s90")
        p("global_store_dwordx2 v1, v[2:3], s[98:99]")
    if not STAMP: return
    p("s_memtime s[90:91]")
    p("s_lshl_b32 s58, s2, 4")
    p("s_add_u32 s58, s58, s59")
    p("s_lshl_b32 s58, s58, 6")
    p(f"s_add_u32 s58, s58, {WS_ST}")
    p("s_waitcnt lgkmcnt(0)")
    p("v_mov_b32 v2, s58")
    for i in range(16):
        p(f"v_mov_b32 v3, s{60+2*i}")
        p(f"global_store_dword v2, v3, s[98:99] offset:{4*i}")

def lane_id(p, d):
    p(f"v_mbcnt_lo_u32_b32 {v(d)}, -1, 0")
    p(f"v_mbcnt_hi_u32_b32 {v(d)}, -1, {v(d)}")

def bail(p):
    p("s_sub_u32 s100, s100, 1")
    p("s_cbranch_scc1 L_END")

def lds_wait_ge(p, lab, vaddr, off, need, vt, sleep=2):
    p(f"s_branch {lab}c")
    p.label(f"{lab}s")
    bail(p)
    p(f"s_sleep {sleep}")
    p.label(f"{lab}c")
    p(f"ds_read_b32 {v(vt)}, {v(vaddr)} offset:{off}")
    p("s_waitcnt lgkmcnt(0)")
    p(f"v_cmp_gt_i32 vcc, {need}, {v(vt)}")
    p(f"s_cbranch_vccnz {lab}s")

def local_flag_base(p, d):
    p(f"s_getreg_b32 s{d}, hwreg(HW_REG_XCC_ID)")
    p(f"s_and_b32 s{d}, s{d}, 15")
    p(f"s_lshl_b32 s{d}, s{d}, 4")
    p(f"s_add_u32 s{d}, s{d}, s27")
    p(f"s_lshl_b32 s{d}, s{d}, 9")
    p(f"s_add_u32 s{d}, s{d}, {FL_KVL}")

def flag_publish(p, vt, voff, soff, SC=" sc1"):
    p("s_memrealtime s[92:93]")
    p("s_waitcnt lgkmcnt(0)")
    p(f"v_mov_b32 {v(vt)}, s92")
    p(f"v_mov_b32 {v(vt+1)}, s93")
    p(f"buffer_store_dwordx2 {v(vt,2)}, {v(voff)}, s[12:15], {soff} offen{SC}")

def flag_test(p, vt):
    p(f"v_cmp_lt_u64 vcc, s[96:97], {v(vt,2)}")
    p(f"v_cmp_gt_u64 s[92:93], s[94:95], {v(vt,2)}")
    p("s_and_b64 vcc, vcc, s[92:93]")

def pf_addr(p, vx, vw, which=(0, 1)):
    if 0 in which:
        p("s_and_b32 s29, s27, 1")
        p("s_lshl_b32 s29, s29, 6")
        p("s_lshl_b32 s10, s26, 7")
        p("s_add_u32 s29, s29, s10")
        p("v_add_u32 v1, s29, v0")
        p(f"v_lshlrev_b32 {v(vx)}, 11, v1")
    if 1 in which:
        p("v_bfe_u32 v2, v0, 2, 2")
        p("s_lshl_b32 s29, s26, 2")
        p("v_add_u32 v2, s29, v2")
        if opt("wup", 0):
            p("v_lshrrev_b32 v3, 4, v0")
            p("v_lshl_add_u32 v2, v3, 8, v2")
        p("v_mul_u32_u24 v2, 6144, v2")
        p("v_and_b32 v3, 3, v0")
        p("v_min_u32 v3, 2, v3")
        p("v_lshl_add_u32 v2, v3, 11, v2")
        p("s_lshl_b32 s29, s27, 7")
        p(f"v_add_u32 {v(vw)}, s29, v2")

def tile3(p):
    p("s_and_b32 s38, s8, 3")
    p("s_lshl_b32 s38, s38, 2")
    p("s_and_b32 s10, s9, 3")
    p("s_add_u32 s38, s38, s10")
    p("s_lshr_b32 s39, s8, 2")
    p("s_lshl_b32 s39, s39, 3")
    p("s_lshr_b32 s10, s9, 2")
    p("s_add_u32 s39, s39, s10")

WTAB = 0x10876543

def emit(p):
    p(f".globl {NAME}")
    p(".p2align 8")
    p(f".type {NAME},@function")
    p.label(NAME)
    p("s_cmp_ge_u32 s2, 256")
    p("s_cbranch_scc1 L_END")
    p(f"s_load_dwordx4 s[4:7], s[0:1], {B_X}")
    p(f"s_load_dwordx2 s[98:99], s[0:1], {D_WS}")
    p("s_memrealtime s[96:97]")
    p("v_lshrrev_b32 v1, 6, v0")
    p("v_and_b32 v0, 63, v0")
    p("s_and_b32 s8, s2, 7")
    p("v_readfirstlane_b32 s3, v1")
    stamp(p, 0); stamp(p, 14, False)
    p("s_lshr_b32 s9, s2, 3")
    p("s_mov_b32 s100, 0x100000")
    if STAMP or LIGHT: p("s_mov_b32 s59, s3")
    p("s_and_b32 s26, s9, 15")
    p("s_lshl_b32 s27, s8, 1")
    p("s_lshr_b32 s10, s9, 4")
    p("s_add_u32 s27, s27, s10")
    p("s_cmp_ge_u32 s3, 4")
    p("s_cbranch_scc1 L_NOTLOADER")
    p("s_and_b32 s34, s3, 2")
    p("s_and_b32 s25, s3, 1")
    p("v_lshrrev_b32 v2, 3, v0")
    p("v_lshlrev_b32 v2, 11, v2")
    p("v_lshrrev_b32 v3, 4, v0")
    p("v_and_b32 v4, 7, v0")
    p("v_xor_b32 v4, v4, v3")
    p("v_lshl_add_u32 v2, v4, 4, v2")
    p("s_lshl_b32 s10, s34, 16")
    p("v_add_u32 v10, s10, v2")
    p("v_xor_b32 v11, 64, v10")
    p(f"v_add_u32 v12, {32768-2048}, v10")
    p(f"v_add_u32 v13, {49152-3072}, v11")
    p(f"v_add_u32 v11, {16384-1024}, v11")
    p("s_lshl_b32 s23, s34, 12")
    p("s_lshl_b32 s10, s25, 14")
    p("s_add_u32 s23, s23, s10")
    p(f"s_mul_i32 s39, s8, {opt('xrot', 0)}")
    p("s_and_b32 s36, s27, 1")
    p(f"s_mul_i32 s36, s36, {opt('nrot', 0)}")
    p("s_add_u32 s39, s39, s36")
    p("s_add_u32 s36, s39, s25")
    p("s_and_b32 s36, s36, 15")
    p("s_lshl_b32 s20, s36, 7")
    p("s_lshl_b32 s10, s26, 18")
    p("s_mov_b32 s14, 262144")
    p("s_mov_b32 s15, 0x20000")
    pf_addr(p, 16, 16, (1,))
    p("s_add_u32 s35, s39, s3")
    p(f"s_and_b32 s35, s35, {3 if opt('wup', 0) else 15}")
    p(f"s_mul_i32 s35, s35, {64*6144}")
    p("s_waitcnt lgkmcnt(0)")
    srd(p, 40, 6, 7, 6 * MB)
    p("buffer_load_dword v17, v16, s[40:43], s35 offen")
    p("s_add_u32 s12, s4, s10")
    p("s_addc_u32 s13, s5, 0")
    def xissue():
        for q_ in range(2):
            p(f"s_add_u32 m0, s23, {4096*q_}")
            p(f"s_add_u32 s10, s20, {65536*q_}")
            for jj in range(4): p(f"buffer_load_dwordx4 {v(10+jj)}, s[12:15], s10 offen offset:{1024*jj} lds")
        p("s_add_u32 s20, s20, 256")
        p("s_and_b32 s20, s20, 2047")
        p("s_add_u32 s23, s23, 32768")
        p(f"s_cmp_ge_u32 s23, {WREG}")
        p(f"s_cselect_b32 s10, {WREG}, 0")
        p("s_sub_u32 s23, s23, s10")
    xissue()
    p("v_lshrrev_b32 v2, 5, v0")
    p("v_lshlrev_b32 v2, 2, v2")
    p("v_bfe_u32 v4, v0, 2, 2")
    p("s_lshl_b32 s10, s34, 4")
    p("v_add3_u32 v2, v2, v4, s10")
    p("v_mul_u32_u24 v2, 6144, v2")
    p("v_bfe_u32 v3, v0, 4, 1")
    p("v_lshl_add_u32 v2, v3, 6, v2")
    p("v_and_b32 v4, 3, v0")
    p("v_lshl_add_u32 v14, v4, 4, v2")
    p("v_add_u32 v15, 48128, v14")
    p("v_lshlrev_b32 v4, 2, v4")
    p(f"v_add_u32 v18, {CNT}, v4")
    p("s_mul_i32 s24, s34, 6144")
    p("s_mul_i32 s10, s25, 24576")
    p("s_add_u32 s24, s24, s10")
    p(f"s_add_u32 s24, s24, {WREG}")
    p("s_mul_i32 s21, s36, 393216")
    p("s_lshl_b32 s11, s27, 7")
    p(f"s_sub_u32 s18, {1024*6144}, s11")
    p("s_mov_b32 s19, 0x20000")
    p("s_add_u32 s16, s6, s11")
    p("s_addc_u32 s17, s7, 0")
    p("s_lshl_b64 s[32:33], 1, s3")
    XPF = opt("xpf", 4)
    if XPF:
        p("s_mov_b32 s37, 393216")
        p("s_cmp_lg_u32 s3, 0")
        p("s_cbranch_scc1 P1_NX")
        pf_addr(p, 16, 16, (0,))
        srd(p, 40, 4, 5, 4 * MB)
        p("s_mov_b32 s37, 128")
        p.label("P1_NX")
        p("s_cmp_lg_u32 s25, 0")
    else:
        p(f"s_cmp_ge_u32 s3, {0 if opt('wup', 0) else 2}")
    p("s_cselect_b32 s42, 0, s42")
    p.label("P1_LISSUE")
    for q_ in range(2):
        p(f"s_add_u32 m0, s24, {6144*q_}")
        p(f"s_add_u32 s10, s21, {16*6144*q_}")
        for ii in range(4): p(f"buffer_load_dwordx4 {v(14+(ii&1))}, s[16:19], s10 offen offset:{1024*ii} lds")
        p(f"s_add_u32 m0, s24, {6144*q_+4096}")
        p(f"s_add_u32 s10, s21, {16*6144*q_+4096}")
        for ii in range(2): p(f"buffer_load_dwordx4 {v(14+ii)}, s[16:19], s10 offen offset:{1024*ii} lds")
    p("s_add_u32 s36, s36, 2")
    p("s_and_b32 s36, s36, 15")
    p("s_mul_i32 s21, s36, 393216")
    p(f"s_add_u32 s35, s36, {XPF - 2 if XPF else 2}")
    p("s_and_b32 s35, s35, 15")
    p("s_mul_i32 s35, s35, s37" if XPF else "s_mul_i32 s35, s35, 393216")
    p(f"s_cmp_ge_u32 s25, {16 - XPF if XPF else 12}")
    p("s_cselect_b32 s42, 0, s42")
    p("s_add_u32 s24, s24, 49152")
    p(f"s_cmp_ge_u32 s24, {WREG + 3*24576}")
    p(f"s_cselect_b32 s11, {3*24576}, 0")
    p("s_sub_u32 s24, s24, s11")
    p("s_add_u32 s25, s25, 2")
    p("s_cmp_ge_u32 s25, 16")
    p("s_cbranch_scc1 P1_LLAST")
    xissue()
    p("buffer_load_dword v17, v16, s[40:43], s35 offen")
    if XPF:
        p("s_add_u32 s35, s35, s37")
        p("buffer_load_dword v17, v16, s[40:43], s35 offen")
    p("s_cmp_eq_u32 s25, 2")
    p("s_cbranch_scc1 P1_LNB")
    p("s_barrier")
    p.label("P1_LNB")
    p(f"s_waitcnt vmcnt({10 if XPF else 9})")
    p("s_barrier")
    p("s_branch P1_LISSUE")
    p.label("P1_LLAST")
    p("s_barrier")
    p("s_waitcnt vmcnt(0)")
    p("s_barrier")
    p("s_cmp_lg_u32 s25, 16")
    p("s_cbranch_scc1 P1_LDONE")
    p("s_barrier")
    p.label("P1_LDONE")
    stamp(p, 1)
    Q, ONES, L, P0, P1, F0, F1, NEGM, SA, SB, O = 4, 12, 16, 20, 24, 28, 44, 60, 76, 92, 108
    VN, VL, VC, VP, IDX, CA, CV_, ONE = 0, 1, 2, 3, 124, 125, 126, 127
    p("s_lshl_b32 s28, s26, 2")
    p("s_add_u32 s28, s28, s3")
    p("v_lshlrev_b32 v1, 4, v0")
    p(f"v_mov_b32 {v(CA)}, {CNT}")
    srd(p, 12, 98, 99, WS_SIZE)
    p("s_lshl_b32 s10, s3, 11")
    p(f"s_add_u32 s10, s10, {QHO}")
    p(f"v_add_u32 {v(SB)}, s10, v1")
    p("s_branch A_INIT")

    p.label("L_NOTLOADER")
    p("s_cmp_ge_u32 s3, 8")
    p("s_cbranch_scc1 L_HELPERS")
    ACC, XF, WF_, XC, WC, SY, VT = 32, 0, 16, 28, 29, 30, 31
    p("s_sub_u32 s31, s3, 4")
    p("s_lshr_b32 s28, s31, 1")
    p("s_and_b32 s29, s31, 1")
    p("v_and_b32 v1, 31, v0")
    p("v_lshrrev_b32 v2, 5, v0")
    p("v_bfe_u32 v3, v0, 1, 3")
    p("v_xor_b32 v3, v3, v2")
    p("v_lshlrev_b32 v3, 4, v3")
    p("v_lshl_add_u32 v3, v1, 7, v3")
    p("s_lshl_b32 s10, s28, 13")
    p(f"v_add_u32 {v(XC)}, s10, v3")
    p("v_lshlrev_b32 v2, 10, v2")
    p("v_bfe_u32 v3, v0, 2, 2")
    p("v_lshl_add_u32 v2, v3, 6, v2")
    p("v_bfe_u32 v3, v0, 4, 1")
    p("v_lshl_add_u32 v2, v3, 5, v2")
    p("v_and_b32 v3, 3, v0")
    p("v_lshl_add_u32 v2, v3, 3, v2")
    p("s_lshl_b32 s10, s29, 8")
    p(f"s_add_u32 s10, s10, {WREG}")
    p(f"v_add_u32 {v(WC)}, s10, v2")
    p("v_lshlrev_b32 v3, 2, v3")
    p(f"v_add_u32 {v(SY)}, {CNT}, v3")
    p("v_lshlrev_b32 v3, 2, v0")
    p(f"v_add_u32 v3, {CNT}, v3")
    p(f"v_mov_b32 {v(VT)}, 0")
    p(f"ds_write_b32 v3, {v(VT)}")
    for i in range(8, 28): p(f"v_mov_b32 {v(i)}, 0")
    for i in range(ACC, ACC + 96): p(f"v_mov_b32 {v(i)}, 0")
    p("s_mov_b32 s25, 0")
    p("s_mov_b32 s24, 0")
    p("s_mov_b32 s21, 0")
    p(f"s_setprio {opt('cpprio', 3)}")
    def mfmas(b):
        L_ = []
        for ty in range(3):
            for rt in range(2):
                d = ACC + (rt * 3 + ty) * 16
                x, w = XF + 8 * b + 4 * rt, WF_ + 4 * ty
                L_.append(mf32(d, w, x, d) if ty < 2 else mf32(d, x, w, d))
        return L_
    def rx(b, rt): return f"ds_read_b128 {v(XF+8*b+4*rt,4)}, {v(XC)} offset:{rt*4096}"
    def rw(ks, ty): return [f"ds_read_b64_tr_b16 {v(WF_+4*ty+2*h,2)}, {v(WC)} offset:{ks*6144+ty*2048+h*512}" for h in range(2)]
    def cons():
        p("s_mov_b64 exec, s[32:33]")
        p(f"ds_inc_u32 {v(SY)}, {v(SY)} offset:{C_CONS}")
        p("s_mov_b64 exec, -1")
    w = lambda n: p(f"s_waitcnt lgkmcnt({n})")
    if opt("al1", -1) >= 0:
        p(".p2align 6")
        for _ in range(opt("al1")): p("s_nop 0")
    p.label("P1_CLOOP")
    for ks in range(4):
        b = ks & 1
        M = mfmas(b ^ 1)
        w(4); p(M[0])
        if ks == 0:
            p(M[1])
            w(0)
            p("s_barrier")
            for r_ in rw(ks, 0): p(r_)
            p(rx(b, 0))
            p(M[2])
            p(rx(b, 1))
            p(f"v_xor_b32 {v(XC)}, 32, {v(XC)}")
        else:
            p(rx(b, 0)); p(rx(b, 1))
            p(f"v_xor_b32 {v(XC)}, {32 if ks == 2 else 96}, {v(XC)}")
            p(M[1])
            for r_ in rw(ks, 0): p(r_)
        if ks == 3: p(f"v_add_u32 {v(XC)}, s22, {v(XC)}")
        if ks == 1:
            p("s_add_u32 s24, s24, 1")
            p("s_cmp_eq_u32 s24, 3")
            p("s_cselect_b32 s23, -2, 1")
            p("s_cselect_b32 s24, 0, s24")
            p("s_mul_i32 s23, s23, 24576")
        if ks == 2:
            p("s_add_u32 s21, s21, 1")
            p("s_cmp_eq_u32 s21, 5")
            p("s_cselect_b32 s22, -4, 1")
            p("s_cselect_b32 s21, 0, s21")
            p("s_mul_i32 s22, s22, 16384")
        if ks: w(6); p(M[2])
        p(M[3])
        for r_ in rw(ks, 1): p(r_)
        if ks: w(6)
        p(M[4])
        if ks == 3:
            p("s_add_u32 s25, s25, 1")
            p("s_cmp_lt_u32 s25, 16")
        p(M[5])
        for r_ in rw(ks, 2): p(r_)
    p(f"v_add_u32 {v(WC)}, s23, {v(WC)}")
    if STAMP and opt("p1st") == 2:
        p("s_and_b32 s58, s25, 7")
        p("s_cmp_lg_u32 s58, 6")
        p("s_cbranch_scc1 P1_STX")
        p("s_mov_b64 s[68:69], s[72:73]")
        p("s_mov_b64 s[70:71], s[74:75]")
        p("s_memrealtime s[72:73]")
        p("s_memtime s[74:75]")
        p("s_mov_b32 s78, s80")
        p("s_mov_b32 s80, s100")
        p.label("P1_STX")
        p("s_cmp_lt_u32 s25, 16")
    if STAMP and opt("p1st") == 1:
        for (n_, i_) in ((5, 4), (6, 5), (7, 6), (8, 7), (9, 9), (10, 10), (11, 11)):
            p(f"s_cmp_lg_u32 s25, {n_}")
            p(f"s_cbranch_scc1 P1_ST{n_}")
            p(f"s_memrealtime s[{60+2*i_}:{61+2*i_}]")
            p.label(f"P1_ST{n_}")
        p("s_cmp_lt_u32 s25, 16")
    p("s_cbranch_scc1 P1_CLOOP")
    PADN = opt("padn", 0)
    p.pads(PADN)
    M = mfmas(1)
    w(4); p(M[0]); p(M[1]); w(2); p(M[2]); p(M[3]); w(0)
    p(M[4]); p(M[5])
    stamp(p, 1)
    lane_id(p, XC)
    p(f"v_lshlrev_b32 {v(XC)}, 4, {v(XC)}")
    srd(p, 12, 98, 99, WS_SIZE)
    p("s_lshl_b32 s10, s27, 1")
    p("s_add_u32 s10, s10, s29")
    p("s_lshl_b32 s10, s10, 4")
    p("s_add_u32 s10, s10, s26")
    p("s_lshl_b32 s10, s10, 14")
    p("s_lshl_b32 s11, s28, 12")
    p("s_add_u32 s10, s10, s11")
    p(f"s_add_u32 s10, s10, {LOC}")
    p("s_add_u32 s16, s10, 8192")
    p("s_lshl_b32 s18, s27, 4")
    p("s_add_u32 s18, s18, s26")
    p("s_lshl_b32 s18, s18, 13")
    p("s_add_u32 s18, s18, s11")
    p(f"s_add_u32 s18, s18, {WS_QX + LOC}")
    p(f"s_add_u32 s11, s11, {OWNC}")
    p(f"v_add_u32 {v(WC)}, s11, {v(XC)}")
    p(f"s_mov_b32 s17, {QSCALE}")
    p("s_xor_b32 s19, s26, s29")
    p("s_bitcmp1_b32 s19, 0")
    p("s_cbranch_scc1 P1_EOTH")
    p("s_nop 3")
    for own in (1, 0):
        n = 0
        order = (((1, 0), (1, 1), (2, 0), (2, 1), (0, 0), (0, 1)) if opt("stf", 1) else ((1, 0), (0, 0), (0, 1), (2, 0), (1, 1), (2, 1))) if own else ((0, 0), (0, 1), (1, 0), (1, 1), (2, 0), (2, 1))
        keep = []
        for (ty, rt) in order:
            d = ACC + (rt * 3 + ty) * 16
            if ty == 0:
                for i in range(16): p(f"v_mul_f32 {v(d+i)}, s17, {v(d+i)}")
            for j in range(2):
                o = d + 8 * j if own else 4 * (n % 7); n += 1
                for i in range(4): p(f"v_cvt_pk_bf16_f32 {v(o+i)}, {v(d+8*j+2*i)}, {v(d+8*j+2*i+1)}")
                st = f"buffer_store_dwordx4 {v(o,4)}, {v(XC)}, s[12:15], {('s18', 's10', 's16')[ty]} offen offset:{rt*2048+j*1024}"
                if own:
                    if ty and opt("stf", 1): p(st)
                    p(f"ds_write_b128 {v(WC)}, {v(o,4)} offset:{(16384, 0, 8192)[ty]+rt*2048+j*1024}")
                    if ty and not opt("stf", 1): keep.append(st)
                else: p(st)
        if own:
            p(f"v_mov_b32 {v(VT)}, 1")
            p(f"v_mov_b32 {v(SY)}, {CNT}")
            for st in keep[:2]: p(st)
            p("s_waitcnt lgkmcnt(0)")
            p("s_mov_b64 exec, 1")
            p(f"ds_add_u32 {v(SY)}, {v(VT)} offset:{C_OWN}")
            p("s_mov_b64 exec, -1")
            for st in keep[2:]: p(st)
            p("s_branch P1_EDONE")
            p.label("P1_EOTH")
    p.label("P1_EDONE")
    p(f"v_mov_b32 v30, {CNT}")
    p("v_mov_b32 v31, 1")
    local_flag_base(p, 34)
    p("s_lshl_b32 s10, s26, 3")
    p("v_mov_b32 v29, s10")
    p("s_waitcnt vmcnt(0)")
    p("s_mov_b64 exec, 1")
    p(f"ds_add_rtn_u32 v31, v30, v31 offset:{C_KVST}")
    p("s_waitcnt lgkmcnt(0)")
    p("v_cmp_eq_u32 vcc, 3, v31")
    p("s_cbranch_vccz P1_NOKVF")
    flag_publish(p, 30, 29, "s34", SC="")
    p.label("P1_NOKVF")
    p("s_mov_b64 exec, -1")
    stamp(p, 3)
    p("s_setprio 0")
    p(f"v_mov_b32 v1, {v(XC)}")
    p(f"v_lshrrev_b32 v0, 4, {v(XC)}")
    p(f"v_mov_b32 {v(CA)}, {CNT}")
    p("s_xor_b32 s28, s26, 1")
    p("s_lshl_b32 s18, s27, 4")
    p("s_add_u32 s18, s18, s28")
    p("s_lshl_b32 s18, s18, 13")
    p("s_lshl_b32 s10, s31, 11")
    p("s_add_u32 s18, s18, s10")
    p(f"s_add_u32 s18, s18, {WS_QX}")
    p("s_lshl_b32 s28, s28, 2")
    p("s_add_u32 s28, s28, s31")
    p.label("A_INIT")
    p("v_and_b32 v2, 2, v0")
    p("v_cmp_eq_u32 vcc, 0, v2")
    p("v_mov_b32 v3, 0x3f803f80")
    p("v_mov_b32 v2, 0")
    for i in range(2): p(f"v_cndmask_b32 {v(ONES+i)}, v2, v3, vcc")
    for i in range(2, 4): p(f"v_cndmask_b32 {v(ONES+i)}, v3, v2, vcc")
    p("v_and_b32 v2, 1, v0")
    p("v_mul_u32_u24 v2, 0xaaaa, v2")
    p(f"v_add_u32 {v(IDX)}, 0x4444, v2")
    p(f"v_mov_b32 {v(ONE)}, 1")
    for i in range(12): p(f"v_mov_b32 {v(L+i)}, 0")
    for i in range(16): p(f"v_mov_b32 {v(O+i)}, 0")
    for i in range(12, 16): p(f"v_mov_b32 {v(F1+i)}, 0")
    p("s_and_b32 s29, s26, 1")
    p("s_lshl_b32 s10, s27, 1")
    p("s_add_u32 s29, s29, s10")
    p("s_mov_b32 s22, 0")
    p(f"v_add_u32 {v(VC)}, {OWNC}, v1")
    p("s_lshl_b32 s10, s3, 2")
    p(f"s_add_u32 s10, s10, {CNT + C_PROG}")
    p(f"v_mov_b32 {v(VP)}, s10")
    p("s_mov_b32 s25, 2")
    p("s_cmp_lt_u32 s3, 4")
    p("s_cselect_b32 s23, 1, 0")
    lds_wait_ge(p, "A_OW", CA, C_OWN, 2, CV_, sleep=opt("owslp", 2))
    for j in range(2): p(f"ds_read_b128 {v(F1+4*j,4)}, {v(VC)} offset:{j*1024}")
    p("s_cmp_ge_u32 s3, 4")
    p("s_cbranch_scc1 A_FARQ")
    for j in range(2): p(f"ds_read_b128 {v(Q+4*j,4)}, {v(SB)} offset:{j*1024}")
    p("s_branch A_HAVEQ")
    p.label("A_FARQ")
    lds_wait_ge(p, "A_QW", CA, C_QRDY, 1, CV_, sleep=1)
    p(f"v_readfirstlane_b32 s10, {v(CV_)}")
    p("s_cmp_eq_u32 s10, 1")
    p(f"s_cselect_b32 s10, {LOC}, 0")
    p("s_add_u32 s18, s18, s10")
    for j in range(2): p(f"buffer_load_dwordx4 {v(Q+4*j,4)}, v1, s[12:15], s18 offen offset:{j*1024}{SC}")
    p("s_waitcnt vmcnt(0)")
    p.label("A_HAVEQ")
    stamp(p, 2)
    p("s_waitcnt lgkmcnt(0)")
    p(mf32(SA, F1, Q, "0"))
    p(mf32(SA, F1+4, Q+4, SA))
    for j in range(2): p(f"ds_read_b128 {v(F0+4*j,4)}, {v(VC)} offset:{2048+j*1024}")
    for j in range(2): p(f"ds_read_b128 {v(F0+8+4*j,4)}, {v(VC)} offset:{8192+j*1024}")
    p("s_nop 7")
    T_ = NEGM
    p(f"v_max3_f32 {v(T_)}, {v(SA)}, {v(SA+1)}, {v(SA+2)}")
    for i in range(3, 15, 2): p(f"v_max3_f32 {v(T_)}, {v(T_)}, {v(SA+i)}, {v(SA+i+1)}")
    p(f"v_max_f32 {v(T_)}, {v(T_)}, {v(SA+15)}")
    p(f"v_mov_b32 {v(CV_)}, {v(T_)}")
    p("s_nop 1")
    p(f"v_permlane32_swap_b32 {v(T_)}, {v(CV_)}")
    p(f"v_max_f32 {v(CV_)}, {v(T_)}, {v(CV_)}")
    for i in range(16): p(f"v_sub_f32 {v(NEGM+i)}, 0, {v(CV_)}")
    for i in range(16): p(f"v_sub_f32 {v(SA+i)}, {v(SA+i)}, {v(CV_)}")
    p(f"v_mov_b32 {v(CV_)}, 0")
    p("s_branch A_ENTRY")
    ORDER = "w0 Y S0 r0 e3 O1p r1 e3 LS e2 S1 r2 c4 e2 O0 r3 e3 X e3 c4"
    LS = f"v_smfmac_f32_16x16x64_bf16 {v(L,4)}, {v(ONES,4)}, {v(P0,8)}, {v(IDX)}"
    def step(F, Sc, Sn, Fn, u, extra=None, head=None):
        e = 0; c = 0
        for t in ORDER.split():
            if t == "S0":
                if u is not None: p(mf32(Sn, F, Q, NEGM))
            elif t == "S1":
                if u is not None: p(mf32(Sn, F+4, Q+4, Sn))
            elif t == "O0": p(mf32(O, F+8, P0, O))
            elif t == "O1p": p(mf32(O, Fn+12, P1, O))
            elif t == "X":
                if extra: extra()
            elif t == "Y":
                if head: head()
            elif t == "LS": p(LS)
            elif t[0] == "e":
                for _ in range(int(t[1:])): p(f"v_exp_f32 {v(Sc+e)}, {v(Sc+e)}"); e += 1
            elif t[0] == "c":
                for _ in range(int(t[1:])): p(f"v_cvt_pk_bf16_f32 {v(P0+c)}, {v(Sc+2*c)}, {v(Sc+2*c+1)}"); c += 1
            elif t[0] == "r":
                if u is not None:
                    j = int(t[1:])
                    if j >= 2: p(f"ds_read_b128 {v(Fn+4*j,4)}, {v(VC)} offset:{8192+u*2048+(j-2)*1024}")
                    elif u < 3: p(f"ds_read_b128 {v(Fn+4*j,4)}, {v(VC)} offset:{(u+1)*2048+j*1024}")
                    else: p(f"ds_read_b128 {v(Fn+4*j,4)}, {v(VN)} offset:{j*1024}")
            elif t[0] == "w": p(f"s_waitcnt lgkmcnt({t[1:]})")
    def arrive():
        p("s_mov_b64 exec, 1")
        p(f"ds_add_u32 {v(VP)}, {v(ONE)}")
        p("s_mov_b64 exec, -1")
        if opt("dyn", 0):
            p(f"v_xor_b32 {v(CV_)}, 16, {v(VP)}")
            p(f"ds_read_b32 {v(CV_)}, {v(CV_)}")
    def lead():
        p(f"v_readfirstlane_b32 s10, {v(CV_)}")
        p("s_add_u32 s10, s10, 2")
        p("s_cmp_gt_u32 s25, s10")
        p("s_cselect_b32 s23, 1, 0")
    def peek():
        p(f"ds_read_b32 {v(CV_)}, {v(CA)} offset:{C_KVL}")
        p(f"v_add_u32 {v(VN)}, s22, v1")
        p("s_add_u32 s22, s22, 16384")
        p(f"s_cmp_ge_u32 s22, {RING}")
        p("s_cselect_b32 s22, 0, s22")
    def chk():
        p.label("A_CHK")
        p(f"v_cmp_gt_u32 vcc, s25, {v(CV_)}")
        p("s_cbranch_vccnz A_SPIN")
    def flip():
        p(f"v_mov_b32 {v(VC)}, {v(VN)}")
        p("s_add_u32 s25, s25, 1")
    LAD = [int(c) for c in OPT.get("lad", "3210")]
    LAD2 = [int(c) for c in OPT.get("lad2", OPT.get("lad", "3210"))]
    DYN = opt("dyn", 0)
    def prio(i):
        p(f"s_setprio {LAD[i]}")
        if LAD2[i] != LAD[i]:
            p("s_cmp_eq_u32 s23, 0")
            p(f"s_cbranch_scc1 A_PR{i}")
            p(f"s_setprio {LAD2[i]}")
            p.label(f"A_PR{i}")
    p.label("A_SPIN")
    bail(p)
    p("s_sleep 1")
    p(f"ds_read_b32 {v(CV_)}, {v(CA)} offset:{C_KVL}")
    p("s_waitcnt lgkmcnt(0)")
    p("s_branch A_CHK")
    p.pads(0)
    if opt("al2", -1) >= 0:
        p(".p2align 6")
        for _ in range(opt("al2")): p("s_nop 0")
    p.label("A_LOOP")
    prio(0)
    step(F1, SB, SA, F0, 0, extra=arrive)
    p.label("A_ENTRY")
    prio(1)
    step(F0, SA, SB, F1, 1, extra=lead if opt("dyn", 0) else None)
    prio(2)
    step(F1, SB, SA, F0, 2, extra=peek)
    prio(3)
    step(F0, SA, SB, F1, 3, extra=flip, head=chk)
    if STAMP:
        for (n_, i_) in ((3, 4), (4, 5), (6, 6), (10, 7)):
            p(f"s_cmp_lg_u32 s25, {n_}")
            p(f"s_cbranch_scc1 A_ST{n_}")
            stamp(p, i_)
            p.label(f"A_ST{n_}")
    p("s_cmp_lt_u32 s25, 18")
    p("s_cbranch_scc1 A_LOOP")
    p.pads(PADN)
    step(F1, SB, SA, F0, None, extra=arrive)
    p("s_nop 1")
    p(mf32(O, F1+12, P1, O))
    p(LS)
    stamp(p, 8)
    p("v_and_b32 v2, 256, v1")
    p("v_cmp_eq_u32 vcc, 0, v2")
    p("s_lshl_b32 s10, s28, 16")
    p("s_lshl_b32 s11, s29, 11")
    p("s_add_u32 s10, s10, s11")
    p("s_nop 3")
    p(f"s_add_u32 s35, s10, {WS_O}")
    p(f"s_mov_b32 s11, {f32bits(2.0**100)}")
    p("s_nop 0")
    p(f"v_add_f32 {v(L)}, {v(L)}, {v(L+1)}")
    p(f"v_add_f32 {v(L+2)}, {v(L+2)}, {v(L+3)}")
    p(f"v_cndmask_b32 v2, {v(L+2)}, {v(L)}, vcc")
    p(f"v_add_f32 v3, abs({v(O)}), v2")
    for i in range(1, 16): p(f"v_add_f32 v3, abs({v(O+i)}), v3")
    p("v_cmp_ngt_f32 vcc, s11, v3")
    if opt("forcefb"): p("s_branch A_FALLBACK")
    p("s_cbranch_vccnz A_FALLBACK")
    p.label("A_FIN")
    p("v_rcp_f32 v2, v2")
    p("s_nop 0")
    for j in range(2):
        for i in range(8 * j, 8 * j + 8): p(f"v_mul_f32 {v(O+i)}, v2, {v(O+i)}")
        for i in range(4 * j, 4 * j + 4): p(f"v_cvt_pk_bf16_f32 {v(P0+i)}, {v(O+2*i)}, {v(O+2*i+1)}")
        p(f"buffer_store_dwordx4 {v(P0+4*j,4)}, v1, s[12:15], s35 offen offset:{1024*j}{SC}")
    OB, WF, AC3 = 76, 8, 40
    p(f"s_load_dwordx2 s[36:37], s[0:1], {D_OUT}")
    p("s_setprio 0")
    p("s_and_b32 s10, s26, 14")
    p(f"s_mul_i32 s34, s10, {FLS}")
    p(f"s_add_u32 s34, s34, {FL_O}")
    p("s_lshl_b32 s10, s29, 3")
    p("s_add_u32 s34, s34, s10")
    p("v_lshrrev_b32 v0, 4, v1")
    p(f"v_mul_u32_u24 v72, {FLS}, v0")
    p("s_waitcnt vmcnt(0)")
    p("s_mov_b64 exec, 1")
    p(f"ds_add_rtn_u32 {v(CV_)}, {v(CA)}, {v(ONE)} offset:{C_OARR}")
    p("s_waitcnt lgkmcnt(0)")
    p(f"v_cmp_eq_u32 vcc, 7, {v(CV_)}")
    p("s_cbranch_vccz G_NOFLAG")
    p("s_mov_b64 exec, 3")
    flag_publish(p, 2, 72, "s34")
    p.label("G_NOFLAG")
    p("s_mov_b64 exec, -1")
    stamp(p, 9)
    if opt("p3w", 4) == 4:
        p("s_cmp_ge_u32 s3, 4")
        p("s_cbranch_scc1 G_FIN")
        OB, WF, AC3 = 56, 8, 24
        tile3(p)
        p("s_lshl_b32 s28, s38, 2")
        p("s_add_u32 s28, s28, s3")
        p("s_lshl_b32 s10, s28, 16")
        p(f"s_add_u32 s10, s10, {WS_O}")
        srd(p, 16, 98, 99, 65536, off="s10")
        srd(p, 20, 36, 37, 8 * MB)
        p("v_add_u32 v2, 4096, v1")
        p("v_lshrrev_b32 v6, 5, v0")
        p("v_lshlrev_b32 v5, 9, v6")
        p("v_bfe_u32 v7, v0, 2, 2")
        p("v_lshl_add_u32 v5, v7, 6, v5")
        p("v_bfe_u32 v7, v0, 4, 1")
        p("v_lshl_add_u32 v5, v7, 5, v5")
        p("v_and_b32 v7, 3, v0")
        p("v_lshl_add_u32 v5, v7, 3, v5")
        for i in range(AC3, AC3 + 32): p(f"v_mov_b32 {v(i)}, 0")
        p("v_and_b32 v7, 31, v0")
        p("v_lshlrev_b32 v7, 12, v7")
        p("v_lshl_add_u32 v7, v6, 4, v7")
        p("s_lshl_b32 s30, s28, 17")
        p("s_lshl_b32 s11, s39, 7")
        p("s_add_u32 s30, s30, s11")
        p("s_add_u32 s30, s30, 2048")
        p("s_mov_b32 s24, 0")
        p("s_mov_b32 s25, 0")
        p(f"s_mov_b32 s31, {WTAB}")
        p("s_mov_b32 s29, 3")
        def acq(u, j):
            p("s_andn2_b32 s10, s25, s24")
            p(f"s_cbranch_scc1 G_AQ{u}b")
            p.label(f"G_AQ{u}a")
            p(f"ds_read_b32 {v(CV_)}, {v(CA)} offset:{C_OMASK}")
            p("s_waitcnt lgkmcnt(0)")
            p(f"v_readfirstlane_b32 s25, {v(CV_)}")
            p("s_andn2_b32 s10, s25, s24")
            p(f"s_cbranch_scc1 G_AQ{u}b")
            bail(p)
            p("s_sleep 2")
            p(f"s_branch G_AQ{u}a")
            p.label(f"G_AQ{u}b")
            p("s_ff1_i32_b32 s11, s10")
            p("s_bitset1_b32 s24, s11")
            p("s_lshl_b32 s10, s11, 11")
            p("s_lshr_b32 s11, s31, s11")
            p("s_and_b32 s11, s11, 15")
            p(f"s_lshl_b32 s{40+j}, s11, 14")
            for n in range(8): p(f"buffer_load_dwordx4 {v(OB+32*j+4*n,4)}, {v(1+(n>>2))}, s[16:19], s10 offen offset:{1024*(n&3)}{SC}")
        def rd(b, ks, va): return [f"ds_read_b64_tr_b16 {v(WF+8*b+4*nt+2*h,2)}, {va} offset:{ks*2048+h*1024+nt*256}" for nt in range(2) for h in range(2)]
        def group(j, rest, nxt):
            va, vb = f"v{3+j}", f"v{4-j}"
            if nxt: p(f"v_add_u32 {vb}, s{41-j}, v5")
            for ks in range(8):
                R = rd((ks + 1) & 1, ks + 1, va) if ks < 7 else (rd(0, 0, vb) if nxt else [])
                M = [mf32(AC3+16*nt, WF+8*(ks&1)+4*nt, OB+32*j+4*ks, AC3+16*nt) for nt in range(2)]
                p(f"s_waitcnt vmcnt({rest + 7 - ks}) lgkmcnt(2)")
                p(M[0])
                for r_ in R[:2]: p(r_)
                p(f"s_waitcnt lgkmcnt({2 if R else 0})")
                p(M[1])
                for r_ in R[2:]: p(r_)
        acq(0, 0)
        stamp(p, 10)
        p("s_setprio 3")
        p("v_add_u32 v3, s40, v5")
        for r_ in rd(0, 0, "v3"): p(r_)
        acq(1, 1)
        p.label("G_LOOP")
        group(0, 8, True); acq(2, 0)
        group(1, 8, True); acq(3, 1)
        p("s_sub_u32 s29, s29, 1")
        p("s_cmp_lg_u32 s29, 0")
        p("s_cbranch_scc1 G_LOOP")
        group(0, 8, True)
        group(1, 0, False)
        stamp(p, 11)
        p("s_nop 9")
        for nt in range(2):
            if nt: p("s_nop 0")
            for i in range(8): p(f"v_cvt_pk_bf16_f32 {v(WF+8*nt+i)}, {v(AC3+16*nt+2*i)}, {v(AC3+16*nt+2*i+1)}")
            p("s_nop 1")
            for pr in range(2):
                b_ = WF + 8 * nt + 4 * pr
                p(f"v_permlane32_swap_b32 {v(b_)}, {v(b_+2)}")
                p(f"v_permlane32_swap_b32 {v(b_+1)}, {v(b_+3)}")
                p(f"buffer_store_dwordx4 {v(b_,4)}, v7, s[20:23], s30 offen offset:{64*nt+32*pr}")
        p.label("G_FIN")
    else:
        tile3(p)
        p("s_and_b32 s28, s3, 3")
        p("s_lshl_b32 s10, s38, 2")
        p("s_add_u32 s28, s28, s10")
        p("s_lshr_b32 s29, s3, 2")
        p("s_lshl_b32 s10, s28, 16")
        p("s_lshl_b32 s11, s29, 12")
        p("s_add_u32 s10, s10, s11")
        p(f"s_add_u32 s10, s10, {WS_O}")
        srd(p, 16, 98, 99, 65536, off="s10")
        srd(p, 20, 36, 37, 8 * MB)
        p("v_lshrrev_b32 v6, 5, v0")
        p("v_lshlrev_b32 v5, 9, v6")
        p("v_bfe_u32 v7, v0, 2, 2")
        p("v_lshl_add_u32 v5, v7, 6, v5")
        p("v_bfe_u32 v7, v0, 4, 1")
        p("v_lshl_add_u32 v5, v7, 5, v5")
        p("v_and_b32 v7, 3, v0")
        p("v_lshl_add_u32 v5, v7, 3, v5")
        p("s_lshl_b32 s10, s29, 13")
        p("v_add_u32 v5, s10, v5")
        for i in range(AC3, AC3 + 32): p(f"v_mov_b32 {v(i)}, 0")
        p("v_and_b32 v73, 31, v0")
        p("v_lshlrev_b32 v73, 12, v73")
        p("v_lshl_add_u32 v73, v6, 4, v73")
        p("s_lshl_b32 s10, s3, 12")
        p("v_add_u32 v74, s10, v1")
        p("v_xor_b32 v75, 16384, v74")
        p("s_lshl_b32 s30, s28, 17")
        p("s_lshl_b32 s11, s39, 7")
        p("s_add_u32 s30, s30, s11")
        p("s_lshl_b32 s11, s29, 6")
        p("s_add_u32 s30, s30, s11")
        p("s_add_u32 s30, s30, 2048")
        p("s_mov_b32 s24, 0")
        p("s_mov_b32 s25, 0")
        p(f"s_mov_b32 s31, {WTAB}")
        def acq(u):
            j = u % 3
            p("s_andn2_b32 s10, s25, s24")
            p(f"s_cbranch_scc1 G_AQ{u}b")
            p.label(f"G_AQ{u}a")
            p(f"ds_read_b32 {v(CV_)}, {v(CA)} offset:{C_OMASK}")
            p("s_waitcnt lgkmcnt(0)")
            p(f"v_readfirstlane_b32 s25, {v(CV_)}")
            p("s_andn2_b32 s10, s25, s24")
            p(f"s_cbranch_scc1 G_AQ{u}b")
            bail(p)
            p("s_sleep 2")
            p(f"s_branch G_AQ{u}a")
            p.label(f"G_AQ{u}b")
            p("s_ff1_i32_b32 s11, s10")
            p("s_bitset1_b32 s24, s11")
            p("s_lshl_b32 s10, s11, 11")
            p("s_lshr_b32 s11, s31, s11")
            p("s_and_b32 s11, s11, 15")
            p(f"s_lshl_b32 s{40+j}, s11, 14")
            for n in range(4): p(f"buffer_load_dwordx4 {v(OB+16*j+4*n,4)}, v1, s[16:19], s10 offen offset:{1024*n}{SC}")
        def rdw(u):
            p(f"v_add_u32 v4, s{40+u%3}, v5")
            for ks in range(4):
                for nt in range(2):
                    for h in range(2): p(f"ds_read_b64_tr_b16 {v(WF+8*ks+4*nt+2*h,2)}, v4 offset:{ks*2048+h*1024+nt*256}")
        acq(0)
        stamp(p, 10)
        rdw(0); acq(1); acq(2)
        for u in range(8):
            rest = 4 * min(2, 7 - u)
            for ks in range(4):
                p(f"s_waitcnt vmcnt({rest + 3 - ks}) lgkmcnt({12 - 4*ks})")
                for nt in range(2): p(mf32(AC3+16*nt, WF+8*ks+4*nt, OB+16*(u%3)+4*ks, AC3+16*nt))
            if u < 7: rdw(u + 1)
            if u + 3 < 8: acq(u + 3)
        stamp(p, 11)
        p("s_barrier")
        p("s_cmp_eq_u32 s29, 0")
        p("s_cbranch_scc1 G_X0")
        p("s_nop 7")
        for j in range(4): p(f"ds_write_b128 v74, {v(AC3+4*j,4)} offset:{1024*j}")
        for i in range(16): p(f"v_mov_b32 {v(AC3+i)}, {v(AC3+16+i)}")
        p("s_branch G_X1")
        p.label("G_X0")
        p("s_nop 8")
        for j in range(4): p(f"ds_write_b128 v74, {v(AC3+16+4*j,4)} offset:{1024*j}")
        p.label("G_X1")
        p("s_waitcnt lgkmcnt(0)")
        p("s_barrier")
        for j in range(4): p(f"ds_read_b128 {v(AC3+16+4*j,4)}, v75 offset:{1024*j}")
        for pr in range(2):
            p(f"s_waitcnt lgkmcnt({2-2*pr})")
            for i in range(8 * pr, 8 * pr + 8): p(f"v_add_f32 {v(AC3+i)}, {v(AC3+i)}, {v(AC3+16+i)}")
            b = WF + 4 * pr
            for i in range(4): p(f"v_cvt_pk_bf16_f32 {v(b+i)}, {v(AC3+8*pr+2*i)}, {v(AC3+8*pr+2*i+1)}")
            p("s_nop 1")
            p(f"v_permlane32_swap_b32 {v(b)}, {v(b+2)}")
            p(f"v_permlane32_swap_b32 {v(b+1)}, {v(b+3)}")
            p(f"buffer_store_dwordx4 {v(b,4)}, v73, s[20:23], s30 offen offset:{32*pr}")
    stamp(p, 12)
    stamp_flush(p)
    p.pads(0)
    p.label("L_END")
    p("s_endpgm")
    p.label("A_FALLBACK")
    p(f"ds_read_b32 {v(CV_)}, {v(CA)} offset:{C_GALL}")
    p("s_waitcnt lgkmcnt(0)")
    p(f"v_readfirstlane_b32 s31, {v(CV_)}")
    M_, AL = NEGM, NEGM + 1
    for i in range(16): p(f"v_mov_b32 {v(O+i)}, 0")
    p("v_mov_b32 v2, 0")
    p(f"v_mov_b32 {v(M_)}, 0xff7fffff")
    p("s_lshl_b32 s30, s29, 18")
    p("s_mov_b32 s25, 0")
    p.label("A_FBL")
    p("s_lshr_b32 s10, s25, 2")
    p("s_bitcmp1_b32 s31, s10")
    p(f"s_cselect_b32 s11, {LOC}, 0")
    p("s_lshl_b32 s10, s10, 14")
    p("s_add_u32 s10, s10, s11")
    p("s_and_b32 s11, s25, 3")
    p("s_lshl_b32 s11, s11, 11")
    p("s_add_u32 s10, s10, s11")
    p("s_add_u32 s10, s10, s30")
    p("s_add_u32 s11, s10, 8192")
    for j in range(2): p(f"buffer_load_dwordx4 {v(F0+4*j,4)}, v1, s[12:15], s10 offen offset:{1024*j}{SC}")
    for j in range(2): p(f"buffer_load_dwordx4 {v(F0+8+4*j,4)}, v1, s[12:15], s11 offen offset:{1024*j}{SC}")
    p("s_waitcnt vmcnt(0)")
    p(mf32(SA, F0, Q, "0"))
    p(mf32(SA, F0+4, Q+4, SA))
    p("s_nop 15")
    p(f"v_max3_f32 v3, {v(SA)}, {v(SA+1)}, {v(M_)}")
    for i in range(2, 16, 2): p(f"v_max3_f32 v3, v3, {v(SA+i)}, {v(SA+i+1)}")
    p(f"v_mov_b32 {v(SB)}, v3")
    p("s_nop 1")
    p(f"v_permlane32_swap_b32 v3, {v(SB)}")
    p(f"v_max_f32 v3, v3, {v(SB)}")
    p(f"v_sub_f32 {v(AL)}, {v(M_)}, v3")
    p(f"v_exp_f32 {v(AL)}, {v(AL)}")
    p(f"v_mov_b32 {v(M_)}, v3")
    for i in range(16): p(f"v_sub_f32 {v(SA+i)}, {v(SA+i)}, v3")
    for i in range(16): p(f"v_exp_f32 {v(SA+i)}, {v(SA+i)}")
    p(f"v_mul_f32 v2, v2, {v(AL)}")
    for i in range(16): p(f"v_mul_f32 {v(O+i)}, {v(O+i)}, {v(AL)}")
    for i in range(16): p(f"v_add_f32 v2, v2, {v(SA+i)}")
    for i in range(8): p(f"v_cvt_pk_bf16_f32 {v(P0+i)}, {v(SA+2*i)}, {v(SA+2*i+1)}")
    p("s_nop 1")
    p(mf32(O, F0+8, P0, O))
    p(mf32(O, F0+12, P1, O))
    p("s_nop 15")
    p("s_add_u32 s25, s25, 1")
    p("s_cmp_lt_u32 s25, 64")
    p("s_cbranch_scc1 A_FBL")
    p("v_mov_b32 v3, v2")
    p("s_nop 1")
    p("v_permlane32_swap_b32 v2, v3")
    p("v_add_f32 v2, v2, v3")
    p("s_branch A_FIN")

    p.label("L_HELPERS")
    p("s_cmp_ge_u32 s3, 9")
    p("s_cbranch_scc1 L_PARTA")
    emit_w8(p)
    p.label("L_PARTA")
    emit_partA(p)

def emit_w8(p):
    p(f"s_load_dwordx2 s[36:37], s[0:1], {B_WO}")
    if opt("cpf", 1):
        p("s_getpc_b64 s[40:41]")
        p.label("W8_PC")
        p(f"s_sub_u32 s40, s40, W8_PC-{NAME}")
        p("s_subb_u32 s41, s41, 0")
        p("v_lshlrev_b32 v21, 7, v0")
        for j in range(2):
            p(f"v_add_u32 v22, {8192*j}, v21")
            p(f"v_min_u32 v22, L_CODE_END-{NAME}-4, v22")
            p(f"global_load_dword v{23+j}, v22, s[40:41]")
    p("v_and_b32 v8, 3, v0")
    p("v_lshlrev_b32 v8, 2, v8")
    p(f"v_add_u32 v8, {CNT}, v8")
    p("v_and_b32 v9, 7, v0")
    p("v_lshlrev_b32 v9, 2, v9")
    p(f"v_add_u32 v9, {CNT}, v9")
    p(f"v_mov_b32 v20, {CNT}")
    p("s_waitcnt lgkmcnt(0)")
    p("s_add_u32 s94, s96, 0x1000000")
    p("s_addc_u32 s95, s97, 0")
    p("v_lshlrev_b32 v1, 4, v0")
    p("v_and_b32 v6, 15, v0")
    p("v_lshlrev_b32 v6, 3, v6")
    srd(p, 12, 98, 99, WS_SIZE)
    p(f"s_mul_i32 s34, s27, {FLS}")
    p(f"s_add_u32 s34, s34, {FL_KV}")
    p("s_and_b32 s30, s26, 1")
    p("s_lshl_b32 s10, s27, 1")
    p("s_add_u32 s30, s30, s10")
    p("s_lshl_b32 s30, s30, 18")
    p("s_xor_b32 s31, s26, 1")
    p("s_mov_b32 s47, 0")
    local_flag_base(p, 35)
    p("s_mov_b32 s48, 0")
    p("s_mov_b32 s49, 0")
    p("s_lshl_b32 s10, s26, 3")
    p("s_add_u32 s10, s10, 128")
    p("v_mov_b32 v17, s10")
    for _ in range(4): p("s_barrier")
    p("s_mov_b64 exec, 1")
    flag_publish(p, 18, 17, "s35", SC="")
    p("s_mov_b64 exec, -1")
    p("v_and_b32 v16, 31, v0")
    p("v_lshlrev_b32 v16, 3, v16")
    p("s_lshl_b32 s44, 1, s26")
    p("s_mov_b32 s45, 0")
    p("s_mov_b32 s46, 0x4000")
    p("s_mov_b32 s21, 0")
    p("s_mov_b32 s25, 1")
    tile3(p)
    p("v_lshrrev_b32 v5, 5, v0")
    p("v_lshlrev_b32 v5, 2, v5")
    p("v_bfe_u32 v7, v0, 2, 2")
    p("v_add_u32 v5, v5, v7")
    p("v_lshlrev_b32 v5, 11, v5")
    p("v_bfe_u32 v7, v0, 4, 1")
    p("v_lshl_add_u32 v5, v7, 6, v5")
    p("v_and_b32 v7, 3, v0")
    p("v_lshl_add_u32 v10, v7, 4, v5")
    for jj in range(1, 4): p(f"v_add_u32 {v(10+jj)}, {jj*(16384-1024)}, v10")
    p("s_lshl_b32 s11, s39, 7")
    p(f"s_sub_u32 s18, {2*MB}, s11")
    p("s_add_u32 s16, s36, s11")
    p("s_addc_u32 s17, s37, 0")
    p("s_mov_b32 s19, 0x20000")
    p("s_setprio 3")
    for _ in range(8): p("s_barrier")
    p(f"buffer_load_dwordx2 v[18:19], v6, s[12:15], s35 offen offset:128{SC}")
    for _ in range(4): p("s_barrier")
    p("s_waitcnt vmcnt(0)")
    flag_test(p, 18)
    p("s_cmp_eq_u64 vcc, -1")
    p("s_cselect_b32 s50, 1, 2")
    if opt("forceg"): p("s_mov_b32 s50, 2")
    p("v_mov_b32 v3, s50")
    p(f"ds_write_b32 v20, v3 offset:{C_CPY}")
    lds_wait_ge(p, "W8_E2", 20, C_KVST, 4, 3, sleep=1)
    stamp(p, 1)
    p.pads(opt("pada"))
    p.label("W8_LOOP")
    p("s_cmp_eq_u32 s47, 0")
    p("s_cbranch_scc1 W8_POLL")
    p("s_andn2_b32 s10, s45, s44")
    p("s_cbranch_scc1 W8_HAVE")
    p.label("W8_POLL")
    p(f"buffer_load_dwordx2 v[18:19], v6, s[12:15], s35 offen{SC}")
    p("s_add_u32 s49, s49, 1")
    bail(p)
    p("s_cmp_eq_u32 s50, 1")
    p("s_cbranch_scc1 W8_PL")
    p(f"buffer_load_dwordx2 v[14:15], v6, s[12:15], s34 offen{SC}")
    p("s_waitcnt vmcnt(0)")
    flag_test(p, 14)
    p("s_and_b32 s45, vcc_lo, 0xffff")
    p("s_sub_u32 s46, s46, 1")
    p("s_cselect_b32 s45, 0xffff, s45")
    p.label("W8_PL")
    p("v_mov_b32 v3, s25")
    p("s_waitcnt vmcnt(0)")
    p(f"ds_write_b32 v20, v3 offset:{C_KVL}")
    if STAMP:
        p("s_cmp_lg_u32 s49, 1")
        p("s_cbranch_scc1 W8_STP")
        stamp(p, 6)
        p.label("W8_STP")
    flag_test(p, 18)
    p("s_and_b32 s48, vcc_lo, 0xffff")
    p("s_or_b32 s45, s45, s48")
    p("s_cmp_lg_u32 s47, 0")
    p("s_cbranch_scc1 W8_QD")
    p("s_bitcmp1_b32 s45, s31")
    p("s_cselect_b32 s47, 2, 0")
    p("s_bitcmp1_b32 s48, s31")
    p("s_cselect_b32 s47, 1, s47")
    p("v_mov_b32 v3, s47")
    p(f"ds_write_b32 v20, v3 offset:{C_QRDY}")
    p.label("W8_QD")
    p("s_andn2_b32 s10, s45, s44")
    p("s_cbranch_scc1 W8_HAVE")
    p(f"s_sleep {opt('kslp', 2)}")
    p("s_branch W8_POLL")
    p.label("W8_NOSLOT")
    p("v_mov_b32 v3, s25")
    p("s_waitcnt vmcnt(0)")
    p(f"ds_write_b32 v20, v3 offset:{C_KVL}")
    bail(p)
    p("s_sleep 4")
    p("s_branch W8_LOOP")
    p.label("W8_HAVE")
    p("s_sub_u32 s24, s25, 5")
    p(f"ds_read_b32 v3, v9 offset:{C_PROG}")
    p("s_waitcnt lgkmcnt(0)")
    p("v_cmp_gt_i32 vcc, s24, v3")
    p("s_cbranch_vccnz W8_NOSLOT")
    p("s_lshr_b32 s11, s10, s26")
    p("s_cselect_b32 s11, s11, s10")
    p("s_cselect_b32 s20, s26, 0")
    p("s_ff1_i32_b32 s11, s11")
    p("s_add_u32 s11, s11, s20")
    p("s_bitset1_b32 s44, s11")
    p("s_lshl_b32 s20, s11, 14")
    p("s_add_u32 s20, s20, s30")
    p("s_bitcmp1_b32 s48, s11")
    p(f"s_cselect_b32 s10, {LOC}, 0")
    p("s_add_u32 s20, s20, s10")
    for q_ in range(4):
        p("s_mov_b32 m0, s21")
        p("s_add_u32 s21, s21, 4096")
        for j in range(4): p(f"buffer_load_dwordx4 v1, s[12:15], s20 offen offset:{1024*j}{SC} lds")
        p("s_add_u32 s20, s20, 4096")
    p(f"s_cmp_ge_u32 s21, {RING}")
    p("s_cselect_b32 s21, 0, s21")
    p("v_mov_b32 v3, s25")
    p("s_add_u32 s25, s25, 1")
    p("s_waitcnt vmcnt(16)")
    p(f"ds_write_b32 v20, v3 offset:{C_KVL}")
    if STAMP:
        for (n_, i_) in ((2, 2), (3, 3), (6, 4)):
            p(f"s_cmp_lg_u32 s25, {n_}")
            p(f"s_cbranch_scc1 W8_ST{n_}")
            stamp(p, i_)
            p.label(f"W8_ST{n_}")
    p("s_cmp_lt_u32 s25, 16")
    p("s_cbranch_scc1 W8_LOOP")
    p("s_bitset1_b32 s48, s26")
    p("v_mov_b32 v7, s48")
    p(f"ds_write_b32 v20, v7 offset:{C_GALL}")
    p("v_mov_b32 v3, 17")
    p("s_waitcnt vmcnt(0)")
    p(f"ds_write_b32 v20, v3 offset:{C_KVL}")
    stamp(p, 5)
    p(f"s_mul_i32 s34, s38, {FLS}")
    p(f"s_add_u32 s34, s34, {FL_O}")
    order = [(0, 11, 0), (1, 12, 0), (2, 13, 0), (3, 13, 4), (4, 13, 4), (5, 13, 4), (6, 14, 4), (7, 15, 4)]
    pack = lambda f: sum(f(o) << (4 * i) for i, o in enumerate(order))
    p(f"s_mov_b32 s41, {WTAB}")
    p(f"s_mov_b32 s42, {pack(lambda o: o[1] - 8)}")
    p("s_mov_b32 s25, 0")
    p("s_mov_b32 s44, 0")
    p("s_mov_b32 s46, 0x4000")
    p.label("W8_WLOOP")
    p("s_cmp_lg_u32 s25, 3")
    p("s_cbranch_scc1 W8_WNC")
    lds_wait_ge(p, "W8_CV", 20, C_A2, 4, 3, sleep=4)
    p.label("W8_WNC")
    p("s_and_b32 s24, s42, 15")
    p("s_add_u32 s24, s24, 8")
    p(f"ds_read_b32 v3, v9 offset:{C_PROG}")
    p("s_waitcnt lgkmcnt(0)")
    p("v_cmp_gt_i32 vcc, s24, v3")
    p("s_cbranch_vccnz W8_WSKIP")
    p("s_lshl_b32 s20, s25, 18")
    p("s_and_b32 s21, s41, 15")
    p("s_lshl_b32 s21, s21, 14")
    p("s_lshl_b32 s10, s25, 2")
    p("s_bitset1_b32 s44, s10")
    for q_ in range(4):
        p("s_mov_b32 m0, s21")
        p("s_add_u32 s21, s21, 4096")
        for jj in range(4): p(f"buffer_load_dwordx4 {v(10+jj)}, s[16:19], s20 offen offset:{1024*jj} lds")
        p("s_add_u32 s20, s20, 65536")
    for r_ in (41, 42): p(f"s_lshr_b32 s{r_}, s{r_}, 4")
    p("s_waitcnt vmcnt(32)")
    p("s_add_u32 s25, s25, 1")
    p("s_cmp_lt_u32 s25, 8")
    p("s_cbranch_scc1 W8_WLOOP")
    lds_wait_ge(p, "W8_OW", 20, C_OARR, opt("ostart", 4), 3, sleep=4)
    p.label("W8_WSKIP")
    p("s_cmp_lt_u32 s25, 8")
    p("s_cbranch_scc1 W8_WNEXT")
    p.label("W8_OPOLL")
    p(f"buffer_load_dwordx2 v[14:15], v16, s[12:15], s34 offen{SC}")
    p("s_waitcnt vmcnt(0)")
    flag_test(p, 14)
    p("s_lshr_b32 s10, vcc_lo, 1")
    p("s_and_b32 s45, vcc_lo, s10")
    p("s_lshr_b32 s10, s45, 2")
    p("s_and_b32 s45, s45, s10")
    p("s_sub_u32 s46, s46, 1")
    p("s_cselect_b32 s45, -1, s45")
    p("s_and_b32 s45, s45, s44")
    lds_wait_ge(p, "W8_OX", 20, C_OARR, 8, 3, sleep=1)
    p("v_mov_b32 v3, s45")
    p(f"ds_write_b32 v20, v3 offset:{C_OMASK}")
    p("s_cmp_eq_u32 s45, 0x11111111")
    p("s_cbranch_scc1 W8_DONE")
    p.label("W8_WNEXT")
    bail(p)
    p(f"s_sleep {opt('oslp', 8)}")
    p("s_cmp_lt_u32 s25, 8")
    p("s_cbranch_scc1 W8_WLOOP")
    p("s_branch W8_OPOLL")
    p.pads(0)
    p.label("W8_DONE")
    if opt("diag"):
        p.label("DG")
        p("s_memrealtime s[92:93]")
        p("s_waitcnt lgkmcnt(0)")
        p("s_sub_u32 s10, s92, s96")
        p(f"s_cmp_lt_u32 s10, {opt('diag')}")
        p("s_cbranch_scc1 DG")
    stamp(p, 12)
    stamp_flush(p)
    p("s_endpgm")

def emit_partA(p):
    pre = "PA"
    nst = [0]
    def st2(L_):
        nst[0] += 1
        p("s_cmp_eq_u32 s9, 1")
        p(f"s_cbranch_scc1 PA_SP{nst[0]}")
        for x in L_: p(x + (SC if x.startswith("buffer") else ""))
        p(f"s_branch PA_SE{nst[0]}")
        p.label(f"PA_SP{nst[0]}")
        for x in L_: p(x)
        p.label(f"PA_SE{nst[0]}")
    p(f"s_load_dwordx8 s[36:43], s[0:1], {A_Q}")
    p(f"s_load_dwordx4 s[44:47], s[0:1], {A_SSMK}")
    p(f"s_load_dwordx4 s[48:51], s[0:1], {B_WO}")
    p("s_sub_u32 s3, s3, 9")
    p("s_lshl_b32 s56, s27, 1")
    p("s_lshr_b32 s10, s3, 1")
    p("s_add_u32 s56, s56, s10")
    p("s_lshl_b32 s56, s56, 4")
    p("s_add_u32 s56, s56, s26")
    p("s_lshl_b32 s56, s56, 14")
    p("s_and_b32 s10, s3, 1")
    p("s_lshl_b32 s10, s10, 13")
    p("s_add_u32 s56, s56, s10")
    p("s_lshl_b32 s57, s27, 4")
    p("s_add_u32 s57, s57, s26")
    p("s_lshl_b32 s57, s57, 13")
    p("s_lshl_b32 s10, s3, 11")
    p("s_add_u32 s57, s57, s10")
    p(f"s_add_u32 s57, s57, {WS_QX}")
    p(f"s_mul_i32 s101, s27, {FLS}")
    p(f"s_add_u32 s101, s101, {FL_KV}")
    p("s_lshl_b32 s10, s26, 3")
    p("s_add_u32 s101, s101, s10")
    if opt("spf", 0):
        p("s_waitcnt lgkmcnt(0)")
        p("s_and_b32 s10, s27, 1")
        p("s_lshl_b32 s10, s10, 2")
        p("s_add_u32 s10, s10, s3")
        p("s_lshl_b32 s10, s10, 15")
        p("s_lshl_b32 s11, s26, 18")
        p("s_add_u32 s10, s10, s11")
        p("s_add_u32 s10, s10, 512")
        p("s_add_u32 s12, s4, s10")
        p("s_addc_u32 s13, s5, 0")
        p("s_lshl_b32 s10, s26, 2")
        p("s_add_u32 s10, s10, s3")
        p("s_add_u32 s10, s10, 256")
        p("s_mul_i32 s10, s10, 6144")
        p("s_lshl_b32 s11, s27, 7")
        p("s_add_u32 s10, s10, s11")
        p("s_add_u32 s14, s6, s10")
        p("s_addc_u32 s15, s7, 0")
        p("v_and_b32 v1, 3, v0")
        p("v_lshlrev_b32 v1, 2, v1")
        p(f"v_add_u32 v1, {CNT}, v1")
        p(f"s_mov_b32 s16, {4 - opt('spf')}")
        p.label("PA_SPF")
        lds_wait_ge(p, "PA_SPW", 1, C_LAND, "s16", 2, sleep=2)
        for hf in range(opt("sph", 1)):
            for r_ in range(16): p(f"s_load_dword s17, s[12:13], {r_*2048 + 64*hf}")
            for t_ in range(3): p(f"s_load_dword s17, s[14:15], {t_*2048 + 64*hf}")
        p("s_add_u32 s12, s12, 128")
        p("s_addc_u32 s13, s13, 0")
        p(f"s_add_u32 s14, s14, {64*6144}")
        p("s_addc_u32 s15, s15, 0")
        p("s_add_u32 s16, s16, 1")
        p(f"s_cmp_lt_i32 s16, {16 - opt('spf')}")
        p("s_cbranch_scc1 PA_SPF")
        p("s_waitcnt lgkmcnt(0)")
    local_flag_base(p, 8)
    p("s_add_u32 s8, s8, 256")
    p("s_mov_b32 s28, s27")
    p("s_lshl_b32 s35, s26, 3")
    p("s_lshl_b32 s29, s26, 2")
    p("s_add_u32 s29, s29, s3")
    p("s_lshl_b32 s27, s28, 6")
    p("s_add_u32 s27, s27, s29")
    p(f"s_mul_i32 s30, s3, {CV_STRIDE}")
    p(f"s_add_u32 s30, s30, {CV_BASE}")
    p("v_and_b32 v1, 7, v0")
    p("v_lshrrev_b32 v2, 3, v0")
    p("s_lshl_b32 s10, s29, 5")
    p("v_lshl_add_u32 v3, v2, 2, s10")
    p("s_lshl_b32 s11, s28, 7")
    p("v_lshl_add_u32 v4, v1, 4, s11")
    p("v_lshl_add_u32 v120, v3, 11, v4")
    p("v_lshl_add_u32 v122, v3, 12, v4")
    p("v_lshlrev_b32 v121, 11, v4")
    p("v_lshl_add_u32 v121, v2, 4, v121")
    p("s_lshr_b32 s31, s29, 4")
    p("s_lshl_b32 s31, s31, 10")
    p("s_and_b32 s26, s29, 7")
    p("s_lshl_b32 s26, s26, 7")
    p("s_add_u32 s31, s31, s26")
    p("s_and_b32 s26, s29, 8")
    p("s_add_u32 s31, s31, s26")
    p("v_add_u32 v121, s31, v121")
    p("v_and_b32 v123, 15, v0")
    p("v_lshlrev_b32 v123, 3, v123")
    p("v_lshlrev_b32 v124, 4, v0")
    p("v_and_b32 v1, 15, v0")
    p("v_lshrrev_b32 v2, 4, v0")
    p("v_lshl_add_u32 v3, v2, 3, s10")
    p("v_lshl_add_u32 v4, v1, 3, s11")
    p("v_lshl_add_u32 v9, v3, 11, v4")
    for j in range(3): p(f"v_add_u32 {v(6+j)}, {(j-3)*2048}, v9")
    for j in range(1, 4): p(f"v_add_u32 {v(9+j)}, {j*4096}, v9")
    p("v_lshlrev_b32 v13, 2, v4")
    p("v_lshrrev_b32 v14, 1, v4")
    p(f"v_mul_u32_u24 v14, {XRS}, v14")
    p("v_lshlrev_b32 v15, 1, v3")
    p("v_sub_u32 v15, 4080, v15")
    p("v_add_u32 v15, v15, v14")
    p("v_lshl_add_u32 v14, v2, 4, v14")
    p("s_lshl_b32 s33, s27, 12")
    p("s_mov_b32 s32, 0xffff0000")
    p(f"s_mul_i32 s34, s28, {FLS}")
    p(f"s_add_u32 s34, s34, {FL_A1}")
    p(f"s_mul_i32 s31, s27, {XRS}")
    p(f"s_add_u32 s31, s31, {WS_XR}")
    p("s_add_u32 s26, s31, 4096")
    p("v_and_b32 v1, 3, v0")
    p("v_lshlrev_b32 v1, 2, v1")
    p(f"v_add_u32 v1, {CNT}, v1")
    p("s_waitcnt lgkmcnt(0)")
    p("s_add_u32 s94, s96, 0x1000000")
    p("s_addc_u32 s95, s97, 0")
    srd(p, 12, 98, 99, WS_SIZE)
    srd(p, 16, 38, 39, 4 * MB)
    srd(p, 20, 40, 41, 4 * MB)
    srd(p, 52, 42, 43, 8192)
    if opt("tch", 0):
        p("v_min_u32 v4, 34, v0")
        p("s_lshl_b32 s10, s29, 5")
        p("s_sub_u32 s10, s10, 3")
        p("v_add_u32 v4, s10, v4")
        p("v_lshlrev_b32 v4, 11, v4")
        p("v_add_u32 v4, s11, v4")
        p(f"s_mul_i32 s10, s3, {opt('tchs', 1)}")
        p(f"s_add_u32 s10, s10, {opt('tch', 0)}")
        lds_wait_ge(p, "PA_T0", 1, C_LAND, "s10", 2, sleep=8)
        p("buffer_load_dword v116, v4, s[16:19], 0 offen")
        p("buffer_load_dword v117, v4, s[20:23], 0 offen")
    if opt("padn") or opt("pada"):
        p("s_cmp_lg_u32 s3, 0")
        p("s_cbranch_scc1 WP_END")
        lds_wait_ge(p, "PA_WP", 1, C_LAND, opt("padat", 8), 2, sleep=16)
        p("s_mov_b64 exec, 0")
        p("s_branch WP0")
        p.label("WP_END")
        p("s_mov_b64 exec, -1")
    if opt("tlb", 0):
        for _ in range(opt("tlbat", 6)): p("s_barrier")
        p("s_cmp_lg_u32 s3, 0")
        p("s_cbranch_scc1 PA_NOTLB")
        p("v_lshlrev_b32 v1, 20, v0")
        p("buffer_load_dword v2, v1, s[12:15], 0 offen")
        p("s_mov_b64 exec, 255")
        for lo, n_ in ((36, 4), (38, 4), (40, 4), (44, 4), (48, 2), (50, 8)):
            srd(p, 60, lo, lo + 1, n_ * MB)
            p("buffer_load_dword v2, v1, s[60:63], 0 offen")
        p("s_mov_b64 exec, -1")
        p.label("PA_NOTLB")
        for _ in range(16 - opt("tlbat", 6)): p("s_barrier")
        p("s_waitcnt vmcnt(0)")
    else:
        for _ in range(16): p("s_barrier")
    p(f"v_mov_b32 v1, {CNT}")
    p.pads(opt("pada"))
    lds_wait_ge(p, "PA_C0", 1, C_CPY, 1, 2, sleep=4)
    p("v_readfirstlane_b32 s9, v2")
    if not opt("pal", 1): p("s_mov_b32 s9, 2")
    p("v_cmp_eq_u32 vcc, 1, v2")
    p("s_cbranch_vccnz PA_C3")
    lds_wait_ge(p, "PA_C1", 1, C_KVST, 4, 2, sleep=2)
    p("v_add_u32 v2, 4096, v124")
    p(f"s_add_u32 s10, s56, {LOC}")
    p(f"s_add_u32 s11, s57, {LOC}")
    for n in range(8): p(f"buffer_load_dwordx4 {v(64+4*n,4)}, {('v124', 'v2')[n>>2]}, s[12:15], s10 offen offset:{1024*(n&3)}{SC}")
    for n in range(2): p(f"buffer_load_dwordx4 {v(96+4*n,4)}, v124, s[12:15], s11 offen offset:{1024*n}{SC}")
    p("s_waitcnt vmcnt(0)")
    for n in range(8): p(f"buffer_store_dwordx4 {v(64+4*n,4)}, {('v124', 'v2')[n>>2]}, s[12:15], s56 offen offset:{1024*(n&3)}{SC}")
    for n in range(2): p(f"buffer_store_dwordx4 {v(96+4*n,4)}, v124, s[12:15], s57 offen offset:{1024*n}{SC}")
    p("v_mov_b32 v2, 1")
    p("v_mov_b32 v3, 0")
    p("s_waitcnt vmcnt(0)")
    p("s_mov_b64 exec, 1")
    p(f"ds_add_rtn_u32 v2, v1, v2 offset:{C_CP2}")
    p("s_waitcnt lgkmcnt(0)")
    p("v_cmp_eq_u32 vcc, 3, v2")
    p("s_cbranch_vccz PA_C2")
    flag_publish(p, 126, 3, "s101")
    p.label("PA_C2")
    p("s_mov_b64 exec, -1")
    p.label("PA_C3")
    lds_wait_ge(p, "PA_W0", 1, C_KVL, opt("hwk", 5), 2, sleep=opt("w0slp", 4))
    p(f"s_setprio {opt('cvprio', 3)}")
    stamp(p, 1)
    KR, VR, SR = 16, 38, 56
    def rowaddr(j):
        if j < 3: return v(6 + j), 0
        return v(9 + (j - 3) // 2), 2048 * ((j - 3) & 1)
    for j in range(2): p(f"buffer_load_dwordx4 {v(SR+4*j,4)}, v13, s[52:55], 0 offen offset:{16*j}")
    for j in range(11):
        a_, o_ = rowaddr(j); p(f"buffer_load_dwordx2 {v(KR+2*j,2)}, {a_}, s[16:19], 0 offen offset:{o_}")
    for j in range(8):
        a_, o_ = rowaddr(j + 3); p(f"buffer_load_dwordx2 {v(VR+2*j,2)}, {a_}, s[20:23], 0 offen offset:{o_}")
    srd(p, 16, 44, 45, 4096, off="s33")
    srd(p, 20, 46, 47, 2048)
    EARLYH = opt("earlyh", 0)
    def hdma(t, u):
        p(f"v_and_b32 {v(u)}, 7, v0")
        p(f"v_lshlrev_b32 {v(u)}, 2, {v(u)}")
        p(f"v_add_u32 {v(u)}, {CNT}, {v(u)}")
        lds_wait_ge(p, "PA_W1", u, C_PROG, 1, u + 1, sleep=4)
        p(f"v_add_u32 {v(t+1)}, -512, v124")
        p(f"v_add_u32 {v(t+2)}, 512, v124")
        p("s_lshl_b32 s10, s27, 1")
        p(f"v_mov_b32 {v(t)}, s10")
        p(f"s_add_u32 m0, s30, {CV_H}")
        p(f"buffer_load_ushort v125, {v(t)}, s[20:23], 0 offen")
        p(f"buffer_load_dwordx4 {v(t+1)}, s[16:19], 0 offen lds")
        p(f"s_add_u32 m0, s30, {CV_H + 1024}")
        p("s_nop 0")
        for j in range(4): p(f"buffer_load_dwordx4 {v(t+2)}, s[16:19], 0 offen offset:{1024*j} lds")
        srd(p, 52, 48, 49, 2 * MB)
        p("s_lshl_b32 s10, s27, 11")
        p(f"v_lshlrev_b32 {v(u)}, 5, v0")
        p(f"buffer_load_dword v127, {v(u)}, s[52:55], s10 offen")
    if EARLYH: hdma(1, 4)
    XH = 7 if EARLYH else 0
    T, KU, AC, OUT = 64, 72, 94, 112
    for cp in range(2):
        if cp == 0:
            p(f"s_waitcnt vmcnt({8 + XH})"); stamp(p, 2)
        for e in range(2):
            for jj in range(2):
                src = SR + 4 * cp + 2 * e + jj
                p(f"v_lshlrev_b32 {v(T+2*(2*jj)+e)}, 16, {v(src)}")
                p(f"v_and_b32 {v(T+2*(2*jj+1)+e)}, s32, {v(src)}")
        for j in range(11):
            p(f"v_lshlrev_b32 {v(KU+2*j)}, 16, {v(KR+2*j+cp)}")
            p(f"v_and_b32 {v(KU+2*j+1)}, s32, {v(KR+2*j+cp)}")
        for t in range(8): p(f"v_pk_mul_f32 {v(AC+2*t,2)}, {v(KU+2*t,2)}, {v(T+6,2)}")
        for j in (2, 1, 0):
            for t in range(8): p(f"v_pk_fma_f32 {v(AC+2*t,2)}, {v(KU+2*(t-j+3),2)}, {v(T+2*j,2)}, {v(AC+2*t,2)}")
        if cp == 0: p(f"s_waitcnt vmcnt({XH})")
        for j in range(8):
            p(f"v_lshlrev_b32 {v(KU+2*j)}, 16, {v(VR+2*j+cp)}")
            p(f"v_and_b32 {v(KU+2*j+1)}, s32, {v(VR+2*j+cp)}")
        for t in range(8): p(f"v_pk_mul_f32 {v(AC+2*t,2)}, {v(AC+2*t,2)}, {v(KU+2*t,2)}")
        L_ = []
        for e in range(2):
            for i in range(4): p(f"v_cvt_pk_bf16_f32 {v(OUT+4*e+i)}, {v(AC+2*(7-2*i)+e)}, {v(AC+2*(6-2*i)+e)}")
            L_ += [f"s_mov_b32 s10, {WS_XR + (2*cp+e)*XRS}", f"buffer_store_dwordx4 {v(OUT+4*e,4)}, v15, s[12:15], s10 offen"]
        st2(L_)
    p("s_cmp_lg_u32 s29, 0")
    p(f"s_cbranch_scc1 {pre}_S1END")
    for i in range(4): p(f"v_mov_b32 {v(8+i)}, 0")
    L_ = []
    for c in range(4): L_ += [f"s_mov_b32 s10, {WS_XR + c*XRS + 4096}", "buffer_store_dwordx4 v[8:11], v14, s[12:15], s10 offen"]
    st2(L_)
    p.label(f"{pre}_S1END")
    def signal_and_wait(tag, coff, work=None):
        p(f"v_mov_b32 v1, {CNT + coff}")
        p("v_mov_b32 v2, 1")
        p("v_mov_b32 v3, s35")
        p("s_waitcnt vmcnt(0)")
        p("s_mov_b64 exec, 1")
        p("ds_add_rtn_u32 v126, v1, v2")
        p("s_mov_b32 s25, 0x4000")
        p("s_waitcnt lgkmcnt(0)")
        p("v_readfirstlane_b32 s24, v126")
        p("s_cmp_lg_u32 s24, 3")
        p(f"s_cbranch_scc1 {pre}_NOSIG{tag}")
        flag_publish(p, 126, 3, "s8", SC="")
        p("s_cmp_eq_u32 s9, 1")
        p(f"s_cbranch_scc1 {pre}_NOSIG{tag}")
        p(f"buffer_store_dwordx2 v[126:127], v3, s[12:15], s34 offen{SC}")
        p.label(f"{pre}_NOSIG{tag}")
        p("s_mov_b64 exec, -1")
        if work: work()
        p("s_cmp_lg_u32 s24, 3")
        p(f"s_cbranch_scc1 {pre}_LWAIT{tag}")
        p.label(f"{pre}_POLL{tag}")
        p(f"s_sleep {opt('slp', 4)}")
        p(f"buffer_load_dwordx2 v[126:127], v123, s[12:15], s8 offen{SC}")
        p("s_sub_u32 s25, s25, 1")
        p(f"s_cbranch_scc1 {pre}_GOT{tag}")
        p("s_waitcnt vmcnt(0)")
        flag_test(p, 126)
        p("s_cmp_eq_u32 s9, 1")
        p(f"s_cbranch_scc1 {pre}_PT{tag}")
        p("s_mov_b64 s[10:11], vcc")
        p(f"buffer_load_dwordx2 v[126:127], v123, s[12:15], s34 offen{SC}")
        p("s_waitcnt vmcnt(0)")
        flag_test(p, 126)
        p("s_or_b64 vcc, vcc, s[10:11]")
        p.label(f"{pre}_PT{tag}")
        p("s_cmp_lg_u64 vcc, -1")
        p(f"s_cbranch_scc1 {pre}_POLL{tag}")
        p.label(f"{pre}_GOT{tag}")
        p("ds_write_b32 v1, v2 offset:4")
        p(f"s_branch {pre}_GO{tag}")
        p.label(f"{pre}_LWAIT{tag}")
        bail(p)
        p("s_sleep 4")
        p("ds_read_b32 v126, v1 offset:4")
        p("s_waitcnt lgkmcnt(0)")
        p("v_cmp_ne_u32 vcc, 1, v126")
        p(f"s_cbranch_vccnz {pre}_LWAIT{tag}")
        p.label(f"{pre}_GO{tag}")
    AB, BB, KVB, ST = 8, 12, 13, 14
    FA, FBB, ACC = 16, 48, 80
    def hload():
        if not EARLYH: hdma(117, 5)
        p("v_and_b32 v5, 15, v0")
        p("v_lshrrev_b32 v6, 4, v0")
        p("v_lshrrev_b32 v3, 1, v5")
        p("v_lshlrev_b32 v4, 2, v6")
        p("v_sub_u32 v4, v4, v3")
        p("v_lshlrev_b32 v4, 2, v4")
        p("v_and_b32 v3, 1, v5")
        p("v_xor_b32 v3, 1, v3")
        p(f"v_mul_u32_u24 v3, {CV_C1}, v3")
        p(f"s_add_u32 s10, s30, {4*1023 - 32*(112+1)}")
        p(f"v_add3_u32 {v(AB)}, v4, v3, s10")
        for kk in range(1, 4): p(f"v_add_u32 {v(AB+kk)}, {1024*kk}, {v(AB)}")
        p("v_lshlrev_b32 v3, 5, v5")
        p("v_lshl_add_u32 v4, v6, 4, v3")
        p(f"s_add_u32 s10, s30, {CV_H + 512 - 32}")
        p(f"v_add_u32 {v(BB)}, s10, v4")
        p(f"v_lshl_add_u32 {v(ST)}, v6, 3, v3")
        p(f"s_add_u32 s10, s30, {4088 - 512*7}")
        p(f"v_sub_u32 {v(KVB)}, s10, {v(ST)}")
        for i in range(32): p(f"v_mov_b32 {v(ACC+i)}, 0")
        p("v_add_u32 v7, 2, v124")
    stamp(p, 3)
    signal_and_wait(1, C_A1, hload)
    stamp(p, 4)
    for (src_v, off) in ((124, 0), (7, CV_C1)):
        p(f"s_add_u32 m0, s30, {off}")
        p("s_nop 0")
        for j in range(4): p(f"buffer_load_dwordx4 {v(src_v)}, s[12:15], s31 offen offset:{1024*j}{SC} lds")
        p(f"s_add_u32 m0, s30, {off + 4096}")
        p("s_mov_b64 exec, 15")
        p(f"buffer_load_dwordx4 {v(src_v)}, s[12:15], s26 offen{SC} lds")
        p("s_mov_b64 exec, -1")
    p(f"s_add_u32 s34, s34, {FL_A2 - FL_A1}")
    p("s_add_u32 s8, s8, 128")
    p("s_mov_b32 s25, 8")
    p("s_waitcnt vmcnt(0)")
    if opt("qt", 1):
        srd(p, 16, 36, 37, 4 * MB)
        p("v_and_b32 v3, 3, v0")
        p("v_lshl_add_u32 v3, v3, 11, v120")
        p("buffer_load_dword v116, v3, s[16:19], 0 offen")
    if opt("wb", 0):
        p(f"s_and_b32 s10, s29, {opt('wb')}")
        p("s_cbranch_scc1 PA_NOWB")
        p("buffer_wbl2 sc1")
        p.label("PA_NOWB")
    stamp(p, 5)
    p.padn = opt("pada") * 2
    p.label(f"{pre}_CVL")
    def rdA(a):
        kk, rem = (7 - a) >> 1, 128 * ((7 - a) & 1)
        return [f"ds_read2_b32 {v(FA+4*a,2)}, {v(AB+kk)} offset0:{rem} offset1:{rem+1}",
                f"ds_read2_b32 {v(FA+4*a+2,2)}, {v(AB+kk)} offset0:{rem+2} offset1:{rem+3}"]
    cnt = [0]
    def cm(a, b):
        p(mf16(ACC+4*(a+b), FA+4*a, FBB+4*b, ACC+4*(a+b)))
        cnt[0] += 1
        if opt("cvnop", -1) >= 0 and cnt[0] % opt("cvev", 1) == 0: p(f"s_nop {opt('cvnop')}")
    def rdB(b): return [f"ds_read_b128 {v(FBB+4*b,4)}, {v(BB)} offset:{512*b}"]
    for x in range(8):
        for r_ in rdA(x) + rdB(x): p(r_)
    for kk in range(4): p(f"v_add_u32 {v(AB+kk)}, -64, {v(AB+kk)}")
    p(f"v_add_u32 {v(BB)}, -64, {v(BB)}")
    p("s_waitcnt lgkmcnt(12)")
    for a in range(4):
        for b in range(4): cm(a, b)
    p("s_waitcnt lgkmcnt(0)")
    for a in range(8):
        for b in range(8 - a):
            if a >= 4 or b >= 4: cm(a, b)
    p("s_sub_u32 s25, s25, 1")
    p("s_cmp_lg_u32 s25, 0")
    p(f"s_cbranch_scc1 {pre}_CVL")
    stamp(p, 6)
    p.padn = opt("pada")
    for t in range(8): p(f"ds_read_b64 {v(FA+2*t,2)}, {v(KVB)} offset:{512*(7-t)}")
    p("v_lshlrev_b32 v125, 16, v125")
    p(f"s_add_u32 s33, s33, {WS_Y}")
    p(f"v_lshlrev_b32 {v(ST)}, 1, {v(ST)}")
    for t in range(8):
        p(f"s_waitcnt lgkmcnt({7-t})" if not STAMP else "s_waitcnt lgkmcnt(0)")
        U = FBB + 4 * (t & 3); a = ACC + 4 * t; o = FBB + 16 + 2 * t
        p(f"v_and_b32 {v(U)}, s32, {v(FA+2*t+1)}")
        p(f"v_lshlrev_b32 {v(U+1)}, 16, {v(FA+2*t+1)}")
        p(f"v_and_b32 {v(U+2)}, s32, {v(FA+2*t)}")
        p(f"v_lshlrev_b32 {v(U+3)}, 16, {v(FA+2*t)}")
        for r_ in range(4): p(f"v_fmac_f32 {v(a+r_)}, v125, {v(U+r_)}")
        p(f"v_cvt_pk_bf16_f32 {v(o)}, {v(a)}, {v(a+1)}")
        p(f"v_cvt_pk_bf16_f32 {v(o+1)}, {v(a+2)}, {v(a+3)}")
    st2([f"buffer_store_dwordx4 {v(FBB+16+4*tp,4)}, {v(ST)}, s[12:15], s33 offen offset:{1024*tp}" for tp in range(4)])
    QR, YR, U, OUT = 16, 32, 48, 64
    def qload():
        srd(p, 16, 36, 37, 4 * MB)
        srd(p, 20, 50, 51, 8 * MB)
        p("v_add_u32 v6, 4096, v120")
        for j in range(4): p(f"buffer_load_dwordx4 {v(QR+4*j,4)}, {('v120', 'v6')[j>>1]}, s[16:19], 0 offen offset:{2048*(j&1)}")
    signal_and_wait(2, C_A2, qload)
    stamp(p, 7)
    for c in range(8):
        p(f"s_mov_b32 s10, {WS_Y + c*4096}")
        p(f"buffer_load_dwordx2 {v(YR+2*c,2)}, v121, s[12:15], s10 offen{SC}")
    p("s_waitcnt vmcnt(0)")
    for t in range(4):
        for cp in range(4):
            u = U + 4 * (cp & 1)
            q = QR + 4 * t + cp
            p(f"v_lshlrev_b32 {v(u)}, 16, {v(q)}")
            p(f"v_and_b32 {v(u+1)}, s32, {v(q)}")
            for e in range(2):
                y = YR + 2 * (2 * cp + e) + (t >> 1)
                if t & 1: p(f"v_and_b32 {v(u+2+e)}, s32, {v(y)}")
                else: p(f"v_lshlrev_b32 {v(u+2+e)}, 16, {v(y)}")
            p(f"v_pk_mul_f32 {v(u,2)}, {v(u,2)}, {v(u+2,2)}")
            p(f"v_cvt_pk_bf16_f32 {v(OUT+4*t+cp)}, {v(u)}, {v(u+1)}")
        p(f"s_mov_b32 s10, {t*4096}")
        p(f"buffer_store_dwordx4 {v(OUT+4*t,4)}, v122, s[20:23], s10 offen{SC}")
    stamp(p, 12)
    stamp_flush(p)
    p("s_endpgm")

def build(path):
    p = Prog()
    emit(p)
    p.pads(0)
    if p.npads:
        p.label(f"WP{p.npads}")
        p("s_branch WP_END")
    p.label("L_CODE_END")
    hdr = open("concat_heads__ssm_conv_h3__mha_block__prompt.s.ref").read().split("\n")
    hdr = [l for l in hdr if l.startswith(";") and "@launch" not in l and "Override" not in l and "grid=ceil" not in l]
    out = "\n".join(hdr) + "\n"
    if opt("aslist", 1): out += f"; @launch kernel={NAME} grid=(256,1,1) block=(832,1,1) lds={LDS_BYTES}\n"
    else: out += f"; @launch grid=(256,1,1) block=(832,1,1) lds={LDS_BYTES}\n"
    out += '.amdgcn_target "amdgcn-amd-amdhsa--gfx950"\n.text\n'
    body = p.text()
    nbad = check(body)
    out += body
    out += f""".section .rodata,"a"
.p2align 6
.amdhsa_kernel {NAME}
  .amdhsa_next_free_vgpr 128
  .amdhsa_next_free_sgpr 102
  .amdhsa_accum_offset 128
  .amdhsa_group_segment_fixed_size 0
  .amdhsa_kernarg_size 96
  .amdhsa_user_sgpr_count 2
  .amdhsa_user_sgpr_kernarg_segment_ptr 1
  .amdhsa_system_sgpr_workgroup_id_x 1
.end_amdhsa_kernel
"""
    open(path, "w").write(out)
    return nbad

if __name__ == "__main__":
    nb = build(sys.argv[1] if len(sys.argv) > 1 else "pk.s")
    print("hazards:", nb)
```

```python
import sys, os, struct, math
sys.path.insert(0, os.path.dirname(os.path.abspath(__file__)))
from asmlib import Prog, v, s, check

MB = 1 << 20
WS_KV, WS_QX, WS_O, WS_XR, WS_Y, WS_FL = 0, 8 * MB, 12 * MB, 16 * MB, 21 * MB, 25 * MB
XRS = 4224
WS_SIZE = 64 * MB
LOC = 32 * MB
FLS = 4352
FL_A1, FL_A2, FL_KV, FL_O, FL_KVL = [WS_FL + 16 * i * FLS for i in range(5)]
A_Q, A_K, A_V, A_SK, A_SSMK, A_D, B_X, B_WQKV, B_WO, D_OUT, D_DBG, D_WS = [8 * i for i in range(12)]
def f32bits(x): return struct.unpack("<I", struct.pack("<f", x))[0]
QSCALE = f32bits((32 ** -0.5) * math.log2(math.e))
STAMP = os.environ.get("STAMP", "0") == "1"
LIGHT = os.environ.get("STAMP", "0") == "2"
OPT = dict(kv.split("=") for kv in os.environ.get("OPT", "").split(",") if kv)
def opt(k, d=0): return int(OPT.get(k, d))
WS_ST = 28 * MB
SC = " sc1"
FLG = {0: "", 1: " nt", 2: " sc1", 3: " sc0 sc1", 4: " sc0"}
NAME = "concat_heads__ssm_conv_h3__mha_block__prompt_kernel"

WREG = 5 * 16384
RING = 6 * 16384
OWNC = WREG + 24576
QHO = OWNC + 16384
CV_BASE = 98304
CV_STRIDE = 15616
CV_C1 = 5120 + 64
CV_H = 2 * 5120 + 128
CNT = CV_BASE + 4 * CV_STRIDE
C_LAND, C_CONS, C_PROG, C_KVL, C_OWN, C_KVST, C_A1, C_A2, C_OARR, C_OMASK, C_QRDY, C_CPY, C_GALL, C_CP2 = 0, 16, 32, 64, 68, 72, 76, 84, 92, 96, 100, 104, 108, 112
LDS_BYTES = CNT + 256

def mf32(d, a, b, c): return f"v_mfma_f32_32x32x16_bf16 {v(d,16)}, {v(a,4)}, {v(b,4)}, {v(c,16) if isinstance(c,int) else c}"
def mf16(d, a, b, c): return f"v_mfma_f32_16x16x32_bf16 {v(d,4)}, {v(a,4)}, {v(b,4)}, {v(c,4) if isinstance(c,int) else c}"

def srd(p, d, lo, hi, nrec, off=None):
    if off is None:
        if lo != d: p(f"s_mov_b32 {s(d)}, {s(lo)}")
        if hi != d + 1: p(f"s_mov_b32 {s(d+1)}, {s(hi)}")
    else:
        p(f"s_add_u32 {s(d)}, {s(lo)}, {off}")
        p(f"s_addc_u32 {s(d+1)}, {s(hi)}, 0")
    p(f"s_mov_b32 {s(d+2)}, {nrec}")
    p(f"s_mov_b32 {s(d+3)}, 0x20000")

def stamp(p, i, real=True):
    if STAMP and not (opt("p1st") and i in (4, 5, 6, 7, 9, 10, 11)): p(f"{'s_memrealtime' if real else 's_memtime'} s[{60+2*i}:{61+2*i}]")
def stamp_flush(p, n=14):
    if LIGHT:
        p("s_memrealtime s[90:91]")
        p("s_lshl_b32 s58, s2, 4")
        p("s_add_u32 s58, s58, s59")
        p("s_lshl_b32 s58, s58, 3")
        p(f"s_add_u32 s58, s58, {WS_ST}")
        p("s_waitcnt lgkmcnt(0)")
        p("v_mov_b32 v1, s58")
        p("v_mov_b32 v2, s96")
        p("v_mov_b32 v3, s90")
        p("global_store_dwordx2 v1, v[2:3], s[98:99]")
    if not STAMP: return
    p("s_memtime s[90:91]")
    p("s_lshl_b32 s58, s2, 4")
    p("s_add_u32 s58, s58, s59")
    p("s_lshl_b32 s58, s58, 6")
    p(f"s_add_u32 s58, s58, {WS_ST}")
    p("s_waitcnt lgkmcnt(0)")
    p("v_mov_b32 v2, s58")
    for i in range(16):
        p(f"v_mov_b32 v3, s{60+2*i}")
        p(f"global_store_dword v2, v3, s[98:99] offset:{4*i}")

def lane_id(p, d):
    p(f"v_mbcnt_lo_u32_b32 {v(d)}, -1, 0")
    p(f"v_mbcnt_hi_u32_b32 {v(d)}, -1, {v(d)}")

def bail(p):
    p("s_sub_u32 s100, s100, 1")
    p("s_cbranch_scc1 L_END")

def lds_wait_ge(p, lab, vaddr, off, need, vt, sleep=2):
    p(f"s_branch {lab}c")
    p.label(f"{lab}s")
    bail(p)
    p(f"s_sleep {sleep}")
    p.label(f"{lab}c")
    p(f"ds_read_b32 {v(vt)}, {v(vaddr)} offset:{off}")
    p("s_waitcnt lgkmcnt(0)")
    p(f"v_cmp_gt_i32 vcc, {need}, {v(vt)}")
    p(f"s_cbranch_vccnz {lab}s")

def local_flag_base(p, d):
    p(f"s_getreg_b32 s{d}, hwreg(HW_REG_XCC_ID)")
    p(f"s_and_b32 s{d}, s{d}, 15")
    p(f"s_lshl_b32 s{d}, s{d}, 4")
    p(f"s_add_u32 s{d}, s{d}, s27")
    p(f"s_lshl_b32 s{d}, s{d}, 9")
    p(f"s_add_u32 s{d}, s{d}, {FL_KVL}")

def flag_publish(p, vt, voff, soff, SC=" sc1"):
    p("s_memrealtime s[92:93]")
    p("s_waitcnt lgkmcnt(0)")
    p(f"v_mov_b32 {v(vt)}, s92")
    p(f"v_mov_b32 {v(vt+1)}, s93")
    p(f"buffer_store_dwordx2 {v(vt,2)}, {v(voff)}, s[12:15], {soff} offen{SC}")

def flag_test(p, vt):
    p(f"v_cmp_lt_u64 vcc, s[96:97], {v(vt,2)}")
    p(f"v_cmp_gt_u64 s[92:93], s[94:95], {v(vt,2)}")
    p("s_and_b64 vcc, vcc, s[92:93]")

def pf_addr(p, vx, vw, which=(0, 1)):
    if 0 in which:
        p("s_and_b32 s29, s27, 1")
        p("s_lshl_b32 s29, s29, 6")
        p("s_lshl_b32 s10, s26, 7")
        p("s_add_u32 s29, s29, s10")
        p("v_add_u32 v1, s29, v0")
        p(f"v_lshlrev_b32 {v(vx)}, 11, v1")
    if 1 in which:
        p("v_bfe_u32 v2, v0, 2, 2")
        p("s_lshl_b32 s29, s26, 2")
        p("v_add_u32 v2, s29, v2")
        if opt("wup", 0):
            p("v_lshrrev_b32 v3, 4, v0")
            p("v_lshl_add_u32 v2, v3, 8, v2")
        p("v_mul_u32_u24 v2, 6144, v2")
        p("v_and_b32 v3, 3, v0")
        p("v_min_u32 v3, 2, v3")
        p("v_lshl_add_u32 v2, v3, 11, v2")
        p("s_lshl_b32 s29, s27, 7")
        p(f"v_add_u32 {v(vw)}, s29, v2")

def tile3(p):
    p("s_and_b32 s38, s8, 3")
    p("s_lshl_b32 s38, s38, 2")
    p("s_and_b32 s10, s9, 3")
    p("s_add_u32 s38, s38, s10")
    p("s_lshr_b32 s39, s8, 2")
    p("s_lshl_b32 s39, s39, 3")
    p("s_lshr_b32 s10, s9, 2")
    p("s_add_u32 s39, s39, s10")

WTAB = 0x10876543

def emit(p):
    p(f".globl {NAME}")
    p(".p2align 8")
    p(f".type {NAME},@function")
    p.label(NAME)
    p("s_cmp_ge_u32 s2, 256")
    p("s_cbranch_scc1 L_END")
    p(f"s_load_dwordx4 s[4:7], s[0:1], {B_X}")
    p(f"s_load_dwordx2 s[98:99], s[0:1], {D_WS}")
    p("s_memrealtime s[96:97]")
    p("v_lshrrev_b32 v1, 6, v0")
    p("v_and_b32 v0, 63, v0")
    p("s_and_b32 s8, s2, 7")
    p("v_readfirstlane_b32 s3, v1")
    stamp(p, 0); stamp(p, 14, False)
    p("s_lshr_b32 s9, s2, 3")
    p("s_mov_b32 s100, 0x100000")
    if STAMP or LIGHT: p("s_mov_b32 s59, s3")
    p("s_and_b32 s26, s9, 15")
    p("s_lshl_b32 s27, s8, 1")
    p("s_lshr_b32 s10, s9, 4")
    p("s_add_u32 s27, s27, s10")
    p("s_cmp_ge_u32 s3, 4")
    p("s_cbranch_scc1 L_NOTLOADER")
    p("s_and_b32 s34, s3, 2")
    p("s_and_b32 s25, s3, 1")
    p("v_lshrrev_b32 v2, 3, v0")
    p("v_lshlrev_b32 v2, 11, v2")
    p("v_lshrrev_b32 v3, 4, v0")
    p("v_and_b32 v4, 7, v0")
    p("v_xor_b32 v4, v4, v3")
    p("v_lshl_add_u32 v2, v4, 4, v2")
    p("s_lshl_b32 s10, s34, 16")
    p("v_add_u32 v10, s10, v2")
    p("v_xor_b32 v11, 64, v10")
    p(f"v_add_u32 v12, {32768-2048}, v10")
    p(f"v_add_u32 v13, {49152-3072}, v11")
    p(f"v_add_u32 v11, {16384-1024}, v11")
    p("s_lshl_b32 s23, s34, 12")
    p("s_lshl_b32 s10, s25, 14")
    p("s_add_u32 s23, s23, s10")
    p(f"s_mul_i32 s39, s8, {opt('xrot', 0)}")
    p("s_and_b32 s36, s27, 1")
    p(f"s_mul_i32 s36, s36, {opt('nrot', 0)}")
    p("s_add_u32 s39, s39, s36")
    p("s_add_u32 s36, s39, s25")
    p("s_and_b32 s36, s36, 15")
    p("s_lshl_b32 s20, s36, 7")
    p("s_lshl_b32 s10, s26, 18")
    p("s_mov_b32 s14, 262144")
    p("s_mov_b32 s15, 0x20000")
    pf_addr(p, 16, 16, (1,))
    p("s_add_u32 s35, s39, s3")
    p(f"s_and_b32 s35, s35, {3 if opt('wup', 0) else 15}")
    p(f"s_mul_i32 s35, s35, {64*6144}")
    p("s_waitcnt lgkmcnt(0)")
    srd(p, 40, 6, 7, 6 * MB)
    p("buffer_load_dword v17, v16, s[40:43], s35 offen")
    p("s_add_u32 s12, s4, s10")
    p("s_addc_u32 s13, s5, 0")
    def xissue():
        for q_ in range(2):
            p(f"s_add_u32 m0, s23, {4096*q_}")
            p(f"s_add_u32 s10, s20, {65536*q_}")
            for jj in range(4): p(f"buffer_load_dwordx4 {v(10+jj)}, s[12:15], s10 offen offset:{1024*jj}{FLG[opt('xf')]} lds")
        p("s_add_u32 s20, s20, 256")
        p("s_and_b32 s20, s20, 2047")
        p("s_add_u32 s23, s23, 32768")
        p(f"s_cmp_ge_u32 s23, {WREG}")
        p(f"s_cselect_b32 s10, {WREG}, 0")
        p("s_sub_u32 s23, s23, s10")
    xissue()
    p("v_lshrrev_b32 v2, 5, v0")
    p("v_lshlrev_b32 v2, 2, v2")
    p("v_bfe_u32 v4, v0, 2, 2")
    p("s_lshl_b32 s10, s34, 4")
    p("v_add3_u32 v2, v2, v4, s10")
    p("v_mul_u32_u24 v2, 6144, v2")
    p("v_bfe_u32 v3, v0, 4, 1")
    p("v_lshl_add_u32 v2, v3, 6, v2")
    p("v_and_b32 v4, 3, v0")
    p("v_lshl_add_u32 v14, v4, 4, v2")
    p("v_add_u32 v15, 48128, v14")
    p("v_lshlrev_b32 v4, 2, v4")
    p(f"v_add_u32 v18, {CNT}, v4")
    p("s_mul_i32 s24, s34, 6144")
    p("s_mul_i32 s10, s25, 24576")
    p("s_add_u32 s24, s24, s10")
    p(f"s_add_u32 s24, s24, {WREG}")
    p("s_mul_i32 s21, s36, 393216")
    p("s_lshl_b32 s11, s27, 7")
    p(f"s_sub_u32 s18, {1024*6144}, s11")
    p("s_mov_b32 s19, 0x20000")
    p("s_add_u32 s16, s6, s11")
    p("s_addc_u32 s17, s7, 0")
    p("s_lshl_b64 s[32:33], 1, s3")
    XPF = opt("xpf", 4)
    if XPF:
        p("s_mov_b32 s37, 393216")
        p("s_cmp_lg_u32 s3, 0")
        p("s_cbranch_scc1 P1_NX")
        pf_addr(p, 16, 16, (0,))
        srd(p, 40, 4, 5, 4 * MB)
        p("s_mov_b32 s37, 128")
        p.label("P1_NX")
        p("s_cmp_lg_u32 s25, 0")
    else:
        p(f"s_cmp_ge_u32 s3, {0 if opt('wup', 0) else 2}")
    p("s_cselect_b32 s42, 0, s42")
    p.label("P1_LISSUE")
    for q_ in range(2):
        p(f"s_add_u32 m0, s24, {6144*q_}")
        p(f"s_add_u32 s10, s21, {16*6144*q_}")
        for ii in range(4): p(f"buffer_load_dwordx4 {v(14+(ii&1))}, s[16:19], s10 offen offset:{1024*ii}{FLG[opt('wf')]} lds")
        p(f"s_add_u32 m0, s24, {6144*q_+4096}")
        p(f"s_add_u32 s10, s21, {16*6144*q_+4096}")
        for ii in range(2): p(f"buffer_load_dwordx4 {v(14+ii)}, s[16:19], s10 offen offset:{1024*ii}{FLG[opt('wf')]} lds")
    p("s_add_u32 s36, s36, 2")
    p("s_and_b32 s36, s36, 15")
    p("s_mul_i32 s21, s36, 393216")
    p(f"s_add_u32 s35, s36, {XPF - 2 if XPF else 2}")
    p("s_and_b32 s35, s35, 15")
    p("s_mul_i32 s35, s35, s37" if XPF else "s_mul_i32 s35, s35, 393216")
    p(f"s_cmp_ge_u32 s25, {16 - XPF if XPF else 12}")
    p("s_cselect_b32 s42, 0, s42")
    p("s_add_u32 s24, s24, 49152")
    p(f"s_cmp_ge_u32 s24, {WREG + 3*24576}")
    p(f"s_cselect_b32 s11, {3*24576}, 0")
    p("s_sub_u32 s24, s24, s11")
    p("s_add_u32 s25, s25, 2")
    p("s_cmp_ge_u32 s25, 16")
    p("s_cbranch_scc1 P1_LLAST")
    xissue()
    p("buffer_load_dword v17, v16, s[40:43], s35 offen")
    if XPF:
        p("s_add_u32 s35, s35, s37")
        p("buffer_load_dword v17, v16, s[40:43], s35 offen")
    p("s_cmp_eq_u32 s25, 2")
    p("s_cbranch_scc1 P1_LNB")
    p("s_barrier")
    p.label("P1_LNB")
    p(f"s_waitcnt vmcnt({10 if XPF else 9})")
    p("s_barrier")
    p("s_branch P1_LISSUE")
    p.label("P1_LLAST")
    p("s_barrier")
    p("s_waitcnt vmcnt(0)")
    p("s_barrier")
    p("s_cmp_lg_u32 s25, 16")
    p("s_cbranch_scc1 P1_LDONE")
    p("s_barrier")
    p.label("P1_LDONE")
    stamp(p, 1)
    Q, ONES, L, P0, P1, F0, F1, NEGM, SA, SB, O = 4, 12, 16, 20, 24, 28, 44, 60, 76, 92, 108
    VN, VL, VC, VP, IDX, CA, CV_, ONE = 0, 1, 2, 3, 124, 125, 126, 127
    p("s_lshl_b32 s28, s26, 2")
    p("s_add_u32 s28, s28, s3")
    p("v_lshlrev_b32 v1, 4, v0")
    p(f"v_mov_b32 {v(CA)}, {CNT}")
    srd(p, 12, 98, 99, WS_SIZE)
    p("s_lshl_b32 s10, s3, 11")
    p(f"s_add_u32 s10, s10, {QHO}")
    p(f"v_add_u32 {v(SB)}, s10, v1")
    p("s_branch A_INIT")

    p.label("L_NOTLOADER")
    p("s_cmp_ge_u32 s3, 8")
    p("s_cbranch_scc1 L_HELPERS")
    ACC, XF, WF_, XC, WC, SY, VT = 32, 0, 16, 28, 29, 30, 31
    p("s_sub_u32 s31, s3, 4")
    p("s_lshr_b32 s28, s31, 1")
    p("s_and_b32 s29, s31, 1")
    p("v_and_b32 v1, 31, v0")
    p("v_lshrrev_b32 v2, 5, v0")
    p("v_bfe_u32 v3, v0, 1, 3")
    p("v_xor_b32 v3, v3, v2")
    p("v_lshlrev_b32 v3, 4, v3")
    p("v_lshl_add_u32 v3, v1, 7, v3")
    p("s_lshl_b32 s10, s28, 13")
    p(f"v_add_u32 {v(XC)}, s10, v3")
    p("v_lshlrev_b32 v2, 10, v2")
    p("v_bfe_u32 v3, v0, 2, 2")
    p("v_lshl_add_u32 v2, v3, 6, v2")
    p("v_bfe_u32 v3, v0, 4, 1")
    p("v_lshl_add_u32 v2, v3, 5, v2")
    p("v_and_b32 v3, 3, v0")
    p("v_lshl_add_u32 v2, v3, 3, v2")
    p("s_lshl_b32 s10, s29, 8")
    p(f"s_add_u32 s10, s10, {WREG}")
    p(f"v_add_u32 {v(WC)}, s10, v2")
    p("v_lshlrev_b32 v3, 2, v3")
    p(f"v_add_u32 {v(SY)}, {CNT}, v3")
    p("v_lshlrev_b32 v3, 2, v0")
    p(f"v_add_u32 v3, {CNT}, v3")
    p(f"v_mov_b32 {v(VT)}, 0")
    p(f"ds_write_b32 v3, {v(VT)}")
    for i in range(8, 28): p(f"v_mov_b32 {v(i)}, 0")
    for i in range(ACC, ACC + 96): p(f"v_mov_b32 {v(i)}, 0")
    p("s_mov_b32 s25, 0")
    p("s_mov_b32 s24, 0")
    p("s_mov_b32 s21, 0")
    p(f"s_setprio {opt('cpprio', 3)}")
    def mfmas(b):
        L_ = []
        for ty in range(3):
            for rt in range(2):
                d = ACC + (rt * 3 + ty) * 16
                x, w = XF + 8 * b + 4 * rt, WF_ + 4 * ty
                L_.append(mf32(d, w, x, d) if ty < 2 else mf32(d, x, w, d))
        return L_
    def rx(b, rt): return f"ds_read_b128 {v(XF+8*b+4*rt,4)}, {v(XC)} offset:{rt*4096}"
    def rw(ks, ty): return [f"ds_read_b64_tr_b16 {v(WF_+4*ty+2*h,2)}, {v(WC)} offset:{ks*6144+ty*2048+h*512}" for h in range(2)]
    def cons():
        p("s_mov_b64 exec, s[32:33]")
        p(f"ds_inc_u32 {v(SY)}, {v(SY)} offset:{C_CONS}")
        p("s_mov_b64 exec, -1")
    w = lambda n: p(f"s_waitcnt lgkmcnt({n})")
    if opt("al1", -1) >= 0:
        p(".p2align 6")
        for _ in range(opt("al1")): p("s_nop 0")
    p.label("P1_CLOOP")
    for ks in range(4):
        b = ks & 1
        M = mfmas(b ^ 1)
        w(4); p(M[0])
        if ks == 0:
            p(M[1])
            w(0)
            p("s_barrier")
            for r_ in rw(ks, 0): p(r_)
            p(rx(b, 0))
            p(M[2])
            p(rx(b, 1))
            p(f"v_xor_b32 {v(XC)}, 32, {v(XC)}")
        else:
            p(rx(b, 0)); p(rx(b, 1))
            p(f"v_xor_b32 {v(XC)}, {32 if ks == 2 else 96}, {v(XC)}")
            p(M[1])
            for r_ in rw(ks, 0): p(r_)
        if ks == 3: p(f"v_add_u32 {v(XC)}, s22, {v(XC)}")
        if ks == 1:
            p("s_add_u32 s24, s24, 1")
            p("s_cmp_eq_u32 s24, 3")
            p("s_cselect_b32 s23, -2, 1")
            p("s_cselect_b32 s24, 0, s24")
            p("s_mul_i32 s23, s23, 24576")
        if ks == 2:
            p("s_add_u32 s21, s21, 1")
            p("s_cmp_eq_u32 s21, 5")
            p("s_cselect_b32 s22, -4, 1")
            p("s_cselect_b32 s21, 0, s21")
            p("s_mul_i32 s22, s22, 16384")
        if ks: w(6); p(M[2])
        p(M[3])
        for r_ in rw(ks, 1): p(r_)
        if ks: w(6)
        p(M[4])
        if ks == 3:
            p("s_add_u32 s25, s25, 1")
            p("s_cmp_lt_u32 s25, 16")
        p(M[5])
        for r_ in rw(ks, 2): p(r_)
    p(f"v_add_u32 {v(WC)}, s23, {v(WC)}")
    if STAMP and opt("p1st") == 2:
        p("s_and_b32 s58, s25, 7")
        p("s_cmp_lg_u32 s58, 6")
        p("s_cbranch_scc1 P1_STX")
        p("s_mov_b64 s[68:69], s[72:73]")
        p("s_mov_b64 s[70:71], s[74:75]")
        p("s_memrealtime s[72:73]")
        p("s_memtime s[74:75]")
        p("s_mov_b32 s78, s80")
        p("s_mov_b32 s80, s100")
        p.label("P1_STX")
        p("s_cmp_lt_u32 s25, 16")
    if STAMP and opt("p1st") == 1:
        for (n_, i_) in ((5, 4), (6, 5), (7, 6), (8, 7), (9, 9), (10, 10), (11, 11)):
            p(f"s_cmp_lg_u32 s25, {n_}")
            p(f"s_cbranch_scc1 P1_ST{n_}")
            p(f"s_memrealtime s[{60+2*i_}:{61+2*i_}]")
            p.label(f"P1_ST{n_}")
        p("s_cmp_lt_u32 s25, 16")
    p("s_cbranch_scc1 P1_CLOOP")
    PADN = opt("padn", 0)
    p.pads(PADN)
    M = mfmas(1)
    w(4); p(M[0]); p(M[1]); w(2); p(M[2]); p(M[3]); w(0)
    p(M[4]); p(M[5])
    stamp(p, 1)
    lane_id(p, XC)
    p(f"v_lshlrev_b32 {v(XC)}, 4, {v(XC)}")
    srd(p, 12, 98, 99, WS_SIZE)
    p("s_lshl_b32 s10, s27, 1")
    p("s_add_u32 s10, s10, s29")
    p("s_lshl_b32 s10, s10, 4")
    p("s_add_u32 s10, s10, s26")
    p("s_lshl_b32 s10, s10, 14")
    p("s_lshl_b32 s11, s28, 12")
    p("s_add_u32 s10, s10, s11")
    p(f"s_add_u32 s10, s10, {LOC}")
    p("s_add_u32 s16, s10, 8192")
    p("s_lshl_b32 s18, s27, 4")
    p("s_add_u32 s18, s18, s26")
    p("s_lshl_b32 s18, s18, 13")
    p("s_add_u32 s18, s18, s11")
    p(f"s_add_u32 s18, s18, {WS_QX + LOC}")
    p(f"s_add_u32 s11, s11, {OWNC}")
    p(f"v_add_u32 {v(WC)}, s11, {v(XC)}")
    p(f"s_mov_b32 s17, {QSCALE}")
    p("s_xor_b32 s19, s26, s29")
    p("s_bitcmp1_b32 s19, 0")
    p("s_cbranch_scc1 P1_EOTH")
    p("s_nop 3")
    for own in (1, 0):
        n = 0
        order = (((1, 0), (1, 1), (2, 0), (2, 1), (0, 0), (0, 1)) if opt("stf", 1) else ((1, 0), (0, 0), (0, 1), (2, 0), (1, 1), (2, 1))) if own else ((0, 0), (0, 1), (1, 0), (1, 1), (2, 0), (2, 1))
        keep = []
        for (ty, rt) in order:
            d = ACC + (rt * 3 + ty) * 16
            if ty == 0:
                for i in range(16): p(f"v_mul_f32 {v(d+i)}, s17, {v(d+i)}")
            for j in range(2):
                o = d + 8 * j if own else 4 * (n % 7); n += 1
                for i in range(4): p(f"v_cvt_pk_bf16_f32 {v(o+i)}, {v(d+8*j+2*i)}, {v(d+8*j+2*i+1)}")
                st = f"buffer_store_dwordx4 {v(o,4)}, {v(XC)}, s[12:15], {('s18', 's10', 's16')[ty]} offen offset:{rt*2048+j*1024}"
                if own:
                    if ty and opt("stf", 1): p(st)
                    p(f"ds_write_b128 {v(WC)}, {v(o,4)} offset:{(16384, 0, 8192)[ty]+rt*2048+j*1024}")
                    if ty and not opt("stf", 1): keep.append(st)
                else: p(st)
        if own:
            p(f"v_mov_b32 {v(VT)}, 1")
            p(f"v_mov_b32 {v(SY)}, {CNT}")
            for st in keep[:2]: p(st)
            p("s_waitcnt lgkmcnt(0)")
            p("s_mov_b64 exec, 1")
            p(f"ds_add_u32 {v(SY)}, {v(VT)} offset:{C_OWN}")
            p("s_mov_b64 exec, -1")
            for st in keep[2:]: p(st)
            p("s_branch P1_EDONE")
            p.label("P1_EOTH")
    p.label("P1_EDONE")
    p(f"v_mov_b32 v30, {CNT}")
    p("v_mov_b32 v31, 1")
    local_flag_base(p, 34)
    p("s_lshl_b32 s10, s26, 3")
    p("v_mov_b32 v29, s10")
    p("s_waitcnt vmcnt(0)")
    p("s_mov_b64 exec, 1")
    p(f"ds_add_rtn_u32 v31, v30, v31 offset:{C_KVST}")
    p("s_waitcnt lgkmcnt(0)")
    p("v_cmp_eq_u32 vcc, 3, v31")
    p("s_cbranch_vccz P1_NOKVF")
    flag_publish(p, 30, 29, "s34", SC="")
    p.label("P1_NOKVF")
    p("s_mov_b64 exec, -1")
    stamp(p, 3)
    p("s_setprio 0")
    p(f"v_mov_b32 v1, {v(XC)}")
    p(f"v_lshrrev_b32 v0, 4, {v(XC)}")
    p(f"v_mov_b32 {v(CA)}, {CNT}")
    p("s_xor_b32 s28, s26, 1")
    p("s_lshl_b32 s18, s27, 4")
    p("s_add_u32 s18, s18, s28")
    p("s_lshl_b32 s18, s18, 13")
    p("s_lshl_b32 s10, s31, 11")
    p("s_add_u32 s18, s18, s10")
    p(f"s_add_u32 s18, s18, {WS_QX}")
    p("s_lshl_b32 s28, s28, 2")
    p("s_add_u32 s28, s28, s31")
    p.label("A_INIT")
    p("v_and_b32 v2, 2, v0")
    p("v_cmp_eq_u32 vcc, 0, v2")
    p("v_mov_b32 v3, 0x3f803f80")
    if opt("sp4", 0):
        p("v_and_b32 v2, 12, v0")
        p("v_cmp_eq_u32 s[10:11], 0, v2")
        p("v_mov_b32 v2, 0")
        p("s_nop 0")
        p("v_cndmask_b32 v3, v2, v3, s[10:11]")
    p("v_mov_b32 v2, 0")
    for i in range(2): p(f"v_cndmask_b32 {v(ONES+i)}, v2, v3, vcc")
    for i in range(2, 4): p(f"v_cndmask_b32 {v(ONES+i)}, v3, v2, vcc")
    p("v_and_b32 v2, 1, v0")
    p("v_mul_u32_u24 v2, 0xaaaa, v2")
    p(f"v_add_u32 {v(IDX)}, 0x4444, v2")
    p(f"v_mov_b32 {v(ONE)}, 1")
    for i in range(12): p(f"v_mov_b32 {v(L+i)}, 0")
    for i in range(16): p(f"v_mov_b32 {v(O+i)}, 0")
    for i in range(12, 16): p(f"v_mov_b32 {v(F1+i)}, 0")
    p("s_and_b32 s29, s26, 1")
    p("s_lshl_b32 s10, s27, 1")
    p("s_add_u32 s29, s29, s10")
    p("s_mov_b32 s22, 0")
    p(f"v_add_u32 {v(VC)}, {OWNC}, v1")
    p("s_lshl_b32 s10, s3, 2")
    p(f"s_add_u32 s10, s10, {CNT + C_PROG}")
    p(f"v_mov_b32 {v(VP)}, s10")
    p("s_mov_b32 s25, 2")
    p("s_cmp_lt_u32 s3, 4")
    p("s_cselect_b32 s23, 1, 0")
    lds_wait_ge(p, "A_OW", CA, C_OWN, 2, CV_, sleep=opt("owslp", 2))
    for j in range(2): p(f"ds_read_b128 {v(F1+4*j,4)}, {v(VC)} offset:{j*1024}")
    p("s_cmp_ge_u32 s3, 4")
    p("s_cbranch_scc1 A_FARQ")
    for j in range(2): p(f"ds_read_b128 {v(Q+4*j,4)}, {v(SB)} offset:{j*1024}")
    p("s_branch A_HAVEQ")
    p.label("A_FARQ")
    lds_wait_ge(p, "A_QW", CA, C_QRDY, 1, CV_, sleep=1)
    p(f"v_readfirstlane_b32 s10, {v(CV_)}")
    p("s_cmp_eq_u32 s10, 1")
    p(f"s_cselect_b32 s10, {LOC}, 0")
    p("s_add_u32 s18, s18, s10")
    for j in range(2): p(f"buffer_load_dwordx4 {v(Q+4*j,4)}, v1, s[12:15], s18 offen offset:{j*1024}{SC}")
    p("s_waitcnt vmcnt(0)")
    p.label("A_HAVEQ")
    stamp(p, 2)
    p("s_waitcnt lgkmcnt(0)")
    p(mf32(SA, F1, Q, "0"))
    p(mf32(SA, F1+4, Q+4, SA))
    for j in range(2): p(f"ds_read_b128 {v(F0+4*j,4)}, {v(VC)} offset:{2048+j*1024}")
    for j in range(2): p(f"ds_read_b128 {v(F0+8+4*j,4)}, {v(VC)} offset:{8192+j*1024}")
    p("s_nop 7")
    T_ = NEGM
    p(f"v_max3_f32 {v(T_)}, {v(SA)}, {v(SA+1)}, {v(SA+2)}")
    for i in range(3, 15, 2): p(f"v_max3_f32 {v(T_)}, {v(T_)}, {v(SA+i)}, {v(SA+i+1)}")
    p(f"v_max_f32 {v(T_)}, {v(T_)}, {v(SA+15)}")
    p(f"v_mov_b32 {v(CV_)}, {v(T_)}")
    p("s_nop 1")
    p(f"v_permlane32_swap_b32 {v(T_)}, {v(CV_)}")
    p(f"v_max_f32 {v(CV_)}, {v(T_)}, {v(CV_)}")
    for i in range(16): p(f"v_sub_f32 {v(NEGM+i)}, 0, {v(CV_)}")
    for i in range(16): p(f"v_sub_f32 {v(SA+i)}, {v(SA+i)}, {v(CV_)}")
    p(f"v_mov_b32 {v(CV_)}, 0")
    p("s_branch A_ENTRY")
    ORDER = ["w0 Y S0 r0 e3 O1p r1 e3 LS e2 S1 r2 c4 e2 O0 r3 e3 X e3 c4",
             "w0 Y S0 r0 r1 e3 O1p r2 r3 e3 LS e2 S1 c4 e2 O0 e3 X e3 c4",
             "w0 Y S0 e3 O1p r0 r1 r2 r3 e3 LS e2 S1 c4 e2 O0 e3 X e3 c4",
             "w0 Y S0 r0 e3 S1 r1 e3 O1p r2 e2 LS c4 e2 O0 r3 e3 X e3 c4",
             "w0 Y O1p r0 e3 S0 r1 e3 LS e2 S1 r2 c4 e2 O0 r3 e3 X e3 c4",
             "w0 Y S0 r0 e4 O1p r1 e3 LS e1 S1 r2 c4 e3 O0 r3 e3 X e2 c4",
             "w0 Y S0 r0 e3 O1p r1 e3 LS e2 c2 S1 r2 c2 e2 O0 r3 e4 X c2 e2 c2",
             "w0 Y S0 r0 e3 O1p r1 e2 LS e3 S1 r2 c4 e2 O0 r3 e4 c2 X e2 c2"][opt("ord", 0)]
    LS = f"v_smfmac_f32_16x16x64_bf16 {v(L,4)}, {v(ONES,4)}, {v(P0,8)}, {v(IDX)}"
    def step(F, Sc, Sn, Fn, u, extra=None, head=None):
        e = 0; c = 0
        for t in ORDER.split():
            if t == "S0":
                if u is not None: p(mf32(Sn, F, Q, NEGM))
            elif t == "S1":
                if u is not None: p(mf32(Sn, F+4, Q+4, Sn))
            elif t == "O0": p(mf32(O, F+8, P0, O))
            elif t == "O1p": p(mf32(O, Fn+12, P1, O))
            elif t == "X":
                if extra: extra()
            elif t == "Y":
                if head: head()
            elif t == "LS": p(LS)
            elif t[0] == "e":
                for _ in range(int(t[1:])): p(f"v_exp_f32 {v(Sc+e)}, {v(Sc+e)}"); e += 1
            elif t[0] == "c":
                for _ in range(int(t[1:])): p(f"v_cvt_pk_bf16_f32 {v(P0+c)}, {v(Sc+2*c)}, {v(Sc+2*c+1)}"); c += 1
            elif t[0] == "r":
                if u is not None:
                    j = int(t[1:])
                    if j >= 2: p(f"ds_read_b128 {v(Fn+4*j,4)}, {v(VC)} offset:{8192+u*2048+(j-2)*1024}")
                    elif u < 3: p(f"ds_read_b128 {v(Fn+4*j,4)}, {v(VC)} offset:{(u+1)*2048+j*1024}")
                    else: p(f"ds_read_b128 {v(Fn+4*j,4)}, {v(VN)} offset:{j*1024}")
            elif t[0] == "w": p(f"s_waitcnt lgkmcnt({t[1:]})")
    def arrive():
        p("s_mov_b64 exec, 1")
        p(f"ds_add_u32 {v(VP)}, {v(ONE)}")
        p("s_mov_b64 exec, -1")
        if opt("dyn", 0):
            p(f"v_xor_b32 {v(CV_)}, 16, {v(VP)}")
            p(f"ds_read_b32 {v(CV_)}, {v(CV_)}")
    def lead():
        p(f"v_readfirstlane_b32 s10, {v(CV_)}")
        p("s_add_u32 s10, s10, 2")
        p("s_cmp_gt_u32 s25, s10")
        p("s_cselect_b32 s23, 1, 0")
    def peek():
        p(f"ds_read_b32 {v(CV_)}, {v(CA)} offset:{C_KVL}")
        p(f"v_add_u32 {v(VN)}, s22, v1")
        p("s_add_u32 s22, s22, 16384")
        p(f"s_cmp_ge_u32 s22, {RING}")
        p("s_cselect_b32 s22, 0, s22")
    def chk():
        p.label("A_CHK")
        p(f"v_cmp_gt_u32 vcc, s25, {v(CV_)}")
        p("s_cbranch_vccnz A_SPIN")
    def flip():
        p(f"v_mov_b32 {v(VC)}, {v(VN)}")
        p("s_add_u32 s25, s25, 1")
    LAD = [int(c) for c in OPT.get("lad", "3210")]
    LAD2 = [int(c) for c in OPT.get("lad2", OPT.get("lad", "3210"))]
    DYN = opt("dyn", 0)
    def prio(i):
        p(f"s_setprio {LAD[i]}")
        if LAD2[i] != LAD[i]:
            p("s_cmp_eq_u32 s23, 0")
            p(f"s_cbranch_scc1 A_PR{i}")
            p(f"s_setprio {LAD2[i]}")
            p.label(f"A_PR{i}")
    p.label("A_SPIN")
    bail(p)
    p("s_sleep 1")
    p(f"ds_read_b32 {v(CV_)}, {v(CA)} offset:{C_KVL}")
    p("s_waitcnt lgkmcnt(0)")
    p("s_branch A_CHK")
    p.pads(0)
    if opt("al2", -1) >= 0:
        p(".p2align 6")
        for _ in range(opt("al2")): p("s_nop 0")
    p.label("A_LOOP")
    prio(0)
    step(F1, SB, SA, F0, 0, extra=arrive)
    p.label("A_ENTRY")
    prio(1)
    step(F0, SA, SB, F1, 1, extra=lead if opt("dyn", 0) else None)
    prio(2)
    step(F1, SB, SA, F0, 2, extra=peek)
    prio(3)
    step(F0, SA, SB, F1, 3, extra=flip, head=chk)
    if STAMP:
        for (n_, i_) in ((3, 4), (4, 5), (6, 6), (10, 7)):
            p(f"s_cmp_lg_u32 s25, {n_}")
            p(f"s_cbranch_scc1 A_ST{n_}")
            stamp(p, i_)
            p.label(f"A_ST{n_}")
    p("s_cmp_lt_u32 s25, 18")
    p("s_cbranch_scc1 A_LOOP")
    p.pads(PADN)
    step(F1, SB, SA, F0, None, extra=arrive)
    p("s_nop 1")
    p(mf32(O, F1+12, P1, O))
    p(LS)
    stamp(p, 8)
    p("v_and_b32 v2, 256, v1")
    p("v_cmp_eq_u32 vcc, 0, v2")
    p("s_lshl_b32 s10, s28, 16")
    p("s_lshl_b32 s11, s29, 11")
    p("s_add_u32 s10, s10, s11")
    p("s_nop 3")
    p(f"s_add_u32 s35, s10, {WS_O}")
    p(f"s_mov_b32 s11, {f32bits(2.0**100)}")
    p("s_nop 0")
    p(f"v_add_f32 {v(L)}, {v(L)}, {v(L+1)}")
    p(f"v_add_f32 {v(L+2)}, {v(L+2)}, {v(L+3)}")
    if opt("sp4", 0):
        p("v_bfe_u32 v3, v1, 4, 4")
        p("v_lshlrev_b32 v3, 2, v3")
        p(f"ds_bpermute_b32 {v(L)}, v3, {v(L)}")
        p(f"ds_bpermute_b32 {v(L+2)}, v3, {v(L+2)}")
        p("s_waitcnt lgkmcnt(0)")
    p(f"v_cndmask_b32 v2, {v(L+2)}, {v(L)}, vcc")
    p(f"v_add_f32 v3, abs({v(O)}), v2")
    for i in range(1, 16): p(f"v_add_f32 v3, abs({v(O+i)}), v3")
    p("v_cmp_ngt_f32 vcc, s11, v3")
    if opt("forcefb"): p("s_branch A_FALLBACK")
    p("s_cbranch_vccnz A_FALLBACK")
    p.label("A_FIN")
    p("v_rcp_f32 v2, v2")
    p("s_nop 0")
    for j in range(2):
        for i in range(8 * j, 8 * j + 8): p(f"v_mul_f32 {v(O+i)}, v2, {v(O+i)}")
        for i in range(4 * j, 4 * j + 4): p(f"v_cvt_pk_bf16_f32 {v(P0+i)}, {v(O+2*i)}, {v(O+2*i+1)}")
        p(f"buffer_store_dwordx4 {v(P0+4*j,4)}, v1, s[12:15], s35 offen offset:{1024*j}{SC}")
    OB, WF, AC3 = 76, 8, 40
    p(f"s_load_dwordx2 s[36:37], s[0:1], {D_OUT}")
    p("s_setprio 0")
    p("s_and_b32 s10, s26, 14")
    p(f"s_mul_i32 s34, s10, {FLS}")
    p(f"s_add_u32 s34, s34, {FL_O}")
    p("s_lshl_b32 s10, s29, 3")
    p("s_add_u32 s34, s34, s10")
    p("v_lshrrev_b32 v0, 4, v1")
    p(f"v_mul_u32_u24 v72, {FLS}, v0")
    p("s_waitcnt vmcnt(0)")
    p("s_mov_b64 exec, 1")
    p(f"ds_add_rtn_u32 {v(CV_)}, {v(CA)}, {v(ONE)} offset:{C_OARR}")
    p("s_waitcnt lgkmcnt(0)")
    p(f"v_cmp_eq_u32 vcc, 7, {v(CV_)}")
    p("s_cbranch_vccz G_NOFLAG")
    p("s_mov_b64 exec, 3")
    flag_publish(p, 2, 72, "s34")
    p.label("G_NOFLAG")
    p("s_mov_b64 exec, -1")
    stamp(p, 9)
    if opt("p3w", 4) == 4:
        p("s_cmp_ge_u32 s3, 4")
        p("s_cbranch_scc1 G_FIN")
        OB, WF, AC3 = 56, 8, 24
        tile3(p)
        p("s_lshl_b32 s28, s38, 2")
        p("s_add_u32 s28, s28, s3")
        p("s_lshl_b32 s10, s28, 16")
        p(f"s_add_u32 s10, s10, {WS_O}")
        srd(p, 16, 98, 99, 65536, off="s10")
        srd(p, 20, 36, 37, 8 * MB)
        p("v_add_u32 v2, 4096, v1")
        p("v_lshrrev_b32 v6, 5, v0")
        p("v_lshlrev_b32 v5, 9, v6")
        p("v_bfe_u32 v7, v0, 2, 2")
        p("v_lshl_add_u32 v5, v7, 6, v5")
        p("v_bfe_u32 v7, v0, 4, 1")
        p("v_lshl_add_u32 v5, v7, 5, v5")
        p("v_and_b32 v7, 3, v0")
        p("v_lshl_add_u32 v5, v7, 3, v5")
        for i in range(AC3, AC3 + 32): p(f"v_mov_b32 {v(i)}, 0")
        p("v_and_b32 v7, 31, v0")
        p("v_lshlrev_b32 v7, 12, v7")
        p("v_lshl_add_u32 v7, v6, 4, v7")
        p("s_lshl_b32 s30, s28, 17")
        p("s_lshl_b32 s11, s39, 7")
        p("s_add_u32 s30, s30, s11")
        p("s_add_u32 s30, s30, 2048")
        p("s_mov_b32 s24, 0")
        p("s_mov_b32 s25, 0")
        p(f"s_mov_b32 s31, {WTAB}")
        p("s_mov_b32 s29, 3")
        p(f"s_and_b32 s43, s39, {opt('grot', 0)}")
        p("s_lshl_b32 s43, s43, 2")
        def acq(u, j):
            p("s_andn2_b32 s10, s25, s24")
            p(f"s_cbranch_scc1 G_AQ{u}b")
            p.label(f"G_AQ{u}a")
            p(f"ds_read_b32 {v(CV_)}, {v(CA)} offset:{C_OMASK}")
            p("s_waitcnt lgkmcnt(0)")
            p(f"v_readfirstlane_b32 s25, {v(CV_)}")
            p("s_andn2_b32 s10, s25, s24")
            p(f"s_cbranch_scc1 G_AQ{u}b")
            bail(p)
            p("s_sleep 2")
            p(f"s_branch G_AQ{u}a")
            p.label(f"G_AQ{u}b")
            if opt("grot", 0):
                p("s_lshr_b32 s11, s10, s43")
                p("s_cselect_b32 s11, s11, s10")
                p("s_cselect_b32 s10, s43, 0")
                p("s_ff1_i32_b32 s11, s11")
                p("s_add_u32 s11, s11, s10")
            else: p("s_ff1_i32_b32 s11, s10")
            p("s_bitset1_b32 s24, s11")
            p("s_lshl_b32 s10, s11, 11")
            p("s_lshr_b32 s11, s31, s11")
            p("s_and_b32 s11, s11, 15")
            p(f"s_lshl_b32 s{40+j}, s11, 14")
            for n in range(8): p(f"buffer_load_dwordx4 {v(OB+32*j+4*n,4)}, {v(1+(n>>2))}, s[16:19], s10 offen offset:{1024*(n&3)}{SC if opt('osc', 1) else ''}")
        def rd(b, ks, va): return [f"ds_read_b64_tr_b16 {v(WF+8*b+4*nt+2*h,2)}, {va} offset:{ks*2048+h*1024+nt*256}" for nt in range(2) for h in range(2)]
        def group(j, rest, nxt):
            va, vb = f"v{3+j}", f"v{4-j}"
            if nxt: p(f"v_add_u32 {vb}, s{41-j}, v5")
            for ks in range(8):
                R = rd((ks + 1) & 1, ks + 1, va) if ks < 7 else (rd(0, 0, vb) if nxt else [])
                M = [mf32(AC3+16*nt, WF+8*(ks&1)+4*nt, OB+32*j+4*ks, AC3+16*nt) for nt in range(2)]
                p(f"s_waitcnt vmcnt({rest + 7 - ks}) lgkmcnt(2)")
                p(M[0])
                for r_ in R[:2]: p(r_)
                p(f"s_waitcnt lgkmcnt({2 if R else 0})")
                p(M[1])
                for r_ in R[2:]: p(r_)
        acq(0, 0)
        stamp(p, 10)
        p("s_setprio 3")
        p("v_add_u32 v3, s40, v5")
        for r_ in rd(0, 0, "v3"): p(r_)
        acq(1, 1)
        p.label("G_LOOP")
        group(0, 8, True); acq(2, 0)
        group(1, 8, True); acq(3, 1)
        p("s_sub_u32 s29, s29, 1")
        p("s_cmp_lg_u32 s29, 0")
        p("s_cbranch_scc1 G_LOOP")
        group(0, 8, True)
        group(1, 0, False)
        stamp(p, 11)
        p("s_nop 9")
        for nt in range(2):
            if nt: p("s_nop 0")
            for i in range(8): p(f"v_cvt_pk_bf16_f32 {v(WF+8*nt+i)}, {v(AC3+16*nt+2*i)}, {v(AC3+16*nt+2*i+1)}")
            p("s_nop 1")
            for pr in range(2):
                b_ = WF + 8 * nt + 4 * pr
                p(f"v_permlane32_swap_b32 {v(b_)}, {v(b_+2)}")
                p(f"v_permlane32_swap_b32 {v(b_+1)}, {v(b_+3)}")
                p(f"buffer_store_dwordx4 {v(b_,4)}, v7, s[20:23], s30 offen offset:{64*nt+32*pr}")
        p.label("G_FIN")
    else:
        tile3(p)
        p("s_and_b32 s28, s3, 3")
        p("s_lshl_b32 s10, s38, 2")
        p("s_add_u32 s28, s28, s10")
        p("s_lshr_b32 s29, s3, 2")
        p("s_lshl_b32 s10, s28, 16")
        p("s_lshl_b32 s11, s29, 12")
        p("s_add_u32 s10, s10, s11")
        p(f"s_add_u32 s10, s10, {WS_O}")
        srd(p, 16, 98, 99, 65536, off="s10")
        srd(p, 20, 36, 37, 8 * MB)
        p("v_lshrrev_b32 v6, 5, v0")
        p("v_lshlrev_b32 v5, 9, v6")
        p("v_bfe_u32 v7, v0, 2, 2")
        p("v_lshl_add_u32 v5, v7, 6, v5")
        p("v_bfe_u32 v7, v0, 4, 1")
        p("v_lshl_add_u32 v5, v7, 5, v5")
        p("v_and_b32 v7, 3, v0")
        p("v_lshl_add_u32 v5, v7, 3, v5")
        p("s_lshl_b32 s10, s29, 13")
        p("v_add_u32 v5, s10, v5")
        for i in range(AC3, AC3 + 32): p(f"v_mov_b32 {v(i)}, 0")
        p("v_and_b32 v73, 31, v0")
        p("v_lshlrev_b32 v73, 12, v73")
        p("v_lshl_add_u32 v73, v6, 4, v73")
        p("s_lshl_b32 s10, s3, 12")
        p("v_add_u32 v74, s10, v1")
        p("v_xor_b32 v75, 16384, v74")
        p("s_lshl_b32 s30, s28, 17")
        p("s_lshl_b32 s11, s39, 7")
        p("s_add_u32 s30, s30, s11")
        p("s_lshl_b32 s11, s29, 6")
        p("s_add_u32 s30, s30, s11")
        p("s_add_u32 s30, s30, 2048")
        p("s_mov_b32 s24, 0")
        p("s_mov_b32 s25, 0")
        p(f"s_mov_b32 s31, {WTAB}")
        def acq(u):
            j = u % 3
            p("s_andn2_b32 s10, s25, s24")
            p(f"s_cbranch_scc1 G_AQ{u}b")
            p.label(f"G_AQ{u}a")
            p(f"ds_read_b32 {v(CV_)}, {v(CA)} offset:{C_OMASK}")
            p("s_waitcnt lgkmcnt(0)")
            p(f"v_readfirstlane_b32 s25, {v(CV_)}")
            p("s_andn2_b32 s10, s25, s24")
            p(f"s_cbranch_scc1 G_AQ{u}b")
            bail(p)
            p("s_sleep 2")
            p(f"s_branch G_AQ{u}a")
            p.label(f"G_AQ{u}b")
            p("s_ff1_i32_b32 s11, s10")
            p("s_bitset1_b32 s24, s11")
            p("s_lshl_b32 s10, s11, 11")
            p("s_lshr_b32 s11, s31, s11")
            p("s_and_b32 s11, s11, 15")
            p(f"s_lshl_b32 s{40+j}, s11, 14")
            for n in range(4): p(f"buffer_load_dwordx4 {v(OB+16*j+4*n,4)}, v1, s[16:19], s10 offen offset:{1024*n}{SC}")
        def rdw(u):
            p(f"v_add_u32 v4, s{40+u%3}, v5")
            for ks in range(4):
                for nt in range(2):
                    for h in range(2): p(f"ds_read_b64_tr_b16 {v(WF+8*ks+4*nt+2*h,2)}, v4 offset:{ks*2048+h*1024+nt*256}")
        acq(0)
        stamp(p, 10)
        rdw(0); acq(1); acq(2)
        for u in range(8):
            rest = 4 * min(2, 7 - u)
            for ks in range(4):
                p(f"s_waitcnt vmcnt({rest + 3 - ks}) lgkmcnt({12 - 4*ks})")
                for nt in range(2): p(mf32(AC3+16*nt, WF+8*ks+4*nt, OB+16*(u%3)+4*ks, AC3+16*nt))
            if u < 7: rdw(u + 1)
            if u + 3 < 8: acq(u + 3)
        stamp(p, 11)
        p("s_barrier")
        p("s_cmp_eq_u32 s29, 0")
        p("s_cbranch_scc1 G_X0")
        p("s_nop 7")
        for j in range(4): p(f"ds_write_b128 v74, {v(AC3+4*j,4)} offset:{1024*j}")
        for i in range(16): p(f"v_mov_b32 {v(AC3+i)}, {v(AC3+16+i)}")
        p("s_branch G_X1")
        p.label("G_X0")
        p("s_nop 8")
        for j in range(4): p(f"ds_write_b128 v74, {v(AC3+16+4*j,4)} offset:{1024*j}")
        p.label("G_X1")
        p("s_waitcnt lgkmcnt(0)")
        p("s_barrier")
        for j in range(4): p(f"ds_read_b128 {v(AC3+16+4*j,4)}, v75 offset:{1024*j}")
        for pr in range(2):
            p(f"s_waitcnt lgkmcnt({2-2*pr})")
            for i in range(8 * pr, 8 * pr + 8): p(f"v_add_f32 {v(AC3+i)}, {v(AC3+i)}, {v(AC3+16+i)}")
            b = WF + 4 * pr
            for i in range(4): p(f"v_cvt_pk_bf16_f32 {v(b+i)}, {v(AC3+8*pr+2*i)}, {v(AC3+8*pr+2*i+1)}")
            p("s_nop 1")
            p(f"v_permlane32_swap_b32 {v(b)}, {v(b+2)}")
            p(f"v_permlane32_swap_b32 {v(b+1)}, {v(b+3)}")
            p(f"buffer_store_dwordx4 {v(b,4)}, v73, s[20:23], s30 offen offset:{32*pr}")
    stamp(p, 12)
    stamp_flush(p)
    p.pads(0)
    p.label("L_END")
    p("s_endpgm")
    p.label("A_FALLBACK")
    p(f"ds_read_b32 {v(CV_)}, {v(CA)} offset:{C_GALL}")
    p("s_waitcnt lgkmcnt(0)")
    p(f"v_readfirstlane_b32 s31, {v(CV_)}")
    M_, AL = NEGM, NEGM + 1
    for i in range(16): p(f"v_mov_b32 {v(O+i)}, 0")
    p("v_mov_b32 v2, 0")
    p(f"v_mov_b32 {v(M_)}, 0xff7fffff")
    p("s_lshl_b32 s30, s29, 18")
    p("s_mov_b32 s25, 0")
    p.label("A_FBL")
    p("s_lshr_b32 s10, s25, 2")
    p("s_bitcmp1_b32 s31, s10")
    p(f"s_cselect_b32 s11, {LOC}, 0")
    p("s_lshl_b32 s10, s10, 14")
    p("s_add_u32 s10, s10, s11")
    p("s_and_b32 s11, s25, 3")
    p("s_lshl_b32 s11, s11, 11")
    p("s_add_u32 s10, s10, s11")
    p("s_add_u32 s10, s10, s30")
    p("s_add_u32 s11, s10, 8192")
    for j in range(2): p(f"buffer_load_dwordx4 {v(F0+4*j,4)}, v1, s[12:15], s10 offen offset:{1024*j}{SC}")
    for j in range(2): p(f"buffer_load_dwordx4 {v(F0+8+4*j,4)}, v1, s[12:15], s11 offen offset:{1024*j}{SC}")
    p("s_waitcnt vmcnt(0)")
    p(mf32(SA, F0, Q, "0"))
    p(mf32(SA, F0+4, Q+4, SA))
    p("s_nop 15")
    p(f"v_max3_f32 v3, {v(SA)}, {v(SA+1)}, {v(M_)}")
    for i in range(2, 16, 2): p(f"v_max3_f32 v3, v3, {v(SA+i)}, {v(SA+i+1)}")
    p(f"v_mov_b32 {v(SB)}, v3")
    p("s_nop 1")
    p(f"v_permlane32_swap_b32 v3, {v(SB)}")
    p(f"v_max_f32 v3, v3, {v(SB)}")
    p(f"v_sub_f32 {v(AL)}, {v(M_)}, v3")
    p(f"v_exp_f32 {v(AL)}, {v(AL)}")
    p(f"v_mov_b32 {v(M_)}, v3")
    for i in range(16): p(f"v_sub_f32 {v(SA+i)}, {v(SA+i)}, v3")
    for i in range(16): p(f"v_exp_f32 {v(SA+i)}, {v(SA+i)}")
    p(f"v_mul_f32 v2, v2, {v(AL)}")
    for i in range(16): p(f"v_mul_f32 {v(O+i)}, {v(O+i)}, {v(AL)}")
    for i in range(16): p(f"v_add_f32 v2, v2, {v(SA+i)}")
    for i in range(8): p(f"v_cvt_pk_bf16_f32 {v(P0+i)}, {v(SA+2*i)}, {v(SA+2*i+1)}")
    p("s_nop 1")
    p(mf32(O, F0+8, P0, O))
    p(mf32(O, F0+12, P1, O))
    p("s_nop 15")
    p("s_add_u32 s25, s25, 1")
    p("s_cmp_lt_u32 s25, 64")
    p("s_cbranch_scc1 A_FBL")
    p("v_mov_b32 v3, v2")
    p("s_nop 1")
    p("v_permlane32_swap_b32 v2, v3")
    p("v_add_f32 v2, v2, v3")
    p("s_branch A_FIN")

    p.label("L_HELPERS")
    p("s_cmp_ge_u32 s3, 9")
    p("s_cbranch_scc1 L_PARTA")
    emit_w8(p)
    p.label("L_PARTA")
    emit_partA(p)

def emit_w8(p):
    p(f"s_load_dwordx2 s[36:37], s[0:1], {B_WO}")
    if opt("cpf", 0):
        p("s_getpc_b64 s[40:41]")
        p.label("W8_PC")
        p(f"s_sub_u32 s40, s40, W8_PC-{NAME}")
        p("s_subb_u32 s41, s41, 0")
        p("v_lshlrev_b32 v21, 7, v0")
        for j in range(2):
            p(f"v_add_u32 v22, {8192*j}, v21")
            p(f"v_min_u32 v22, L_CODE_END-{NAME}-4, v22")
            p(f"global_load_dword v{23+j}, v22, s[40:41]")
    p("v_and_b32 v8, 3, v0")
    p("v_lshlrev_b32 v8, 2, v8")
    p(f"v_add_u32 v8, {CNT}, v8")
    p("v_and_b32 v9, 7, v0")
    p("v_lshlrev_b32 v9, 2, v9")
    p(f"v_add_u32 v9, {CNT}, v9")
    p(f"v_mov_b32 v20, {CNT}")
    p("s_waitcnt lgkmcnt(0)")
    p("s_add_u32 s94, s96, 0x1000000")
    p("s_addc_u32 s95, s97, 0")
    p("v_lshlrev_b32 v1, 4, v0")
    p("v_and_b32 v6, 15, v0")
    p("v_lshlrev_b32 v6, 3, v6")
    srd(p, 12, 98, 99, WS_SIZE)
    p(f"s_mul_i32 s34, s27, {FLS}")
    p(f"s_add_u32 s34, s34, {FL_KV}")
    p("s_and_b32 s30, s26, 1")
    p("s_lshl_b32 s10, s27, 1")
    p("s_add_u32 s30, s30, s10")
    p("s_lshl_b32 s30, s30, 18")
    p("s_xor_b32 s31, s26, 1")
    p("s_mov_b32 s47, 0")
    local_flag_base(p, 35)
    p("s_mov_b32 s48, 0")
    p("s_mov_b32 s49, 0")
    p("s_lshl_b32 s10, s26, 3")
    p("s_add_u32 s10, s10, 128")
    p("v_mov_b32 v17, s10")
    for _ in range(4): p("s_barrier")
    p("s_mov_b64 exec, 1")
    flag_publish(p, 18, 17, "s35", SC="")
    p("s_mov_b64 exec, -1")
    p("v_and_b32 v16, 31, v0")
    p("v_lshlrev_b32 v16, 3, v16")
    p("s_lshl_b32 s44, 1, s26")
    p("s_mov_b32 s45, 0")
    p("s_mov_b32 s46, 0x4000")
    p("s_mov_b32 s21, 0")
    p("s_mov_b32 s25, 1")
    tile3(p)
    p("v_lshrrev_b32 v5, 5, v0")
    p("v_lshlrev_b32 v5, 2, v5")
    p("v_bfe_u32 v7, v0, 2, 2")
    p("v_add_u32 v5, v5, v7")
    p("v_lshlrev_b32 v5, 11, v5")
    p("v_bfe_u32 v7, v0, 4, 1")
    p("v_lshl_add_u32 v5, v7, 6, v5")
    p("v_and_b32 v7, 3, v0")
    p("v_lshl_add_u32 v10, v7, 4, v5")
    for jj in range(1, 4): p(f"v_add_u32 {v(10+jj)}, {jj*(16384-1024)}, v10")
    p("s_lshl_b32 s11, s39, 7")
    p(f"s_sub_u32 s18, {2*MB}, s11")
    p("s_add_u32 s16, s36, s11")
    p("s_addc_u32 s17, s37, 0")
    p("s_mov_b32 s19, 0x20000")
    p("s_setprio 3")
    for _ in range(8): p("s_barrier")
    p(f"buffer_load_dwordx2 v[18:19], v6, s[12:15], s35 offen offset:128{SC}")
    for _ in range(4): p("s_barrier")
    p("s_waitcnt vmcnt(0)")
    flag_test(p, 18)
    p("s_cmp_eq_u64 vcc, -1")
    p("s_cselect_b32 s50, 1, 2")
    if opt("forceg"): p("s_mov_b32 s50, 2")
    p("v_mov_b32 v3, s50")
    p(f"ds_write_b32 v20, v3 offset:{C_CPY}")
    lds_wait_ge(p, "W8_E2", 20, C_KVST, 4, 3, sleep=1)
    stamp(p, 1)
    p.pads(opt("pada"))
    p.label("W8_LOOP")
    p("s_cmp_eq_u32 s47, 0")
    p("s_cbranch_scc1 W8_POLL")
    p("s_andn2_b32 s10, s45, s44")
    p("s_cbranch_scc1 W8_HAVE")
    p.label("W8_POLL")
    p(f"buffer_load_dwordx2 v[18:19], v6, s[12:15], s35 offen{SC}")
    p("s_add_u32 s49, s49, 1")
    bail(p)
    p("s_cmp_eq_u32 s50, 1")
    p("s_cbranch_scc1 W8_PL")
    p(f"buffer_load_dwordx2 v[14:15], v6, s[12:15], s34 offen{SC}")
    p("s_waitcnt vmcnt(0)")
    flag_test(p, 14)
    p("s_and_b32 s45, vcc_lo, 0xffff")
    p("s_sub_u32 s46, s46, 1")
    p("s_cselect_b32 s45, 0xffff, s45")
    p.label("W8_PL")
    p("v_mov_b32 v3, s25")
    p("s_waitcnt vmcnt(0)")
    p(f"ds_write_b32 v20, v3 offset:{C_KVL}")
    if STAMP:
        p("s_cmp_lg_u32 s49, 1")
        p("s_cbranch_scc1 W8_STP")
        stamp(p, 6)
        p.label("W8_STP")
    flag_test(p, 18)
    p("s_and_b32 s48, vcc_lo, 0xffff")
    p("s_or_b32 s45, s45, s48")
    p("s_cmp_lg_u32 s47, 0")
    p("s_cbranch_scc1 W8_QD")
    p("s_bitcmp1_b32 s45, s31")
    p("s_cselect_b32 s47, 2, 0")
    p("s_bitcmp1_b32 s48, s31")
    p("s_cselect_b32 s47, 1, s47")
    p("v_mov_b32 v3, s47")
    p(f"ds_write_b32 v20, v3 offset:{C_QRDY}")
    p.label("W8_QD")
    p("s_andn2_b32 s10, s45, s44")
    p("s_cbranch_scc1 W8_HAVE")
    p(f"s_sleep {opt('kslp', 2)}")
    p("s_branch W8_POLL")
    p.label("W8_NOSLOT")
    p("v_mov_b32 v3, s25")
    p("s_waitcnt vmcnt(0)")
    p(f"ds_write_b32 v20, v3 offset:{C_KVL}")
    bail(p)
    p("s_sleep 4")
    p("s_branch W8_LOOP")
    p.label("W8_HAVE")
    p("s_sub_u32 s24, s25, 5")
    p(f"ds_read_b32 v3, v9 offset:{C_PROG}")
    p("s_waitcnt lgkmcnt(0)")
    p("v_cmp_gt_i32 vcc, s24, v3")
    p("s_cbranch_vccnz W8_NOSLOT")
    p("s_lshr_b32 s11, s10, s26")
    p("s_cselect_b32 s11, s11, s10")
    p("s_cselect_b32 s20, s26, 0")
    p("s_ff1_i32_b32 s11, s11")
    p("s_add_u32 s11, s11, s20")
    p("s_bitset1_b32 s44, s11")
    p("s_lshl_b32 s20, s11, 14")
    p("s_add_u32 s20, s20, s30")
    p("s_bitcmp1_b32 s48, s11")
    p(f"s_cselect_b32 s10, {LOC}, 0")
    p("s_add_u32 s20, s20, s10")
    for q_ in range(4):
        p("s_mov_b32 m0, s21")
        p("s_add_u32 s21, s21, 4096")
        for j in range(4): p(f"buffer_load_dwordx4 v1, s[12:15], s20 offen offset:{1024*j}{SC} lds")
        p("s_add_u32 s20, s20, 4096")
    p(f"s_cmp_ge_u32 s21, {RING}")
    p("s_cselect_b32 s21, 0, s21")
    p("v_mov_b32 v3, s25")
    p("s_add_u32 s25, s25, 1")
    p("s_waitcnt vmcnt(16)")
    p(f"ds_write_b32 v20, v3 offset:{C_KVL}")
    if STAMP:
        for (n_, i_) in ((2, 2), (3, 3), (6, 4)):
            p(f"s_cmp_lg_u32 s25, {n_}")
            p(f"s_cbranch_scc1 W8_ST{n_}")
            stamp(p, i_)
            p.label(f"W8_ST{n_}")
    p("s_cmp_lt_u32 s25, 16")
    p("s_cbranch_scc1 W8_LOOP")
    p("s_bitset1_b32 s48, s26")
    p("v_mov_b32 v7, s48")
    p(f"ds_write_b32 v20, v7 offset:{C_GALL}")
    p("v_mov_b32 v3, 17")
    p("s_waitcnt vmcnt(0)")
    p(f"ds_write_b32 v20, v3 offset:{C_KVL}")
    stamp(p, 5)
    p(f"s_mul_i32 s34, s38, {FLS}")
    p(f"s_add_u32 s34, s34, {FL_O}")
    order = [(0, 11, 0), (1, 12, 0), (2, 13, 0), (3, 13, 4), (4, 13, 4), (5, 13, 4), (6, 14, 4), (7, 15, 4)]
    pack = lambda f: sum(f(o) << (4 * i) for i, o in enumerate(order))
    p(f"s_mov_b32 s41, {WTAB}")
    p(f"s_mov_b32 s42, {pack(lambda o: o[1] - 8)}")
    p("s_mov_b32 s25, 0")
    p("s_mov_b32 s44, 0")
    p("s_mov_b32 s46, 0x4000")
    p.label("W8_WLOOP")
    p("s_cmp_lg_u32 s25, 3")
    p("s_cbranch_scc1 W8_WNC")
    lds_wait_ge(p, "W8_CV", 20, C_A2, 4, 3, sleep=4)
    p.label("W8_WNC")
    p("s_and_b32 s24, s42, 15")
    p("s_add_u32 s24, s24, 8")
    p(f"ds_read_b32 v3, v9 offset:{C_PROG}")
    p("s_waitcnt lgkmcnt(0)")
    p("v_cmp_gt_i32 vcc, s24, v3")
    p("s_cbranch_vccnz W8_WSKIP")
    p("s_lshl_b32 s20, s25, 18")
    p("s_and_b32 s21, s41, 15")
    p("s_lshl_b32 s21, s21, 14")
    p("s_lshl_b32 s10, s25, 2")
    p("s_bitset1_b32 s44, s10")
    for q_ in range(4):
        p("s_mov_b32 m0, s21")
        p("s_add_u32 s21, s21, 4096")
        for jj in range(4): p(f"buffer_load_dwordx4 {v(10+jj)}, s[16:19], s20 offen offset:{1024*jj} lds")
        p("s_add_u32 s20, s20, 65536")
    for r_ in (41, 42): p(f"s_lshr_b32 s{r_}, s{r_}, 4")
    p("s_waitcnt vmcnt(32)")
    p("s_add_u32 s25, s25, 1")
    p("s_cmp_lt_u32 s25, 8")
    p("s_cbranch_scc1 W8_WLOOP")
    lds_wait_ge(p, "W8_OW", 20, C_OARR, opt("ostart", 4), 3, sleep=4)
    p.label("W8_WSKIP")
    p("s_cmp_lt_u32 s25, 8")
    p("s_cbranch_scc1 W8_WNEXT")
    p.label("W8_OPOLL")
    p(f"buffer_load_dwordx2 v[14:15], v16, s[12:15], s34 offen{SC}")
    p("s_waitcnt vmcnt(0)")
    flag_test(p, 14)
    p("s_lshr_b32 s10, vcc_lo, 1")
    p("s_and_b32 s45, vcc_lo, s10")
    p("s_lshr_b32 s10, s45, 2")
    p("s_and_b32 s45, s45, s10")
    p("s_sub_u32 s46, s46, 1")
    p("s_cselect_b32 s45, -1, s45")
    p("s_and_b32 s45, s45, s44")
    lds_wait_ge(p, "W8_OX", 20, C_OARR, 8, 3, sleep=1)
    p("v_mov_b32 v3, s45")
    p(f"ds_write_b32 v20, v3 offset:{C_OMASK}")
    p("s_cmp_eq_u32 s45, 0x11111111")
    p("s_cbranch_scc1 W8_DONE")
    p.label("W8_WNEXT")
    bail(p)
    p(f"s_sleep {opt('oslp', 8)}")
    p("s_cmp_lt_u32 s25, 8")
    p("s_cbranch_scc1 W8_WLOOP")
    p("s_branch W8_OPOLL")
    p.pads(0)
    p.label("W8_DONE")
    if opt("diag"):
        p.label("DG")
        p("s_memrealtime s[92:93]")
        p("s_waitcnt lgkmcnt(0)")
        p("s_sub_u32 s10, s92, s96")
        p(f"s_cmp_lt_u32 s10, {opt('diag')}")
        p("s_cbranch_scc1 DG")
    stamp(p, 12)
    stamp_flush(p)
    p("s_endpgm")

def emit_partA(p):
    pre = "PA"
    nst = [0]
    def st2(L_):
        nst[0] += 1
        p("s_cmp_eq_u32 s9, 1")
        p(f"s_cbranch_scc1 PA_SP{nst[0]}")
        for x in L_: p(x + (SC if x.startswith("buffer") else ""))
        p(f"s_branch PA_SE{nst[0]}")
        p.label(f"PA_SP{nst[0]}")
        for x in L_: p(x)
        p.label(f"PA_SE{nst[0]}")
    p(f"s_load_dwordx8 s[36:43], s[0:1], {A_Q}")
    p(f"s_load_dwordx4 s[44:47], s[0:1], {A_SSMK}")
    p(f"s_load_dwordx4 s[48:51], s[0:1], {B_WO}")
    p("s_sub_u32 s3, s3, 9")
    p("s_lshl_b32 s56, s27, 1")
    p("s_lshr_b32 s10, s3, 1")
    p("s_add_u32 s56, s56, s10")
    p("s_lshl_b32 s56, s56, 4")
    p("s_add_u32 s56, s56, s26")
    p("s_lshl_b32 s56, s56, 14")
    p("s_and_b32 s10, s3, 1")
    p("s_lshl_b32 s10, s10, 13")
    p("s_add_u32 s56, s56, s10")
    p("s_lshl_b32 s57, s27, 4")
    p("s_add_u32 s57, s57, s26")
    p("s_lshl_b32 s57, s57, 13")
    p("s_lshl_b32 s10, s3, 11")
    p("s_add_u32 s57, s57, s10")
    p(f"s_add_u32 s57, s57, {WS_QX}")
    p(f"s_mul_i32 s101, s27, {FLS}")
    p(f"s_add_u32 s101, s101, {FL_KV}")
    p("s_lshl_b32 s10, s26, 3")
    p("s_add_u32 s101, s101, s10")
    if opt("spf", 0):
        p("s_waitcnt lgkmcnt(0)")
        p("s_and_b32 s10, s27, 1")
        p("s_lshl_b32 s10, s10, 2")
        p("s_add_u32 s10, s10, s3")
        p("s_lshl_b32 s10, s10, 15")
        p("s_lshl_b32 s11, s26, 18")
        p("s_add_u32 s10, s10, s11")
        p("s_add_u32 s10, s10, 512")
        p("s_add_u32 s12, s4, s10")
        p("s_addc_u32 s13, s5, 0")
        p("s_lshl_b32 s10, s26, 2")
        p("s_add_u32 s10, s10, s3")
        p("s_add_u32 s10, s10, 256")
        p("s_mul_i32 s10, s10, 6144")
        p("s_lshl_b32 s11, s27, 7")
        p("s_add_u32 s10, s10, s11")
        p("s_add_u32 s14, s6, s10")
        p("s_addc_u32 s15, s7, 0")
        p("v_and_b32 v1, 3, v0")
        p("v_lshlrev_b32 v1, 2, v1")
        p(f"v_add_u32 v1, {CNT}, v1")
        p(f"s_mov_b32 s16, {4 - opt('spf')}")
        p.label("PA_SPF")
        lds_wait_ge(p, "PA_SPW", 1, C_LAND, "s16", 2, sleep=2)
        for hf in range(opt("sph", 1)):
            for r_ in range(16): p(f"s_load_dword s17, s[12:13], {r_*2048 + 64*hf}")
            for t_ in range(3): p(f"s_load_dword s17, s[14:15], {t_*2048 + 64*hf}")
        p("s_add_u32 s12, s12, 128")
        p("s_addc_u32 s13, s13, 0")
        p(f"s_add_u32 s14, s14, {64*6144}")
        p("s_addc_u32 s15, s15, 0")
        p("s_add_u32 s16, s16, 1")
        p(f"s_cmp_lt_i32 s16, {16 - opt('spf')}")
        p("s_cbranch_scc1 PA_SPF")
        p("s_waitcnt lgkmcnt(0)")
    local_flag_base(p, 8)
    p("s_add_u32 s8, s8, 256")
    p("s_mov_b32 s28, s27")
    p("s_lshl_b32 s35, s26, 3")
    p("s_lshl_b32 s29, s26, 2")
    p("s_add_u32 s29, s29, s3")
    p("s_lshl_b32 s27, s28, 6")
    p("s_add_u32 s27, s27, s29")
    p(f"s_mul_i32 s30, s3, {CV_STRIDE}")
    p(f"s_add_u32 s30, s30, {CV_BASE}")
    p("v_and_b32 v1, 7, v0")
    p("v_lshrrev_b32 v2, 3, v0")
    p("s_lshl_b32 s10, s29, 5")
    p("v_lshl_add_u32 v3, v2, 2, s10")
    p("s_lshl_b32 s11, s28, 7")
    p("v_lshl_add_u32 v4, v1, 4, s11")
    p("v_lshl_add_u32 v120, v3, 11, v4")
    p("v_lshl_add_u32 v122, v3, 12, v4")
    p("v_lshlrev_b32 v121, 11, v4")
    p("v_lshl_add_u32 v121, v2, 4, v121")
    p("s_lshr_b32 s31, s29, 4")
    p("s_lshl_b32 s31, s31, 10")
    p("s_and_b32 s26, s29, 7")
    p("s_lshl_b32 s26, s26, 7")
    p("s_add_u32 s31, s31, s26")
    p("s_and_b32 s26, s29, 8")
    p("s_add_u32 s31, s31, s26")
    p("v_add_u32 v121, s31, v121")
    p("v_and_b32 v123, 15, v0")
    p("v_lshlrev_b32 v123, 3, v123")
    p("v_lshlrev_b32 v124, 4, v0")
    p("v_and_b32 v1, 15, v0")
    p("v_lshrrev_b32 v2, 4, v0")
    p("v_lshl_add_u32 v3, v2, 3, s10")
    p("v_lshl_add_u32 v4, v1, 3, s11")
    p("v_lshl_add_u32 v9, v3, 11, v4")
    for j in range(3): p(f"v_add_u32 {v(6+j)}, {(j-3)*2048}, v9")
    for j in range(1, 4): p(f"v_add_u32 {v(9+j)}, {j*4096}, v9")
    p("v_lshlrev_b32 v13, 2, v4")
    p("v_lshrrev_b32 v14, 1, v4")
    p(f"v_mul_u32_u24 v14, {XRS}, v14")
    p("v_lshlrev_b32 v15, 1, v3")
    p("v_sub_u32 v15, 4080, v15")
    p("v_add_u32 v15, v15, v14")
    p("v_lshl_add_u32 v14, v2, 4, v14")
    p("s_lshl_b32 s33, s27, 12")
    p("s_mov_b32 s32, 0xffff0000")
    p(f"s_mul_i32 s34, s28, {FLS}")
    p(f"s_add_u32 s34, s34, {FL_A1}")
    p(f"s_mul_i32 s31, s27, {XRS}")
    p(f"s_add_u32 s31, s31, {WS_XR}")
    p("s_add_u32 s26, s31, 4096")
    p("v_and_b32 v1, 3, v0")
    p("v_lshlrev_b32 v1, 2, v1")
    p(f"v_add_u32 v1, {CNT}, v1")
    p("s_waitcnt lgkmcnt(0)")
    p("s_add_u32 s94, s96, 0x1000000")
    p("s_addc_u32 s95, s97, 0")
    srd(p, 12, 98, 99, WS_SIZE)
    srd(p, 16, 38, 39, 4 * MB)
    srd(p, 20, 40, 41, 4 * MB)
    srd(p, 52, 42, 43, 8192)
    if opt("tch", 0):
        p("v_min_u32 v4, 34, v0")
        p("s_lshl_b32 s10, s29, 5")
        p("s_sub_u32 s10, s10, 3")
        p("v_add_u32 v4, s10, v4")
        p("v_lshlrev_b32 v4, 11, v4")
        p("v_add_u32 v4, s11, v4")
        p(f"s_mul_i32 s10, s3, {opt('tchs', 1)}")
        p(f"s_add_u32 s10, s10, {opt('tch', 0)}")
        lds_wait_ge(p, "PA_T0", 1, C_LAND, "s10", 2, sleep=8)
        p("buffer_load_dword v116, v4, s[16:19], 0 offen")
        p("buffer_load_dword v117, v4, s[20:23], 0 offen")
    if opt("padn") or opt("pada"):
        p("s_cmp_lg_u32 s3, 0")
        p("s_cbranch_scc1 WP_END")
        lds_wait_ge(p, "PA_WP", 1, C_LAND, opt("padat", 8), 2, sleep=16)
        p("s_mov_b64 exec, 0")
        p("s_branch WP0")
        p.label("WP_END")
        p("s_mov_b64 exec, -1")
    TB = opt("tb", 0)
    if TB:
        p("v_lshlrev_b32 v1, 7, v0")
        p("s_lshl_b32 s10, s2, 14")
        p("s_and_b32 s11, s3, 1")
        p("s_lshl_b32 s11, s11, 13")
        p("s_add_u32 s10, s10, s11")
        p("s_cmp_lt_u32 s3, 2")
        p("s_cselect_b32 s60, s38, s40")
        p("s_cselect_b32 s61, s39, s41")
        p("s_cselect_b32 s64, s44, s36")
        p("s_cselect_b32 s65, s45, s37")
        for r_ in (62, 66):
            p(f"s_mov_b32 s{r_}, {4*MB}")
            p(f"s_mov_b32 s{r_+1}, 0x20000")
        for _ in range(TB): p("s_barrier")
        p("buffer_load_dword v2, v1, s[60:63], s10 offen")
        if opt("tb2", 0): p("buffer_load_dword v2, v1, s[64:67], s10 offen")
        for _ in range(16 - TB): p("s_barrier")
        p("s_waitcnt vmcnt(0)")
    else:
        for _ in range(16): p("s_barrier")
    p(f"v_mov_b32 v1, {CNT}")
    p.pads(opt("pada"))
    lds_wait_ge(p, "PA_C0", 1, C_CPY, 1, 2, sleep=4)
    p("v_readfirstlane_b32 s9, v2")
    if not opt("pal", 1): p("s_mov_b32 s9, 2")
    p("v_cmp_eq_u32 vcc, 1, v2")
    p("s_cbranch_vccnz PA_C3")
    lds_wait_ge(p, "PA_C1", 1, C_KVST, 4, 2, sleep=2)
    p("v_add_u32 v2, 4096, v124")
    p(f"s_add_u32 s10, s56, {LOC}")
    p(f"s_add_u32 s11, s57, {LOC}")
    for n in range(8): p(f"buffer_load_dwordx4 {v(64+4*n,4)}, {('v124', 'v2')[n>>2]}, s[12:15], s10 offen offset:{1024*(n&3)}{SC}")
    for n in range(2): p(f"buffer_load_dwordx4 {v(96+4*n,4)}, v124, s[12:15], s11 offen offset:{1024*n}{SC}")
    p("s_waitcnt vmcnt(0)")
    for n in range(8): p(f"buffer_store_dwordx4 {v(64+4*n,4)}, {('v124', 'v2')[n>>2]}, s[12:15], s56 offen offset:{1024*(n&3)}{SC}")
    for n in range(2): p(f"buffer_store_dwordx4 {v(96+4*n,4)}, v124, s[12:15], s57 offen offset:{1024*n}{SC}")
    p("v_mov_b32 v2, 1")
    p("v_mov_b32 v3, 0")
    p("s_waitcnt vmcnt(0)")
    p("s_mov_b64 exec, 1")
    p(f"ds_add_rtn_u32 v2, v1, v2 offset:{C_CP2}")
    p("s_waitcnt lgkmcnt(0)")
    p("v_cmp_eq_u32 vcc, 3, v2")
    p("s_cbranch_vccz PA_C2")
    flag_publish(p, 126, 3, "s101")
    p.label("PA_C2")
    p("s_mov_b64 exec, -1")
    p.label("PA_C3")
    lds_wait_ge(p, "PA_W0", 1, C_KVL, opt("hwk", 5), 2, sleep=opt("w0slp", 4))
    p(f"s_setprio {opt('cvprio', 3)}")
    stamp(p, 1)
    KR, VR, SR = 16, 38, 56
    def rowaddr(j):
        if j < 3: return v(6 + j), 0
        return v(9 + (j - 3) // 2), 2048 * ((j - 3) & 1)
    for j in range(2): p(f"buffer_load_dwordx4 {v(SR+4*j,4)}, v13, s[52:55], 0 offen offset:{16*j}")
    for j in range(11):
        a_, o_ = rowaddr(j); p(f"buffer_load_dwordx2 {v(KR+2*j,2)}, {a_}, s[16:19], 0 offen offset:{o_}")
    for j in range(8):
        a_, o_ = rowaddr(j + 3); p(f"buffer_load_dwordx2 {v(VR+2*j,2)}, {a_}, s[20:23], 0 offen offset:{o_}")
    srd(p, 16, 44, 45, 4096, off="s33")
    srd(p, 20, 46, 47, 2048)
    EARLYH = opt("earlyh", 0)
    def hdma(t, u):
        p(f"v_and_b32 {v(u)}, 7, v0")
        p(f"v_lshlrev_b32 {v(u)}, 2, {v(u)}")
        p(f"v_add_u32 {v(u)}, {CNT}, {v(u)}")
        lds_wait_ge(p, "PA_W1", u, C_PROG, 1, u + 1, sleep=4)
        p(f"v_add_u32 {v(t+1)}, -512, v124")
        p(f"v_add_u32 {v(t+2)}, 512, v124")
        p("s_lshl_b32 s10, s27, 1")
        p(f"v_mov_b32 {v(t)}, s10")
        p(f"s_add_u32 m0, s30, {CV_H}")
        p(f"buffer_load_ushort v125, {v(t)}, s[20:23], 0 offen")
        p(f"buffer_load_dwordx4 {v(t+1)}, s[16:19], 0 offen lds")
        p(f"s_add_u32 m0, s30, {CV_H + 1024}")
        p("s_nop 0")
        for j in range(4): p(f"buffer_load_dwordx4 {v(t+2)}, s[16:19], 0 offen offset:{1024*j} lds")
        srd(p, 52, 48, 49, 2 * MB)
        p("s_lshl_b32 s10, s27, 11")
        p(f"v_lshlrev_b32 {v(u)}, 5, v0")
        p(f"buffer_load_dword v127, {v(u)}, s[52:55], s10 offen")
    if EARLYH: hdma(1, 4)
    XH = 7 if EARLYH else 0
    T, KU, AC, OUT = 64, 72, 94, 112
    for cp in range(2):
        if cp == 0:
            p(f"s_waitcnt vmcnt({8 + XH})"); stamp(p, 2)
        for e in range(2):
            for jj in range(2):
                src = SR + 4 * cp + 2 * e + jj
                p(f"v_lshlrev_b32 {v(T+2*(2*jj)+e)}, 16, {v(src)}")
                p(f"v_and_b32 {v(T+2*(2*jj+1)+e)}, s32, {v(src)}")
        for j in range(11):
            p(f"v_lshlrev_b32 {v(KU+2*j)}, 16, {v(KR+2*j+cp)}")
            p(f"v_and_b32 {v(KU+2*j+1)}, s32, {v(KR+2*j+cp)}")
        for t in range(8): p(f"v_pk_mul_f32 {v(AC+2*t,2)}, {v(KU+2*t,2)}, {v(T+6,2)}")
        for j in (2, 1, 0):
            for t in range(8): p(f"v_pk_fma_f32 {v(AC+2*t,2)}, {v(KU+2*(t-j+3),2)}, {v(T+2*j,2)}, {v(AC+2*t,2)}")
        if cp == 0: p(f"s_waitcnt vmcnt({XH})")
        for j in range(8):
            p(f"v_lshlrev_b32 {v(KU+2*j)}, 16, {v(VR+2*j+cp)}")
            p(f"v_and_b32 {v(KU+2*j+1)}, s32, {v(VR+2*j+cp)}")
        for t in range(8): p(f"v_pk_mul_f32 {v(AC+2*t,2)}, {v(AC+2*t,2)}, {v(KU+2*t,2)}")
        L_ = []
        for e in range(2):
            for i in range(4): p(f"v_cvt_pk_bf16_f32 {v(OUT+4*e+i)}, {v(AC+2*(7-2*i)+e)}, {v(AC+2*(6-2*i)+e)}")
            L_ += [f"s_mov_b32 s10, {WS_XR + (2*cp+e)*XRS}", f"buffer_store_dwordx4 {v(OUT+4*e,4)}, v15, s[12:15], s10 offen"]
        st2(L_)
    p("s_cmp_lg_u32 s29, 0")
    p(f"s_cbranch_scc1 {pre}_S1END")
    for i in range(4): p(f"v_mov_b32 {v(8+i)}, 0")
    L_ = []
    for c in range(4): L_ += [f"s_mov_b32 s10, {WS_XR + c*XRS + 4096}", "buffer_store_dwordx4 v[8:11], v14, s[12:15], s10 offen"]
    st2(L_)
    p.label(f"{pre}_S1END")
    def signal_and_wait(tag, coff, work=None):
        p(f"v_mov_b32 v1, {CNT + coff}")
        p("v_mov_b32 v2, 1")
        p("v_mov_b32 v3, s35")
        p("s_waitcnt vmcnt(0)")
        p("s_mov_b64 exec, 1")
        p("ds_add_rtn_u32 v126, v1, v2")
        p("s_mov_b32 s25, 0x4000")
        p("s_waitcnt lgkmcnt(0)")
        p("v_readfirstlane_b32 s24, v126")
        p("s_cmp_lg_u32 s24, 3")
        p(f"s_cbranch_scc1 {pre}_NOSIG{tag}")
        flag_publish(p, 126, 3, "s8", SC="")
        p("s_cmp_eq_u32 s9, 1")
        p(f"s_cbranch_scc1 {pre}_NOSIG{tag}")
        p(f"buffer_store_dwordx2 v[126:127], v3, s[12:15], s34 offen{SC}")
        p.label(f"{pre}_NOSIG{tag}")
        p("s_mov_b64 exec, -1")
        if work: work()
        p("s_cmp_lg_u32 s24, 3")
        p(f"s_cbranch_scc1 {pre}_LWAIT{tag}")
        p.label(f"{pre}_POLL{tag}")
        p(f"s_sleep {opt('slp', 4)}")
        p(f"buffer_load_dwordx2 v[126:127], v123, s[12:15], s8 offen{SC}")
        p("s_sub_u32 s25, s25, 1")
        p(f"s_cbranch_scc1 {pre}_GOT{tag}")
        p("s_waitcnt vmcnt(0)")
        flag_test(p, 126)
        p("s_cmp_eq_u32 s9, 1")
        p(f"s_cbranch_scc1 {pre}_PT{tag}")
        p("s_mov_b64 s[10:11], vcc")
        p(f"buffer_load_dwordx2 v[126:127], v123, s[12:15], s34 offen{SC}")
        p("s_waitcnt vmcnt(0)")
        flag_test(p, 126)
        p("s_or_b64 vcc, vcc, s[10:11]")
        p.label(f"{pre}_PT{tag}")
        p("s_cmp_lg_u64 vcc, -1")
        p(f"s_cbranch_scc1 {pre}_POLL{tag}")
        p.label(f"{pre}_GOT{tag}")
        p("ds_write_b32 v1, v2 offset:4")
        p(f"s_branch {pre}_GO{tag}")
        p.label(f"{pre}_LWAIT{tag}")
        bail(p)
        p("s_sleep 4")
        p("ds_read_b32 v126, v1 offset:4")
        p("s_waitcnt lgkmcnt(0)")
        p("v_cmp_ne_u32 vcc, 1, v126")
        p(f"s_cbranch_vccnz {pre}_LWAIT{tag}")
        p.label(f"{pre}_GO{tag}")
    AB, BB, KVB, ST = 8, 12, 13, 14
    FA, FBB, ACC = 16, 48, 80
    def hload():
        if not EARLYH: hdma(117, 5)
        p("v_and_b32 v5, 15, v0")
        p("v_lshrrev_b32 v6, 4, v0")
        p("v_lshrrev_b32 v3, 1, v5")
        p("v_lshlrev_b32 v4, 2, v6")
        p("v_sub_u32 v4, v4, v3")
        p("v_lshlrev_b32 v4, 2, v4")
        p("v_and_b32 v3, 1, v5")
        p("v_xor_b32 v3, 1, v3")
        p(f"v_mul_u32_u24 v3, {CV_C1}, v3")
        p(f"s_add_u32 s10, s30, {4*1023 - 32*(112+1)}")
        p(f"v_add3_u32 {v(AB)}, v4, v3, s10")
        for kk in range(1, 4): p(f"v_add_u32 {v(AB+kk)}, {1024*kk}, {v(AB)}")
        p("v_lshlrev_b32 v3, 5, v5")
        p("v_lshl_add_u32 v4, v6, 4, v3")
        p(f"s_add_u32 s10, s30, {CV_H + 512 - 32}")
        p(f"v_add_u32 {v(BB)}, s10, v4")
        p(f"v_lshl_add_u32 {v(ST)}, v6, 3, v3")
        p(f"s_add_u32 s10, s30, {4088 - 512*7}")
        p(f"v_sub_u32 {v(KVB)}, s10, {v(ST)}")
        for i in range(32): p(f"v_mov_b32 {v(ACC+i)}, 0")
        p("v_add_u32 v7, 2, v124")
    stamp(p, 3)
    signal_and_wait(1, C_A1, hload)
    stamp(p, 4)
    for (src_v, off) in ((124, 0), (7, CV_C1)):
        p(f"s_add_u32 m0, s30, {off}")
        p("s_nop 0")
        for j in range(4): p(f"buffer_load_dwordx4 {v(src_v)}, s[12:15], s31 offen offset:{1024*j}{SC} lds")
        p(f"s_add_u32 m0, s30, {off + 4096}")
        p("s_mov_b64 exec, 15")
        p(f"buffer_load_dwordx4 {v(src_v)}, s[12:15], s26 offen{SC} lds")
        p("s_mov_b64 exec, -1")
    p(f"s_add_u32 s34, s34, {FL_A2 - FL_A1}")
    p("s_add_u32 s8, s8, 128")
    p("s_mov_b32 s25, 8")
    p("s_waitcnt vmcnt(0)")
    if opt("qt", 1):
        srd(p, 16, 36, 37, 4 * MB)
        p("v_and_b32 v3, 3, v0")
        p("v_lshl_add_u32 v3, v3, 11, v120")
        p("buffer_load_dword v116, v3, s[16:19], 0 offen")
    if opt("wb", 0):
        p(f"s_and_b32 s10, s29, {opt('wb')}")
        p("s_cbranch_scc1 PA_NOWB")
        p("buffer_wbl2 sc1")
        p.label("PA_NOWB")
    stamp(p, 5)
    p.padn = opt("pada") * 2
    DL = opt("dl", 0)
    if DL:
        p(f"v_mov_b32 v5, {CNT}")
        p(f"s_setprio {opt('lprio', 0)}")
    p.label(f"{pre}_CVL")
    if DL: p(f"ds_read_b32 v6, v5 offset:{C_KVL}")
    def rdA(a):
        kk, rem = (7 - a) >> 1, 128 * ((7 - a) & 1)
        return [f"ds_read2_b32 {v(FA+4*a,2)}, {v(AB+kk)} offset0:{rem} offset1:{rem+1}",
                f"ds_read2_b32 {v(FA+4*a+2,2)}, {v(AB+kk)} offset0:{rem+2} offset1:{rem+3}"]
    cnt = [0]
    def cm(a, b):
        p(mf16(ACC+4*(a+b), FA+4*a, FBB+4*b, ACC+4*(a+b)))
        cnt[0] += 1
        if opt("cvnop", -1) >= 0 and cnt[0] % opt("cvev", 1) == 0: p(f"s_nop {opt('cvnop')}")
    def rdB(b): return [f"ds_read_b128 {v(FBB+4*b,4)}, {v(BB)} offset:{512*b}"]
    for x in range(8):
        for r_ in rdA(x) + rdB(x): p(r_)
    for kk in range(4): p(f"v_add_u32 {v(AB+kk)}, -64, {v(AB+kk)}")
    p(f"v_add_u32 {v(BB)}, -64, {v(BB)}")
    p("s_waitcnt lgkmcnt(12)")
    if DL:
        p(f"v_cmp_gt_i32 vcc, {DL}, v6")
        p(f"s_cbranch_vccnz {pre}_CVB")
        p("s_setprio 3")
        p.label(f"{pre}_CVB")
    for a in range(4):
        for b in range(4): cm(a, b)
    p("s_waitcnt lgkmcnt(0)")
    for a in range(8):
        for b in range(8 - a):
            if a >= 4 or b >= 4: cm(a, b)
    p("s_sub_u32 s25, s25, 1")
    p("s_cmp_lg_u32 s25, 0")
    p(f"s_cbranch_scc1 {pre}_CVL")
    stamp(p, 6)
    p("s_setprio 3")
    p.padn = opt("pada")
    for t in range(8): p(f"ds_read_b64 {v(FA+2*t,2)}, {v(KVB)} offset:{512*(7-t)}")
    p("v_lshlrev_b32 v125, 16, v125")
    p(f"s_add_u32 s33, s33, {WS_Y}")
    p(f"v_lshlrev_b32 {v(ST)}, 1, {v(ST)}")
    for t in range(8):
        p(f"s_waitcnt lgkmcnt({7-t})" if not STAMP else "s_waitcnt lgkmcnt(0)")
        U = FBB + 4 * (t & 3); a = ACC + 4 * t; o = FBB + 16 + 2 * t
        p(f"v_and_b32 {v(U)}, s32, {v(FA+2*t+1)}")
        p(f"v_lshlrev_b32 {v(U+1)}, 16, {v(FA+2*t+1)}")
        p(f"v_and_b32 {v(U+2)}, s32, {v(FA+2*t)}")
        p(f"v_lshlrev_b32 {v(U+3)}, 16, {v(FA+2*t)}")
        for r_ in range(4): p(f"v_fmac_f32 {v(a+r_)}, v125, {v(U+r_)}")
        p(f"v_cvt_pk_bf16_f32 {v(o)}, {v(a)}, {v(a+1)}")
        p(f"v_cvt_pk_bf16_f32 {v(o+1)}, {v(a+2)}, {v(a+3)}")
    st2([f"buffer_store_dwordx4 {v(FBB+16+4*tp,4)}, {v(ST)}, s[12:15], s33 offen offset:{1024*tp}" for tp in range(4)])
    QR, YR, U, OUT = 16, 32, 48, 64
    def qload():
        srd(p, 16, 36, 37, 4 * MB)
        srd(p, 20, 50, 51, 8 * MB)
        p("v_add_u32 v6, 4096, v120")
        for j in range(4): p(f"buffer_load_dwordx4 {v(QR+4*j,4)}, {('v120', 'v6')[j>>1]}, s[16:19], 0 offen offset:{2048*(j&1)}")
    signal_and_wait(2, C_A2, qload)
    stamp(p, 7)
    for c in range(8):
        p(f"s_mov_b32 s10, {WS_Y + c*4096}")
        p(f"buffer_load_dwordx2 {v(YR+2*c,2)}, v121, s[12:15], s10 offen{SC}")
    p("s_waitcnt vmcnt(0)")
    for t in range(4):
        for cp in range(4):
            u = U + 4 * (cp & 1)
            q = QR + 4 * t + cp
            p(f"v_lshlrev_b32 {v(u)}, 16, {v(q)}")
            p(f"v_and_b32 {v(u+1)}, s32, {v(q)}")
            for e in range(2):
                y = YR + 2 * (2 * cp + e) + (t >> 1)
                if t & 1: p(f"v_and_b32 {v(u+2+e)}, s32, {v(y)}")
                else: p(f"v_lshlrev_b32 {v(u+2+e)}, 16, {v(y)}")
            p(f"v_pk_mul_f32 {v(u,2)}, {v(u,2)}, {v(u+2,2)}")
            p(f"v_cvt_pk_bf16_f32 {v(OUT+4*t+cp)}, {v(u)}, {v(u+1)}")
        p(f"s_mov_b32 s10, {t*4096}")
        p(f"buffer_store_dwordx4 {v(OUT+4*t,4)}, v122, s[20:23], s10 offen{SC}")
    stamp(p, 12)
    stamp_flush(p)
    p("s_endpgm")

def build(path):
    p = Prog()
    emit(p)
    p.pads(0)
    if p.npads:
        p.label(f"WP{p.npads}")
        p("s_branch WP_END")
    p.label("L_CODE_END")
    hdr = open("concat_heads__ssm_conv_h3__mha_block__prompt.s.ref").read().split("\n")
    hdr = [l for l in hdr if l.startswith(";") and "@launch" not in l and "Override" not in l and "grid=ceil" not in l]
    out = "\n".join(hdr) + "\n"
    if opt("aslist", 1): out += f"; @launch kernel={NAME} grid=(256,1,1) block=(832,1,1) lds={LDS_BYTES}\n"
    else: out += f"; @launch grid=(256,1,1) block=(832,1,1) lds={LDS_BYTES}\n"
    out += '.amdgcn_target "amdgcn-amd-amdhsa--gfx950"\n.text\n'
    body = p.text()
    nbad = check(body)
    out += body
    out += f""".section .rodata,"a"
.p2align 6
.amdhsa_kernel {NAME}
  .amdhsa_next_free_vgpr 128
  .amdhsa_next_free_sgpr 102
  .amdhsa_accum_offset 128
  .amdhsa_group_segment_fixed_size 0
  .amdhsa_kernarg_size 96
  .amdhsa_user_sgpr_count 2
  .amdhsa_user_sgpr_kernarg_segment_ptr 1
  .amdhsa_system_sgpr_workgroup_id_x 1
.end_amdhsa_kernel
"""
    open(path, "w").write(out)
    return nbad

if __name__ == "__main__":
    nb = build(sys.argv[1] if len(sys.argv) > 1 else "pk.s")
    print("hazards:", nb)
```

```python
import sys, os, struct, math
sys.path.insert(0, os.path.dirname(os.path.abspath(__file__)))
from asmlib import Prog, v, s, check

MB = 1 << 20
WS_KV, WS_QX, WS_O, WS_XR, WS_Y, WS_FL = 0, 8 * MB, 12 * MB, 16 * MB, 21 * MB, 25 * MB
XRS = 4224
WS_SIZE = 64 * MB
LOC = 32 * MB
FLS = 4352
FL_A1, FL_A2, FL_KV, FL_O, FL_KVL = [WS_FL + 16 * i * FLS for i in range(5)]
A_Q, A_K, A_V, A_SK, A_SSMK, A_D, B_X, B_WQKV, B_WO, D_OUT, D_DBG, D_WS = [8 * i for i in range(12)]
def f32bits(x): return struct.unpack("<I", struct.pack("<f", x))[0]
QSCALE = f32bits((32 ** -0.5) * math.log2(math.e))
STAMP = os.environ.get("STAMP", "0") == "1"
LIGHT = os.environ.get("STAMP", "0") == "2"
OPT = dict(kv.split("=") for kv in os.environ.get("OPT", "").split(",") if kv)
def opt(k, d=0): return int(OPT.get(k, d))
WS_ST = 28 * MB
SC = " sc1"
FLG = {0: "", 1: " nt", 2: " sc1", 3: " sc0 sc1", 4: " sc0"}
NAME = "concat_heads__ssm_conv_h3__mha_block__prompt_kernel"

WREG = 5 * 16384
RING = 6 * 16384
OWNC = WREG + 24576
QHO = OWNC + 16384
CV_BASE = 98304
CV_STRIDE = 15616
CV_C1 = 5120 + 64
CV_H = 2 * 5120 + 128
CNT = CV_BASE + 4 * CV_STRIDE
C_LAND, C_CONS, C_PROG, C_KVL, C_OWN, C_KVST, C_A1, C_A2, C_OARR, C_OMASK, C_QRDY, C_CPY, C_GALL, C_CP2 = 0, 16, 32, 64, 68, 72, 76, 84, 92, 96, 100, 104, 108, 112
LDS_BYTES = CNT + 256

def mf32(d, a, b, c): return f"v_mfma_f32_32x32x16_bf16 {v(d,16)}, {v(a,4)}, {v(b,4)}, {v(c,16) if isinstance(c,int) else c}"
def mf16(d, a, b, c): return f"v_mfma_f32_16x16x32_bf16 {v(d,4)}, {v(a,4)}, {v(b,4)}, {v(c,4) if isinstance(c,int) else c}"

def srd(p, d, lo, hi, nrec, off=None):
    if off is None:
        if lo != d: p(f"s_mov_b32 {s(d)}, {s(lo)}")
        if hi != d + 1: p(f"s_mov_b32 {s(d+1)}, {s(hi)}")
    else:
        p(f"s_add_u32 {s(d)}, {s(lo)}, {off}")
        p(f"s_addc_u32 {s(d+1)}, {s(hi)}, 0")
    p(f"s_mov_b32 {s(d+2)}, {nrec}")
    p(f"s_mov_b32 {s(d+3)}, 0x20000")

def stamp(p, i, real=True):
    if STAMP and not (opt("p1st") and i in (4, 5, 6, 7, 9, 10, 11)): p(f"{'s_memrealtime' if real else 's_memtime'} s[{60+2*i}:{61+2*i}]")
def stamp_flush(p, n=14):
    if LIGHT:
        p("s_memrealtime s[90:91]")
        p("s_lshl_b32 s58, s2, 4")
        p("s_add_u32 s58, s58, s59")
        p("s_lshl_b32 s58, s58, 3")
        p(f"s_add_u32 s58, s58, {WS_ST}")
        p("s_waitcnt lgkmcnt(0)")
        p("v_mov_b32 v1, s58")
        p("v_mov_b32 v2, s96")
        p("v_mov_b32 v3, s90")
        p("global_store_dwordx2 v1, v[2:3], s[98:99]")
    if not STAMP: return
    p("s_memtime s[90:91]")
    p("s_lshl_b32 s58, s2, 4")
    p("s_add_u32 s58, s58, s59")
    p("s_lshl_b32 s58, s58, 6")
    p(f"s_add_u32 s58, s58, {WS_ST}")
    p("s_waitcnt lgkmcnt(0)")
    p("v_mov_b32 v2, s58")
    for i in range(16):
        p(f"v_mov_b32 v3, s{60+2*i}")
        p(f"global_store_dword v2, v3, s[98:99] offset:{4*i}")

def lane_id(p, d):
    p(f"v_mbcnt_lo_u32_b32 {v(d)}, -1, 0")
    p(f"v_mbcnt_hi_u32_b32 {v(d)}, -1, {v(d)}")

def bail(p):
    p("s_sub_u32 s100, s100, 1")
    p("s_cbranch_scc1 L_END")

def lds_wait_ge(p, lab, vaddr, off, need, vt, sleep=2):
    p(f"s_branch {lab}c")
    p.label(f"{lab}s")
    bail(p)
    p(f"s_sleep {sleep}")
    p.label(f"{lab}c")
    p(f"ds_read_b32 {v(vt)}, {v(vaddr)} offset:{off}")
    p("s_waitcnt lgkmcnt(0)")
    p(f"v_cmp_gt_i32 vcc, {need}, {v(vt)}")
    p(f"s_cbranch_vccnz {lab}s")

def local_flag_base(p, d):
    p(f"s_getreg_b32 s{d}, hwreg(HW_REG_XCC_ID)")
    p(f"s_and_b32 s{d}, s{d}, 15")
    p(f"s_lshl_b32 s{d}, s{d}, 4")
    p(f"s_add_u32 s{d}, s{d}, s27")
    p(f"s_lshl_b32 s{d}, s{d}, 9")
    p(f"s_add_u32 s{d}, s{d}, {FL_KVL}")

def flag_publish(p, vt, voff, soff, SC=" sc1"):
    p("s_memrealtime s[92:93]")
    p("s_waitcnt lgkmcnt(0)")
    p(f"v_mov_b32 {v(vt)}, s92")
    p(f"v_mov_b32 {v(vt+1)}, s93")
    p(f"buffer_store_dwordx2 {v(vt,2)}, {v(voff)}, s[12:15], {soff} offen{SC}")

def flag_test(p, vt):
    p(f"v_cmp_lt_u64 vcc, s[96:97], {v(vt,2)}")
    p(f"v_cmp_gt_u64 s[92:93], s[94:95], {v(vt,2)}")
    p("s_and_b64 vcc, vcc, s[92:93]")

def pf_addr(p, vx, vw, which=(0, 1)):
    if 0 in which:
        p("s_and_b32 s29, s27, 1")
        p("s_lshl_b32 s29, s29, 6")
        p("s_lshl_b32 s10, s26, 7")
        p("s_add_u32 s29, s29, s10")
        p("v_add_u32 v1, s29, v0")
        p(f"v_lshlrev_b32 {v(vx)}, 11, v1")
    if 1 in which:
        p("v_bfe_u32 v2, v0, 2, 2")
        p("s_lshl_b32 s29, s26, 2")
        p("v_add_u32 v2, s29, v2")
        if opt("wup", 0):
            p("v_lshrrev_b32 v3, 4, v0")
            p("v_lshl_add_u32 v2, v3, 8, v2")
        p("v_mul_u32_u24 v2, 6144, v2")
        p("v_and_b32 v3, 3, v0")
        p("v_min_u32 v3, 2, v3")
        p("v_lshl_add_u32 v2, v3, 11, v2")
        p("s_lshl_b32 s29, s27, 7")
        p(f"v_add_u32 {v(vw)}, s29, v2")

def tile3(p):
    p("s_and_b32 s38, s8, 3")
    p("s_lshl_b32 s38, s38, 2")
    p("s_and_b32 s10, s9, 3")
    p("s_add_u32 s38, s38, s10")
    p("s_lshr_b32 s39, s8, 2")
    p("s_lshl_b32 s39, s39, 3")
    p("s_lshr_b32 s10, s9, 2")
    p("s_add_u32 s39, s39, s10")

WTAB = 0x10876543

def emit(p):
    p(f".globl {NAME}")
    p(".p2align 8")
    p(f".type {NAME},@function")
    p.label(NAME)
    p("s_cmp_ge_u32 s2, 256")
    p("s_cbranch_scc1 L_END")
    p(f"s_load_dwordx4 s[4:7], s[0:1], {B_X}")
    p(f"s_load_dwordx2 s[98:99], s[0:1], {D_WS}")
    p("s_memrealtime s[96:97]")
    p("v_lshrrev_b32 v1, 6, v0")
    p("v_and_b32 v0, 63, v0")
    p("s_and_b32 s8, s2, 7")
    p("v_readfirstlane_b32 s3, v1")
    stamp(p, 0); stamp(p, 14, False)
    p("s_lshr_b32 s9, s2, 3")
    p("s_mov_b32 s100, 0x100000")
    if STAMP or LIGHT: p("s_mov_b32 s59, s3")
    p("s_and_b32 s26, s9, 15")
    p("s_lshl_b32 s27, s8, 1")
    p("s_lshr_b32 s10, s9, 4")
    p("s_add_u32 s27, s27, s10")
    p("s_cmp_ge_u32 s3, 4")
    p("s_cbranch_scc1 L_NOTLOADER")
    p("s_and_b32 s34, s3, 2")
    p("s_and_b32 s25, s3, 1")
    p("v_lshrrev_b32 v2, 3, v0")
    p("v_lshlrev_b32 v2, 11, v2")
    p("v_lshrrev_b32 v3, 4, v0")
    p("v_and_b32 v4, 7, v0")
    p("v_xor_b32 v4, v4, v3")
    p("v_lshl_add_u32 v2, v4, 4, v2")
    p("s_lshl_b32 s10, s34, 16")
    p("v_add_u32 v10, s10, v2")
    p("v_xor_b32 v11, 64, v10")
    p(f"v_add_u32 v12, {32768-2048}, v10")
    p(f"v_add_u32 v13, {49152-3072}, v11")
    p(f"v_add_u32 v11, {16384-1024}, v11")
    p("s_lshl_b32 s23, s34, 12")
    p("s_lshl_b32 s10, s25, 14")
    p("s_add_u32 s23, s23, s10")
    p(f"s_mul_i32 s39, s8, {opt('xrot', 0)}")
    p("s_and_b32 s36, s27, 1")
    p(f"s_mul_i32 s36, s36, {opt('nrot', 0)}")
    p("s_add_u32 s39, s39, s36")
    p("s_add_u32 s36, s39, s25")
    p("s_and_b32 s36, s36, 15")
    p("s_lshl_b32 s20, s36, 7")
    p("s_lshl_b32 s10, s26, 18")
    p("s_mov_b32 s14, 262144")
    p("s_mov_b32 s15, 0x20000")
    pf_addr(p, 16, 16, (1,))
    p("s_add_u32 s35, s39, s3")
    p(f"s_and_b32 s35, s35, {3 if opt('wup', 0) else 15}")
    p(f"s_mul_i32 s35, s35, {64*6144}")
    p("s_waitcnt lgkmcnt(0)")
    srd(p, 40, 6, 7, 6 * MB)
    p("buffer_load_dword v17, v16, s[40:43], s35 offen")
    p("s_add_u32 s12, s4, s10")
    p("s_addc_u32 s13, s5, 0")
    def xissue():
        for q_ in range(2):
            p(f"s_add_u32 m0, s23, {4096*q_}")
            p(f"s_add_u32 s10, s20, {65536*q_}")
            for jj in range(4): p(f"buffer_load_dwordx4 {v(10+jj)}, s[12:15], s10 offen offset:{1024*jj}{FLG[opt('xf')]} lds")
        p("s_add_u32 s20, s20, 256")
        p("s_and_b32 s20, s20, 2047")
        p("s_add_u32 s23, s23, 32768")
        p(f"s_cmp_ge_u32 s23, {WREG}")
        p(f"s_cselect_b32 s10, {WREG}, 0")
        p("s_sub_u32 s23, s23, s10")
    xissue()
    p("v_lshrrev_b32 v2, 5, v0")
    p("v_lshlrev_b32 v2, 2, v2")
    p("v_bfe_u32 v4, v0, 2, 2")
    p("s_lshl_b32 s10, s34, 4")
    p("v_add3_u32 v2, v2, v4, s10")
    p("v_mul_u32_u24 v2, 6144, v2")
    p("v_bfe_u32 v3, v0, 4, 1")
    p("v_lshl_add_u32 v2, v3, 6, v2")
    p("v_and_b32 v4, 3, v0")
    p("v_lshl_add_u32 v14, v4, 4, v2")
    p("v_add_u32 v15, 48128, v14")
    p("v_lshlrev_b32 v4, 2, v4")
    p(f"v_add_u32 v18, {CNT}, v4")
    p("s_mul_i32 s24, s34, 6144")
    p("s_mul_i32 s10, s25, 24576")
    p("s_add_u32 s24, s24, s10")
    p(f"s_add_u32 s24, s24, {WREG}")
    p("s_mul_i32 s21, s36, 393216")
    p("s_lshl_b32 s11, s27, 7")
    p(f"s_sub_u32 s18, {1024*6144}, s11")
    p("s_mov_b32 s19, 0x20000")
    p("s_add_u32 s16, s6, s11")
    p("s_addc_u32 s17, s7, 0")
    p("s_lshl_b64 s[32:33], 1, s3")
    XPF = opt("xpf", 4)
    if XPF:
        p("s_mov_b32 s37, 393216")
        p("s_cmp_lg_u32 s3, 0")
        p("s_cbranch_scc1 P1_NX")
        pf_addr(p, 16, 16, (0,))
        srd(p, 40, 4, 5, 4 * MB)
        p("s_mov_b32 s37, 128")
        p.label("P1_NX")
        p("s_cmp_lg_u32 s25, 0")
    else:
        p(f"s_cmp_ge_u32 s3, {0 if opt('wup', 0) else 2}")
    p("s_cselect_b32 s42, 0, s42")
    p.label("P1_LISSUE")
    for q_ in range(2):
        p(f"s_add_u32 m0, s24, {6144*q_}")
        p(f"s_add_u32 s10, s21, {16*6144*q_}")
        for ii in range(4): p(f"buffer_load_dwordx4 {v(14+(ii&1))}, s[16:19], s10 offen offset:{1024*ii}{FLG[opt('wf')]} lds")
        p(f"s_add_u32 m0, s24, {6144*q_+4096}")
        p(f"s_add_u32 s10, s21, {16*6144*q_+4096}")
        for ii in range(2): p(f"buffer_load_dwordx4 {v(14+ii)}, s[16:19], s10 offen offset:{1024*ii}{FLG[opt('wf')]} lds")
    p("s_add_u32 s36, s36, 2")
    p("s_and_b32 s36, s36, 15")
    p("s_mul_i32 s21, s36, 393216")
    p(f"s_add_u32 s35, s36, {XPF - 2 if XPF else 2}")
    p("s_and_b32 s35, s35, 15")
    p("s_mul_i32 s35, s35, s37" if XPF else "s_mul_i32 s35, s35, 393216")
    p(f"s_cmp_ge_u32 s25, {16 - XPF if XPF else 12}")
    p("s_cselect_b32 s42, 0, s42")
    p("s_add_u32 s24, s24, 49152")
    p(f"s_cmp_ge_u32 s24, {WREG + 3*24576}")
    p(f"s_cselect_b32 s11, {3*24576}, 0")
    p("s_sub_u32 s24, s24, s11")
    p("s_add_u32 s25, s25, 2")
    p("s_cmp_ge_u32 s25, 16")
    p("s_cbranch_scc1 P1_LLAST")
    xissue()
    p("buffer_load_dword v17, v16, s[40:43], s35 offen")
    if XPF:
        p("s_add_u32 s35, s35, s37")
        p("buffer_load_dword v17, v16, s[40:43], s35 offen")
    p("s_cmp_eq_u32 s25, 2")
    p("s_cbranch_scc1 P1_LNB")
    p("s_barrier")
    p.label("P1_LNB")
    p(f"s_waitcnt vmcnt({10 if XPF else 9})")
    p("s_barrier")
    p("s_branch P1_LISSUE")
    p.label("P1_LLAST")
    p("s_barrier")
    p("s_waitcnt vmcnt(0)")
    p("s_barrier")
    p("s_cmp_lg_u32 s25, 16")
    p("s_cbranch_scc1 P1_LDONE")
    p("s_barrier")
    p.label("P1_LDONE")
    stamp(p, 1)
    Q, ONES, L, P0, P1, F0, F1, NEGM, SA, SB, O = 4, 12, 16, 20, 24, 28, 44, 60, 76, 92, 108
    VN, VL, VC, VP, IDX, CA, CV_, ONE = 0, 1, 2, 3, 124, 125, 126, 127
    p("s_lshl_b32 s28, s26, 2")
    p("s_add_u32 s28, s28, s3")
    p("v_lshlrev_b32 v1, 4, v0")
    p(f"v_mov_b32 {v(CA)}, {CNT}")
    srd(p, 12, 98, 99, WS_SIZE)
    p("s_lshl_b32 s10, s3, 11")
    p(f"s_add_u32 s10, s10, {QHO}")
    p(f"v_add_u32 {v(SB)}, s10, v1")
    p("s_branch A_INIT")

    p.label("L_NOTLOADER")
    p("s_cmp_ge_u32 s3, 8")
    p("s_cbranch_scc1 L_HELPERS")
    ACC, XF, WF_, XC, WC, SY, VT = 32, 0, 16, 28, 29, 30, 31
    p("s_sub_u32 s31, s3, 4")
    p("s_lshr_b32 s28, s31, 1")
    p("s_and_b32 s29, s31, 1")
    p("v_and_b32 v1, 31, v0")
    p("v_lshrrev_b32 v2, 5, v0")
    p("v_bfe_u32 v3, v0, 1, 3")
    p("v_xor_b32 v3, v3, v2")
    p("v_lshlrev_b32 v3, 4, v3")
    p("v_lshl_add_u32 v3, v1, 7, v3")
    p("s_lshl_b32 s10, s28, 13")
    p(f"v_add_u32 {v(XC)}, s10, v3")
    p("v_lshlrev_b32 v2, 10, v2")
    p("v_bfe_u32 v3, v0, 2, 2")
    p("v_lshl_add_u32 v2, v3, 6, v2")
    p("v_bfe_u32 v3, v0, 4, 1")
    p("v_lshl_add_u32 v2, v3, 5, v2")
    p("v_and_b32 v3, 3, v0")
    p("v_lshl_add_u32 v2, v3, 3, v2")
    p("s_lshl_b32 s10, s29, 8")
    p(f"s_add_u32 s10, s10, {WREG}")
    p(f"v_add_u32 {v(WC)}, s10, v2")
    p("v_lshlrev_b32 v3, 2, v3")
    p(f"v_add_u32 {v(SY)}, {CNT}, v3")
    p("v_lshlrev_b32 v3, 2, v0")
    p(f"v_add_u32 v3, {CNT}, v3")
    p(f"v_mov_b32 {v(VT)}, 0")
    p(f"ds_write_b32 v3, {v(VT)}")
    for i in range(8, 28): p(f"v_mov_b32 {v(i)}, 0")
    for i in range(ACC, ACC + 96): p(f"v_mov_b32 {v(i)}, 0")
    p("s_mov_b32 s25, 0")
    p("s_mov_b32 s24, 0")
    p("s_mov_b32 s21, 0")
    p(f"s_setprio {opt('cpprio', 3)}")
    def mfmas(b):
        L_ = []
        for ty in range(3):
            for rt in range(2):
                d = ACC + (rt * 3 + ty) * 16
                x, w = XF + 8 * b + 4 * rt, WF_ + 4 * ty
                L_.append(mf32(d, w, x, d) if ty < 2 else mf32(d, x, w, d))
        return L_
    def rx(b, rt): return f"ds_read_b128 {v(XF+8*b+4*rt,4)}, {v(XC)} offset:{rt*4096}"
    def rw(ks, ty): return [f"ds_read_b64_tr_b16 {v(WF_+4*ty+2*h,2)}, {v(WC)} offset:{ks*6144+ty*2048+h*512}" for h in range(2)]
    def cons():
        p("s_mov_b64 exec, s[32:33]")
        p(f"ds_inc_u32 {v(SY)}, {v(SY)} offset:{C_CONS}")
        p("s_mov_b64 exec, -1")
    w = lambda n: p(f"s_waitcnt lgkmcnt({n})")
    if opt("al1", -1) >= 0:
        p(".p2align 6")
        for _ in range(opt("al1")): p("s_nop 0")
    p.label("P1_CLOOP")
    for ks in range(4):
        b = ks & 1
        M = mfmas(b ^ 1)
        w(4); p(M[0])
        if ks == 0:
            p(M[1])
            w(0)
            p("s_barrier")
            for r_ in rw(ks, 0): p(r_)
            p(rx(b, 0))
            p(M[2])
            p(rx(b, 1))
            p(f"v_xor_b32 {v(XC)}, 32, {v(XC)}")
        else:
            p(rx(b, 0)); p(rx(b, 1))
            p(f"v_xor_b32 {v(XC)}, {32 if ks == 2 else 96}, {v(XC)}")
            p(M[1])
            for r_ in rw(ks, 0): p(r_)
        if ks == 3: p(f"v_add_u32 {v(XC)}, s22, {v(XC)}")
        if ks == 1:
            p("s_add_u32 s24, s24, 1")
            p("s_cmp_eq_u32 s24, 3")
            p("s_cselect_b32 s23, -2, 1")
            p("s_cselect_b32 s24, 0, s24")
            p("s_mul_i32 s23, s23, 24576")
        if ks == 2:
            p("s_add_u32 s21, s21, 1")
            p("s_cmp_eq_u32 s21, 5")
            p("s_cselect_b32 s22, -4, 1")
            p("s_cselect_b32 s21, 0, s21")
            p("s_mul_i32 s22, s22, 16384")
        if ks: w(6); p(M[2])
        p(M[3])
        for r_ in rw(ks, 1): p(r_)
        if ks: w(6)
        p(M[4])
        if ks == 3:
            p("s_add_u32 s25, s25, 1")
            p("s_cmp_lt_u32 s25, 16")
        p(M[5])
        for r_ in rw(ks, 2): p(r_)
    p(f"v_add_u32 {v(WC)}, s23, {v(WC)}")
    if STAMP and opt("p1st") == 2:
        p("s_and_b32 s58, s25, 7")
        p("s_cmp_lg_u32 s58, 6")
        p("s_cbranch_scc1 P1_STX")
        p("s_mov_b64 s[68:69], s[72:73]")
        p("s_mov_b64 s[70:71], s[74:75]")
        p("s_memrealtime s[72:73]")
        p("s_memtime s[74:75]")
        p("s_mov_b32 s78, s80")
        p("s_mov_b32 s80, s100")
        p.label("P1_STX")
        p("s_cmp_lt_u32 s25, 16")
    if STAMP and opt("p1st") == 1:
        for (n_, i_) in ((5, 4), (6, 5), (7, 6), (8, 7), (9, 9), (10, 10), (11, 11)):
            p(f"s_cmp_lg_u32 s25, {n_}")
            p(f"s_cbranch_scc1 P1_ST{n_}")
            p(f"s_memrealtime s[{60+2*i_}:{61+2*i_}]")
            p.label(f"P1_ST{n_}")
        p("s_cmp_lt_u32 s25, 16")
    p("s_cbranch_scc1 P1_CLOOP")
    PADN = opt("padn", 0)
    p.pads(PADN)
    M = mfmas(1)
    w(4); p(M[0]); p(M[1]); w(2); p(M[2]); p(M[3]); w(0)
    p(M[4]); p(M[5])
    stamp(p, 1)
    lane_id(p, XC)
    p(f"v_lshlrev_b32 {v(XC)}, 4, {v(XC)}")
    srd(p, 12, 98, 99, WS_SIZE)
    p("s_lshl_b32 s10, s27, 1")
    p("s_add_u32 s10, s10, s29")
    p("s_lshl_b32 s10, s10, 4")
    p("s_add_u32 s10, s10, s26")
    p("s_lshl_b32 s10, s10, 14")
    p("s_lshl_b32 s11, s28, 12")
    p("s_add_u32 s10, s10, s11")
    p(f"s_add_u32 s10, s10, {LOC}")
    p("s_add_u32 s16, s10, 8192")
    p("s_lshl_b32 s18, s27, 4")
    p("s_add_u32 s18, s18, s26")
    p("s_lshl_b32 s18, s18, 13")
    p("s_add_u32 s18, s18, s11")
    p(f"s_add_u32 s18, s18, {WS_QX + LOC}")
    p(f"s_add_u32 s11, s11, {OWNC}")
    p(f"v_add_u32 {v(WC)}, s11, {v(XC)}")
    p(f"s_mov_b32 s17, {QSCALE}")
    p("s_xor_b32 s19, s26, s29")
    p("s_bitcmp1_b32 s19, 0")
    p("s_cbranch_scc1 P1_EOTH")
    p("s_nop 3")
    for own in (1, 0):
        n = 0
        order = (((1, 0), (1, 1), (2, 0), (2, 1), (0, 0), (0, 1)) if opt("stf", 1) else ((1, 0), (0, 0), (0, 1), (2, 0), (1, 1), (2, 1))) if own else ((0, 0), (0, 1), (1, 0), (1, 1), (2, 0), (2, 1))
        keep = []
        for (ty, rt) in order:
            d = ACC + (rt * 3 + ty) * 16
            if ty == 0:
                for i in range(16): p(f"v_mul_f32 {v(d+i)}, s17, {v(d+i)}")
            for j in range(2):
                o = d + 8 * j if own else 4 * (n % 7); n += 1
                for i in range(4): p(f"v_cvt_pk_bf16_f32 {v(o+i)}, {v(d+8*j+2*i)}, {v(d+8*j+2*i+1)}")
                st = f"buffer_store_dwordx4 {v(o,4)}, {v(XC)}, s[12:15], {('s18', 's10', 's16')[ty]} offen offset:{rt*2048+j*1024}"
                if own:
                    if ty and opt("stf", 1): p(st)
                    p(f"ds_write_b128 {v(WC)}, {v(o,4)} offset:{(16384, 0, 8192)[ty]+rt*2048+j*1024}")
                    if ty and not opt("stf", 1): keep.append(st)
                else: p(st)
        if own:
            p(f"v_mov_b32 {v(VT)}, 1")
            p(f"v_mov_b32 {v(SY)}, {CNT}")
            for st in keep[:2]: p(st)
            p("s_waitcnt lgkmcnt(0)")
            p("s_mov_b64 exec, 1")
            p(f"ds_add_u32 {v(SY)}, {v(VT)} offset:{C_OWN}")
            p("s_mov_b64 exec, -1")
            for st in keep[2:]: p(st)
            p("s_branch P1_EDONE")
            p.label("P1_EOTH")
    p.label("P1_EDONE")
    p(f"v_mov_b32 v30, {CNT}")
    p("v_mov_b32 v31, 1")
    local_flag_base(p, 34)
    p("s_lshl_b32 s10, s26, 3")
    p("v_mov_b32 v29, s10")
    p("s_waitcnt vmcnt(0)")
    p("s_mov_b64 exec, 1")
    p(f"ds_add_rtn_u32 v31, v30, v31 offset:{C_KVST}")
    p("s_waitcnt lgkmcnt(0)")
    p("v_cmp_eq_u32 vcc, 3, v31")
    p("s_cbranch_vccz P1_NOKVF")
    flag_publish(p, 30, 29, "s34", SC="")
    p.label("P1_NOKVF")
    p("s_mov_b64 exec, -1")
    stamp(p, 3)
    p("s_setprio 0")
    p(f"v_mov_b32 v1, {v(XC)}")
    p(f"v_lshrrev_b32 v0, 4, {v(XC)}")
    p(f"v_mov_b32 {v(CA)}, {CNT}")
    p("s_xor_b32 s28, s26, 1")
    p("s_lshl_b32 s18, s27, 4")
    p("s_add_u32 s18, s18, s28")
    p("s_lshl_b32 s18, s18, 13")
    p("s_lshl_b32 s10, s31, 11")
    p("s_add_u32 s18, s18, s10")
    p(f"s_add_u32 s18, s18, {WS_QX}")
    p("s_lshl_b32 s28, s28, 2")
    p("s_add_u32 s28, s28, s31")
    p.label("A_INIT")
    p("v_and_b32 v2, 2, v0")
    p("v_cmp_eq_u32 vcc, 0, v2")
    p("v_mov_b32 v3, 0x3f803f80")
    if opt("sp4", 0):
        p("v_and_b32 v2, 12, v0")
        p("v_cmp_eq_u32 s[10:11], 0, v2")
        p("v_mov_b32 v2, 0")
        p("s_nop 0")
        p("v_cndmask_b32 v3, v2, v3, s[10:11]")
    p("v_mov_b32 v2, 0")
    for i in range(2): p(f"v_cndmask_b32 {v(ONES+i)}, v2, v3, vcc")
    for i in range(2, 4): p(f"v_cndmask_b32 {v(ONES+i)}, v3, v2, vcc")
    p("v_and_b32 v2, 1, v0")
    p("v_mul_u32_u24 v2, 0xaaaa, v2")
    p(f"v_add_u32 {v(IDX)}, 0x4444, v2")
    p(f"v_mov_b32 {v(ONE)}, 1")
    for i in range(12): p(f"v_mov_b32 {v(L+i)}, 0")
    for i in range(16): p(f"v_mov_b32 {v(O+i)}, 0")
    for i in range(12, 16): p(f"v_mov_b32 {v(F1+i)}, 0")
    p("s_and_b32 s29, s26, 1")
    p("s_lshl_b32 s10, s27, 1")
    p("s_add_u32 s29, s29, s10")
    p("s_mov_b32 s22, 0")
    p(f"v_add_u32 {v(VC)}, {OWNC}, v1")
    p("s_lshl_b32 s10, s3, 2")
    p(f"s_add_u32 s10, s10, {CNT + C_PROG}")
    p(f"v_mov_b32 {v(VP)}, s10")
    p("s_mov_b32 s25, 2")
    p("s_cmp_lt_u32 s3, 4")
    p("s_cselect_b32 s23, 1, 0")
    lds_wait_ge(p, "A_OW", CA, C_OWN, 2, CV_, sleep=opt("owslp", 2))
    for j in range(2): p(f"ds_read_b128 {v(F1+4*j,4)}, {v(VC)} offset:{j*1024}")
    p("s_cmp_ge_u32 s3, 4")
    p("s_cbranch_scc1 A_FARQ")
    for j in range(2): p(f"ds_read_b128 {v(Q+4*j,4)}, {v(SB)} offset:{j*1024}")
    p("s_branch A_HAVEQ")
    p.label("A_FARQ")
    lds_wait_ge(p, "A_QW", CA, C_QRDY, 1, CV_, sleep=1)
    p(f"v_readfirstlane_b32 s10, {v(CV_)}")
    p("s_cmp_eq_u32 s10, 1")
    p(f"s_cselect_b32 s10, {LOC}, 0")
    p("s_add_u32 s18, s18, s10")
    for j in range(2): p(f"buffer_load_dwordx4 {v(Q+4*j,4)}, v1, s[12:15], s18 offen offset:{j*1024}{SC}")
    p("s_waitcnt vmcnt(0)")
    p.label("A_HAVEQ")
    stamp(p, 2)
    p("s_waitcnt lgkmcnt(0)")
    p(mf32(SA, F1, Q, "0"))
    p(mf32(SA, F1+4, Q+4, SA))
    for j in range(2): p(f"ds_read_b128 {v(F0+4*j,4)}, {v(VC)} offset:{2048+j*1024}")
    for j in range(2): p(f"ds_read_b128 {v(F0+8+4*j,4)}, {v(VC)} offset:{8192+j*1024}")
    p("s_nop 7")
    T_ = NEGM
    p(f"v_max3_f32 {v(T_)}, {v(SA)}, {v(SA+1)}, {v(SA+2)}")
    for i in range(3, 15, 2): p(f"v_max3_f32 {v(T_)}, {v(T_)}, {v(SA+i)}, {v(SA+i+1)}")
    p(f"v_max_f32 {v(T_)}, {v(T_)}, {v(SA+15)}")
    p(f"v_mov_b32 {v(CV_)}, {v(T_)}")
    p("s_nop 1")
    p(f"v_permlane32_swap_b32 {v(T_)}, {v(CV_)}")
    p(f"v_max_f32 {v(CV_)}, {v(T_)}, {v(CV_)}")
    for i in range(16): p(f"v_sub_f32 {v(NEGM+i)}, 0, {v(CV_)}")
    for i in range(16): p(f"v_sub_f32 {v(SA+i)}, {v(SA+i)}, {v(CV_)}")
    p(f"v_mov_b32 {v(CV_)}, 0")
    p("s_branch A_ENTRY")
    ORDER = ["w0 Y S0 r0 e3 O1p r1 e3 LS e2 S1 r2 c4 e2 O0 r3 e3 X e3 c4",
             "w0 Y S0 r0 r1 e3 O1p r2 r3 e3 LS e2 S1 c4 e2 O0 e3 X e3 c4",
             "w0 Y S0 e3 O1p r0 r1 r2 r3 e3 LS e2 S1 c4 e2 O0 e3 X e3 c4",
             "w0 Y S0 r0 e3 S1 r1 e3 O1p r2 e2 LS c4 e2 O0 r3 e3 X e3 c4",
             "w0 Y O1p r0 e3 S0 r1 e3 LS e2 S1 r2 c4 e2 O0 r3 e3 X e3 c4",
             "w0 Y S0 r0 e4 O1p r1 e3 LS e1 S1 r2 c4 e3 O0 r3 e3 X e2 c4",
             "w0 Y S0 r0 e3 O1p r1 e3 LS e2 c2 S1 r2 c2 e2 O0 r3 e4 X c2 e2 c2",
             "w0 Y S0 r0 e3 O1p r1 e2 LS e3 S1 r2 c4 e2 O0 r3 e4 c2 X e2 c2"][opt("ord", 0)]
    LS = f"v_smfmac_f32_16x16x64_bf16 {v(L,4)}, {v(ONES,4)}, {v(P0,8)}, {v(IDX)}"
    def step(F, Sc, Sn, Fn, u, extra=None, head=None):
        e = 0; c = 0
        for t in ORDER.split():
            if t == "S0":
                if u is not None: p(mf32(Sn, F, Q, NEGM))
            elif t == "S1":
                if u is not None: p(mf32(Sn, F+4, Q+4, Sn))
            elif t == "O0": p(mf32(O, F+8, P0, O))
            elif t == "O1p": p(mf32(O, Fn+12, P1, O))
            elif t == "X":
                if extra: extra()
            elif t == "Y":
                if head: head()
            elif t == "LS": p(LS)
            elif t[0] == "e":
                for _ in range(int(t[1:])): p(f"v_exp_f32 {v(Sc+e)}, {v(Sc+e)}"); e += 1
            elif t[0] == "c":
                for _ in range(int(t[1:])): p(f"v_cvt_pk_bf16_f32 {v(P0+c)}, {v(Sc+2*c)}, {v(Sc+2*c+1)}"); c += 1
            elif t[0] == "r":
                if u is not None:
                    j = int(t[1:])
                    if j >= 2: p(f"ds_read_b128 {v(Fn+4*j,4)}, {v(VC)} offset:{8192+u*2048+(j-2)*1024}")
                    elif u < 3: p(f"ds_read_b128 {v(Fn+4*j,4)}, {v(VC)} offset:{(u+1)*2048+j*1024}")
                    else: p(f"ds_read_b128 {v(Fn+4*j,4)}, {v(VN)} offset:{j*1024}")
            elif t[0] == "w": p(f"s_waitcnt lgkmcnt({t[1:]})")
    def arrive():
        p("s_mov_b64 exec, 1")
        p(f"ds_add_u32 {v(VP)}, {v(ONE)}")
        p("s_mov_b64 exec, -1")
        if opt("dyn", 0):
            p(f"v_xor_b32 {v(CV_)}, 16, {v(VP)}")
            p(f"ds_read_b32 {v(CV_)}, {v(CV_)}")
    def lead():
        p(f"v_readfirstlane_b32 s10, {v(CV_)}")
        p("s_add_u32 s10, s10, 2")
        p("s_cmp_gt_u32 s25, s10")
        p("s_cselect_b32 s23, 1, 0")
    def peek():
        p(f"ds_read_b32 {v(CV_)}, {v(CA)} offset:{C_KVL}")
        p(f"v_add_u32 {v(VN)}, s22, v1")
        p("s_add_u32 s22, s22, 16384")
        p(f"s_cmp_ge_u32 s22, {RING}")
        p("s_cselect_b32 s22, 0, s22")
    def chk():
        p.label("A_CHK")
        p(f"v_cmp_gt_u32 vcc, s25, {v(CV_)}")
        p("s_cbranch_vccnz A_SPIN")
    def flip():
        p(f"v_mov_b32 {v(VC)}, {v(VN)}")
        p("s_add_u32 s25, s25, 1")
    LAD = [int(c) for c in OPT.get("lad", "3210")]
    LAD2 = [int(c) for c in OPT.get("lad2", OPT.get("lad", "3210"))]
    DYN = opt("dyn", 0)
    def prio(i):
        p(f"s_setprio {LAD[i]}")
        if LAD2[i] != LAD[i]:
            p("s_cmp_eq_u32 s23, 0")
            p(f"s_cbranch_scc1 A_PR{i}")
            p(f"s_setprio {LAD2[i]}")
            p.label(f"A_PR{i}")
    p.label("A_SPIN")
    bail(p)
    p("s_sleep 1")
    p(f"ds_read_b32 {v(CV_)}, {v(CA)} offset:{C_KVL}")
    p("s_waitcnt lgkmcnt(0)")
    p("s_branch A_CHK")
    p.pads(0)
    if opt("al2", -1) >= 0:
        p(".p2align 6")
        for _ in range(opt("al2")): p("s_nop 0")
    p.label("A_LOOP")
    prio(0)
    step(F1, SB, SA, F0, 0, extra=arrive)
    p.label("A_ENTRY")
    prio(1)
    step(F0, SA, SB, F1, 1, extra=lead if opt("dyn", 0) else None)
    prio(2)
    step(F1, SB, SA, F0, 2, extra=peek)
    prio(3)
    step(F0, SA, SB, F1, 3, extra=flip, head=chk)
    if STAMP:
        for (n_, i_) in ((3, 4), (4, 5), (6, 6), (10, 7)):
            p(f"s_cmp_lg_u32 s25, {n_}")
            p(f"s_cbranch_scc1 A_ST{n_}")
            stamp(p, i_)
            p.label(f"A_ST{n_}")
    p("s_cmp_lt_u32 s25, 18")
    p("s_cbranch_scc1 A_LOOP")
    p.pads(PADN)
    step(F1, SB, SA, F0, None, extra=arrive)
    p("s_nop 1")
    p(mf32(O, F1+12, P1, O))
    p(LS)
    stamp(p, 8)
    p("v_and_b32 v2, 256, v1")
    p("v_cmp_eq_u32 vcc, 0, v2")
    p("s_lshl_b32 s10, s28, 16")
    p("s_lshl_b32 s11, s29, 11")
    p("s_add_u32 s10, s10, s11")
    p("s_nop 3")
    p(f"s_add_u32 s35, s10, {WS_O}")
    p(f"s_mov_b32 s11, {f32bits(2.0**100)}")
    p("s_nop 0")
    p(f"v_add_f32 {v(L)}, {v(L)}, {v(L+1)}")
    p(f"v_add_f32 {v(L+2)}, {v(L+2)}, {v(L+3)}")
    if opt("sp4", 0):
        p("v_bfe_u32 v3, v1, 4, 4")
        p("v_lshlrev_b32 v3, 2, v3")
        p(f"ds_bpermute_b32 {v(L)}, v3, {v(L)}")
        p(f"ds_bpermute_b32 {v(L+2)}, v3, {v(L+2)}")
        p("s_waitcnt lgkmcnt(0)")
    p(f"v_cndmask_b32 v2, {v(L+2)}, {v(L)}, vcc")
    p(f"v_add_f32 v3, abs({v(O)}), v2")
    for i in range(1, 16): p(f"v_add_f32 v3, abs({v(O+i)}), v3")
    p("v_cmp_ngt_f32 vcc, s11, v3")
    if opt("forcefb"): p("s_branch A_FALLBACK")
    p("s_cbranch_vccnz A_FALLBACK")
    p.label("A_FIN")
    p("v_rcp_f32 v2, v2")
    p("s_nop 0")
    for j in range(2):
        for i in range(8 * j, 8 * j + 8): p(f"v_mul_f32 {v(O+i)}, v2, {v(O+i)}")
        for i in range(4 * j, 4 * j + 4): p(f"v_cvt_pk_bf16_f32 {v(P0+i)}, {v(O+2*i)}, {v(O+2*i+1)}")
        p(f"buffer_store_dwordx4 {v(P0+4*j,4)}, v1, s[12:15], s35 offen offset:{1024*j}{SC}")
    OB, WF, AC3 = 76, 8, 40
    p(f"s_load_dwordx2 s[36:37], s[0:1], {D_OUT}")
    p("s_setprio 0")
    p("s_and_b32 s10, s26, 14")
    p(f"s_mul_i32 s34, s10, {FLS}")
    p(f"s_add_u32 s34, s34, {FL_O}")
    p("s_lshl_b32 s10, s29, 3")
    p("s_add_u32 s34, s34, s10")
    p("v_lshrrev_b32 v0, 4, v1")
    p(f"v_mul_u32_u24 v72, {FLS}, v0")
    p("s_waitcnt vmcnt(0)")
    p("s_mov_b64 exec, 1")
    p(f"ds_add_rtn_u32 {v(CV_)}, {v(CA)}, {v(ONE)} offset:{C_OARR}")
    p("s_waitcnt lgkmcnt(0)")
    p(f"v_cmp_eq_u32 vcc, 7, {v(CV_)}")
    p("s_cbranch_vccz G_NOFLAG")
    p("s_mov_b64 exec, 3")
    flag_publish(p, 2, 72, "s34")
    p.label("G_NOFLAG")
    p("s_mov_b64 exec, -1")
    stamp(p, 9)
    if opt("p3w", 4) == 4:
        p("s_cmp_ge_u32 s3, 4")
        p("s_cbranch_scc1 G_FIN")
        OB, WF, AC3 = 56, 8, 24
        tile3(p)
        p("s_lshl_b32 s28, s38, 2")
        p("s_add_u32 s28, s28, s3")
        p("s_lshl_b32 s10, s28, 16")
        p(f"s_add_u32 s10, s10, {WS_O}")
        srd(p, 16, 98, 99, 65536, off="s10")
        srd(p, 20, 36, 37, 8 * MB)
        p("v_add_u32 v2, 4096, v1")
        p("v_lshrrev_b32 v6, 5, v0")
        p("v_lshlrev_b32 v5, 9, v6")
        p("v_bfe_u32 v7, v0, 2, 2")
        p("v_lshl_add_u32 v5, v7, 6, v5")
        p("v_bfe_u32 v7, v0, 4, 1")
        p("v_lshl_add_u32 v5, v7, 5, v5")
        p("v_and_b32 v7, 3, v0")
        p("v_lshl_add_u32 v5, v7, 3, v5")
        for i in range(AC3, AC3 + 32): p(f"v_mov_b32 {v(i)}, 0")
        p("v_and_b32 v7, 31, v0")
        p("v_lshlrev_b32 v7, 12, v7")
        p("v_lshl_add_u32 v7, v6, 4, v7")
        p("s_lshl_b32 s30, s28, 17")
        p("s_lshl_b32 s11, s39, 7")
        p("s_add_u32 s30, s30, s11")
        p("s_add_u32 s30, s30, 2048")
        p("s_mov_b32 s24, 0")
        p("s_mov_b32 s25, 0")
        p(f"s_mov_b32 s31, {WTAB}")
        p("s_mov_b32 s29, 3")
        p(f"s_and_b32 s43, s39, {opt('grot', 0)}")
        p("s_lshl_b32 s43, s43, 2")
        def acq(u, j):
            p("s_andn2_b32 s10, s25, s24")
            p(f"s_cbranch_scc1 G_AQ{u}b")
            p.label(f"G_AQ{u}a")
            p(f"ds_read_b32 {v(CV_)}, {v(CA)} offset:{C_OMASK}")
            p("s_waitcnt lgkmcnt(0)")
            p(f"v_readfirstlane_b32 s25, {v(CV_)}")
            p("s_andn2_b32 s10, s25, s24")
            p(f"s_cbranch_scc1 G_AQ{u}b")
            bail(p)
            p("s_sleep 2")
            p(f"s_branch G_AQ{u}a")
            p.label(f"G_AQ{u}b")
            if opt("grot", 0):
                p("s_lshr_b32 s11, s10, s43")
                p("s_cselect_b32 s11, s11, s10")
                p("s_cselect_b32 s10, s43, 0")
                p("s_ff1_i32_b32 s11, s11")
                p("s_add_u32 s11, s11, s10")
            else: p("s_ff1_i32_b32 s11, s10")
            p("s_bitset1_b32 s24, s11")
            p("s_lshl_b32 s10, s11, 11")
            p("s_lshr_b32 s11, s31, s11")
            p("s_and_b32 s11, s11, 15")
            p(f"s_lshl_b32 s{40+j}, s11, 14")
            for n in range(8): p(f"buffer_load_dwordx4 {v(OB+32*j+4*n,4)}, {v(1+(n>>2))}, s[16:19], s10 offen offset:{1024*(n&3)}{SC if opt('osc', 1) else ''}")
        def rd(b, ks, va): return [f"ds_read_b64_tr_b16 {v(WF+8*b+4*nt+2*h,2)}, {va} offset:{ks*2048+h*1024+nt*256}" for nt in range(2) for h in range(2)]
        def group(j, rest, nxt):
            va, vb = f"v{3+j}", f"v{4-j}"
            if nxt: p(f"v_add_u32 {vb}, s{41-j}, v5")
            for ks in range(8):
                R = rd((ks + 1) & 1, ks + 1, va) if ks < 7 else (rd(0, 0, vb) if nxt else [])
                M = [mf32(AC3+16*nt, WF+8*(ks&1)+4*nt, OB+32*j+4*ks, AC3+16*nt) for nt in range(2)]
                p(f"s_waitcnt vmcnt({rest + 7 - ks}) lgkmcnt(2)")
                p(M[0])
                for r_ in R[:2]: p(r_)
                p(f"s_waitcnt lgkmcnt({2 if R else 0})")
                p(M[1])
                for r_ in R[2:]: p(r_)
        acq(0, 0)
        stamp(p, 10)
        p("s_setprio 3")
        p("v_add_u32 v3, s40, v5")
        for r_ in rd(0, 0, "v3"): p(r_)
        acq(1, 1)
        p.label("G_LOOP")
        group(0, 8, True); acq(2, 0)
        group(1, 8, True); acq(3, 1)
        p("s_sub_u32 s29, s29, 1")
        p("s_cmp_lg_u32 s29, 0")
        p("s_cbranch_scc1 G_LOOP")
        group(0, 8, True)
        group(1, 0, False)
        stamp(p, 11)
        p("s_nop 9")
        for nt in range(2):
            if nt: p("s_nop 0")
            for i in range(8): p(f"v_cvt_pk_bf16_f32 {v(WF+8*nt+i)}, {v(AC3+16*nt+2*i)}, {v(AC3+16*nt+2*i+1)}")
            p("s_nop 1")
            for pr in range(2):
                b_ = WF + 8 * nt + 4 * pr
                p(f"v_permlane32_swap_b32 {v(b_)}, {v(b_+2)}")
                p(f"v_permlane32_swap_b32 {v(b_+1)}, {v(b_+3)}")
                p(f"buffer_store_dwordx4 {v(b_,4)}, v7, s[20:23], s30 offen offset:{64*nt+32*pr}")
        p.label("G_FIN")
    else:
        tile3(p)
        p("s_and_b32 s28, s3, 3")
        p("s_lshl_b32 s10, s38, 2")
        p("s_add_u32 s28, s28, s10")
        p("s_lshr_b32 s29, s3, 2")
        p("s_lshl_b32 s10, s28, 16")
        p("s_lshl_b32 s11, s29, 12")
        p("s_add_u32 s10, s10, s11")
        p(f"s_add_u32 s10, s10, {WS_O}")
        srd(p, 16, 98, 99, 65536, off="s10")
        srd(p, 20, 36, 37, 8 * MB)
        p("v_lshrrev_b32 v6, 5, v0")
        p("v_lshlrev_b32 v5, 9, v6")
        p("v_bfe_u32 v7, v0, 2, 2")
        p("v_lshl_add_u32 v5, v7, 6, v5")
        p("v_bfe_u32 v7, v0, 4, 1")
        p("v_lshl_add_u32 v5, v7, 5, v5")
        p("v_and_b32 v7, 3, v0")
        p("v_lshl_add_u32 v5, v7, 3, v5")
        p("s_lshl_b32 s10, s29, 13")
        p("v_add_u32 v5, s10, v5")
        for i in range(AC3, AC3 + 32): p(f"v_mov_b32 {v(i)}, 0")
        p("v_and_b32 v73, 31, v0")
        p("v_lshlrev_b32 v73, 12, v73")
        p("v_lshl_add_u32 v73, v6, 4, v73")
        p("s_lshl_b32 s10, s3, 12")
        p("v_add_u32 v74, s10, v1")
        p("v_xor_b32 v75, 16384, v74")
        p("s_lshl_b32 s30, s28, 17")
        p("s_lshl_b32 s11, s39, 7")
        p("s_add_u32 s30, s30, s11")
        p("s_lshl_b32 s11, s29, 6")
        p("s_add_u32 s30, s30, s11")
        p("s_add_u32 s30, s30, 2048")
        p("s_mov_b32 s24, 0")
        p("s_mov_b32 s25, 0")
        p(f"s_mov_b32 s31, {WTAB}")
        def acq(u):
            j = u % 3
            p("s_andn2_b32 s10, s25, s24")
            p(f"s_cbranch_scc1 G_AQ{u}b")
            p.label(f"G_AQ{u}a")
            p(f"ds_read_b32 {v(CV_)}, {v(CA)} offset:{C_OMASK}")
            p("s_waitcnt lgkmcnt(0)")
            p(f"v_readfirstlane_b32 s25, {v(CV_)}")
            p("s_andn2_b32 s10, s25, s24")
            p(f"s_cbranch_scc1 G_AQ{u}b")
            bail(p)
            p("s_sleep 2")
            p(f"s_branch G_AQ{u}a")
            p.label(f"G_AQ{u}b")
            p("s_ff1_i32_b32 s11, s10")
            p("s_bitset1_b32 s24, s11")
            p("s_lshl_b32 s10, s11, 11")
            p("s_lshr_b32 s11, s31, s11")
            p("s_and_b32 s11, s11, 15")
            p(f"s_lshl_b32 s{40+j}, s11, 14")
            for n in range(4): p(f"buffer_load_dwordx4 {v(OB+16*j+4*n,4)}, v1, s[16:19], s10 offen offset:{1024*n}{SC}")
        def rdw(u):
            p(f"v_add_u32 v4, s{40+u%3}, v5")
            for ks in range(4):
                for nt in range(2):
                    for h in range(2): p(f"ds_read_b64_tr_b16 {v(WF+8*ks+4*nt+2*h,2)}, v4 offset:{ks*2048+h*1024+nt*256}")
        acq(0)
        stamp(p, 10)
        rdw(0); acq(1); acq(2)
        for u in range(8):
            rest = 4 * min(2, 7 - u)
            for ks in range(4):
                p(f"s_waitcnt vmcnt({rest + 3 - ks}) lgkmcnt({12 - 4*ks})")
                for nt in range(2): p(mf32(AC3+16*nt, WF+8*ks+4*nt, OB+16*(u%3)+4*ks, AC3+16*nt))
            if u < 7: rdw(u + 1)
            if u + 3 < 8: acq(u + 3)
        stamp(p, 11)
        p("s_barrier")
        p("s_cmp_eq_u32 s29, 0")
        p("s_cbranch_scc1 G_X0")
        p("s_nop 7")
        for j in range(4): p(f"ds_write_b128 v74, {v(AC3+4*j,4)} offset:{1024*j}")
        for i in range(16): p(f"v_mov_b32 {v(AC3+i)}, {v(AC3+16+i)}")
        p("s_branch G_X1")
        p.label("G_X0")
        p("s_nop 8")
        for j in range(4): p(f"ds_write_b128 v74, {v(AC3+16+4*j,4)} offset:{1024*j}")
        p.label("G_X1")
        p("s_waitcnt lgkmcnt(0)")
        p("s_barrier")
        for j in range(4): p(f"ds_read_b128 {v(AC3+16+4*j,4)}, v75 offset:{1024*j}")
        for pr in range(2):
            p(f"s_waitcnt lgkmcnt({2-2*pr})")
            for i in range(8 * pr, 8 * pr + 8): p(f"v_add_f32 {v(AC3+i)}, {v(AC3+i)}, {v(AC3+16+i)}")
            b = WF + 4 * pr
            for i in range(4): p(f"v_cvt_pk_bf16_f32 {v(b+i)}, {v(AC3+8*pr+2*i)}, {v(AC3+8*pr+2*i+1)}")
            p("s_nop 1")
            p(f"v_permlane32_swap_b32 {v(b)}, {v(b+2)}")
            p(f"v_permlane32_swap_b32 {v(b+1)}, {v(b+3)}")
            p(f"buffer_store_dwordx4 {v(b,4)}, v73, s[20:23], s30 offen offset:{32*pr}")
    stamp(p, 12)
    stamp_flush(p)
    p.pads(0)
    p.label("L_END")
    p("s_endpgm")
    p.label("A_FALLBACK")
    p(f"ds_read_b32 {v(CV_)}, {v(CA)} offset:{C_GALL}")
    p("s_waitcnt lgkmcnt(0)")
    p(f"v_readfirstlane_b32 s31, {v(CV_)}")
    M_, AL = NEGM, NEGM + 1
    for i in range(16): p(f"v_mov_b32 {v(O+i)}, 0")
    p("v_mov_b32 v2, 0")
    p(f"v_mov_b32 {v(M_)}, 0xff7fffff")
    p("s_lshl_b32 s30, s29, 18")
    p("s_mov_b32 s25, 0")
    p.label("A_FBL")
    p("s_lshr_b32 s10, s25, 2")
    p("s_bitcmp1_b32 s31, s10")
    p(f"s_cselect_b32 s11, {LOC}, 0")
    p("s_lshl_b32 s10, s10, 14")
    p("s_add_u32 s10, s10, s11")
    p("s_and_b32 s11, s25, 3")
    p("s_lshl_b32 s11, s11, 11")
    p("s_add_u32 s10, s10, s11")
    p("s_add_u32 s10, s10, s30")
    p("s_add_u32 s11, s10, 8192")
    for j in range(2): p(f"buffer_load_dwordx4 {v(F0+4*j,4)}, v1, s[12:15], s10 offen offset:{1024*j}{SC}")
    for j in range(2): p(f"buffer_load_dwordx4 {v(F0+8+4*j,4)}, v1, s[12:15], s11 offen offset:{1024*j}{SC}")
    p("s_waitcnt vmcnt(0)")
    p(mf32(SA, F0, Q, "0"))
    p(mf32(SA, F0+4, Q+4, SA))
    p("s_nop 15")
    p(f"v_max3_f32 v3, {v(SA)}, {v(SA+1)}, {v(M_)}")
    for i in range(2, 16, 2): p(f"v_max3_f32 v3, v3, {v(SA+i)}, {v(SA+i+1)}")
    p(f"v_mov_b32 {v(SB)}, v3")
    p("s_nop 1")
    p(f"v_permlane32_swap_b32 v3, {v(SB)}")
    p(f"v_max_f32 v3, v3, {v(SB)}")
    p(f"v_sub_f32 {v(AL)}, {v(M_)}, v3")
    p(f"v_exp_f32 {v(AL)}, {v(AL)}")
    p(f"v_mov_b32 {v(M_)}, v3")
    for i in range(16): p(f"v_sub_f32 {v(SA+i)}, {v(SA+i)}, v3")
    for i in range(16): p(f"v_exp_f32 {v(SA+i)}, {v(SA+i)}")
    p(f"v_mul_f32 v2, v2, {v(AL)}")
    for i in range(16): p(f"v_mul_f32 {v(O+i)}, {v(O+i)}, {v(AL)}")
    for i in range(16): p(f"v_add_f32 v2, v2, {v(SA+i)}")
    for i in range(8): p(f"v_cvt_pk_bf16_f32 {v(P0+i)}, {v(SA+2*i)}, {v(SA+2*i+1)}")
    p("s_nop 1")
    p(mf32(O, F0+8, P0, O))
    p(mf32(O, F0+12, P1, O))
    p("s_nop 15")
    p("s_add_u32 s25, s25, 1")
    p("s_cmp_lt_u32 s25, 64")
    p("s_cbranch_scc1 A_FBL")
    p("v_mov_b32 v3, v2")
    p("s_nop 1")
    p("v_permlane32_swap_b32 v2, v3")
    p("v_add_f32 v2, v2, v3")
    p("s_branch A_FIN")

    p.label("L_HELPERS")
    p("s_cmp_ge_u32 s3, 9")
    p("s_cbranch_scc1 L_PARTA")
    emit_w8(p)
    p.label("L_PARTA")
    emit_partA(p)

def emit_w8(p):
    p(f"s_load_dwordx2 s[36:37], s[0:1], {B_WO}")
    if opt("cpf", 0):
        p("s_getpc_b64 s[40:41]")
        p.label("W8_PC")
        p(f"s_sub_u32 s40, s40, W8_PC-{NAME}")
        p("s_subb_u32 s41, s41, 0")
        p("v_lshlrev_b32 v21, 7, v0")
        for j in range(2):
            p(f"v_add_u32 v22, {8192*j}, v21")
            p(f"v_min_u32 v22, L_CODE_END-{NAME}-4, v22")
            p(f"global_load_dword v{23+j}, v22, s[40:41]")
    p("v_and_b32 v8, 3, v0")
    p("v_lshlrev_b32 v8, 2, v8")
    p(f"v_add_u32 v8, {CNT}, v8")
    p("v_and_b32 v9, 7, v0")
    p("v_lshlrev_b32 v9, 2, v9")
    p(f"v_add_u32 v9, {CNT}, v9")
    p(f"v_mov_b32 v20, {CNT}")
    p("s_waitcnt lgkmcnt(0)")
    p("s_add_u32 s94, s96, 0x1000000")
    p("s_addc_u32 s95, s97, 0")
    p("v_lshlrev_b32 v1, 4, v0")
    p("v_and_b32 v6, 15, v0")
    p("v_lshlrev_b32 v6, 3, v6")
    srd(p, 12, 98, 99, WS_SIZE)
    p(f"s_mul_i32 s34, s27, {FLS}")
    p(f"s_add_u32 s34, s34, {FL_KV}")
    p("s_and_b32 s30, s26, 1")
    p("s_lshl_b32 s10, s27, 1")
    p("s_add_u32 s30, s30, s10")
    p("s_lshl_b32 s30, s30, 18")
    p("s_xor_b32 s31, s26, 1")
    p("s_mov_b32 s47, 0")
    local_flag_base(p, 35)
    p("s_mov_b32 s48, 0")
    p("s_mov_b32 s49, 0")
    p("s_lshl_b32 s10, s26, 3")
    p("s_add_u32 s10, s10, 128")
    p("v_mov_b32 v17, s10")
    for _ in range(4): p("s_barrier")
    p("s_mov_b64 exec, 1")
    flag_publish(p, 18, 17, "s35", SC="")
    p("s_mov_b64 exec, -1")
    p("v_and_b32 v16, 31, v0")
    p("v_lshlrev_b32 v16, 3, v16")
    p("s_lshl_b32 s44, 1, s26")
    p("s_mov_b32 s45, 0")
    p("s_mov_b32 s46, 0x4000")
    p("s_mov_b32 s21, 0")
    p("s_mov_b32 s25, 1")
    tile3(p)
    p("v_lshrrev_b32 v5, 5, v0")
    p("v_lshlrev_b32 v5, 2, v5")
    p("v_bfe_u32 v7, v0, 2, 2")
    p("v_add_u32 v5, v5, v7")
    p("v_lshlrev_b32 v5, 11, v5")
    p("v_bfe_u32 v7, v0, 4, 1")
    p("v_lshl_add_u32 v5, v7, 6, v5")
    p("v_and_b32 v7, 3, v0")
    p("v_lshl_add_u32 v10, v7, 4, v5")
    for jj in range(1, 4): p(f"v_add_u32 {v(10+jj)}, {jj*(16384-1024)}, v10")
    p("s_lshl_b32 s11, s39, 7")
    p(f"s_sub_u32 s18, {2*MB}, s11")
    p("s_add_u32 s16, s36, s11")
    p("s_addc_u32 s17, s37, 0")
    p("s_mov_b32 s19, 0x20000")
    p(f"s_setprio {opt('w8prio', 3)}")
    for _ in range(8): p("s_barrier")
    p(f"buffer_load_dwordx2 v[18:19], v6, s[12:15], s35 offen offset:128{SC}")
    for _ in range(4): p("s_barrier")
    p("s_waitcnt vmcnt(0)")
    flag_test(p, 18)
    p("s_cmp_eq_u64 vcc, -1")
    p("s_cselect_b32 s50, 1, 2")
    if opt("forceg"): p("s_mov_b32 s50, 2")
    p("v_mov_b32 v3, s50")
    p(f"ds_write_b32 v20, v3 offset:{C_CPY}")
    lds_wait_ge(p, "W8_E2", 20, C_KVST, 4, 3, sleep=1)
    stamp(p, 1)
    p.pads(opt("pada"))
    p.label("W8_LOOP")
    p("s_cmp_eq_u32 s47, 0")
    p("s_cbranch_scc1 W8_POLL")
    p("s_andn2_b32 s10, s45, s44")
    p("s_cbranch_scc1 W8_HAVE")
    p.label("W8_POLL")
    p(f"buffer_load_dwordx2 v[18:19], v6, s[12:15], s35 offen{SC}")
    p("s_add_u32 s49, s49, 1")
    bail(p)
    p("s_cmp_eq_u32 s50, 1")
    p("s_cbranch_scc1 W8_PL")
    p(f"buffer_load_dwordx2 v[14:15], v6, s[12:15], s34 offen{SC}")
    p("s_waitcnt vmcnt(0)")
    flag_test(p, 14)
    p("s_and_b32 s45, vcc_lo, 0xffff")
    p("s_sub_u32 s46, s46, 1")
    p("s_cselect_b32 s45, 0xffff, s45")
    p.label("W8_PL")
    p("v_mov_b32 v3, s25")
    p("s_waitcnt vmcnt(0)")
    p(f"ds_write_b32 v20, v3 offset:{C_KVL}")
    if STAMP:
        p("s_cmp_lg_u32 s49, 1")
        p("s_cbranch_scc1 W8_STP")
        stamp(p, 6)
        p.label("W8_STP")
    flag_test(p, 18)
    p("s_and_b32 s48, vcc_lo, 0xffff")
    p("s_or_b32 s45, s45, s48")
    p("s_cmp_lg_u32 s47, 0")
    p("s_cbranch_scc1 W8_QD")
    p("s_bitcmp1_b32 s45, s31")
    p("s_cselect_b32 s47, 2, 0")
    p("s_bitcmp1_b32 s48, s31")
    p("s_cselect_b32 s47, 1, s47")
    p("v_mov_b32 v3, s47")
    p(f"ds_write_b32 v20, v3 offset:{C_QRDY}")
    p.label("W8_QD")
    p("s_andn2_b32 s10, s45, s44")
    p("s_cbranch_scc1 W8_HAVE")
    p(f"s_sleep {opt('kslp', 2)}")
    p("s_branch W8_POLL")
    p.label("W8_NOSLOT")
    p("v_mov_b32 v3, s25")
    p("s_waitcnt vmcnt(0)")
    p(f"ds_write_b32 v20, v3 offset:{C_KVL}")
    bail(p)
    p(f"s_sleep {opt('nslp', 4)}")
    p("s_branch W8_LOOP")
    p.label("W8_HAVE")
    p("s_sub_u32 s24, s25, 5")
    p(f"ds_read_b32 v3, v9 offset:{C_PROG}")
    p("s_waitcnt lgkmcnt(0)")
    p("v_cmp_gt_i32 vcc, s24, v3")
    p("s_cbranch_vccnz W8_NOSLOT")
    p("s_lshr_b32 s11, s10, s26")
    p("s_cselect_b32 s11, s11, s10")
    p("s_cselect_b32 s20, s26, 0")
    p("s_ff1_i32_b32 s11, s11")
    p("s_add_u32 s11, s11, s20")
    p("s_bitset1_b32 s44, s11")
    p("s_lshl_b32 s20, s11, 14")
    p("s_add_u32 s20, s20, s30")
    p("s_bitcmp1_b32 s48, s11")
    p(f"s_cselect_b32 s10, {LOC}, 0")
    p("s_add_u32 s20, s20, s10")
    for q_ in range(4):
        p("s_mov_b32 m0, s21")
        p("s_add_u32 s21, s21, 4096")
        for j in range(4): p(f"buffer_load_dwordx4 v1, s[12:15], s20 offen offset:{1024*j}{SC} lds")
        p("s_add_u32 s20, s20, 4096")
    p(f"s_cmp_ge_u32 s21, {RING}")
    p("s_cselect_b32 s21, 0, s21")
    p("v_mov_b32 v3, s25")
    p("s_add_u32 s25, s25, 1")
    p("s_waitcnt vmcnt(16)")
    p(f"ds_write_b32 v20, v3 offset:{C_KVL}")
    if STAMP:
        for (n_, i_) in ((2, 2), (3, 3), (6, 4)):
            p(f"s_cmp_lg_u32 s25, {n_}")
            p(f"s_cbranch_scc1 W8_ST{n_}")
            stamp(p, i_)
            p.label(f"W8_ST{n_}")
    p("s_cmp_lt_u32 s25, 16")
    p("s_cbranch_scc1 W8_LOOP")
    p("s_bitset1_b32 s48, s26")
    p("v_mov_b32 v7, s48")
    p(f"ds_write_b32 v20, v7 offset:{C_GALL}")
    p("v_mov_b32 v3, 17")
    p("s_waitcnt vmcnt(0)")
    p(f"ds_write_b32 v20, v3 offset:{C_KVL}")
    stamp(p, 5)
    p(f"s_mul_i32 s34, s38, {FLS}")
    p(f"s_add_u32 s34, s34, {FL_O}")
    order = [(0, 11, 0), (1, 12, 0), (2, 13, 0), (3, 13, 4), (4, 13, 4), (5, 13, 4), (6, 14, 4), (7, 15, 4)]
    pack = lambda f: sum(f(o) << (4 * i) for i, o in enumerate(order))
    p(f"s_mov_b32 s41, {WTAB}")
    p(f"s_mov_b32 s42, {pack(lambda o: o[1] - 8)}")
    p("s_mov_b32 s25, 0")
    p("s_mov_b32 s44, 0")
    p("s_mov_b32 s51, 0")
    p("s_mov_b32 s46, 0x4000")
    p.label("W8_WLOOP")
    p("s_cmp_lg_u32 s25, 3")
    p("s_cbranch_scc1 W8_WNC")
    lds_wait_ge(p, "W8_CV", 20, C_A2, 4, 3, sleep=4)
    p.label("W8_WNC")
    p("s_and_b32 s24, s42, 15")
    p("s_add_u32 s24, s24, 8")
    p(f"ds_read_b32 v3, v9 offset:{C_PROG}")
    p("s_waitcnt lgkmcnt(0)")
    p("v_cmp_gt_i32 vcc, s24, v3")
    p("s_cbranch_vccnz W8_WSKIP")
    p("s_lshl_b32 s20, s25, 18")
    p("s_and_b32 s21, s41, 15")
    p("s_lshl_b32 s21, s21, 14")
    p("s_lshl_b32 s10, s25, 2")
    p("s_bitset1_b32 s44, s10")
    for q_ in range(4):
        p("s_mov_b32 m0, s21")
        p("s_add_u32 s21, s21, 4096")
        for jj in range(4): p(f"buffer_load_dwordx4 {v(10+jj)}, s[16:19], s20 offen offset:{1024*jj} lds")
        p("s_add_u32 s20, s20, 65536")
    for r_ in (41, 42): p(f"s_lshr_b32 s{r_}, s{r_}, 4")
    p("s_waitcnt vmcnt(32)")
    p("s_add_u32 s25, s25, 1")
    p("s_cmp_lt_u32 s25, 8")
    p("s_cbranch_scc1 W8_WLOOP")
    lds_wait_ge(p, "W8_OW", 20, C_OARR, opt("ostart", 4), 3, sleep=4)
    p.label("W8_WSKIP")
    p("s_cmp_lt_u32 s25, 8")
    p("s_cbranch_scc1 W8_WNEXT")
    p.label("W8_OPOLL")
    p(f"buffer_load_dwordx2 v[14:15], v16, s[12:15], s34 offen{SC}")
    p("s_waitcnt vmcnt(0)")
    flag_test(p, 14)
    p("s_lshr_b32 s10, vcc_lo, 1")
    p("s_and_b32 s45, vcc_lo, s10")
    p("s_lshr_b32 s10, s45, 2")
    p("s_and_b32 s45, s45, s10")
    p("s_sub_u32 s46, s46, 1")
    p("s_cselect_b32 s45, -1, s45")
    p("s_and_b32 s45, s45, s44")
    if opt("pre", 0):
        p("s_mov_b32 s10, s45")
        for _ in range(opt("pre")):
            p("s_sub_u32 s11, s10, 1")
            p("s_and_b32 s10, s10, s11")
        p("s_andn2_b32 s10, s45, s10")
        p("s_or_b32 s51, s51, s10")
        p("v_mov_b32 v3, s51")
        p(f"ds_write_b32 v20, v3 offset:{C_OMASK}")
        p("s_mov_b32 s51, s45")
    lds_wait_ge(p, "W8_OX", 20, C_OARR, 8, 3, sleep=1)
    p("v_mov_b32 v3, s45")
    p(f"ds_write_b32 v20, v3 offset:{C_OMASK}")
    p("s_cmp_eq_u32 s45, 0x11111111")
    p("s_cbranch_scc1 W8_DONE")
    p.label("W8_WNEXT")
    bail(p)
    p(f"s_sleep {opt('oslp', 8)}")
    p("s_cmp_lt_u32 s25, 8")
    p("s_cbranch_scc1 W8_WLOOP")
    p("s_branch W8_OPOLL")
    p.pads(0)
    p.label("W8_DONE")
    if opt("diag"):
        p.label("DG")
        p("s_memrealtime s[92:93]")
        p("s_waitcnt lgkmcnt(0)")
        p("s_sub_u32 s10, s92, s96")
        p(f"s_cmp_lt_u32 s10, {opt('diag')}")
        p("s_cbranch_scc1 DG")
    stamp(p, 12)
    stamp_flush(p)
    p("s_endpgm")

def emit_partA(p):
    pre = "PA"
    nst = [0]
    def st2(L_):
        nst[0] += 1
        p("s_cmp_eq_u32 s9, 1")
        p(f"s_cbranch_scc1 PA_SP{nst[0]}")
        for x in L_: p(x + (SC if x.startswith("buffer") else ""))
        p(f"s_branch PA_SE{nst[0]}")
        p.label(f"PA_SP{nst[0]}")
        for x in L_: p(x)
        p.label(f"PA_SE{nst[0]}")
    p(f"s_load_dwordx8 s[36:43], s[0:1], {A_Q}")
    p(f"s_load_dwordx4 s[44:47], s[0:1], {A_SSMK}")
    p(f"s_load_dwordx4 s[48:51], s[0:1], {B_WO}")
    p("s_sub_u32 s3, s3, 9")
    p("s_lshl_b32 s56, s27, 1")
    p("s_lshr_b32 s10, s3, 1")
    p("s_add_u32 s56, s56, s10")
    p("s_lshl_b32 s56, s56, 4")
    p("s_add_u32 s56, s56, s26")
    p("s_lshl_b32 s56, s56, 14")
    p("s_and_b32 s10, s3, 1")
    p("s_lshl_b32 s10, s10, 13")
    p("s_add_u32 s56, s56, s10")
    p("s_lshl_b32 s57, s27, 4")
    p("s_add_u32 s57, s57, s26")
    p("s_lshl_b32 s57, s57, 13")
    p("s_lshl_b32 s10, s3, 11")
    p("s_add_u32 s57, s57, s10")
    p(f"s_add_u32 s57, s57, {WS_QX}")
    p(f"s_mul_i32 s101, s27, {FLS}")
    p(f"s_add_u32 s101, s101, {FL_KV}")
    p("s_lshl_b32 s10, s26, 3")
    p("s_add_u32 s101, s101, s10")
    if opt("spf", 0):
        p("s_waitcnt lgkmcnt(0)")
        p("s_and_b32 s10, s27, 1")
        p("s_lshl_b32 s10, s10, 2")
        p("s_add_u32 s10, s10, s3")
        p("s_lshl_b32 s10, s10, 15")
        p("s_lshl_b32 s11, s26, 18")
        p("s_add_u32 s10, s10, s11")
        p("s_add_u32 s10, s10, 512")
        p("s_add_u32 s12, s4, s10")
        p("s_addc_u32 s13, s5, 0")
        p("s_lshl_b32 s10, s26, 2")
        p("s_add_u32 s10, s10, s3")
        p("s_add_u32 s10, s10, 256")
        p("s_mul_i32 s10, s10, 6144")
        p("s_lshl_b32 s11, s27, 7")
        p("s_add_u32 s10, s10, s11")
        p("s_add_u32 s14, s6, s10")
        p("s_addc_u32 s15, s7, 0")
        p("v_and_b32 v1, 3, v0")
        p("v_lshlrev_b32 v1, 2, v1")
        p(f"v_add_u32 v1, {CNT}, v1")
        p(f"s_mov_b32 s16, {4 - opt('spf')}")
        p.label("PA_SPF")
        lds_wait_ge(p, "PA_SPW", 1, C_LAND, "s16", 2, sleep=2)
        for hf in range(opt("sph", 1)):
            for r_ in range(16): p(f"s_load_dword s17, s[12:13], {r_*2048 + 64*hf}")
            for t_ in range(3): p(f"s_load_dword s17, s[14:15], {t_*2048 + 64*hf}")
        p("s_add_u32 s12, s12, 128")
        p("s_addc_u32 s13, s13, 0")
        p(f"s_add_u32 s14, s14, {64*6144}")
        p("s_addc_u32 s15, s15, 0")
        p("s_add_u32 s16, s16, 1")
        p(f"s_cmp_lt_i32 s16, {16 - opt('spf')}")
        p("s_cbranch_scc1 PA_SPF")
        p("s_waitcnt lgkmcnt(0)")
    local_flag_base(p, 8)
    p("s_add_u32 s8, s8, 256")
    p("s_mov_b32 s28, s27")
    p("s_lshl_b32 s35, s26, 3")
    p("s_lshl_b32 s29, s26, 2")
    p("s_add_u32 s29, s29, s3")
    p("s_lshl_b32 s27, s28, 6")
    p("s_add_u32 s27, s27, s29")
    p(f"s_mul_i32 s30, s3, {CV_STRIDE}")
    p(f"s_add_u32 s30, s30, {CV_BASE}")
    p("v_and_b32 v1, 7, v0")
    p("v_lshrrev_b32 v2, 3, v0")
    p("s_lshl_b32 s10, s29, 5")
    p("v_lshl_add_u32 v3, v2, 2, s10")
    p("s_lshl_b32 s11, s28, 7")
    p("v_lshl_add_u32 v4, v1, 4, s11")
    p("v_lshl_add_u32 v120, v3, 11, v4")
    p("v_lshl_add_u32 v122, v3, 12, v4")
    p("v_lshlrev_b32 v121, 11, v4")
    p("v_lshl_add_u32 v121, v2, 4, v121")
    p("s_lshr_b32 s31, s29, 4")
    p("s_lshl_b32 s31, s31, 10")
    p("s_and_b32 s26, s29, 7")
    p("s_lshl_b32 s26, s26, 7")
    p("s_add_u32 s31, s31, s26")
    p("s_and_b32 s26, s29, 8")
    p("s_add_u32 s31, s31, s26")
    p("v_add_u32 v121, s31, v121")
    p("v_and_b32 v123, 15, v0")
    p("v_lshlrev_b32 v123, 3, v123")
    p("v_lshlrev_b32 v124, 4, v0")
    p("v_and_b32 v1, 15, v0")
    p("v_lshrrev_b32 v2, 4, v0")
    p("v_lshl_add_u32 v3, v2, 3, s10")
    p("v_lshl_add_u32 v4, v1, 3, s11")
    p("v_lshl_add_u32 v9, v3, 11, v4")
    for j in range(3): p(f"v_add_u32 {v(6+j)}, {(j-3)*2048}, v9")
    for j in range(1, 4): p(f"v_add_u32 {v(9+j)}, {j*4096}, v9")
    p("v_lshlrev_b32 v13, 2, v4")
    p("v_lshrrev_b32 v14, 1, v4")
    p(f"v_mul_u32_u24 v14, {XRS}, v14")
    p("v_lshlrev_b32 v15, 1, v3")
    p("v_sub_u32 v15, 4080, v15")
    p("v_add_u32 v15, v15, v14")
    p("v_lshl_add_u32 v14, v2, 4, v14")
    p("s_lshl_b32 s33, s27, 12")
    p("s_mov_b32 s32, 0xffff0000")
    p(f"s_mul_i32 s34, s28, {FLS}")
    p(f"s_add_u32 s34, s34, {FL_A1}")
    p(f"s_mul_i32 s31, s27, {XRS}")
    p(f"s_add_u32 s31, s31, {WS_XR}")
    p("s_add_u32 s26, s31, 4096")
    p("v_and_b32 v1, 3, v0")
    p("v_lshlrev_b32 v1, 2, v1")
    p(f"v_add_u32 v1, {CNT}, v1")
    p("s_waitcnt lgkmcnt(0)")
    p("s_add_u32 s94, s96, 0x1000000")
    p("s_addc_u32 s95, s97, 0")
    srd(p, 12, 98, 99, WS_SIZE)
    srd(p, 16, 38, 39, 4 * MB)
    srd(p, 20, 40, 41, 4 * MB)
    srd(p, 52, 42, 43, 8192)
    if opt("tch", 0):
        p("v_min_u32 v4, 34, v0")
        p("s_lshl_b32 s10, s29, 5")
        p("s_sub_u32 s10, s10, 3")
        p("v_add_u32 v4, s10, v4")
        p("v_lshlrev_b32 v4, 11, v4")
        p("v_add_u32 v4, s11, v4")
        p(f"s_mul_i32 s10, s3, {opt('tchs', 1)}")
        p(f"s_add_u32 s10, s10, {opt('tch', 0)}")
        lds_wait_ge(p, "PA_T0", 1, C_LAND, "s10", 2, sleep=8)
        p("buffer_load_dword v116, v4, s[16:19], 0 offen")
        p("buffer_load_dword v117, v4, s[20:23], 0 offen")
    if opt("padn") or opt("pada"):
        p("s_cmp_lg_u32 s3, 0")
        p("s_cbranch_scc1 WP_END")
        lds_wait_ge(p, "PA_WP", 1, C_LAND, opt("padat", 8), 2, sleep=16)
        p("s_mov_b64 exec, 0")
        p("s_branch WP0")
        p.label("WP_END")
        p("s_mov_b64 exec, -1")
    TB = opt("tb", 0)
    if TB:
        p("v_lshlrev_b32 v1, 7, v0")
        p("s_lshl_b32 s10, s2, 14")
        p("s_and_b32 s11, s3, 1")
        p("s_lshl_b32 s11, s11, 13")
        p("s_add_u32 s10, s10, s11")
        p("s_cmp_lt_u32 s3, 2")
        p("s_cselect_b32 s60, s38, s40")
        p("s_cselect_b32 s61, s39, s41")
        p("s_cselect_b32 s64, s44, s36")
        p("s_cselect_b32 s65, s45, s37")
        for r_ in (62, 66):
            p(f"s_mov_b32 s{r_}, {4*MB}")
            p(f"s_mov_b32 s{r_+1}, 0x20000")
        for _ in range(TB): p("s_barrier")
        p("buffer_load_dword v2, v1, s[60:63], s10 offen")
        if opt("tb2", 0): p("buffer_load_dword v2, v1, s[64:67], s10 offen")
        for _ in range(16 - TB): p("s_barrier")
        p("s_waitcnt vmcnt(0)")
    else:
        for _ in range(16): p("s_barrier")
    p(f"v_mov_b32 v1, {CNT}")
    p.pads(opt("pada"))
    lds_wait_ge(p, "PA_C0", 1, C_CPY, 1, 2, sleep=4)
    p("v_readfirstlane_b32 s9, v2")
    if not opt("pal", 1): p("s_mov_b32 s9, 2")
    p("v_cmp_eq_u32 vcc, 1, v2")
    p("s_cbranch_vccnz PA_C3")
    lds_wait_ge(p, "PA_C1", 1, C_KVST, 4, 2, sleep=2)
    p("v_add_u32 v2, 4096, v124")
    p(f"s_add_u32 s10, s56, {LOC}")
    p(f"s_add_u32 s11, s57, {LOC}")
    for n in range(8): p(f"buffer_load_dwordx4 {v(64+4*n,4)}, {('v124', 'v2')[n>>2]}, s[12:15], s10 offen offset:{1024*(n&3)}{SC}")
    for n in range(2): p(f"buffer_load_dwordx4 {v(96+4*n,4)}, v124, s[12:15], s11 offen offset:{1024*n}{SC}")
    p("s_waitcnt vmcnt(0)")
    for n in range(8): p(f"buffer_store_dwordx4 {v(64+4*n,4)}, {('v124', 'v2')[n>>2]}, s[12:15], s56 offen offset:{1024*(n&3)}{SC}")
    for n in range(2): p(f"buffer_store_dwordx4 {v(96+4*n,4)}, v124, s[12:15], s57 offen offset:{1024*n}{SC}")
    p("v_mov_b32 v2, 1")
    p("v_mov_b32 v3, 0")
    p("s_waitcnt vmcnt(0)")
    p("s_mov_b64 exec, 1")
    p(f"ds_add_rtn_u32 v2, v1, v2 offset:{C_CP2}")
    p("s_waitcnt lgkmcnt(0)")
    p("v_cmp_eq_u32 vcc, 3, v2")
    p("s_cbranch_vccz PA_C2")
    flag_publish(p, 126, 3, "s101")
    p.label("PA_C2")
    p("s_mov_b64 exec, -1")
    p.label("PA_C3")
    if opt("noa") == 1:
        p("v_mov_b32 v2, 4")
        p(f"ds_write_b32 v1, v2 offset:{C_A2}")
        stamp_flush(p)
        p("s_endpgm")
    lds_wait_ge(p, "PA_W0", 1, C_KVL, opt("hwk", 5), 2, sleep=opt("w0slp", 4))
    p(f"s_setprio {opt('cvprio', 3)}")
    stamp(p, 1)
    if opt("ct", 0):
        p("v_lshlrev_b32 v2, 7, v0")
        p("s_lshl_b32 s10, s2, 14")
        p("s_and_b32 s11, s3, 1")
        p("s_lshl_b32 s11, s11, 13")
        p("s_add_u32 s10, s10, s11")
        p("s_cmp_lt_u32 s3, 2")
        p("s_cbranch_scc1 PA_CTK")
        p("buffer_load_dword v3, v2, s[20:23], s10 offen")
        p("s_branch PA_CTE")
        p.label("PA_CTK")
        p("buffer_load_dword v3, v2, s[16:19], s10 offen")
        p.label("PA_CTE")
        p("s_waitcnt vmcnt(0)")
    KR, VR, SR = 16, 38, 56
    def rowaddr(j):
        if j < 3: return v(6 + j), 0
        return v(9 + (j - 3) // 2), 2048 * ((j - 3) & 1)
    for j in range(2): p(f"buffer_load_dwordx4 {v(SR+4*j,4)}, v13, s[52:55], 0 offen offset:{16*j}")
    for j in range(11):
        a_, o_ = rowaddr(j); p(f"buffer_load_dwordx2 {v(KR+2*j,2)}, {a_}, s[16:19], 0 offen offset:{o_}")
    for j in range(8):
        a_, o_ = rowaddr(j + 3); p(f"buffer_load_dwordx2 {v(VR+2*j,2)}, {a_}, s[20:23], 0 offen offset:{o_}")
    srd(p, 16, 44, 45, 4096, off="s33")
    srd(p, 20, 46, 47, 2048)
    EARLYH = opt("earlyh", 0)
    def hdma(t, u):
        p(f"v_and_b32 {v(u)}, 7, v0")
        p(f"v_lshlrev_b32 {v(u)}, 2, {v(u)}")
        p(f"v_add_u32 {v(u)}, {CNT}, {v(u)}")
        lds_wait_ge(p, "PA_W1", u, C_PROG, 1, u + 1, sleep=4)
        p(f"v_add_u32 {v(t+1)}, -512, v124")
        p(f"v_add_u32 {v(t+2)}, 512, v124")
        p("s_lshl_b32 s10, s27, 1")
        p(f"v_mov_b32 {v(t)}, s10")
        p(f"s_add_u32 m0, s30, {CV_H}")
        p(f"buffer_load_ushort v125, {v(t)}, s[20:23], 0 offen")
        p(f"buffer_load_dwordx4 {v(t+1)}, s[16:19], 0 offen lds")
        p(f"s_add_u32 m0, s30, {CV_H + 1024}")
        p("s_nop 0")
        for j in range(4): p(f"buffer_load_dwordx4 {v(t+2)}, s[16:19], 0 offen offset:{1024*j} lds")
        srd(p, 52, 48, 49, 2 * MB)
        p("s_lshl_b32 s10, s27, 11")
        p(f"v_lshlrev_b32 {v(u)}, 5, v0")
        p(f"buffer_load_dword v127, {v(u)}, s[52:55], s10 offen")
    if EARLYH: hdma(1, 4)
    XH = 7 if EARLYH else 0
    T, KU, AC, OUT = 64, 72, 94, 112
    for cp in range(2):
        if cp == 0:
            p(f"s_waitcnt vmcnt({8 + XH})"); stamp(p, 2)
        for e in range(2):
            for jj in range(2):
                src = SR + 4 * cp + 2 * e + jj
                p(f"v_lshlrev_b32 {v(T+2*(2*jj)+e)}, 16, {v(src)}")
                p(f"v_and_b32 {v(T+2*(2*jj+1)+e)}, s32, {v(src)}")
        for j in range(11):
            p(f"v_lshlrev_b32 {v(KU+2*j)}, 16, {v(KR+2*j+cp)}")
            p(f"v_and_b32 {v(KU+2*j+1)}, s32, {v(KR+2*j+cp)}")
        for t in range(8): p(f"v_pk_mul_f32 {v(AC+2*t,2)}, {v(KU+2*t,2)}, {v(T+6,2)}")
        for j in (2, 1, 0):
            for t in range(8): p(f"v_pk_fma_f32 {v(AC+2*t,2)}, {v(KU+2*(t-j+3),2)}, {v(T+2*j,2)}, {v(AC+2*t,2)}")
        if cp == 0: p(f"s_waitcnt vmcnt({XH})")
        for j in range(8):
            p(f"v_lshlrev_b32 {v(KU+2*j)}, 16, {v(VR+2*j+cp)}")
            p(f"v_and_b32 {v(KU+2*j+1)}, s32, {v(VR+2*j+cp)}")
        for t in range(8): p(f"v_pk_mul_f32 {v(AC+2*t,2)}, {v(AC+2*t,2)}, {v(KU+2*t,2)}")
        L_ = []
        for e in range(2):
            for i in range(4): p(f"v_cvt_pk_bf16_f32 {v(OUT+4*e+i)}, {v(AC+2*(7-2*i)+e)}, {v(AC+2*(6-2*i)+e)}")
            L_ += [f"s_mov_b32 s10, {WS_XR + (2*cp+e)*XRS}", f"buffer_store_dwordx4 {v(OUT+4*e,4)}, v15, s[12:15], s10 offen"]
        st2(L_)
    p("s_cmp_lg_u32 s29, 0")
    p(f"s_cbranch_scc1 {pre}_S1END")
    for i in range(4): p(f"v_mov_b32 {v(8+i)}, 0")
    L_ = []
    for c in range(4): L_ += [f"s_mov_b32 s10, {WS_XR + c*XRS + 4096}", "buffer_store_dwordx4 v[8:11], v14, s[12:15], s10 offen"]
    st2(L_)
    p.label(f"{pre}_S1END")
    def signal_and_wait(tag, coff, work=None):
        p(f"v_mov_b32 v1, {CNT + coff}")
        p("v_mov_b32 v2, 1")
        p("v_mov_b32 v3, s35")
        p("s_waitcnt vmcnt(0)")
        p("s_mov_b64 exec, 1")
        p("ds_add_rtn_u32 v126, v1, v2")
        p("s_mov_b32 s25, 0x4000")
        p("s_waitcnt lgkmcnt(0)")
        p("v_readfirstlane_b32 s24, v126")
        p("s_cmp_lg_u32 s24, 3")
        p(f"s_cbranch_scc1 {pre}_NOSIG{tag}")
        flag_publish(p, 126, 3, "s8", SC="")
        p("s_cmp_eq_u32 s9, 1")
        p(f"s_cbranch_scc1 {pre}_NOSIG{tag}")
        p(f"buffer_store_dwordx2 v[126:127], v3, s[12:15], s34 offen{SC}")
        p.label(f"{pre}_NOSIG{tag}")
        p("s_mov_b64 exec, -1")
        if work: work()
        p("s_cmp_lg_u32 s24, 3")
        p(f"s_cbranch_scc1 {pre}_LWAIT{tag}")
        p.label(f"{pre}_POLL{tag}")
        p(f"s_sleep {opt('slp', 4)}")
        p(f"buffer_load_dwordx2 v[126:127], v123, s[12:15], s8 offen{SC}")
        p("s_sub_u32 s25, s25, 1")
        p(f"s_cbranch_scc1 {pre}_GOT{tag}")
        p("s_waitcnt vmcnt(0)")
        flag_test(p, 126)
        p("s_cmp_eq_u32 s9, 1")
        p(f"s_cbranch_scc1 {pre}_PT{tag}")
        p("s_mov_b64 s[10:11], vcc")
        p(f"buffer_load_dwordx2 v[126:127], v123, s[12:15], s34 offen{SC}")
        p("s_waitcnt vmcnt(0)")
        flag_test(p, 126)
        p("s_or_b64 vcc, vcc, s[10:11]")
        p.label(f"{pre}_PT{tag}")
        p("s_cmp_lg_u64 vcc, -1")
        p(f"s_cbranch_scc1 {pre}_POLL{tag}")
        p.label(f"{pre}_GOT{tag}")
        p("ds_write_b32 v1, v2 offset:4")
        p(f"s_branch {pre}_GO{tag}")
        p.label(f"{pre}_LWAIT{tag}")
        bail(p)
        p(f"s_sleep {opt('lwslp', 4)}")
        p("ds_read_b32 v126, v1 offset:4")
        p("s_waitcnt lgkmcnt(0)")
        p("v_cmp_ne_u32 vcc, 1, v126")
        p(f"s_cbranch_vccnz {pre}_LWAIT{tag}")
        p.label(f"{pre}_GO{tag}")
    AB, BB, KVB, ST = 8, 12, 13, 14
    FA, FBB, ACC = 16, 48, 80
    def hload():
        if not EARLYH: hdma(117, 5)
        p("v_and_b32 v5, 15, v0")
        p("v_lshrrev_b32 v6, 4, v0")
        p("v_lshrrev_b32 v3, 1, v5")
        p("v_lshlrev_b32 v4, 2, v6")
        p("v_sub_u32 v4, v4, v3")
        p("v_lshlrev_b32 v4, 2, v4")
        p("v_and_b32 v3, 1, v5")
        p("v_xor_b32 v3, 1, v3")
        p(f"v_mul_u32_u24 v3, {CV_C1}, v3")
        p(f"s_add_u32 s10, s30, {4*1023 - 32*(112+1)}")
        p(f"v_add3_u32 {v(AB)}, v4, v3, s10")
        for kk in range(1, 4): p(f"v_add_u32 {v(AB+kk)}, {1024*kk}, {v(AB)}")
        p("v_lshlrev_b32 v3, 5, v5")
        p("v_lshl_add_u32 v4, v6, 4, v3")
        p(f"s_add_u32 s10, s30, {CV_H + 512 - 32}")
        p(f"v_add_u32 {v(BB)}, s10, v4")
        p(f"v_lshl_add_u32 {v(ST)}, v6, 3, v3")
        p(f"s_add_u32 s10, s30, {4088 - 512*7}")
        p(f"v_sub_u32 {v(KVB)}, s10, {v(ST)}")
        for i in range(32): p(f"v_mov_b32 {v(ACC+i)}, 0")
        p("v_add_u32 v7, 2, v124")
    stamp(p, 3)
    signal_and_wait(1, C_A1, hload)
    stamp(p, 4)
    for (src_v, off) in ((124, 0), (7, CV_C1)):
        p(f"s_add_u32 m0, s30, {off}")
        p("s_nop 0")
        for j in range(4): p(f"buffer_load_dwordx4 {v(src_v)}, s[12:15], s31 offen offset:{1024*j}{SC} lds")
        p(f"s_add_u32 m0, s30, {off + 4096}")
        p("s_mov_b64 exec, 15")
        p(f"buffer_load_dwordx4 {v(src_v)}, s[12:15], s26 offen{SC} lds")
        p("s_mov_b64 exec, -1")
    p(f"s_add_u32 s34, s34, {FL_A2 - FL_A1}")
    p("s_add_u32 s8, s8, 128")
    p(f"s_mov_b32 s25, {1 if opt('noa') == 2 else 8}")
    p("s_waitcnt vmcnt(0)")
    if opt("qt", 1):
        srd(p, 16, 36, 37, 4 * MB)
        p("v_and_b32 v3, 3, v0")
        p("v_lshl_add_u32 v3, v3, 11, v120")
        p("buffer_load_dword v116, v3, s[16:19], 0 offen")
    if opt("wb", 0):
        p(f"s_and_b32 s10, s29, {opt('wb')}")
        p("s_cbranch_scc1 PA_NOWB")
        p("buffer_wbl2 sc1")
        p.label("PA_NOWB")
    stamp(p, 5)
    p.padn = opt("pada") * 2
    DL = opt("dl", 0)
    if DL:
        p(f"v_mov_b32 v5, {CNT}")
        p(f"s_setprio {opt('lprio', 0)}")
    p.label(f"{pre}_CVL")
    if DL: p(f"ds_read_b32 v6, v5 offset:{C_KVL}")
    def rdA(a):
        kk, rem = (7 - a) >> 1, 128 * ((7 - a) & 1)
        return [f"ds_read2_b32 {v(FA+4*a,2)}, {v(AB+kk)} offset0:{rem} offset1:{rem+1}",
                f"ds_read2_b32 {v(FA+4*a+2,2)}, {v(AB+kk)} offset0:{rem+2} offset1:{rem+3}"]
    cnt = [0]
    def cm(a, b):
        p(mf16(ACC+4*(a+b), FA+4*a, FBB+4*b, ACC+4*(a+b)))
        cnt[0] += 1
        if opt("cvnop", -1) >= 0 and cnt[0] % opt("cvev", 1) == 0: p(f"s_nop {opt('cvnop')}")
    def rdB(b): return [f"ds_read_b128 {v(FBB+4*b,4)}, {v(BB)} offset:{512*b}"]
    for x in range(8):
        for r_ in rdA(x) + rdB(x): p(r_)
    for kk in range(4): p(f"v_add_u32 {v(AB+kk)}, -64, {v(AB+kk)}")
    p(f"v_add_u32 {v(BB)}, -64, {v(BB)}")
    p("s_waitcnt lgkmcnt(12)")
    if DL:
        p(f"v_cmp_gt_i32 vcc, {DL}, v6")
        p(f"s_cbranch_vccnz {pre}_CVB")
        p("s_setprio 3")
        p.label(f"{pre}_CVB")
    for a in range(4):
        for b in range(4): cm(a, b)
    p("s_waitcnt lgkmcnt(0)")
    for a in range(8):
        for b in range(8 - a):
            if a >= 4 or b >= 4: cm(a, b)
    p("s_sub_u32 s25, s25, 1")
    p("s_cmp_lg_u32 s25, 0")
    p(f"s_cbranch_scc1 {pre}_CVL")
    stamp(p, 6)
    p("s_setprio 3")
    p.padn = opt("pada")
    for t in range(8): p(f"ds_read_b64 {v(FA+2*t,2)}, {v(KVB)} offset:{512*(7-t)}")
    p("v_lshlrev_b32 v125, 16, v125")
    p(f"s_add_u32 s33, s33, {WS_Y}")
    p(f"v_lshlrev_b32 {v(ST)}, 1, {v(ST)}")
    for t in range(8):
        p(f"s_waitcnt lgkmcnt({7-t})" if not STAMP else "s_waitcnt lgkmcnt(0)")
        U = FBB + 4 * (t & 3); a = ACC + 4 * t; o = FBB + 16 + 2 * t
        p(f"v_and_b32 {v(U)}, s32, {v(FA+2*t+1)}")
        p(f"v_lshlrev_b32 {v(U+1)}, 16, {v(FA+2*t+1)}")
        p(f"v_and_b32 {v(U+2)}, s32, {v(FA+2*t)}")
        p(f"v_lshlrev_b32 {v(U+3)}, 16, {v(FA+2*t)}")
        for r_ in range(4): p(f"v_fmac_f32 {v(a+r_)}, v125, {v(U+r_)}")
        p(f"v_cvt_pk_bf16_f32 {v(o)}, {v(a)}, {v(a+1)}")
        p(f"v_cvt_pk_bf16_f32 {v(o+1)}, {v(a+2)}, {v(a+3)}")
    st2([f"buffer_store_dwordx4 {v(FBB+16+4*tp,4)}, {v(ST)}, s[12:15], s33 offen offset:{1024*tp}" for tp in range(4)])
    QR, YR, U, OUT = 16, 32, 48, 64
    def qload():
        srd(p, 16, 36, 37, 4 * MB)
        srd(p, 20, 50, 51, 8 * MB)
        p("v_add_u32 v6, 4096, v120")
        for j in range(4): p(f"buffer_load_dwordx4 {v(QR+4*j,4)}, {('v120', 'v6')[j>>1]}, s[16:19], 0 offen offset:{2048*(j&1)}")
    signal_and_wait(2, C_A2, qload)
    stamp(p, 7)
    for c in range(8):
        p(f"s_mov_b32 s10, {WS_Y + c*4096}")
        p(f"buffer_load_dwordx2 {v(YR+2*c,2)}, v121, s[12:15], s10 offen{SC}")
    p("s_waitcnt vmcnt(0)")
    for t in range(4):
        for cp in range(4):
            u = U + 4 * (cp & 1)
            q = QR + 4 * t + cp
            p(f"v_lshlrev_b32 {v(u)}, 16, {v(q)}")
            p(f"v_and_b32 {v(u+1)}, s32, {v(q)}")
            for e in range(2):
                y = YR + 2 * (2 * cp + e) + (t >> 1)
                if t & 1: p(f"v_and_b32 {v(u+2+e)}, s32, {v(y)}")
                else: p(f"v_lshlrev_b32 {v(u+2+e)}, 16, {v(y)}")
            p(f"v_pk_mul_f32 {v(u,2)}, {v(u,2)}, {v(u+2,2)}")
            p(f"v_cvt_pk_bf16_f32 {v(OUT+4*t+cp)}, {v(u)}, {v(u+1)}")
        p(f"s_mov_b32 s10, {t*4096}")
        p(f"buffer_store_dwordx4 {v(OUT+4*t,4)}, v122, s[20:23], s10 offen{SC}")
    stamp(p, 12)
    stamp_flush(p)
    p("s_endpgm")

DOC = """;
"""

def build(path):
    p = Prog()
    emit(p)
    p.pads(0)
    if p.npads:
        p.label(f"WP{p.npads}")
        p("s_branch WP_END")
    p.label("L_CODE_END")
    hdr = open("concat_heads__ssm_conv_h3__mha_block__prompt.s.ref").read().split("\n")
    hdr = [l for l in hdr if l.startswith(";") and "@launch" not in l and "Override" not in l and "grid=ceil" not in l]
    out = "\n".join(hdr) + "\n"
    if opt("aslist", 1): out += f"; @launch kernel={NAME} grid=(256,1,1) block=(832,1,1) lds={LDS_BYTES}\n"
    else: out += f"; @launch grid=(256,1,1) block=(832,1,1) lds={LDS_BYTES}\n"
    out += DOC
    out += '.amdgcn_target "amdgcn-amd-amdhsa--gfx950"\n.text\n'
    body = p.text()
    nbad = check(body)
    out += body
    out += f""".section .rodata,"a"
.p2align 6
.amdhsa_kernel {NAME}
  .amdhsa_next_free_vgpr 128
  .amdhsa_next_free_sgpr 102
  .amdhsa_accum_offset 128
  .amdhsa_group_segment_fixed_size 0
  .amdhsa_kernarg_size 96
  .amdhsa_user_sgpr_count 2
  .amdhsa_user_sgpr_kernarg_segment_ptr 1
  .amdhsa_system_sgpr_workgroup_id_x 1
.end_amdhsa_kernel
"""
    open(path, "w").write(out)
    return nbad

if __name__ == "__main__":
    nb = build(sys.argv[1] if len(sys.argv) > 1 else "pk.s")
    print("hazards:", nb)
```
